```python
import torch

def _softmax(x, axis=-1):
    return torch.softmax(x, dim=axis)

def _gelu(x):
    return torch.nn.functional.gelu(x, approximate='tanh')

def _silu(x):
    return torch.nn.functional.silu(x)

def _sigmoid(x):
    return torch.sigmoid(x)

def _layernorm(x, axis=-1, eps=1e-05):
    m = x.mean(dim=axis, keepdim=True)
    v = x.var(dim=axis, keepdim=True, unbiased=False)
    return (x - m) / torch.sqrt(v + eps)

def _scatter_add(tgt, idx, src, axis=0):
    return tgt.clone().index_add_(axis, idx, src)

def _segment_sum(src, seg, n):
    out = torch.zeros((n,) + src.shape[1:], dtype=src.dtype)
    return out.index_add_(0, seg, src)

def _pad(x, pw):
    flat = tuple((v for pair in reversed(pw) for v in pair))
    return torch.nn.functional.pad(x, flat)
kernel_name = 'adaLN_cond__sliding_block_cached__glu_gated_glu__decode'

def setup_inputs():

    _w = lambda a: (lambda t: t.to(torch.bfloat16) if t.is_floating_point() else t)(torch.as_tensor(a))

    def _A_setup():
        B, Sq, D = (1, 1, 512)
        Hq, Hkv, Sk, Dh = (32, 8, 16384, 128)
        assert Hq % Hkv == 0, (Hq, Hkv)
        return {'x': _w((lambda *s: torch.randn(*s, dtype=torch.bfloat16) * 0.1)(B, Sq, D)), 'k_cache': _w((lambda *s: torch.randn(*s, dtype=torch.bfloat16) * 0.8)(B, Hkv, Sk, Dh)), 'v_cache': _w((lambda *s: torch.randn(*s, dtype=torch.bfloat16) * 0.8)(B, Hkv, Sk, Dh)), 'wq': _w((lambda *s: torch.randn(*s, dtype=torch.bfloat16) * 0.8)(D, Hq * Dh) * D ** (-0.5)), 'wo': _w((lambda *s: torch.randn(*s, dtype=torch.bfloat16) * 0.8)(Hq * Dh, D) * (Hq * Dh) ** (-0.5))}
    _A_in = _A_setup()

    def _B_setup():
        B, S, D, F = (1, 1, 512, 1792)
        return {'x': _w((lambda *s: torch.randn(*s, dtype=torch.bfloat16) * 0.1)(B, S, D)), 'w_gate': _w((lambda *s: torch.randn(*s, dtype=torch.bfloat16) * 0.2)(D, F)), 'w_up': _w((lambda *s: torch.randn(*s, dtype=torch.bfloat16) * 0.1)(D, F)), 'w_down': _w((lambda *s: torch.randn(*s, dtype=torch.bfloat16) * 0.1)(F, D))}
    _B_in = _B_setup()
    return {'A_x': _A_in['x'], 'A_k_cache': _A_in['k_cache'], 'A_v_cache': _A_in['v_cache'], 'A_wq': _A_in['wq'], 'A_wo': _A_in['wo'], 'B_x': _B_in['x'], 'B_w_gate': _B_in['w_gate'], 'B_w_up': _B_in['w_up'], 'B_w_down': _B_in['w_down'], 'c': _w((lambda *s: torch.randn(*s, dtype=torch.bfloat16) * 0.4)(1, 512) * 8.0), 'w_mod': _w((lambda *s: torch.randn(*s, dtype=torch.bfloat16) * 0.4)(512, 6 * 512) * 512 ** (-0.5) * 8.0)}

def reference(A_x, A_k_cache, A_v_cache, A_wq, A_wo, B_x, B_w_gate, B_w_up, B_w_down, c, w_mod):

    def _A_ref(x, k_cache, v_cache, wq, wo):
        B, Sq, D = x.shape
        Hq, Dh = (32, 128)
        Hkv, Sk = (k_cache.shape[1], k_cache.shape[2])
        W = min(4096, max(256, Sk // 4))
        rep = Hq // Hkv
        q = (lambda x, *d: x.permute(*d))((x @ wq).reshape(B, Sq, Hq, Dh), 0, 2, 1, 3)
        k = (lambda x, n, axis: torch.repeat_interleave(x, n, dim=axis))(k_cache[:, :, Sk - W:, :], rep, axis=1)
        v = (lambda x, n, axis: torch.repeat_interleave(x, n, dim=axis))(v_cache[:, :, Sk - W:, :], rep, axis=1)
        scores = torch.einsum('bhqd,bhkd->bhqk', q, k) * Dh ** (-0.5)
        p = _softmax(scores, axis=-1)
        o = torch.einsum('bhqk,bhkd->bhqd', p, v)
        return (lambda x, *d: x.permute(*d))(o, 0, 2, 1, 3).reshape(B, Sq, Hq * Dh) @ wo

    def _B_ref(x, w_gate, w_up, w_down):
        g = torch.einsum('bsd,df->bsf', x, w_gate)
        u = torch.einsum('bsd,df->bsf', x, w_up)
        h = _sigmoid(g) * u
        return torch.einsum('bsf,fd->bsd', h, w_down)
    x = A_x
    mod = (_silu(c) @ w_mod).reshape(c.shape[0], 6, 1, -1)
    sa, ca, ga, sb, cb, gb = (mod[:, 0].clone(), mod[:, 1].clone(), mod[:, 2].clone(), mod[:, 3].clone(), mod[:, 4].clone(), mod[:, 5].clone())
    h = _layernorm(x, axis=-1) * (1 + ca) + sa
    x = x + ga * _A_ref(h, A_k_cache, A_v_cache, A_wq, A_wo)
    h = _layernorm(x, axis=-1) * (1 + cb) + sb
    x = x + gb * _B_ref(h, B_w_gate, B_w_up, B_w_down)
    return x
```

```python
import re

TRANS = ('v_exp_f32', 'v_log_f32', 'v_rcp_f32', 'v_rsq_f32', 'v_sqrt_f32', 'v_sin_f32', 'v_cos_f32')

def regs_of(tok):
    tok = tok.strip()
    neg = tok.startswith('-')
    if neg: tok = tok[1:]
    m = re.fullmatch(r'abs\((.*)\)', tok) or re.fullmatch(r'\|(.*)\|', tok)
    if m: tok = m.group(1)
    m = re.fullmatch(r'([vsa])\[(\d+):(\d+)\]', tok)
    if m: return [f'{m.group(1)}{i}' for i in range(int(m.group(2)), int(m.group(3)) + 1)]
    if re.fullmatch(r'[vsa]\d+', tok): return [tok]
    if tok == 'vcc': return ['vcc_lo', 'vcc_hi']
    if tok == 'exec': return ['exec_lo', 'exec_hi']
    if tok in ('vcc_lo', 'vcc_hi', 'exec_lo', 'exec_hi', 'm0'): return [tok]
    return []

class Ins:
    def __init__(self, text):
        self.text = text
        t = text.split(';')[0].strip()
        self.label = None
        self.mn = ''
        self.ops = []
        self.rd = set(); self.wr = set()
        self.kind = 'other'
        if t.endswith(':'):
            self.label = t[:-1]; self.kind = 'label'; return
        if not t or t.startswith('.'):
            self.kind = 'directive'; return
        parts = t.split(None, 1)
        self.mn = mn = parts[0]
        rest = parts[1] if len(parts) > 1 else ''
        ops = []; depth = 0; cur = ''
        for ch in rest:
            if ch in '[(': depth += 1
            if ch in '])': depth -= 1
            if ch == ',' and depth == 0: ops.append(cur.strip()); cur = ''
            else: cur += ch
        if cur.strip(): ops.append(cur.strip())
        self.mods = ''
        if ops:
            last = ops[-1].split(None, 1)
            ops[-1] = last[0]
            self.mods = last[1] if len(last) > 1 else ''
        self.ops = ops
        R = [regs_of(o) for o in ops]
        self.dpp = bool(re.search(r'quad_perm|row_shl|row_shr|row_ror|row_mirror|row_half_mirror|row_bcast|row_newbcast|wave_', self.mods))
        self.wait = 1
        if mn == 's_nop':
            self.kind = 'nop'; self.wait = int(ops[0], 0) + 1; return
        if mn.startswith('s_cbranch') or mn == 's_branch':
            self.kind = 'branch'; self.target = ops[0]; return
        if mn.startswith('v_mfma'):
            self.kind = 'mfma'
            self.wr = set(R[0]); self.A = set(R[1]); self.B = set(R[2]); self.C = set(R[3]); self.rd = self.A | self.B | self.C
            self.D = R[0]
            return
        if mn.startswith('v_'):
            self.kind = 'valu'
            base = re.sub(r'_(e32|e64|dpp|sdwa)$', '', mn)
            self.base = base
            self.trans = base in TRANS
            self.dot = base.startswith('v_dot')
            self.permlane = base.startswith('v_permlane')
            self.readlane = base in ('v_readlane_b32', 'v_readfirstlane_b32')
            self.wr = set(R[0])
            for r in R[1:]: self.rd |= set(r)
            if self.permlane: self.wr |= set(R[1]); self.rd |= set(R[0])
            if base in ('v_fmac_f32', 'v_dot2c_f32_bf16', 'v_writelane_b32', 'v_pk_fmac_f16') or self.dpp: self.rd |= set(R[0])
            return
        if mn.startswith('global_') or mn.startswith('buffer_'):
            self.kind = 'vmem'
            self.lds = ('_lds_' in mn) or (' lds' in ' ' + self.mods)
            self.store = '_store' in mn
            self.data = set()
            if self.lds:
                for r in R: self.rd |= set(r)
                self.rd.add('m0')
            elif mn.startswith('global_load'):
                self.wr = set(R[0])
                for r in R[1:]: self.rd |= set(r)
            elif mn.startswith('global_atomic') and len(R) == 4:
                self.wr = set(R[0])
                for r in R[1:]: self.rd |= set(r)
            elif mn.startswith('global_store') or mn.startswith('global_atomic'):
                for r in R: self.rd |= set(r)
                self.data = set(R[1])
            elif mn.startswith('buffer_load'):
                self.wr = set(R[0])
                for r in R[1:]: self.rd |= set(r)
            else:
                for r in R: self.rd |= set(r)
                self.data = set(R[0]) if R else set()
            self.wide = bool(re.search(r'x[34]$', mn)) and self.store
            return
        if mn.startswith('ds_'):
            self.kind = 'ds'
            if mn.startswith('ds_read') or 'permute' in mn or 'swizzle' in mn or '_rtn' in mn:
                self.wr = set(R[0])
                for r in R[1:]: self.rd |= set(r)
            else:
                for r in R: self.rd |= set(r)
            return
        if mn.startswith('s_'):
            self.kind = 'salu'
            if mn.startswith('s_cmp') or mn.startswith('s_bitcmp') or mn in ('s_waitcnt', 's_barrier', 's_sleep', 's_endpgm', 's_setprio'):
                for r in R: self.rd |= set(r)
            else:
                if R: self.wr = set(R[0])
                for r in R[1:]: self.rd |= set(r)
                if 'saveexec' in mn: self.wr |= {'exec_lo', 'exec_hi'}
            return

def is_s(r): return r[0] == 's' or r.startswith('vcc')
def is_v(r): return r[0] in 'va' and not r.startswith('vcc')

def need(P, C):
    n = 0
    if P.kind == 'valu':
        sw = {r for r in P.wr if is_s(r)}
        vw = {r for r in P.wr if is_v(r)}
        if sw:
            if C.kind == 'vmem' and sw & C.rd: n = max(n, 5)
            if C.kind == 'valu' and sw & C.rd: n = max(n, 4 if C.readlane or C.base == 'v_writelane_b32' else 2)
            if C.kind == 'mfma' and sw & C.rd: n = max(n, 2)
        if vw:
            if C.kind == 'valu':
                if C.dpp and vw & C.rd: n = max(n, 2)
                if C.permlane and vw & C.rd: n = max(n, 2)
                if C.readlane and vw & C.rd: n = max(n, 1)
                if P.trans and vw & C.rd and not C.trans: n = max(n, 1)
                if P.trans and vw & C.rd and C.trans: n = max(n, 1)
                if P.dot and vw & (C.rd | C.wr):
                    if C.base == P.base and len(C.ops) >= 4 and set(regs_of(C.ops[3])) == vw and not (vw & (set(regs_of(C.ops[1])) | set(regs_of(C.ops[2])))):
                        pass
                    else: n = max(n, 3)
            if C.kind == 'mfma' and vw & C.rd: n = max(n, 3 if P.dot else 2)
            if P.dot and C.kind in ('vmem', 'ds') and vw & C.rd: n = max(n, 3)
            if P.trans and C.kind in ('vmem', 'ds') and vw & C.rd: n = max(n, 1)
    if P.kind == 'salu' and 'm0' in P.wr and C.kind == 'vmem' and C.lds: n = max(n, 1)
    if P.kind == 'vmem' and getattr(P, 'wide', False):
        if P.data & C.wr: n = max(n, 2)
    if P.kind == 'mfma':
        D = P.wr
        big = '32x32' in P.mn
        d_ab, d_ov, d_war = (12, 10, 7) if big else (8, 6, 3)
        if C.kind == 'mfma':
            if D & (C.A | C.B): n = max(n, d_ab)
            if D & C.C:
                if C.C == D and C.mn == P.mn: n = max(n, 2 if 'x16_bf16' in P.mn and '16x16' in P.mn else 0)
                else: n = max(n, d_ov)
            elif D & C.wr: n = max(n, d_ov)
        elif C.kind in ('valu', 'vmem', 'ds'):
            if D & (C.rd | C.wr): n = max(n, d_ab)
            if C.kind == 'valu' and P.C & C.wr: n = max(n, d_war)
    return n

WINDOW = 14

def pad_hazards(lines):
    ins = [Ins(l) for l in lines]
    def real(i): return i.kind not in ('label', 'directive')
    changed = True
    rounds = 0
    while changed:
        changed = False; rounds += 1
        assert rounds < 200
        labels = {x.label: k for k, x in enumerate(ins) if x.kind == 'label'}
        k = 0
        while k < len(ins):
            C = ins[k]
            if real(C) and C.kind != 'nop':
                dist = 0; j = k - 1; lack = 0
                while j >= 0 and dist < WINDOW:
                    P = ins[j]
                    if real(P):
                        if P.kind == 'branch' and P.mn == 's_branch' or P.mn == 's_endpgm': break
                        nd = need(P, C)
                        if nd > dist: lack = max(lack, nd - dist)
                        dist += P.wait
                    j -= 1
                if lack:
                    ins.insert(k, Ins(f'    s_nop {lack-1}')); changed = True; k += 1
            k += 1
        if changed: continue
        for k, B in enumerate(ins):
            if B.kind != 'branch': continue
            tgt = labels[B.target]
            pre = []; j = k; dist = 0
            while j >= 0 and dist < WINDOW:
                if real(ins[j]):
                    if j != k and (ins[j].kind == 'branch' and ins[j].mn == 's_branch'): break
                    pre.append(ins[j]); dist += ins[j].wait
                j -= 1
            d0 = 0; j = tgt
            while j < len(ins) and d0 < WINDOW:
                C = ins[j]
                if real(C):
                    dist = d0; lack = 0
                    for P in pre:
                        nd = need(P, C)
                        if nd > dist: lack = max(lack, nd - dist)
                        dist += P.wait
                    if lack:
                        ins.insert(j, Ins(f'    s_nop {lack-1}')); changed = True; break
                    d0 += C.wait
                    if C.kind == 'branch' and C.mn == 's_branch' or C.mn == 's_endpgm': break
                j += 1
            if changed: break
    return [x.text for x in ins]

class Alloc:
    def __init__(self, prefix, start, limit):
        self.p = prefix; self.n = start; self.limit = limit; self.hi = start
    def __call__(self, n=1, align=None):
        if align is None: align = 1 if n == 1 else (2 if n == 2 else 4 if self.p == 's' or True else 2)
        self.n = (self.n + align - 1) // align * align
        r = Reg(self.p, self.n, n); self.n += n
        assert self.n <= self.limit, 'out of registers'
        self.hi = max(self.hi, self.n)
        return r
    def mark(self): return self.n
    def release(self, m): self.n = m

class Reg:
    def __init__(self, p, i, n): self.p = p; self.i = i; self.n = n
    def __str__(self): return f'{self.p}{self.i}' if self.n == 1 else f'{self.p}[{self.i}:{self.i+self.n-1}]'
    def __getitem__(self, k):
        if isinstance(k, slice):
            a = k.start or 0; b = k.stop if k.stop is not None else self.n
            assert 0 <= a < b <= self.n
            return Reg(self.p, self.i + a, b - a)
        assert 0 <= k < self.n
        return Reg(self.p, self.i + k, 1)
    __format__ = lambda self, spec: str(self)
```

```python
import sys, json
from kasm import pad_hazards, Alloc, Reg

KN = 'adaLN_cond__sliding_block_cached__glu_gated_glu__decode'
CFG = dict(W=20, stamps=0, order='MR,WO,|,GU,DN', limit=200000, pf=1, gateq=0, ntM=1, dbgfail=1)
for a in sys.argv[2:]:
    k, v = a.split('=')
    CFG[k] = int(v) if v.lstrip('-').isdigit() else v
OUT = sys.argv[1]

EP = 0; S_M = 0x1000; S_MR = 0x10000; G2 = 0x20000; G3 = 0x28000
LB0 = 0x40000; LBS = 0x28000
H_ = 0; MV = 0x800; X2 = 0x1800; MLG = 0x2000; PX = 0x2800; Q_ = 0x4000; A_ = 0x8000; B1 = 0x18000
STAMPS = 0x200000
WQ = 0; KK = 0x4000; VV = 0xC000; WO = 0x14000; MR = 0x18000; GU = 0x1A000; DN = 0x1E000
QL = 0x20000; PL = 0x20400; HL = 0x20800; MLL = 0x20C00; FLG = 0x20D00
F_LP = FLG; F_PW = FLG + 4; F_PURE = FLG + 8; F_QF = FLG + 16; F_PF = FLG + 32
LDS_BYTES = 0x20E00
sWAVE, sG, sT, sE, sT10, sT16, sT10b = 's3', 's4', 's5', 's6', 's7', 's8', 's9'
sPUR, sEXP, sCNT, sTMP = 's[10:11]', 's[12:13]', 's14', 's15'
pX, pK, pV, pWQ, pWO, pBX, pWG, pWU, pWD, pC, pWM, pOUT, pDBG, pWS = [f's[{16+2*i}:{17+2*i}]' for i in range(14)]
pLB = 's[44:45]'; sPURE = 's46'; sMASK = 's47'; sSEL = 's48'; sHI = 's49'; sL2E = 's50'
def lo(p): return 's' + p[2:-1].split(':')[0]
def hi(p): return 's' + p[2:-1].split(':')[1]

L = []
def A(x): L.append('    ' + x)
def LAB(x): L.append(x + ':')
uid = [0]
def nl(p='L'):
    uid[0] += 1; return f'{p}_{uid[0]}'
slow_paths = []

def stamp(i):
    if CFG['stamps']: A(f's_memrealtime s[{64+2*i}:{65+2*i}]')
def set_exec(mask):
    if mask == -1: A('s_mov_b64 exec, -1'); return
    l, h = mask & 0xffffffff, mask >> 32
    if h == 0 and l <= 64: A(f's_mov_b64 exec, {l}'); return
    A(f's_mov_b32 exec_lo, {l:#x}'); A(f's_mov_b32 exec_hi, {h:#x}')
M_N0 = 0x0001000100010001; M_N4 = 0x000F000F000F000F; M_N8 = 0x00FF00FF00FF00FF; M_N2 = 0x0003000300030003; M_Q0 = 0x1111111111111111

def rnd(d, s):
    A(f'v_cvt_pk_bf16_f32 {d}, {s}, {s}'); A(f'v_and_b32 {d}, {sHI}, {d}')
def dpp(op, d, a, b, ctl, bank=0xf):
    A(f'{op}_dpp {d}, {a}, {b} {ctl} row_mask:0xf bank_mask:{bank:#x}')
def row_allred(op, regs):
    for sh in (8, 4, 2, 1):
        for r in regs: dpp(op, r, r, r, f'row_ror:{sh}')
def xrow_allred(op, v, t):
    A(f'v_mov_b32 {t}, {v}'); A(f'v_permlane16_swap_b32 {v}, {t}'); A(f'{op} {v}, {v}, {t}')
    A(f'v_mov_b32 {t}, {v}'); A(f'v_permlane32_swap_b32 {v}, {t}'); A(f'{op} {v}, {v}, {t}')
def fail_branch(code, loop):
    A(f's_sub_u32 {sCNT}, {sCNT}, 1'); A(f's_cbranch_scc0 {loop}')
    if CFG['dbgfail']: A(f's_mov_b32 {sTMP}, {code}')
    A('s_branch L_fail')
def poll(code, loads, raw, out, tag, maskbits, chk, full=()):
    lp, ok = nl('P'), nl('OK')
    A(f's_mov_b32 {sCNT}, {CFG["limit"]}')
    LAB(lp)
    for x in loads: A(x)
    A('s_waitcnt vmcnt(0)')
    for r, o in zip(raw, out): A(f'v_xor_b32 {o}, {tag}, {r}')
    o = list(out)
    if len(o) == 2: A(f'v_or_b32 {chk}, {o[0]}, {o[1]}'); o = []
    else:
        A(f'v_or3_b32 {chk}, {o[0]}, {o[1]}, {o[2]}'); o = o[3:]
    while len(o) >= 2: A(f'v_or3_b32 {chk}, {chk}, {o[0]}, {o[1]}'); o = o[2:]
    if o: A(f'v_or_b32 {chk}, {chk}, {o[0]}')
    A(f'v_and_b32 {chk}, {maskbits:#x}, {chk}')
    for r in full: A(f'v_xor_b32 {r}, {sE}, {r}'); A(f'v_or_b32 {chk}, {chk}, {r}')
    A(f'v_cmp_ne_u32 vcc, 0, {chk}')
    A(f's_cbranch_vccz {ok}')
    fail_branch(code, lp)
    LAB(ok)
def lds_wait(code, vaddr, off, val, tmp, sleep=0):
    lp, ok = nl('W'), nl('OK')
    A(f's_mov_b32 {sCNT}, {CFG["limit"]}')
    LAB(lp)
    A(f'ds_read_b32 {tmp}, {vaddr} offset:{off}')
    A('s_waitcnt lgkmcnt(0)')
    A(f'v_readfirstlane_b32 {sTMP}, {tmp}')
    A(f's_cmp_ge_u32 {sTMP}, {val}')
    A(f's_cbranch_scc1 {ok}')
    if sleep: A(f's_sleep {sleep}')
    fail_branch(code, lp)
    LAB(ok)
def lds_wait4(code, vaddr, off, fl, reads):
    lp, ok = nl('W'), nl('OK')
    A(f's_mov_b32 {sCNT}, {CFG["limit"]}')
    LAB(lp)
    A(f'ds_read_b128 {fl}, {vaddr} offset:{off}')
    for x in reads: A(x)
    A('s_waitcnt lgkmcnt(0)')
    A(f'v_and_b32 {fl[0]}, {fl[0]}, {fl[1]}'); A(f'v_and_b32 {fl[2]}, {fl[2]}, {fl[3]}'); A(f'v_and_b32 {fl[0]}, {fl[0]}, {fl[2]}')
    A(f'v_cmp_eq_u32 vcc, 0, {fl[0]}')
    A(f's_cbranch_vccz {ok}')
    fail_branch(code, lp)
    LAB(ok)
def pure_read():
    return f'ds_read_b32 {vPU}, {vZ} offset:{F_PURE - FLG}'
def pure_update():
    A(f'v_readfirstlane_b32 {sPURE}, {vPU}')
def lstore(instrs):
    sl, bk = nl('SL'), nl('BK')
    A(f's_cmp_eq_u32 {sPURE}, 1'); A(f's_cbranch_scc0 {sl}')
    for x in instrs: A(x)
    LAB(bk)
    slow_paths.append((sl, [x + ' sc1' for x in instrs], bk))
def tagf(d, s, vtag): A(f'v_and_or_b32 {d}, {s}, {sMASK}, {vtag}')
def epoch_consts():
    A(f's_add_u32 {sE}, {sE}, 1')
    A(f's_and_b32 {sT10}, {sE}, 0x3f'); A(f's_and_b32 {sT16}, {sE}, 0xffff'); A(f's_xor_b32 {sT10b}, {sT10}, 0x20')
def common_consts():
    A(f's_mov_b32 {sMASK}, 0xffffffc0'); A(f's_mov_b32 {sSEL}, 0x07060302'); A(f's_mov_b32 {sHI}, 0xffff0000'); A(f's_mov_b32 {sL2E}, 0x3fb8aa3b')
    A(f's_mov_b32 {sPURE}, 0')
def lb_ptr():
    A(f's_mul_i32 s53, {sG}, {LBS}'); A(f's_add_u32 s53, s53, {LB0}')
    A(f's_add_u32 {lo(pLB)}, {lo(pWS)}, s53'); A(f's_addc_u32 {hi(pLB)}, {hi(pWS)}, 0')
def silu_bf(d, c, t1):
    A(f'v_mul_f32 {t1}, {sL2E}, {c}'); A(f'v_exp_f32 {t1}, -{t1}'); A(f'v_add_f32 {t1}, 1.0, {t1}'); A(f'v_rcp_f32 {t1}, {t1}'); A(f'v_mul_f32 {d}, {c}, {t1}')
def end_wave():
    if CFG['stamps']: A('s_branch L_stamps')
    else: A('s_endpgm')

order = CFG['order'].split(',')
MK = dict(WQ=1, K0=2, V0=6)
n = 10
for o in order:
    if o != '|': MK[o] = n; n += 1

LAB('L_start')
stamp(0)
A('s_cmp_ge_u32 s2, 256'); A('s_cbranch_scc1 L_exit')
A('s_load_dwordx16 s[16:31], s[0:1], 0'); A('s_load_dwordx8 s[32:39], s[0:1], 64'); A('s_load_dwordx4 s[40:43], s[0:1], 96')
A('v_lshrrev_b32 v1, 6, v0'); A('v_and_b32 v0, 63, v0'); A(f'v_readfirstlane_b32 {sWAVE}, v1')
A(f's_and_b32 {sG}, s2, 7'); A(f's_lshr_b32 {sT}, s2, 3')
A(f's_cmp_eq_u32 {sWAVE}, 5'); A('s_cbranch_scc1 L_aux')
A(f's_cmp_eq_u32 {sWAVE}, 4'); A('s_cbranch_scc1 L_loader')
vL = 'v0'

V = Alloc('v', 1, 200)
vN, vQ, vR, vC, vT0, vT1, vT2, vT3, vCH, vZ = [V() for _ in range(10)]
vTg, vTgb, vPU = V(), V(), V()
A(f's_and_b32 s54, {sT}, 7')
A(f's_lshr_b32 s55, {sT}, 3')
A(f's_cmp_eq_u32 {sWAVE}, 0'); A('s_cbranch_scc0 L_c_not0')
m0 = V.mark()
vW = V(16); vC0, vC1, vRow, vRow2 = V(), V(), V(), V()
A(f'v_mul_u32_u24 {vRow}, 6144, {vL}'); A(f'v_add_u32 {vRow2}, {64*6144}, {vRow}'); A(f'v_lshlrev_b32 {vT0}, 1, {vL}')
A(f's_mul_i32 s56, s55, {128*6144}'); A(f's_lshl_b32 s57, {sG}, 7'); A('s_add_u32 s56, s56, s57'); A('s_lshl_b32 s57, s54, 4'); A('s_add_u32 s56, s56, s57')
A('s_lshl_b32 s57, s55, 8'); A(f'v_add_u32 {vT0}, s57, {vT0}')
A('s_waitcnt lgkmcnt(0)')
A(f's_add_u32 s58, {lo(pWM)}, s56'); A(f's_addc_u32 s59, {hi(pWM)}, 0')
nt = ' nt' if CFG['ntM'] else ''
A(f'global_load_ushort {vC0}, {vT0}, {pC}'); A(f'global_load_ushort {vC1}, {vT0}, {pC} offset:128')
A(f'global_load_dwordx4 {vW[0:4]}, {vRow}, s[58:59]{nt}'); A(f'global_load_dwordx4 {vW[4:8]}, {vRow}, s[58:59] offset:1024{nt}')
A(f'global_load_dwordx4 {vW[8:12]}, {vRow2}, s[58:59]{nt}'); A(f'global_load_dwordx4 {vW[12:16]}, {vRow2}, s[58:59] offset:1024{nt}')
A(f's_load_dword {sE}, {pWS}, {EP}')
common_consts(); lb_ptr()
A('s_barrier')
stamp(1)
vSa, vSb, vSc, vSd = V(), V(), V(), V()
vAc = V(16)
vPub = V()
A(f'v_lshrrev_b32 {vPub}, 5, {vL}')
for sh, w in ((4, 1), (3, 2), (2, 3)):
    A(f'v_bfe_u32 {vT1}, {vL}, {sh}, 1'); A(f'v_lshl_add_u32 {vPub}, {vT1}, {w}, {vPub}')
A(f's_lshl_b32 s56, s2, 7'); A(f's_add_u32 s56, s56, {S_M}'); A(f'v_lshl_add_u32 {vPub}, {vPub}, 2, s56')
A('s_waitcnt vmcnt(4)')
for c, slo, shi in ((vC0, vSa, vSb), (vC1, vSc, vSd)):
    A(f'v_lshlrev_b32 {c}, 16, {c}'); silu_bf(c, c, vT1)
    A(f'v_cvt_pk_bf16_f32 {c}, {c}, {c}'); A(f'v_and_b32 {shi}, {sHI}, {c}'); A(f'v_lshrrev_b32 {slo}, 16, {c}')
A('s_waitcnt lgkmcnt(0)'); epoch_consts(); A(f'v_mov_b32 {vTg}, {sT10}')
for b in range(2):
    for a in range(2):
        A(f's_waitcnt vmcnt({3 - (2*b + a)})')
        slo, shi = ((vSa, vSb), (vSc, vSd))[b]
        for j in range(4):
            w = vW[8*b + 4*a + j]
            for k, s in ((0, slo), (1, shi)):
                d = vAc[8*a + 2*j + k]
                A(f'v_dot2_f32_bf16 {d}, {w}, {s}, {0 if b == 0 else d}')
stamp(2)
for i in range(8): A(f'v_permlane32_swap_b32 {vAc[2*i]}, {vAc[2*i+1]}')
for i in range(8): A(f'v_add_f32 {vAc[2*i]}, {vAc[2*i]}, {vAc[2*i+1]}')
for i in range(4): A(f'v_permlane16_swap_b32 {vAc[4*i]}, {vAc[4*i+2]}')
for i in range(4): A(f'v_add_f32 {vAc[4*i]}, {vAc[4*i]}, {vAc[4*i+2]}')
dpp('v_add_f32', vAc[1], vAc[0], vAc[0], 'row_ror:8', 0x3); dpp('v_add_f32', vAc[2], vAc[8], vAc[8], 'row_ror:8', 0x3)
dpp('v_add_f32', vAc[1], vAc[4], vAc[4], 'row_ror:8', 0xc); dpp('v_add_f32', vAc[2], vAc[12], vAc[12], 'row_ror:8', 0xc)
dpp('v_add_f32', vAc[3], vAc[1], vAc[1], 'row_half_mirror', 0x5); dpp('v_add_f32', vAc[3], vAc[2], vAc[2], 'row_half_mirror', 0xa)
dpp('v_add_f32', vAc[3], vAc[3], vAc[3], 'quad_perm:[1,0,3,2]'); dpp('v_add_f32', vAc[3], vAc[3], vAc[3], 'quad_perm:[2,3,0,1]')
tagf(vAc[3], vAc[3], vTg)
set_exec(M_Q0)
A(f'global_store_dword {vPub}, {vAc[3]}, {pWS} sc1')
set_exec(-1)
stamp(3)
A('s_branch L_c_common')
V.release(m0)

LAB('L_c_not0')
A(f's_cmp_eq_u32 {sWAVE}, 1'); A('s_cbranch_scc0 L_c_23')
m0 = V.mark()
vX = V(4); vXd, vMean, vVar, vAd, vHs = V(), V(), V(), V(), V(); vU = V(8); vRw = V(2); vSa, vCa = V(), V()
A(f'v_lshlrev_b32 {vT0}, 4, {vL}')
A(f'v_and_b32 {vT1}, 15, {vL}'); A(f's_lshl_b32 s56, {sT}, 4'); A(f'v_add_u32 {vT1}, s56, {vT1}')
A(f'v_lshlrev_b32 {vHs}, 2, {vT1}'); A(f'v_lshlrev_b32 {vT1}, 1, {vT1}')
A('s_waitcnt lgkmcnt(0)')
A(f'global_load_dwordx4 {vX}, {vT0}, {pX}'); A(f'global_load_ushort {vXd}, {vT1}, {pX}')
A(f's_load_dword {sE}, {pWS}, {EP}')
common_consts(); lb_ptr()
A('s_barrier')
A(f'v_bfe_u32 {vT0}, {vL}, 3, 1'); A(f'v_lshrrev_b32 {vT1}, 4, {vL}'); A(f'v_lshl_add_u32 {vT0}, {vT1}, 3, {vT0}')
A(f's_and_b32 s56, {sT}, 3'); A('s_lshl_b32 s56, s56, 4'); A(f's_lshr_b32 s57, {sT}, 2'); A('s_add_u32 s56, s56, s57'); A('s_lshl_b32 s56, s56, 7'); A(f's_add_u32 s56, s56, {S_M}')
A(f'v_lshlrev_b32 {vT0}, 10, {vT0}'); A(f'v_and_b32 {vT1}, 7, {vL}'); A(f'v_lshlrev_b32 {vT1}, 2, {vT1}'); A(f'v_add3_u32 {vAd}, {vT0}, {vT1}, s56')
A('s_waitcnt vmcnt(0)')
for j in range(4):
    A(f'v_lshlrev_b32 {vU[2*j]}, 16, {vX[j]}'); A(f'v_and_b32 {vU[2*j+1]}, {sHI}, {vX[j]}')
A(f'v_add_f32 {vMean}, {vU[0]}, {vU[1]}')
for j in range(2, 8): A(f'v_add_f32 {vMean}, {vMean}, {vU[j]}')
row_allred('v_add_f32', [vMean]); xrow_allred('v_add_f32', vMean, vT0)
A(f'v_mul_f32 {vMean}, 0x3b000000, {vMean}')
for j in range(8): A(f'v_sub_f32 {vU[j]}, {vU[j]}, {vMean}')
A(f'v_mul_f32 {vVar}, {vU[0]}, {vU[0]}')
for j in range(1, 8): A(f'v_fmac_f32 {vVar}, {vU[j]}, {vU[j]}')
row_allred('v_add_f32', [vVar]); xrow_allred('v_add_f32', vVar, vT0)
A(f'v_mul_f32 {vVar}, 0x3b000000, {vVar}')
rnd(vMean, vMean); rnd(vVar, vVar)
A(f'v_add_f32 {vVar}, 0x3727c5ac, {vVar}'); rnd(vVar, vVar)
A(f'v_sqrt_f32 {vVar}, {vVar}'); rnd(vVar, vVar)
A(f'v_lshlrev_b32 {vXd}, 16, {vXd}'); A(f'v_sub_f32 {vXd}, {vXd}, {vMean}'); rnd(vXd, vXd)
A(f'v_rcp_f32 {vT0}, {vVar}'); A(f'v_mul_f32 {vT1}, {vXd}, {vT0}'); A(f'v_fma_f32 {vT2}, -{vT1}, {vVar}, {vXd}'); A(f'v_fma_f32 {vXd}, {vT2}, {vT0}, {vT1}')
rnd(vXd, vXd)
A('s_waitcnt lgkmcnt(0)'); epoch_consts()
A(f'v_mov_b32 {vZ}, {FLG}')
stamp(2)
poll(1, [f'global_load_dword {vRw[0]}, {vAd}, {pWS} sc1', f'global_load_dword {vRw[1]}, {vAd}, {pWS} offset:32 sc1', pure_read()], [vRw[0], vRw[1]], [vSa, vCa], sT10, 0x3f, vCH)
stamp(3)
A(f'v_permlane32_swap_b32 {vSa}, {vCa}'); A(f'v_add_f32 {vSa}, {vSa}, {vCa}')
A(f'v_mov_b32 {vCa}, {vSa}'); A(f'v_permlane16_swap_b32 {vSa}, {vCa}'); A(f'v_add_f32 {vSa}, {vSa}, {vCa}')
rnd(vSa, vSa)
A(f'v_mov_b32 {vCa}, {vSa}'); A(f'v_permlane32_swap_b32 {vSa}, {vCa}')
A(f'v_add_f32 {vCa}, 1.0, {vCa}'); rnd(vCa, vCa)
A(f'v_mul_f32 {vCa}, {vXd}, {vCa}'); rnd(vCa, vCa)
A(f'v_add_f32 {vCa}, {vCa}, {vSa}'); rnd(vCa, vCa)
A(f'v_or_b32 {vCa}, {sT16}, {vCa}')
A('s_waitcnt lgkmcnt(0)'); pure_update()
set_exec(0xffff)
lstore([f'global_store_dword {vHs}, {vCa}, {pLB} offset:{H_}'])
set_exec(-1)
A('s_branch L_c_common')
V.release(m0)

LAB('L_c_23')
A('s_waitcnt lgkmcnt(0)')
A(f's_load_dword {sE}, {pWS}, {EP}')
common_consts(); lb_ptr()
A('s_barrier')
A('s_waitcnt lgkmcnt(0)'); epoch_consts()

LAB('L_c_common')
A(f'v_mov_b32 {vTg}, {sT10}'); A(f'v_mov_b32 {vTgb}, {sT10b}'); A(f'v_mov_b32 {vZ}, {FLG}')
A(f'v_and_b32 {vN}, 15, {vL}'); A(f'v_lshrrev_b32 {vQ}, 4, {vL}'); A(f'v_bfe_u32 {vR}, {vL}, 2, 2'); A(f'v_and_b32 {vC}, 3, {vL}')
v8qr = V()
A(f'v_lshl_add_u32 {v8qr}, {vQ}, 3, {vR}')
mQ = V.mark()
vWq = V(16); vHB = V(16); vAq = V(4); vH = V(2); vHx = V(2); vA1, vA2, vA3, vA4 = V(), V(), V(), V()
A(f's_lshl_b32 s56, {sWAVE}, 5'); A(f'v_lshlrev_b32 {vA1}, 7, {v8qr}'); A(f'v_lshl_add_u32 {vA1}, {vC}, 3, {vA1}'); A(f'v_add_u32 {vA1}, s56, {vA1}')
A('s_lshl_b32 s56, s55, 9'); A(f'v_lshl_add_u32 {vA2}, {vL}, 3, s56')
A(f's_lshl_b32 s56, {sWAVE}, 8'); A(f's_add_u32 s56, s56, {HL}'); A(f'v_lshl_add_u32 {vA3}, {vL}, 2, s56'); A(f'v_lshl_add_u32 {vA4}, {vQ}, 4, s56')
vQst = V()
A('s_lshl_b32 s56, s55, 11'); A('s_lshl_b32 s57, s54, 8'); A('s_add_u32 s56, s56, s57'); A(f's_lshl_b32 s57, {sWAVE}, 6'); A('s_add_u32 s56, s56, s57'); A(f's_add_u32 s56, s56, {Q_}')
A(f'v_lshl_add_u32 {vQst}, {vQ}, 4, s56')
lds_wait(2, vZ, F_PW - FLG, 1, vT0)
lds_wait(3, vZ, F_LP - FLG, MK['WQ'], vT0)
for ks in range(4):
    A(f'ds_read_b64_tr_b16 {vWq[4*ks:4*ks+2]}, {vA1} offset:{WQ + ks*4096}'); A(f'ds_read_b64_tr_b16 {vWq[4*ks+2:4*ks+4]}, {vA1} offset:{WQ + ks*4096 + 512}')
A('s_waitcnt lgkmcnt(0)')
stamp(4)
poll(4, [f'global_load_dwordx2 {vH}, {vA2}, {pLB} offset:{H_} sc1', pure_read()], [vH[0], vH[1]], [vHx[0], vHx[1]], sT16, 0xffff, vCH)
stamp(5)
A(f'v_perm_b32 {vT0}, {vHx[1]}, {vHx[0]}, {sSEL}')
A(f'ds_write_b32 {vA3}, {vT0}')
for ks in range(4): A(f'ds_read_b128 {vHB[4*ks:4*ks+4]}, {vA4} offset:{64*ks}')
A('s_waitcnt lgkmcnt(0)'); pure_update()
for ks in range(4): A(f'v_mfma_f32_16x16x32_bf16 {vAq}, {vWq[4*ks:4*ks+4]}, {vHB[4*ks:4*ks+4]}, {0 if ks == 0 else vAq}')
for r in range(4): tagf(vAq[r], vAq[r], vTg)
set_exec(M_N0)
lstore([f'global_store_dwordx4 {vQst}, {vAq}, {pLB}'])
set_exec(-1)
stamp(6)
V.release(mQ)
mA = V.mark()
vK = V(32); vQB = V(16); vS = V(8); vFl = V(4); vQr = V(8); vQx = V(8)
vA1, vA2, vA3, vA4 = V(), V(), V(), V(); vKa = V(4, 1)
A(f'v_xor_b32 {vT0}, {vQ}, {vN}'); A(f'v_lshlrev_b32 {vT0}, 4, {vT0}'); A(f'v_lshl_add_u32 {vT0}, {vN}, 8, {vT0}')
A(f's_lshl_b32 s56, {sWAVE}, 13'); A(f's_add_u32 s56, s56, {KK}'); A(f'v_add_u32 {vKa[0]}, s56, {vT0}')
for ks in range(1, 4): A(f'v_xor_b32 {vKa[ks]}, {64*ks}, {vKa[0]}')
A(f'v_lshrrev_b32 {vT0}, 5, {vL}'); A(f'v_and_b32 {vT1}, 31, {vL}'); A(f'v_lshlrev_b32 {vA1}, 12, {vT0}'); A(f'v_lshl_add_u32 {vA1}, {vT1}, 4, {vA1}')
A(f's_lshl_b32 s56, {sWAVE}, 9'); A(f's_add_u32 s56, s56, {Q_}'); A(f'v_add_u32 {vA1}, s56, {vA1}')
A(f's_lshl_b32 s56, {sWAVE}, 8'); A(f's_add_u32 s56, s56, {QL}'); A(f'v_lshlrev_b32 {vA2}, 3, {vT1}'); A(f'v_lshl_add_u32 {vA2}, {vT0}, 2, {vA2}'); A(f'v_add_u32 {vA2}, s56, {vA2}')
A(f'v_lshlrev_b32 {vA3}, 8, {vC}'); A(f'v_lshl_add_u32 {vA3}, {vQ}, 4, {vA3}'); A(f'v_add_u32 {vA3}, {QL}, {vA3}')
vFw = V(); vOne = V()
A(f's_lshl_b32 s56, {sWAVE}, 2'); A(f's_add_u32 s56, s56, {FLG}'); A(f'v_mov_b32 {vFw}, s56'); A(f'v_mov_b32 {vOne}, 1')
vPw, vMw, vMr = V(), V(), V()
A(f's_lshl_b32 s56, {sWAVE}, 6'); A(f's_add_u32 s56, s56, {PL}'); A(f'v_lshlrev_b32 {vPw}, 8, {vC}'); A(f'v_lshl_add_u32 {vPw}, {vQ}, 3, {vPw}'); A(f'v_add_u32 {vPw}, s56, {vPw}')
A(f's_lshl_b32 s56, {sWAVE}, 5'); A(f's_add_u32 s56, s56, {MLL}'); A(f'v_lshl_add_u32 {vMw}, {vC}, 3, s56')
A(f'v_lshlrev_b32 {vMr}, 3, {vC}'); A(f'v_add_u32 {vMr}, {MLL}, {vMr}')
A(f's_add_u32 s57, {sWAVE}, {MK["K0"]}')
lds_wait(5, vZ, F_LP - FLG, 's57', vT0)
for T in range(2):
    for ks in range(4): A(f'ds_read_b128 {vK[16*T+4*ks:16*T+4*ks+4]}, {vKa[ks]} offset:{4096*T}')
A('s_waitcnt lgkmcnt(0)')
stamp(7)
poll(6, [f'global_load_dwordx4 {vQr[0:4]}, {vA1}, {pLB} sc1', f'global_load_dwordx4 {vQr[4:8]}, {vA1}, {pLB} offset:2048 sc1'], [vQr[i] for i in range(8)], [vQx[i] for i in range(8)], sT10, 0x3f, vCH)
stamp(8)
for i in range(4): A(f'v_add_f32 {vQx[i]}, {vQx[i]}, {vQx[4+i]}')
A(f'v_permlane32_swap_b32 {vQx[0]}, {vQx[2]}'); A(f'v_permlane32_swap_b32 {vQx[1]}, {vQx[3]}')
A(f'v_add_f32 {vQx[0]}, {vQx[0]}, {vQx[2]}'); A(f'v_add_f32 {vQx[1]}, {vQx[1]}, {vQx[3]}')
A(f'v_cvt_pk_bf16_f32 {vT0}, {vQx[0]}, {vQx[1]}')
A(f'ds_write_b32 {vA2}, {vT0}'); A(f'ds_write_b32 {vFw}, {vOne} offset:{F_QF - FLG}')
lds_wait4(7, vZ, F_QF - FLG, vFl, [f'ds_read_b128 {vQB[4*ks:4*ks+4]}, {vA3} offset:{64*ks}' for ks in range(4)] + [pure_read()])
pure_update()
for ks in range(4):
    for T in range(2): A(f'v_mfma_f32_16x16x32_bf16 {vS[4*T:4*T+4]}, {vK[16*T+4*ks:16*T+4*ks+4]}, {vQB[4*ks:4*ks+4]}, {0 if ks == 0 else vS[4*T:4*T+4]}')
vP = V(4); vML4 = V(4); vML = vML4[0:2]; vM = vML4[0]; vLs = vML4[1]
A('s_mov_b32 s56, 0x3db504f3')
for rep in range(2):
    for i in range(4): A(f'v_cvt_pk_bf16_f32 {vP[i]}, {vS[2*i]}, {vS[2*i+1]}')
    for i in range(4):
        A(f'v_lshlrev_b32 {vS[2*i]}, 16, {vP[i]}'); A(f'v_and_b32 {vS[2*i+1]}, {sHI}, {vP[i]}')
    if rep == 0:
        for i in range(8): A(f'v_mul_f32 {vS[i]}, s56, {vS[i]}')
A(f'v_max3_f32 {vM}, {vS[0]}, {vS[1]}, {vS[2]}'); A(f'v_max3_f32 {vT0}, {vS[3]}, {vS[4]}, {vS[5]}'); A(f'v_max3_f32 {vM}, {vM}, {vS[6]}, {vS[7]}'); A(f'v_max_f32 {vM}, {vM}, {vT0}')
xrow_allred('v_max_f32', vM, vT0)
for i in range(8): A(f'v_sub_f32 {vS[i]}, {vS[i]}, {vM}')
for i in range(8): A(f'v_mul_f32 {vS[i]}, {sL2E}, {vS[i]}')
for i in range(8): A(f'v_exp_f32 {vS[i]}, {vS[i]}')
for i in range(4): A(f'v_cvt_pk_bf16_f32 {vP[i]}, {vS[2*i]}, {vS[2*i+1]}')
set_exec(M_N4)
A(f'ds_write_b64 {vPw}, {vP[0:2]}'); A(f'ds_write_b64 {vPw}, {vP[2:4]} offset:32')
set_exec(-1)
A(f'v_add_f32 {vLs}, {vS[0]}, {vS[1]}'); A(f'v_add_f32 {vT1}, {vS[2]}, {vS[3]}'); A(f'v_add_f32 {vT2}, {vS[4]}, {vS[5]}'); A(f'v_add_f32 {vT3}, {vS[6]}, {vS[7]}')
A(f'v_add_f32 {vLs}, {vLs}, {vT1}'); A(f'v_add_f32 {vT2}, {vT2}, {vT3}'); A(f'v_add_f32 {vLs}, {vLs}, {vT2}')
xrow_allred('v_add_f32', vLs, vT0)
set_exec(0xf)
A(f'ds_write_b64 {vMw}, {vML}'); A(f'ds_write_b32 {vFw}, {vOne} offset:{F_PF - FLG}')
set_exec(-1)
stamp(9)
vVa = V(2, 1); vAst = V(); vMc = V(8); vF = V(4); vO = V(8); vAcc = V(8); vVt = V(8)
vPB = vQB
A(f'v_and_b32 {vT0}, 1, {vQ}'); A(f'v_lshl_add_u32 {vT0}, {vT0}, 2, {vR}'); A(f'v_lshlrev_b32 {vT0}, 1, {vT0}')
A(f'v_lshrrev_b32 {vT1}, 1, {vC}'); A(f's_lshl_b32 s56, {sWAVE}, 2'); A(f'v_add_u32 {vT1}, s56, {vT1}')
A(f'v_and_b32 {vT2}, 1, {vC}'); A(f'v_lshlrev_b32 {vT2}, 3, {vT2}'); A(f'v_lshl_add_u32 {vT2}, {v8qr}, 8, {vT2}'); A(f'v_add_u32 {vT2}, {VV}, {vT2}')
for j in range(2):
    if j: A(f'v_add_u32 {vT1}, 2, {vT1}')
    A(f'v_xor_b32 {vT3}, {vT1}, {vT0}'); A(f'v_lshl_add_u32 {vVa[j]}, {vT3}, 4, {vT2}')
A(f's_lshl_b32 s56, {sT}, 11'); A(f's_lshl_b32 s57, {sWAVE}, 7'); A('s_add_u32 s56, s56, s57'); A(f's_add_u32 s56, s56, {A_}')
A(f'v_lshlrev_b32 {vAst}, 9, {vC}'); A(f'v_lshl_add_u32 {vAst}, {vQ}, 4, {vAst}'); A(f'v_add_u32 {vAst}, s56, {vAst}')
lds_wait4(8, vZ, F_PF - FLG, vFl, [f'ds_read_b64 {vMc[2*c:2*c+2]}, {vMr} offset:{32*c}' for c in range(4)] + [f'ds_read_b128 {vPB[4*c:4*c+4]}, {vA3} offset:{PL - QL + 64*c}' for c in range(4)])
A(f'v_max3_f32 {vM}, {vMc[0]}, {vMc[2]}, {vMc[4]}'); A(f'v_max_f32 {vM}, {vM}, {vMc[6]}')
for c in range(4): A(f'v_sub_f32 {vF[c]}, {vMc[2*c]}, {vM}')
for c in range(4): A(f'v_mul_f32 {vF[c]}, {sL2E}, {vF[c]}')
for c in range(4): A(f'v_exp_f32 {vF[c]}, {vF[c]}')
A(f'v_mul_f32 {vLs}, {vF[0]}, {vMc[1]}')
for c in range(1, 4): A(f'v_fmac_f32 {vLs}, {vF[c]}, {vMc[2*c+1]}')
sk = nl('S')
A(f's_cmp_eq_u32 {sWAVE}, 0'); A(f's_cbranch_scc0 {sk}')
tagf(vM, vM, vTg); tagf(vLs, vLs, vTg)
A(f'v_mov_b32 {vML4[2]}, {sE}'); A(f'v_mov_b32 {vML4[3]}, {sE}')
A(f's_lshl_b32 s56, {sT}, 6'); A(f's_add_u32 s56, s56, {MLG}'); A(f'v_lshl_add_u32 {vT0}, {vL}, 4, s56')
set_exec(0xf)
lstore([f'global_store_dwordx4 {vT0}, {vML4}, {pLB}'])
set_exec(-1)
LAB(sk)
stamp(10)
for c in range(4):
    lds_wait(9, vZ, F_LP - FLG, MK['V0'] + c, vT0)
    for j in range(2):
        A(f'ds_read_b64_tr_b16 {vVt[4*j:4*j+2]}, {vVa[j]} offset:{8192*c}'); A(f'ds_read_b64_tr_b16 {vVt[4*j+2:4*j+4]}, {vVa[j]} offset:{8192*c + 1024}')
    if c > 0:
        for i in range(8):
            A(f'v_mul_f32 {vO[i]}, {vF[0]}, {vAcc[i]}' if c == 1 else f'v_fmac_f32 {vO[i]}, {vF[c-1]}, {vAcc[i]}')
    A('s_waitcnt lgkmcnt(2)')
    A(f'v_mfma_f32_16x16x32_bf16 {vAcc[0:4]}, {vVt[0:4]}, {vPB[4*c:4*c+4]}, 0')
    A('s_waitcnt lgkmcnt(0)')
    A(f'v_mfma_f32_16x16x32_bf16 {vAcc[4:8]}, {vVt[4:8]}, {vPB[4*c:4*c+4]}, 0')
for i in range(8): A(f'v_fmac_f32 {vO[i]}, {vF[3]}, {vAcc[i]}')
for i in range(8): tagf(vO[i], vO[i], vTg)
set_exec(M_N4)
lstore([f'global_store_dwordx4 {vAst}, {vO[0:4]}, {pLB}', f'global_store_dwordx4 {vAst}, {vO[4:8]}, {pLB} offset:64'])
set_exec(-1)
stamp(11)
V.release(mA)
vMk = V(8, 1); vBst = V()
mW = V.mark()
vWo = V(16); vA1, vA2, vA3, vA4 = V(), V(), V(), V(); vMr4 = V(8); vMx = V(4); vAr = V(8); vAx = V(8); vOb = V(2); vBm = V(4); vD = V(4); vW1, vW2 = V(), V()
A('s_lshl_b32 s56, s55, 4'); A(f's_add_u32 s56, s56, {MLG}'); A(f'v_lshl_add_u32 {vA1}, {vN}, 6, s56')
A('s_lshl_b32 s56, s55, 9'); A('s_lshl_b32 s57, s54, 6'); A('s_add_u32 s56, s56, s57'); A(f's_add_u32 s56, s56, {A_}')
A(f'v_lshlrev_b32 {vA2}, 11, {vN}'); A(f'v_lshl_add_u32 {vA2}, {vQ}, 4, {vA2}'); A(f'v_add_u32 {vA2}, s56, {vA2}'); A(f'v_add_u32 {vA3}, 32768, {vA2}')
poll(10, [f'global_load_dwordx4 {vMr4[0:4]}, {vA1}, {pLB} sc1', f'global_load_dwordx4 {vMr4[4:8]}, {vA1}, {pLB} offset:1024 sc1'], [vMr4[i] for i in (0, 1, 4, 5)], [vMx[i] for i in range(4)], sT10, 0x3f, vCH, full=[vMr4[i] for i in (2, 3, 6, 7)])
A(f'v_max_f32 {vT0}, {vMx[0]}, {vMx[2]}'); row_allred('v_max_f32', [vT0])
A(f'v_sub_f32 {vW1}, {vMx[0]}, {vT0}'); A(f'v_sub_f32 {vW2}, {vMx[2]}, {vT0}'); A(f'v_mul_f32 {vW1}, {sL2E}, {vW1}'); A(f'v_mul_f32 {vW2}, {sL2E}, {vW2}')
A(f'v_exp_f32 {vW1}, {vW1}'); A(f'v_exp_f32 {vW2}, {vW2}')
A(f'v_mul_f32 {vT0}, {vW1}, {vMx[1]}'); A(f'v_fmac_f32 {vT0}, {vW2}, {vMx[3]}'); row_allred('v_add_f32', [vT0])
A(f'v_rcp_f32 {vT0}, {vT0}'); A(f'v_mul_f32 {vW1}, {vW1}, {vT0}'); A(f'v_mul_f32 {vW2}, {vW2}, {vT0}')
A(f'v_lshl_add_u32 {vT0}, {vQ}, 2, {vR}'); A(f'v_and_b32 {vT1}, 7, {vT0}'); A(f'v_lshlrev_b32 {vA4}, 10, {vT0}'); A(f'v_lshl_add_u32 {vA4}, {vT1}, 5, {vA4}'); A(f'v_lshl_add_u32 {vA4}, {vC}, 3, {vA4}')
A(f's_lshl_b32 s56, {sWAVE}, 8'); A(f's_add_u32 s56, s56, {WO}'); A(f'v_add_u32 {vA4}, s56, {vA4}')
lds_wait(11, vZ, F_LP - FLG, MK['WO'], vT0)
for j in range(8):
    A(f'v_xor_b32 {vT0}, {32*j}, {vA4}'); A(f'ds_read_b64_tr_b16 {vWo[2*j:2*j+2]}, {vT0}')
for j in range(8):
    A(f'v_cmp_eq_u32 vcc, {j}, {vN}'); A(f'v_cndmask_b32 {vMk[j]}, 0, -1, vcc')
A(f's_lshl_b32 s56, {sT}, 11'); A(f's_lshl_b32 s57, {sWAVE}, 9'); A('s_add_u32 s56, s56, s57'); A(f's_add_u32 s56, s56, {B1}')
A(f'v_lshlrev_b32 {vBst}, 6, {vN}'); A(f'v_lshl_add_u32 {vBst}, {vQ}, 4, {vBst}'); A(f'v_add_u32 {vBst}, s56, {vBst}')
A('s_waitcnt lgkmcnt(0)')
stamp(12)
poll(12, [f'global_load_dwordx4 {vAr[0:4]}, {vA2}, {pLB} sc1', f'global_load_dwordx4 {vAr[4:8]}, {vA3}, {pLB} sc1'], [vAr[i] for i in range(8)], [vAx[i] for i in range(8)], sT10, 0x3f, vCH)
for i in range(4): A(f'v_mul_f32 {vAx[i]}, {vW1}, {vAx[i]}')
for i in range(4): A(f'v_fmac_f32 {vAx[i]}, {vW2}, {vAx[4+i]}')
row_allred('v_add_f32', [vAx[i] for i in range(4)])
A(f'v_cvt_pk_bf16_f32 {vOb[0]}, {vAx[0]}, {vAx[1]}'); A(f'v_cvt_pk_bf16_f32 {vOb[1]}, {vAx[2]}, {vAx[3]}')
for j in range(8):
    b = vBm[2*(j & 1):2*(j & 1)+2]
    A(f'v_and_b32 {b[0]}, {vMk[j]}, {vOb[0]}'); A(f'v_and_b32 {b[1]}, {vMk[j]}, {vOb[1]}')
    A(f'v_mfma_f32_16x16x16_bf16 {vD}, {vWo[2*j:2*j+2]}, {b}, {0 if j == 0 else vD}')
for r in range(4): tagf(vD[r], vD[r], vTg)
set_exec(M_N8)
lstore([f'global_store_dwordx4 {vBst}, {vD}, {pLB}'])
set_exec(-1)
stamp(13)
V.release(mW)
vGu = V(16); vDn = V(8); vSB = V(8); vT1v = V(8); vXr = V(8); vXx = V(8); vHp = V(4); vBm = V(8); vD = V(4)
vA1, vA2, vCst, vCld = V(), V(), V(), V(); vMd = V(2, 1); vSum, vSq = V(), V()
A(f's_and_b32 s56, {sT}, 15'); A(f'v_add_u32 {vT0}, s56, {vN}'); A(f'v_and_b32 {vT0}, 15, {vT0}'); A(f'v_lshlrev_b32 {vA1}, 7, {vT0}'); A(f'v_lshl_add_u32 {vA1}, {vQ}, 5, {vA1}')
A(f'v_add_u32 {vA2}, {X2}, {vA1}'); A(f'v_add_u32 {vA1}, {MV}, {vA1}')
poll(13, [f'global_load_dwordx4 {vXr[0:4]}, {vA1}, {pLB} sc1', f'global_load_dwordx4 {vXr[4:8]}, {vA1}, {pLB} offset:16 sc1'], [vXr[i] for i in range(8)], [vSB[i] for i in range(8)], sT16, 0xffff, vCH)
poll(14, [f'global_load_dwordx4 {vXr[0:4]}, {vA1}, {pLB} offset:2048 sc1', f'global_load_dwordx4 {vXr[4:8]}, {vA1}, {pLB} offset:2064 sc1'], [vXr[i] for i in range(8)], [vT1v[i] for i in range(8)], sT16, 0xffff, vCH)
A(f's_lshl_b32 s56, {sWAVE}, 7'); A(f's_add_u32 s56, s56, {GU}'); A(f'v_lshlrev_b32 {vT1}, 9, {v8qr}'); A(f'v_lshl_add_u32 {vT1}, {vC}, 3, {vT1}'); A(f'v_add_u32 {vT1}, s56, {vT1}')
lds_wait(15, vZ, F_LP - FLG, MK['GU'], vT0)
for j in range(4):
    A(f'ds_read_b64_tr_b16 {vGu[4*j:4*j+2]}, {vT1} offset:{32*j}'); A(f'ds_read_b64_tr_b16 {vGu[4*j+2:4*j+4]}, {vT1} offset:{32*j + 2048}')
A(f's_lshl_b32 s56, {sWAVE}, 8'); A(f's_add_u32 s56, s56, {DN}'); A(f'v_lshlrev_b32 {vT2}, 10, {vR}'); A(f'v_lshl_add_u32 {vT2}, {vQ}, 5, {vT2}'); A(f'v_lshl_add_u32 {vT2}, {vC}, 3, {vT2}'); A(f'v_add_u32 {vT2}, s56, {vT2}')
for jj in range(2):
    A(f'v_add_u32 {vT3}, {4*jj}, {vQ}'); A(f'v_cmp_eq_u32 vcc, {vT3}, {vN}'); A(f'v_cndmask_b32 {vMd[jj]}, 0, -1, vcc')
A(f's_lshl_b32 s56, {sT}, 10'); A(f's_lshl_b32 s57, {sWAVE}, 8'); A('s_add_u32 s56, s56, s57'); A(f's_add_u32 s56, s56, {A_}')
A(f'v_lshlrev_b32 {vCst}, 6, {vN}'); A(f'v_lshl_add_u32 {vCst}, {vQ}, 4, {vCst}'); A(f'v_add_u32 {vCst}, s56, {vCst}')
A(f'v_bfe_u32 {vT3}, {vL}, 1, 1'); A(f'v_lshrrev_b32 {vCld}, 2, {vL}'); A(f'v_lshl_add_u32 {vCld}, {vT3}, 4, {vCld}'); A(f'v_lshlrev_b32 {vCld}, 10, {vCld}')
A(f'v_and_b32 {vT3}, 1, {vL}'); A(f'v_lshl_add_u32 {vCld}, {vT3}, 4, {vCld}'); A(f's_lshl_b32 s56, {sT}, 5'); A(f's_add_u32 s56, s56, {A_}'); A(f'v_add_u32 {vCld}, s56, {vCld}')
lds_wait(16, vZ, F_LP - FLG, MK['DN'], vT0)
for jj in range(2):
    A(f'ds_read_b64_tr_b16 {vDn[4*jj:4*jj+2]}, {vT2} offset:{128*jj}'); A(f'ds_read_b64_tr_b16 {vDn[4*jj+2:4*jj+4]}, {vT2} offset:{128*jj + 4096}')
if 1:
    A(f's_mov_b32 s58, {M_N4 & 0xffffffff:#x}'); A(f's_cmp_eq_u32 {sWAVE}, 3'); A(f's_cselect_b32 s58, {M_N2 & 0xffffffff:#x}, s58')
A('s_waitcnt lgkmcnt(0)')
stamp(14)
poll(17, [f'global_load_dwordx4 {vXr[0:4]}, {vA2}, {pLB} sc1', f'global_load_dwordx4 {vXr[4:8]}, {vA2}, {pLB} offset:16 sc1'], [vXr[i] for i in range(8)], [vXx[i] for i in range(8)], sT16, 0xffff, vCH)
A(f'v_add_f32 {vSum}, {vXx[0]}, {vXx[1]}'); A(f'v_mul_f32 {vSq}, {vXx[0]}, {vXx[0]}')
A(f'v_add_f32 {vT0}, {vXx[2]}, {vXx[3]}'); A(f'v_mul_f32 {vT1}, {vXx[1]}, {vXx[1]}')
for i in range(2, 8): A(f'v_fmac_f32 {vSq if i % 2 == 0 else vT1}, {vXx[i]}, {vXx[i]}')
A(f'v_add_f32 {vT2}, {vXx[4]}, {vXx[5]}'); A(f'v_add_f32 {vT3}, {vXx[6]}, {vXx[7]}'); A(f'v_add_f32 {vSum}, {vSum}, {vT0}'); A(f'v_add_f32 {vT2}, {vT2}, {vT3}')
A(f'v_add_f32 {vSq}, {vSq}, {vT1}'); A(f'v_add_f32 {vSum}, {vSum}, {vT2}')
A(f'v_permlane32_swap_b32 {vSum}, {vSq}'); A(f'v_add_f32 {vSum}, {vSum}, {vSq}')
A(f'v_mov_b32 {vSq}, {vSum}'); A(f'v_permlane16_swap_b32 {vSum}, {vSq}'); A(f'v_add_f32 {vSum}, {vSum}, {vSq}')
row_allred('v_add_f32', [vSum])
A(f'v_mul_f32 {vSum}, 0x3b000000, {vSum}')
A(f'v_mov_b32 {vSq}, {vSum}'); A(f'v_permlane32_swap_b32 {vSum}, {vSq}')
A(f'v_fma_f32 {vSq}, -{vSum}, {vSum}, {vSq}'); A(f'v_max_f32 {vSq}, 0, {vSq}'); A(f'v_add_f32 {vSq}, 0x3727c5ac, {vSq}'); A(f'v_rsq_f32 {vSq}, {vSq}')
for i in range(8): A(f'v_sub_f32 {vXx[i]}, {vXx[i]}, {vSum}')
for i in range(8): A(f'v_mul_f32 {vT1v[i]}, {vSq}, {vT1v[i]}')
for i in range(8): A(f'v_fma_f32 {vXx[i]}, {vXx[i]}, {vT1v[i]}, {vSB[i]}')
for i in range(4): A(f'v_cvt_pk_bf16_f32 {vHp[i]}, {vXx[2*i]}, {vXx[2*i+1]}')
sk = nl('S')
for j in range(4):
    if j == 2: A(f's_cmp_eq_u32 {sWAVE}, 3'); A(f's_cbranch_scc1 {sk}')
    b = vBm[4*(j & 1):4*(j & 1)+4]
    for k in range(4): dpp('v_and_b32', b[k], vHp[k], vMk[j], 'row_newbcast:0')
    A(f'v_mfma_f32_16x16x32_bf16 {vD}, {vGu[4*j:4*j+4]}, {b}, {0 if j == 0 else vD}')
LAB(sk)
for r in range(4): tagf(vD[r], vD[r], vTgb)
A('s_mov_b32 exec_lo, s58'); A('s_mov_b32 exec_hi, s58')
lstore([f'global_store_dwordx4 {vCst}, {vD}, {pLB}'])
set_exec(-1)
A(f's_cmp_ge_u32 {sT}, 28'); A('s_cbranch_scc1 L_c_zero')
vG = vXx
poll(18, [f'global_load_dwordx4 {vXr[0:4]}, {vCld}, {pLB} sc1'], [vXr[i] for i in range(4)], [vG[i] for i in range(4)], sT10b, 0x3f, vCH)
A(f'v_permlane32_swap_b32 {vG[0]}, {vG[1]}'); A(f'v_permlane32_swap_b32 {vG[2]}, {vG[3]}')
A(f'v_add_f32 {vG[0]}, {vG[0]}, {vG[1]}'); A(f'v_add_f32 {vG[2]}, {vG[2]}, {vG[3]}')
A(f'v_permlane16_swap_b32 {vG[0]}, {vG[2]}'); A(f'v_add_f32 {vG[0]}, {vG[0]}, {vG[2]}')
dpp('v_add_f32', vG[0], vG[0], vG[0], 'row_ror:4'); dpp('v_add_f32', vG[0], vG[0], vG[0], 'row_ror:8')
rnd(vG[0], vG[0])
A(f'v_mul_f32 {vT0}, {sL2E}, {vG[0]}'); A(f'v_exp_f32 {vT0}, -{vT0}'); A(f'v_add_f32 {vT0}, 1.0, {vT0}'); A(f'v_rcp_f32 {vT0}, {vT0}'); rnd(vT0, vT0)
dpp('v_mul_f32', vT0, vG[0], vT0, 'quad_perm:[2,3,0,1]')
A(f'v_mov_b32 {vT1}, {vT0}'); A(f'v_permlane32_swap_b32 {vT0}, {vT1}'); A(f'v_cvt_pk_bf16_f32 {vT0}, {vT0}, {vT1}')
for k, ln in enumerate((0, 16, 1, 17)): A(f'v_readlane_b32 s{56+k}, {vT0}, {ln}')
for jj in range(2):
    b = vBm[4*jj:4*jj+4]
    for k in range(4): A(f'v_and_b32 {b[k]}, s{56+k}, {vMd[jj]}')
    A(f'v_mfma_f32_16x16x32_bf16 {vD}, {vDn[4*jj:4*jj+4]}, {b}, {0 if jj == 0 else vD}')
for r in range(4): tagf(vD[r], vD[r], vTgb)
LAB('L_c_pub')
set_exec(M_N8)
lstore([f'global_store_dwordx4 {vBst}, {vD}, {pLB}'])
set_exec(-1)
stamp(15)
end_wave()
LAB('L_c_zero')
for r in range(4): A(f'v_mov_b32 {vD[r]}, {vTgb}')
A('s_branch L_c_pub')
vg_compute = V.hi

LAB('L_loader')
V = Alloc('v', 1, 200)
vO1, vT0, vT1, vLin, vFlg, vMark = [V() for _ in range(6)]; vKo = V(4, 1); vVo = V(2, 1); vX = V()
A(f's_and_b32 s54, {sT}, 7'); A(f's_lshr_b32 s55, {sT}, 3')
A(f'v_lshrrev_b32 {vT0}, 3, {vL}'); A(f'v_and_b32 {vT1}, 7, {vL}'); A(f'v_lshlrev_b32 {vO1}, 13, {vT0}'); A(f'v_lshl_add_u32 {vO1}, {vT1}, 4, {vO1}')
A('s_lshl_b32 s56, s55, 20'); A(f's_lshl_b32 s57, {sG}, 10'); A('s_add_u32 s56, s56, s57'); A('s_lshl_b32 s57, s54, 7'); A('s_add_u32 s56, s56, s57')
A(f'v_add_u32 {vO1}, s56, {vO1}')
A('s_mov_b32 m0, 0')
items = []
for i in range(16):
    pre = [] if i == 0 else [f'v_add_u32 {vO1}, 65536, {vO1}', 's_add_u32 m0, m0, 1024']
    if i == 0: pre = ['s_waitcnt lgkmcnt(0)']
    items.append((pre, f'global_load_lds_dwordx4 {vO1}, {pWQ} nt', MK['WQ'] if i == 15 else None))
kv_setup = [f'v_lshrrev_b32 {vT0}, 4, {vL}', f'v_and_b32 {vT1}, 15, {vL}']
for m in range(4):
    kv_setup += [f'v_add_u32 {vX}, {4*m}, {vT0}', f'v_xor_b32 {vX}, {vX}, {vT1}', f'v_lshlrev_b32 {vX}, 4, {vX}', f'v_lshl_add_u32 {vKo[m]}, {vT0}, 8, {vX}']
for m in range(2):
    kv_setup += [f'v_add_u32 {vX}, {4*m}, {vT0}', f'v_lshlrev_b32 {vX}, 1, {vX}', f'v_xor_b32 {vX}, {vX}, {vT1}', f'v_lshlrev_b32 {vX}, 4, {vX}', f'v_lshl_add_u32 {vVo[m]}, {vT0}, 8, {vX}']
kv_setup += [f's_lshl_b32 s56, {sG}, 22', f's_lshl_b32 s57, {sT}, 15', 's_add_u32 s56, s56, s57', 's_add_u32 s56, s56, 0x300000',
             f's_add_u32 s58, {lo(pK)}, s56', f's_addc_u32 s59, {hi(pK)}, 0', f's_add_u32 s60, {lo(pV)}, s56', f's_addc_u32 s61, {hi(pV)}, 0',
             f'v_lshlrev_b32 {vLin}, 4, {vL}', f'v_mov_b32 {vFlg}, {F_LP}']
for i in range(32):
    pre = []
    if i == 0: pre = kv_setup + [f's_mov_b32 m0, {KK}']
    elif i % 4 == 0: pre = ['s_add_u32 s58, s58, 4096', 's_addc_u32 s59, s59, 0', 's_add_u32 m0, m0, 4096']
    items.append((pre, f'global_load_lds_dwordx4 {vKo[i % 4]}, s[58:59] offset:{1024*(i % 4)} nt', MK['K0'] + i // 8 if i % 8 == 7 else None))
for i in range(32):
    pre = []
    if i == 0: pre = [f's_mov_b32 m0, {VV}']
    elif i % 4 == 0: pre = ['s_add_u32 s60, s60, 4096', 's_addc_u32 s61, s61, 0', 's_add_u32 m0, m0, 4096']
    items.append((pre, f'global_load_lds_dwordx4 {vVo[(i >> 1) & 1]}, s[60:61] offset:{1024*(i % 4)} nt', MK['V0'] + i // 8 if i % 8 == 7 else None))
for o in order:
    if o == '|': items.append('gate'); continue
    if o == 'MR':
        for i in range(8):
            if i == 0:
                pre = [f'v_lshrrev_b32 {vT0}, 3, {vL}', f'v_and_b32 {vT1}, 7, {vL}', f'v_mul_u32_u24 {vO1}, 6144, {vT0}', f'v_lshl_add_u32 {vO1}, {vT1}, 4, {vO1}',
                       f's_lshr_b32 s56, {sT}, 2', f's_mul_i32 s56, s56, {64*6144}', f's_and_b32 s57, {sT}, 3', 's_lshl_b32 s57, s57, 10', 's_add_u32 s56, s56, s57',
                       f's_lshl_b32 s57, {sG}, 7', 's_add_u32 s56, s56, s57', 's_add_u32 s56, s56, 2048', f'v_add_u32 {vO1}, s56, {vO1}', f's_mov_b32 m0, {MR}']
            else: pre = [f'v_add_u32 {vO1}, {8*6144}, {vO1}', 's_add_u32 m0, m0, 1024']
            items.append((pre, f'global_load_lds_dwordx4 {vO1}, {pWM} nt', MK['MR'] if i == 7 else None))
    if o == 'WO':
        for i in range(16):
            pre = []
            if i == 0: pre = [f's_lshl_b32 s56, {sG}, 19', f's_lshl_b32 s57, {sT}, 14', 's_add_u32 s56, s56, s57', f's_add_u32 s58, {lo(pWO)}, s56', f's_addc_u32 s59, {hi(pWO)}, 0', f's_mov_b32 m0, {WO}']
            elif i % 4 == 0: pre = ['s_add_u32 s58, s58, 4096', 's_addc_u32 s59, s59, 0', 's_add_u32 m0, m0, 4096']
            pre = pre + [f'v_xor_b32 {vX}, {32*(i & 7)}, {vLin}']
            items.append((pre, f'global_load_lds_dwordx4 {vX}, s[58:59] offset:{1024*(i % 4)} nt', MK['WO'] if i == 15 else None))
    if o == 'GU':
        for i in range(16):
            if i == 0:
                pre = [f'v_lshrrev_b32 {vT0}, 5, {vL}', f'v_and_b32 {vT1}, 31, {vL}', f'v_mul_u32_u24 {vO1}, 3584, {vT0}', f'v_lshl_add_u32 {vO1}, {vT1}, 4, {vO1}',
                       f's_and_b32 s56, {sT}, 15', f's_mul_i32 s56, s56, {32*3584}', f's_mul_i32 s57, {sG}, 448', 's_add_u32 s56, s56, s57', f'v_add_u32 {vO1}, s56, {vO1}',
                       f's_cmp_ge_u32 {sT}, 16', f's_cselect_b32 s58, {lo(pWU)}, {lo(pWG)}', f's_cselect_b32 s59, {hi(pWU)}, {hi(pWG)}', f's_mov_b32 m0, {GU}']
            else: pre = [f'v_add_u32 {vO1}, {2*3584}, {vO1}', 's_add_u32 m0, m0, 1024']
            items.append((pre, ('gu', f'global_load_lds_dwordx4 {vO1}, s[58:59] nt'), MK['GU'] if i == 15 else None))
    if o == 'DN':
        for i in range(8):
            pre = []
            if i == 0: pre = [f's_min_u32 s57, {sT}, 27', f's_mul_i32 s56, {sG}, {224*1024}', 's_lshl_b32 s57, s57, 13', 's_add_u32 s56, s56, s57', f's_add_u32 s58, {lo(pWD)}, s56', f's_addc_u32 s59, {hi(pWD)}, 0', f's_mov_b32 m0, {DN}']
            elif i % 4 == 0: pre = ['s_add_u32 s58, s58, 4096', 's_addc_u32 s59, s59, 0', 's_add_u32 m0, m0, 4096']
            items.append((pre, f'global_load_lds_dwordx4 {vLin}, s[58:59] offset:{1024*(i % 4)} nt', MK['DN'] if i == 7 else None))
W = CFG['W']
def post(mark):
    A(f'v_mov_b32 {vMark}, {mark}'); A(f'ds_write_b32 {vFlg}, {vMark}')
    st = {MK['WQ']: 2, MK['K0'] + 3: 3, MK['V0'] + 3: 4, MK['WO']: 5, MK['MR']: 6, MK['GU']: 7, MK['DN']: 8}.get(mark)
    if st: stamp(st)
pend = []
def drain():
    while pend:
        mk = pend.pop(0)
        if mk is not None:
            A(f's_waitcnt vmcnt({len(pend)})'); post(mk)
did_bar = False
cnt = 0
for it in items:
    if it == 'gate':
        drain()
        if CFG['gateq']:
            lds_wait(20, vFlg, F_PF - FLG, 1, vT0)
        continue
    pre, ins, mk = it
    for x in pre: A(x)
    if isinstance(ins, tuple):
        A('s_mov_b32 exec_lo, 0x0fffffff'); A('s_mov_b32 exec_hi, 0x0fffffff'); A(ins[1]); A('s_mov_b64 exec, -1')
    else: A(ins)
    cnt += 1
    pend.append(mk)
    if cnt == min(W, 16) and not did_bar:
        stamp(1); A('s_barrier'); did_bar = True
    if len(pend) >= W:
        A(f's_waitcnt vmcnt({W-1})')
        mk0 = pend.pop(0)
        if mk0 is not None: post(mk0)
drain()
A('s_waitcnt lgkmcnt(0)')
end_wave()
vg_loader = V.hi

LAB('L_aux')
V = Alloc('v', 1, 200)
vN, vQ, vR, vC, vT0, vT1, vT2, vT3, vCH, vZ, vTg, vTgb, v8qr, vPx, vPe = [V() for _ in range(15)]
if CFG['pf']:
    A('s_getpc_b64 s[56:57]')
    LAB('L_pc')
    A('s_sub_u32 s56, s56, L_pc - L_start'); A('s_subb_u32 s57, s57, 0')
    A(f's_and_b32 s58, {sT}, 1'); A('s_lshl_b32 s58, s58, 13'); A(f'v_lshl_add_u32 {vT0}, {vL}, 7, s58'); A(f'v_min_u32 {vT0}, L_codeend - L_start - 4, {vT0}')
    A(f'global_load_dword {vT3}, {vT0}, s[56:57]')
A(f'v_lshlrev_b32 {vT1}, 2, {vL}'); A(f'v_add_u32 {vT1}, {FLG}, {vT1}'); A(f'v_mov_b32 {vT2}, 0')
set_exec(0xffff); A(f'ds_write_b32 {vT1}, {vT2}'); set_exec(-1)
common_consts()
A(f'v_and_b32 {vN}, 15, {vL}'); A(f'v_lshrrev_b32 {vQ}, 4, {vL}'); A(f'v_bfe_u32 {vR}, {vL}, 2, 2'); A(f'v_and_b32 {vC}, 3, {vL}'); A(f'v_lshl_add_u32 {v8qr}, {vQ}, 3, {vR}')
A(f'v_mov_b32 {vZ}, {FLG}')
vCc = V(8); vXc = V(); vFil = V(4)
A(f's_lshr_b32 s56, {sT}, 2'); A('s_lshl_b32 s56, s56, 7'); A(f'v_lshl_add_u32 {vT0}, {vQ}, 4, s56')
A(f's_lshl_b32 s56, {sT}, 5'); A(f'v_lshl_add_u32 {vT1}, {vN}, 1, s56')
A('s_getreg_b32 s52, hwreg(HW_REG_XCC_ID)'); A('s_and_b32 s52, s52, 15')
A('s_waitcnt lgkmcnt(0)')
A(f's_load_dword {sE}, {pWS}, {EP}')
A('s_barrier')
A(f'global_load_dwordx4 {vCc[0:4]}, {vT0}, {pC}'); A(f'global_load_dwordx4 {vCc[4:8]}, {vT0}, {pC} offset:64'); A(f'global_load_ushort {vXc}, {vT1}, {pX}')
lb_ptr()
A(f'v_lshlrev_b32 {vT0}, 7, {vL}'); A(f'global_load_dword {vT3}, {vT0}, {pLB} sc1'); A(f'v_add_u32 {vT0}, 0x2000, {vT0}')
set_exec(0x1ffff); A(f'global_load_dword {vT3}, {vT0}, {pLB} sc1'); set_exec(-1)
A('s_waitcnt lgkmcnt(0)'); epoch_consts()
A(f'v_mov_b32 {vTg}, {sT10}'); A(f'v_mov_b32 {vTgb}, {sT10b}')
A(f's_lshl_b32 s53, {sE}, 4'); A('s_or_b32 s53, s53, s52'); A(f'v_mov_b32 {vPe}, s53')
A(f's_lshl_b32 s56, {sT}, 2'); A(f's_add_u32 s56, s56, {PX}'); A(f'v_mov_b32 {vT0}, s56')
set_exec(1); A(f'global_store_dword {vT0}, {vPe}, {pLB}'); set_exec(-1)
A(f'v_and_b32 {vPx}, 31, {vL}'); A(f'v_lshlrev_b32 {vPx}, 2, {vPx}'); A(f'v_add_u32 {vPx}, {PX}, {vPx}')
for i in range(4): A(f'v_not_b32 {vFil[i]}, {vTg}')
A(f's_lshl_b32 s56, {sT}, 11'); A(f'v_lshl_add_u32 {vT0}, {vL}, 4, s56'); A(f'v_add_u32 {vT1}, {B1}, {vT0}'); A(f'v_add_u32 {vT0}, {A_}, {vT0}')
A(f'global_store_dwordx4 {vT0}, {vFil}, {pLB}'); A(f'global_store_dwordx4 {vT0}, {vFil}, {pLB} offset:1024')
A(f'global_store_dwordx4 {vT1}, {vFil}, {pLB}'); A(f'global_store_dwordx4 {vT1}, {vFil}, {pLB} offset:1024')
A(f's_lshr_b32 s56, {sT}, 3'); A('s_lshl_b32 s56, s56, 11'); A(f's_and_b32 s57, {sT}, 7'); A('s_lshl_b32 s57, s57, 8'); A('s_add_u32 s56, s56, s57'); A(f's_add_u32 s56, s56, {Q_}')
A(f'v_lshl_add_u32 {vT2}, {vL}, 4, s56')
set_exec(0xffff); A(f'global_store_dwordx4 {vT2}, {vFil}, {pLB}'); set_exec(-1)
A('s_waitcnt vmcnt(0)')
A(f'v_mov_b32 {vT0}, 1'); A(f'ds_write_b32 {vZ}, {vT0} offset:{F_PW - FLG}')
stamp(1)
def pure_probe(tries):
    lp, dn = nl('PP'), nl('PD')
    A(f's_cmp_eq_u32 {sPURE}, 1'); A(f's_cbranch_scc1 {dn}')
    A(f's_mov_b32 {sCNT}, {tries}')
    LAB(lp)
    A(f'global_load_dword {vT0}, {vPx}, {pLB} sc1'); A('s_waitcnt vmcnt(0)')
    A(f'v_cmp_ne_u32 vcc, {vT0}, {vPe}'); A(f's_cbranch_vccz {lp}_ok')
    A(f's_sub_u32 {sCNT}, {sCNT}, 1'); A(f's_cbranch_scc0 {lp}'); A(f's_branch {dn}')
    LAB(lp + '_ok')
    A(f's_mov_b32 {sPURE}, 1'); A(f'v_mov_b32 {vT0}, 1'); A(f'ds_write_b32 {vZ}, {vT0} offset:{F_PURE - FLG}')
    LAB(dn)
pure_probe(12)
stamp(9)
vU = V(2)
for i in range(8):
    A(f'v_lshlrev_b32 {vU[0]}, 16, {vCc[i]}'); A(f'v_and_b32 {vU[1]}, {sHI}, {vCc[i]}')
    silu_bf(vU[0], vU[0], vT0); silu_bf(vU[1], vU[1], vT1)
    A(f'v_cvt_pk_bf16_f32 {vCc[i]}, {vU[0]}, {vU[1]}')
A(f'v_lshlrev_b32 {vXc}, 16, {vXc}')
vMk = V(4, 1); vMrA = V(32); vBm = V(8); vD = V(4); vGa = V(8, 1); vRw = V(8, 2); vRx = V(8, 2); vMod, vGb = V(), V()
for j in range(4):
    A(f'v_cmp_eq_u32 vcc, {j}, {vN}'); A(f'v_cndmask_b32 {vMk[j]}, 0, -1, vcc')
A(f'v_lshlrev_b32 {vT1}, 7, {v8qr}'); A(f'v_lshl_add_u32 {vT1}, {vC}, 3, {vT1}'); A(f'v_add_u32 {vT1}, {MR}, {vT1}')
vSt = V()
A(f's_lshl_b32 s56, s2, 8'); A(f's_add_u32 s56, s56, {S_MR}'); A(f'v_lshlrev_b32 {vSt}, 6, {vN}'); A(f'v_lshl_add_u32 {vSt}, {vQ}, 4, {vSt}'); A(f'v_add_u32 {vSt}, s56, {vSt}')
A(f's_lshr_b32 s56, {sT}, 2'); A('s_lshl_b32 s56, s56, 8'); A(f's_and_b32 s57, {sT}, 3'); A('s_lshl_b32 s57, s57, 6'); A('s_add_u32 s56, s56, s57'); A(f's_add_u32 s56, s56, {S_MR}')
A(f'v_lshlrev_b32 {vGa[0]}, 11, {vQ}'); A(f'v_lshl_add_u32 {vGa[0]}, {vN}, 2, {vGa[0]}'); A(f'v_add_u32 {vGa[0]}, s56, {vGa[0]}')
for i in range(1, 8): A(f'v_add_u32 {vGa[i]}, {8192*i}, {vGa[0]}')
vB1a, vB1b, vG2s, vG2l, vX2s, vMVs, vOut = [V() for _ in range(7)]
A(f'v_lshrrev_b32 {vT2}, 2, {vL}'); A(f'v_lshlrev_b32 {vB1a}, 11, {vT2}'); A(f'v_lshl_add_u32 {vB1a}, {vC}, 4, {vB1a}')
A(f's_lshl_b32 s56, {sT}, 6'); A(f's_add_u32 s57, s56, {B1}'); A(f'v_add_u32 {vB1a}, s57, {vB1a}'); A(f'v_add_u32 {vB1b}, 32768, {vB1a}')
A(f'v_lshrrev_b32 {vT2}, 5, {vL}'); A(f'v_lshl_add_u32 {vG2s}, {vC}, 2, {vT2}'); A(f'v_and_b32 {vT2}, 1, {vQ}'); A(f'v_lshl_add_u32 {vG2s}, {vT2}, 1, {vG2s}')
A(f's_lshl_b32 s57, s2, 7'); A(f's_add_u32 s57, s57, {G2}'); A(f'v_lshl_add_u32 {vG2s}, {vG2s}, 2, s57')
A(f's_lshl_b32 s57, {sT}, 10'); A(f's_add_u32 s57, s57, {G2}'); A(f'v_lshlrev_b32 {vG2l}, 7, {vQ}'); A(f'v_lshl_add_u32 {vG2l}, {vN}, 2, {vG2l}'); A(f'v_add_u32 {vG2l}, s57, {vG2l}')
A(f's_add_u32 s57, s56, {X2}'); A(f'v_lshl_add_u32 {vX2s}, {vN}, 2, s57')
A(f's_add_u32 s57, s56, {MV - 2048}'); A(f'v_lshlrev_b32 {vMVs}, 11, {vQ}'); A(f'v_lshl_add_u32 {vMVs}, {vN}, 2, {vMVs}'); A(f'v_add_u32 {vMVs}, s57, {vMVs}')
A(f's_lshl_b32 s57, {sT}, 5'); A(f'v_lshl_add_u32 {vOut}, {vN}, 1, s57')
lds_wait(21, vZ, F_LP - FLG, MK['MR'], vT0, sleep=2)
for ks in range(2):
    for j in range(4):
        r = vMrA[16*ks+4*j:16*ks+4*j+4]
        A(f'ds_read_b64_tr_b16 {r[0:2]}, {vT1} offset:{4096*ks + 32*j}'); A(f'ds_read_b64_tr_b16 {r[2:4]}, {vT1} offset:{4096*ks + 32*j + 512}')
A('s_waitcnt lgkmcnt(0)')
first = True
for ks in range(2):
    for j in range(4):
        b = vBm[4*(j & 1):4*(j & 1)+4]
        for k in range(4): A(f'v_and_b32 {b[k]}, {vMk[j]}, {vCc[4*ks+k]}')
        A(f'v_mfma_f32_16x16x32_bf16 {vD}, {vMrA[16*ks+4*j:16*ks+4*j+4]}, {b}, {0 if first else vD}'); first = False
for r in range(4): tagf(vD[r], vD[r], vTg)
set_exec(M_N4); A(f'global_store_dwordx4 {vSt}, {vD}, {pWS} sc1'); set_exec(-1)
stamp(2)
pure_probe(1)
poll(22, [f'global_load_dword {vRw[i]}, {vGa[i]}, {pWS} sc1' for i in range(8)], [vRw[i] for i in range(8)], [vRx[i] for i in range(8)], sT10, 0x3f, vCH)
for a, b in ((0, 1), (2, 3), (4, 5), (6, 7), (0, 2), (4, 6), (0, 4)): A(f'v_add_f32 {vRx[a]}, {vRx[a]}, {vRx[b]}')
rnd(vMod, vRx[0])
A(f'v_add_f32 {vT0}, 1.0, {vMod}'); rnd(vT0, vT0)
A(f'v_cmp_eq_u32 vcc, 2, {vQ}'); A(f'v_cndmask_b32 {vT0}, {vMod}, {vT0}, vcc'); A(f'v_or_b32 {vT0}, {sT16}, {vT0}')
set_exec(0x0000ffffffff0000)
lstore([f'global_store_dword {vMVs}, {vT0}, {pLB}'])
set_exec(-1)
A(f'v_mov_b32 {vGb}, {vMod}'); A(f'v_mov_b32 {vT1}, {vMod}'); A(f'v_permlane16_swap_b32 {vT1}, {vGb}'); A(f'v_mov_b32 {vT1}, {vGb}'); A(f'v_permlane32_swap_b32 {vT1}, {vGb}')
stamp(3)
def reduce32(code, tag, goff):
    poll(code, [f'global_load_dwordx4 {vRw[0:4]}, {vB1a}, {pLB} sc1', f'global_load_dwordx4 {vRw[4:8]}, {vB1b}, {pLB} sc1'], [vRw[i] for i in range(8)], [vRx[i] for i in range(8)], tag, 0x3f, vCH)
    for i in range(4): A(f'v_add_f32 {vRx[i]}, {vRx[i]}, {vRx[4+i]}')
    A(f'v_permlane32_swap_b32 {vRx[0]}, {vRx[1]}'); A(f'v_permlane32_swap_b32 {vRx[2]}, {vRx[3]}')
    A(f'v_add_f32 {vRx[0]}, {vRx[0]}, {vRx[1]}'); A(f'v_add_f32 {vRx[2]}, {vRx[2]}, {vRx[3]}')
    A(f'v_permlane16_swap_b32 {vRx[0]}, {vRx[2]}'); A(f'v_add_f32 {vRx[0]}, {vRx[0]}, {vRx[2]}')
    dpp('v_add_f32', vRx[0], vRx[0], vRx[0], 'row_ror:4'); dpp('v_add_f32', vRx[0], vRx[0], vRx[0], 'row_ror:8')
    tagf(vRx[0], vRx[0], vTg)
    set_exec(M_N4)
    if goff: A(f'v_add_u32 {vG2s}, {goff}, {vG2s}')
    A(f'global_store_dword {vG2s}, {vRx[0]}, {pWS} sc1'); set_exec(-1)
def gather8(code):
    poll(code, [f'global_load_dword {vRw[0]}, {vG2l}, {pWS} sc1', f'global_load_dword {vRw[1]}, {vG2l}, {pWS} offset:512 sc1'], [vRw[0], vRw[1]], [vRx[0], vRx[1]], sT10, 0x3f, vCH)
    A(f'v_add_f32 {vRx[0]}, {vRx[0]}, {vRx[1]}'); xrow_allred('v_add_f32', vRx[0], vT0)
    rnd(vRx[0], vRx[0])
reduce32(23, sT10, 0)
stamp(4)
gather8(24)
stamp(5)
A(f'v_mul_f32 {vRx[0]}, {vMod}, {vRx[0]}'); rnd(vRx[0], vRx[0])
A(f'v_add_f32 {vXc}, {vXc}, {vRx[0]}'); rnd(vXc, vXc)
A(f'v_or_b32 {vT0}, {sT16}, {vXc}')
set_exec(0xffff)
lstore([f'global_store_dword {vX2s}, {vT0}, {pLB}'])
set_exec(-1)
stamp(6)
A(f'v_add_u32 {vG2s}, {G3 - G2}, {vG2s}'); A(f'v_add_u32 {vG2l}, {G3 - G2}, {vG2l}')
reduce32(25, sT10b, 0)
stamp(7)
A(f's_and_b32 s56, {sT}, 7'); A(f's_cmp_eq_u32 s56, {sG}'); A('s_cbranch_scc0 L_aux_end')
gather8(26)
A(f'v_mul_f32 {vRx[0]}, {vGb}, {vRx[0]}'); rnd(vRx[0], vRx[0])
A(f'v_add_f32 {vXc}, {vXc}, {vRx[0]}'); A(f'v_cvt_pk_bf16_f32 {vXc}, {vXc}, {vXc}')
set_exec(0xffff); A(f'global_store_short {vOut}, {vXc}, {pOUT}')
A('s_cmp_eq_u32 s2, 0'); A('s_cbranch_scc0 L_aux_end2')
set_exec(1); A(f'v_mov_b32 {vT0}, {EP}'); A(f'v_mov_b32 {vT1}, {sE}'); A(f'global_store_dword {vT0}, {vT1}, {pWS} sc1')
LAB('L_aux_end2')
set_exec(-1)
stamp(8)
LAB('L_aux_end')
end_wave()
vg_aux = V.hi

for sl, ins, bk in slow_paths:
    LAB(sl)
    for x in ins: A(x)
    A(f's_branch {bk}')
LAB('L_fail')
if CFG['dbgfail']:
    set_exec(1)
    A(f'v_mov_b32 v1, 128'); A(f's_lshl_b32 s56, s2, 16'); A(f's_lshl_b32 s57, {sWAVE}, 8'); A('s_or_b32 s56, s56, s57'); A(f's_or_b32 s56, s56, {sTMP}'); A('v_mov_b32 v2, s56')
    A(f'global_store_dword v1, v2, {pDBG} sc1')
    set_exec(-1)
if CFG['stamps']:
    LAB('L_stamps')
    A('s_waitcnt lgkmcnt(0)')
    A('v_mov_b32 v2, 0')
    for i in range(16): A(f'v_writelane_b32 v2, s{64+2*i}, {i}')
    A('s_mul_i32 s56, s2, 6'); A(f's_add_u32 s56, s56, {sWAVE}'); A('s_lshl_b32 s56, s56, 6'); A(f's_add_u32 s56, s56, {STAMPS}')
    A('v_lshl_add_u32 v1, v0, 2, s56')
    set_exec(0xffff); A(f'global_store_dword v1, v2, {pWS}')
LAB('L_exit')
A('s_endpgm')
LAB('L_codeend')

body = pad_hazards(L)
vg = max(vg_compute, vg_loader, vg_aux)
vg = (vg + 7) // 8 * 8
hdr = open('cdna_kernels/' + KN + '.s.ref').read().split('; Override launch')[0]
name = KN + '_kernel'
txt = hdr + f"""; @launch grid=(256,1,1) block=(384,1,1) lds={LDS_BYTES}
.amdgcn_target "amdgcn-amd-amdhsa--gfx950"
.text
.globl {name}
.p2align 8
.type {name},@function
{name}:
""" + '\n'.join(body) + f"""
.section .rodata,"a"
.p2align 6
.amdhsa_kernel {name}
  .amdhsa_next_free_vgpr {vg}
  .amdhsa_next_free_sgpr 96
  .amdhsa_accum_offset {vg}
  .amdhsa_group_segment_fixed_size 0
  .amdhsa_kernarg_size 112
  .amdhsa_user_sgpr_count 2
  .amdhsa_user_sgpr_kernarg_segment_ptr 1
  .amdhsa_system_sgpr_workgroup_id_x 1
  .amdhsa_float_denorm_mode_32 3
.end_amdhsa_kernel
"""
open(OUT, 'w').write(txt)
print('vgprs', vg_compute, vg_loader, vg_aux, 'lines', len(body), file=sys.stderr)
```

```python
import sys, json
from kasm import pad_hazards, Alloc, Reg

KN = 'adaLN_cond__sliding_block_cached__glu_gated_glu__decode'
CFG = dict(dbgtime=0, W=20, stamps=0, order='MR,WO,|,GU,DN', limit=200000, pf=1, gateq=0, ntM=1, dbgfail=1)
for a in sys.argv[2:]:
    k, v = a.split('=')
    CFG[k] = int(v) if v.lstrip('-').isdigit() else v
OUT = sys.argv[1]

EP = 0; S_M = 0x1000; S_MR = 0x10000; G2 = 0x20000; G3 = 0x28000
LB0 = 0x40000; LBS = 0x28000
H_ = 0; MV = 0x800; X2 = 0x1800; MLG = 0x2000; PX = 0x2800; Q_ = 0x4000; A_ = 0x8000; B1 = 0x18000
STAMPS = 0x200000
WQ = 0; KK = 0x4000; VV = 0xC000; WO = 0x14000; MR = 0x18000; GU = 0x1A000; DN = 0x1E000
QL = 0x20000; PL = 0x20400; HL = 0x20800; MLL = 0x20C00; FLG = 0x20D00
F_LP = FLG; F_PW = FLG + 4; F_PURE = FLG + 8; F_QF = FLG + 16; F_PF = FLG + 32
LDS_BYTES = 0x20E00
sWAVE, sG, sT, sE, sT10, sT16, sT10b = 's3', 's4', 's5', 's6', 's7', 's8', 's9'
sPUR, sEXP, sCNT, sTMP = 's[10:11]', 's[12:13]', 's14', 's15'
pX, pK, pV, pWQ, pWO, pBX, pWG, pWU, pWD, pC, pWM, pOUT, pDBG, pWS = [f's[{16+2*i}:{17+2*i}]' for i in range(14)]
pLB = 's[44:45]'; sPURE = 's46'; sMASK = 's47'; sSEL = 's48'; sHI = 's49'; sL2E = 's50'
def lo(p): return 's' + p[2:-1].split(':')[0]
def hi(p): return 's' + p[2:-1].split(':')[1]

L = []
def A(x): L.append('    ' + x)
def LAB(x): L.append(x + ':')
uid = [0]
def nl(p='L'):
    uid[0] += 1; return f'{p}_{uid[0]}'
slow_paths = []

def stamp(i):
    if CFG['stamps']: A(f's_memrealtime s[{64+2*i}:{65+2*i}]')
def set_exec(mask):
    if mask == -1: A('s_mov_b64 exec, -1'); return
    l, h = mask & 0xffffffff, mask >> 32
    if h == 0 and l <= 64: A(f's_mov_b64 exec, {l}'); return
    A(f's_mov_b32 exec_lo, {l:#x}'); A(f's_mov_b32 exec_hi, {h:#x}')
M_N0 = 0x0001000100010001; M_N4 = 0x000F000F000F000F; M_N8 = 0x00FF00FF00FF00FF; M_N2 = 0x0003000300030003; M_Q0 = 0x1111111111111111

def rnd(d, s):
    A(f'v_cvt_pk_bf16_f32 {d}, {s}, {s}'); A(f'v_and_b32 {d}, {sHI}, {d}')
def dpp(op, d, a, b, ctl, bank=0xf):
    A(f'{op}_dpp {d}, {a}, {b} {ctl} row_mask:0xf bank_mask:{bank:#x}')
def row_allred(op, regs):
    for sh in (8, 4, 2, 1):
        for r in regs: dpp(op, r, r, r, f'row_ror:{sh}')
def xrow_allred(op, v, t):
    A(f'v_mov_b32 {t}, {v}'); A(f'v_permlane16_swap_b32 {v}, {t}'); A(f'{op} {v}, {v}, {t}')
    A(f'v_mov_b32 {t}, {v}'); A(f'v_permlane32_swap_b32 {v}, {t}'); A(f'{op} {v}, {v}, {t}')
def fail_branch(code, loop):
    A(f's_sub_u32 {sCNT}, {sCNT}, 1'); A(f's_cbranch_scc0 {loop}')
    if CFG['dbgfail']: A(f's_mov_b32 {sTMP}, {code}')
    A('s_branch L_fail')
def poll(code, loads, raw, out, tag, maskbits, chk, full=()):
    lp, ok = nl('P'), nl('OK')
    A(f's_mov_b32 {sCNT}, {CFG["limit"]}')
    LAB(lp)
    for x in loads: A(x)
    A('s_waitcnt vmcnt(0)')
    for r, o in zip(raw, out): A(f'v_xor_b32 {o}, {tag}, {r}')
    o = list(out)
    if len(o) == 2: A(f'v_or_b32 {chk}, {o[0]}, {o[1]}'); o = []
    else:
        A(f'v_or3_b32 {chk}, {o[0]}, {o[1]}, {o[2]}'); o = o[3:]
    while len(o) >= 2: A(f'v_or3_b32 {chk}, {chk}, {o[0]}, {o[1]}'); o = o[2:]
    if o: A(f'v_or_b32 {chk}, {chk}, {o[0]}')
    A(f'v_and_b32 {chk}, {maskbits:#x}, {chk}')
    for r in full: A(f'v_xor_b32 {r}, {sE}, {r}'); A(f'v_or_b32 {chk}, {chk}, {r}')
    A(f'v_cmp_ne_u32 vcc, 0, {chk}')
    A(f's_cbranch_vccz {ok}')
    fail_branch(code, lp)
    LAB(ok)
def lds_wait(code, vaddr, off, val, tmp, sleep=0):
    lp, ok = nl('W'), nl('OK')
    A(f's_mov_b32 {sCNT}, {CFG["limit"]}')
    LAB(lp)
    A(f'ds_read_b32 {tmp}, {vaddr} offset:{off}')
    A('s_waitcnt lgkmcnt(0)')
    A(f'v_readfirstlane_b32 {sTMP}, {tmp}')
    A(f's_cmp_ge_u32 {sTMP}, {val}')
    A(f's_cbranch_scc1 {ok}')
    if sleep: A(f's_sleep {sleep}')
    fail_branch(code, lp)
    LAB(ok)
def lds_wait4(code, vaddr, off, fl, reads):
    lp, ok = nl('W'), nl('OK')
    A(f's_mov_b32 {sCNT}, {CFG["limit"]}')
    LAB(lp)
    A(f'ds_read_b128 {fl}, {vaddr} offset:{off}')
    for x in reads: A(x)
    A('s_waitcnt lgkmcnt(0)')
    A(f'v_and_b32 {fl[0]}, {fl[0]}, {fl[1]}'); A(f'v_and_b32 {fl[2]}, {fl[2]}, {fl[3]}'); A(f'v_and_b32 {fl[0]}, {fl[0]}, {fl[2]}')
    A(f'v_cmp_eq_u32 vcc, 0, {fl[0]}')
    A(f's_cbranch_vccz {ok}')
    fail_branch(code, lp)
    LAB(ok)
def pure_read():
    return f'ds_read_b32 {vPU}, {vZ} offset:{F_PURE - FLG}'
def pure_update():
    A(f'v_readfirstlane_b32 {sPURE}, {vPU}')
def lstore(instrs):
    sl, bk = nl('SL'), nl('BK')
    A(f's_cmp_eq_u32 {sPURE}, 1'); A(f's_cbranch_scc0 {sl}')
    for x in instrs: A(x)
    LAB(bk)
    slow_paths.append((sl, [x + ' sc1' for x in instrs], bk))
def tagf(d, s, vtag): A(f'v_and_or_b32 {d}, {s}, {sMASK}, {vtag}')
def epoch_consts():
    A(f's_add_u32 {sE}, {sE}, 1')
    A(f's_and_b32 {sT10}, {sE}, 0x3f'); A(f's_and_b32 {sT16}, {sE}, 0xffff'); A(f's_xor_b32 {sT10b}, {sT10}, 0x20')
def common_consts():
    A(f's_mov_b32 {sMASK}, 0xffffffc0'); A(f's_mov_b32 {sSEL}, 0x07060302'); A(f's_mov_b32 {sHI}, 0xffff0000'); A(f's_mov_b32 {sL2E}, 0x3fb8aa3b')
    A(f's_mov_b32 {sPURE}, 0')
def lb_ptr():
    A(f's_mul_i32 s53, {sG}, {LBS}'); A(f's_add_u32 s53, s53, {LB0}')
    A(f's_add_u32 {lo(pLB)}, {lo(pWS)}, s53'); A(f's_addc_u32 {hi(pLB)}, {hi(pWS)}, 0')
def silu_bf(d, c, t1):
    A(f'v_mul_f32 {t1}, {sL2E}, {c}'); A(f'v_exp_f32 {t1}, -{t1}'); A(f'v_add_f32 {t1}, 1.0, {t1}'); A(f'v_rcp_f32 {t1}, {t1}'); A(f'v_mul_f32 {d}, {c}, {t1}')
def end_wave():
    if CFG['stamps']: A('s_branch L_stamps')
    else: A('s_endpgm')

order = CFG['order'].split(',')
MK = dict(WQ=1, K0=2, V0=6)
n = 10
for o in order:
    if o != '|': MK[o] = n; n += 1

LAB('L_start')
stamp(0)
if CFG['dbgtime']: A('s_memrealtime s[92:93]')
A('s_cmp_ge_u32 s2, 256'); A('s_cbranch_scc1 L_exit')
A('s_load_dwordx16 s[16:31], s[0:1], 0'); A('s_load_dwordx8 s[32:39], s[0:1], 64'); A('s_load_dwordx4 s[40:43], s[0:1], 96')
A('v_lshrrev_b32 v1, 6, v0'); A('v_and_b32 v0, 63, v0'); A(f'v_readfirstlane_b32 {sWAVE}, v1')
A(f's_and_b32 {sG}, s2, 7'); A(f's_lshr_b32 {sT}, s2, 3')
A(f's_cmp_eq_u32 {sWAVE}, 5'); A('s_cbranch_scc1 L_aux')
A(f's_cmp_eq_u32 {sWAVE}, 4'); A('s_cbranch_scc1 L_loader')
vL = 'v0'

V = Alloc('v', 1, 200)
vN, vQ, vR, vC, vT0, vT1, vT2, vT3, vCH, vZ = [V() for _ in range(10)]
vTg, vTgb, vPU = V(), V(), V()
A(f's_and_b32 s54, {sT}, 7')
A(f's_lshr_b32 s55, {sT}, 3')
A(f's_cmp_eq_u32 {sWAVE}, 0'); A('s_cbranch_scc0 L_c_not0')
m0 = V.mark()
vW = V(16); vC0, vC1, vRow, vRow2 = V(), V(), V(), V()
A(f'v_mul_u32_u24 {vRow}, 6144, {vL}'); A(f'v_add_u32 {vRow2}, {64*6144}, {vRow}'); A(f'v_lshlrev_b32 {vT0}, 1, {vL}')
A(f's_mul_i32 s56, s55, {128*6144}'); A(f's_lshl_b32 s57, {sG}, 7'); A('s_add_u32 s56, s56, s57'); A('s_lshl_b32 s57, s54, 4'); A('s_add_u32 s56, s56, s57')
A('s_lshl_b32 s57, s55, 8'); A(f'v_add_u32 {vT0}, s57, {vT0}')
A('s_waitcnt lgkmcnt(0)')
A(f's_add_u32 s58, {lo(pWM)}, s56'); A(f's_addc_u32 s59, {hi(pWM)}, 0')
nt = ' nt' if CFG['ntM'] else ''
A(f'global_load_ushort {vC0}, {vT0}, {pC}'); A(f'global_load_ushort {vC1}, {vT0}, {pC} offset:128')
A(f'global_load_dwordx4 {vW[0:4]}, {vRow}, s[58:59]{nt}'); A(f'global_load_dwordx4 {vW[4:8]}, {vRow}, s[58:59] offset:1024{nt}')
A(f'global_load_dwordx4 {vW[8:12]}, {vRow2}, s[58:59]{nt}'); A(f'global_load_dwordx4 {vW[12:16]}, {vRow2}, s[58:59] offset:1024{nt}')
A(f's_load_dword {sE}, {pWS}, {EP}')
common_consts(); lb_ptr()
A('s_barrier')
stamp(1)
vSa, vSb, vSc, vSd = V(), V(), V(), V()
vAc = V(16)
vPub = V()
A(f'v_lshrrev_b32 {vPub}, 5, {vL}')
for sh, w in ((4, 1), (3, 2), (2, 3)):
    A(f'v_bfe_u32 {vT1}, {vL}, {sh}, 1'); A(f'v_lshl_add_u32 {vPub}, {vT1}, {w}, {vPub}')
A(f's_lshl_b32 s56, s2, 7'); A(f's_add_u32 s56, s56, {S_M}'); A(f'v_lshl_add_u32 {vPub}, {vPub}, 2, s56')
A('s_waitcnt vmcnt(4)')
for c, slo, shi in ((vC0, vSa, vSb), (vC1, vSc, vSd)):
    A(f'v_lshlrev_b32 {c}, 16, {c}'); silu_bf(c, c, vT1)
    A(f'v_cvt_pk_bf16_f32 {c}, {c}, {c}'); A(f'v_and_b32 {shi}, {sHI}, {c}'); A(f'v_lshrrev_b32 {slo}, 16, {c}')
A('s_waitcnt lgkmcnt(0)'); epoch_consts(); A(f'v_mov_b32 {vTg}, {sT10}')
for b in range(2):
    for a in range(2):
        A(f's_waitcnt vmcnt({3 - (2*b + a)})')
        slo, shi = ((vSa, vSb), (vSc, vSd))[b]
        for j in range(4):
            w = vW[8*b + 4*a + j]
            for k, s in ((0, slo), (1, shi)):
                d = vAc[8*a + 2*j + k]
                A(f'v_dot2_f32_bf16 {d}, {w}, {s}, {0 if b == 0 else d}')
stamp(2)
for i in range(8): A(f'v_permlane32_swap_b32 {vAc[2*i]}, {vAc[2*i+1]}')
for i in range(8): A(f'v_add_f32 {vAc[2*i]}, {vAc[2*i]}, {vAc[2*i+1]}')
for i in range(4): A(f'v_permlane16_swap_b32 {vAc[4*i]}, {vAc[4*i+2]}')
for i in range(4): A(f'v_add_f32 {vAc[4*i]}, {vAc[4*i]}, {vAc[4*i+2]}')
dpp('v_add_f32', vAc[1], vAc[0], vAc[0], 'row_ror:8', 0x3); dpp('v_add_f32', vAc[2], vAc[8], vAc[8], 'row_ror:8', 0x3)
dpp('v_add_f32', vAc[1], vAc[4], vAc[4], 'row_ror:8', 0xc); dpp('v_add_f32', vAc[2], vAc[12], vAc[12], 'row_ror:8', 0xc)
dpp('v_add_f32', vAc[3], vAc[1], vAc[1], 'row_half_mirror', 0x5); dpp('v_add_f32', vAc[3], vAc[2], vAc[2], 'row_half_mirror', 0xa)
dpp('v_add_f32', vAc[3], vAc[3], vAc[3], 'quad_perm:[1,0,3,2]'); dpp('v_add_f32', vAc[3], vAc[3], vAc[3], 'quad_perm:[2,3,0,1]')
tagf(vAc[3], vAc[3], vTg)
set_exec(M_Q0)
A(f'global_store_dword {vPub}, {vAc[3]}, {pWS} sc1')
set_exec(-1)
stamp(3)
A('s_branch L_c_common')
V.release(m0)

LAB('L_c_not0')
A(f's_cmp_eq_u32 {sWAVE}, 1'); A('s_cbranch_scc0 L_c_23')
m0 = V.mark()
vX = V(4); vXd, vMean, vVar, vAd, vHs = V(), V(), V(), V(), V(); vU = V(8); vRw = V(2); vSa, vCa = V(), V()
A(f'v_lshlrev_b32 {vT0}, 4, {vL}')
A(f'v_and_b32 {vT1}, 15, {vL}'); A(f's_lshl_b32 s56, {sT}, 4'); A(f'v_add_u32 {vT1}, s56, {vT1}')
A(f'v_lshlrev_b32 {vHs}, 2, {vT1}'); A(f'v_lshlrev_b32 {vT1}, 1, {vT1}')
A('s_waitcnt lgkmcnt(0)')
A(f'global_load_dwordx4 {vX}, {vT0}, {pX}'); A(f'global_load_ushort {vXd}, {vT1}, {pX}')
A(f's_load_dword {sE}, {pWS}, {EP}')
common_consts(); lb_ptr()
A('s_barrier')
A(f'v_bfe_u32 {vT0}, {vL}, 3, 1'); A(f'v_lshrrev_b32 {vT1}, 4, {vL}'); A(f'v_lshl_add_u32 {vT0}, {vT1}, 3, {vT0}')
A(f's_and_b32 s56, {sT}, 3'); A('s_lshl_b32 s56, s56, 4'); A(f's_lshr_b32 s57, {sT}, 2'); A('s_add_u32 s56, s56, s57'); A('s_lshl_b32 s56, s56, 7'); A(f's_add_u32 s56, s56, {S_M}')
A(f'v_lshlrev_b32 {vT0}, 10, {vT0}'); A(f'v_and_b32 {vT1}, 7, {vL}'); A(f'v_lshlrev_b32 {vT1}, 2, {vT1}'); A(f'v_add3_u32 {vAd}, {vT0}, {vT1}, s56')
A('s_waitcnt vmcnt(0)')
for j in range(4):
    A(f'v_lshlrev_b32 {vU[2*j]}, 16, {vX[j]}'); A(f'v_and_b32 {vU[2*j+1]}, {sHI}, {vX[j]}')
A(f'v_add_f32 {vMean}, {vU[0]}, {vU[1]}')
for j in range(2, 8): A(f'v_add_f32 {vMean}, {vMean}, {vU[j]}')
row_allred('v_add_f32', [vMean]); xrow_allred('v_add_f32', vMean, vT0)
A(f'v_mul_f32 {vMean}, 0x3b000000, {vMean}')
for j in range(8): A(f'v_sub_f32 {vU[j]}, {vU[j]}, {vMean}')
A(f'v_mul_f32 {vVar}, {vU[0]}, {vU[0]}')
for j in range(1, 8): A(f'v_fmac_f32 {vVar}, {vU[j]}, {vU[j]}')
row_allred('v_add_f32', [vVar]); xrow_allred('v_add_f32', vVar, vT0)
A(f'v_mul_f32 {vVar}, 0x3b000000, {vVar}')
rnd(vMean, vMean); rnd(vVar, vVar)
A(f'v_add_f32 {vVar}, 0x3727c5ac, {vVar}'); rnd(vVar, vVar)
A(f'v_sqrt_f32 {vVar}, {vVar}'); rnd(vVar, vVar)
A(f'v_lshlrev_b32 {vXd}, 16, {vXd}'); A(f'v_sub_f32 {vXd}, {vXd}, {vMean}'); rnd(vXd, vXd)
A(f'v_rcp_f32 {vT0}, {vVar}'); A(f'v_mul_f32 {vT1}, {vXd}, {vT0}'); A(f'v_fma_f32 {vT2}, -{vT1}, {vVar}, {vXd}'); A(f'v_fma_f32 {vXd}, {vT2}, {vT0}, {vT1}')
rnd(vXd, vXd)
A('s_waitcnt lgkmcnt(0)'); epoch_consts()
A(f'v_mov_b32 {vZ}, {FLG}')
stamp(2)
poll(1, [f'global_load_dword {vRw[0]}, {vAd}, {pWS} sc1', f'global_load_dword {vRw[1]}, {vAd}, {pWS} offset:32 sc1', pure_read()], [vRw[0], vRw[1]], [vSa, vCa], sT10, 0x3f, vCH)
stamp(3)
A(f'v_permlane32_swap_b32 {vSa}, {vCa}'); A(f'v_add_f32 {vSa}, {vSa}, {vCa}')
A(f'v_mov_b32 {vCa}, {vSa}'); A(f'v_permlane16_swap_b32 {vSa}, {vCa}'); A(f'v_add_f32 {vSa}, {vSa}, {vCa}')
rnd(vSa, vSa)
A(f'v_mov_b32 {vCa}, {vSa}'); A(f'v_permlane32_swap_b32 {vSa}, {vCa}')
A(f'v_add_f32 {vCa}, 1.0, {vCa}'); rnd(vCa, vCa)
A(f'v_mul_f32 {vCa}, {vXd}, {vCa}'); rnd(vCa, vCa)
A(f'v_add_f32 {vCa}, {vCa}, {vSa}'); rnd(vCa, vCa)
A(f'v_or_b32 {vCa}, {sT16}, {vCa}')
A('s_waitcnt lgkmcnt(0)'); pure_update()
set_exec(0xffff)
lstore([f'global_store_dword {vHs}, {vCa}, {pLB} offset:{H_}'])
set_exec(-1)
A('s_branch L_c_common')
V.release(m0)

LAB('L_c_23')
A('s_waitcnt lgkmcnt(0)')
A(f's_load_dword {sE}, {pWS}, {EP}')
common_consts(); lb_ptr()
A('s_barrier')
A('s_waitcnt lgkmcnt(0)'); epoch_consts()

LAB('L_c_common')
A(f'v_mov_b32 {vTg}, {sT10}'); A(f'v_mov_b32 {vTgb}, {sT10b}'); A(f'v_mov_b32 {vZ}, {FLG}')
A(f'v_and_b32 {vN}, 15, {vL}'); A(f'v_lshrrev_b32 {vQ}, 4, {vL}'); A(f'v_bfe_u32 {vR}, {vL}, 2, 2'); A(f'v_and_b32 {vC}, 3, {vL}')
v8qr = V()
A(f'v_lshl_add_u32 {v8qr}, {vQ}, 3, {vR}')
mQ = V.mark()
vWq = V(16); vHB = V(16); vAq = V(4); vH = V(2); vHx = V(2); vA1, vA2, vA3, vA4 = V(), V(), V(), V()
A(f's_lshl_b32 s56, {sWAVE}, 5'); A(f'v_lshlrev_b32 {vA1}, 7, {v8qr}'); A(f'v_lshl_add_u32 {vA1}, {vC}, 3, {vA1}'); A(f'v_add_u32 {vA1}, s56, {vA1}')
A('s_lshl_b32 s56, s55, 9'); A(f'v_lshl_add_u32 {vA2}, {vL}, 3, s56')
A(f's_lshl_b32 s56, {sWAVE}, 8'); A(f's_add_u32 s56, s56, {HL}'); A(f'v_lshl_add_u32 {vA3}, {vL}, 2, s56'); A(f'v_lshl_add_u32 {vA4}, {vQ}, 4, s56')
vQst = V()
A('s_lshl_b32 s56, s55, 11'); A('s_lshl_b32 s57, s54, 8'); A('s_add_u32 s56, s56, s57'); A(f's_lshl_b32 s57, {sWAVE}, 6'); A('s_add_u32 s56, s56, s57'); A(f's_add_u32 s56, s56, {Q_}')
A(f'v_lshl_add_u32 {vQst}, {vQ}, 4, s56')
lds_wait(2, vZ, F_PW - FLG, 1, vT0)
lds_wait(3, vZ, F_LP - FLG, MK['WQ'], vT0)
for ks in range(4):
    A(f'ds_read_b64_tr_b16 {vWq[4*ks:4*ks+2]}, {vA1} offset:{WQ + ks*4096}'); A(f'ds_read_b64_tr_b16 {vWq[4*ks+2:4*ks+4]}, {vA1} offset:{WQ + ks*4096 + 512}')
A('s_waitcnt lgkmcnt(0)')
stamp(4)
poll(4, [f'global_load_dwordx2 {vH}, {vA2}, {pLB} offset:{H_} sc1', pure_read()], [vH[0], vH[1]], [vHx[0], vHx[1]], sT16, 0xffff, vCH)
stamp(5)
A(f'v_perm_b32 {vT0}, {vHx[1]}, {vHx[0]}, {sSEL}')
A(f'ds_write_b32 {vA3}, {vT0}')
for ks in range(4): A(f'ds_read_b128 {vHB[4*ks:4*ks+4]}, {vA4} offset:{64*ks}')
A('s_waitcnt lgkmcnt(0)'); pure_update()
for ks in range(4): A(f'v_mfma_f32_16x16x32_bf16 {vAq}, {vWq[4*ks:4*ks+4]}, {vHB[4*ks:4*ks+4]}, {0 if ks == 0 else vAq}')
for r in range(4): tagf(vAq[r], vAq[r], vTg)
set_exec(M_N0)
lstore([f'global_store_dwordx4 {vQst}, {vAq}, {pLB}'])
set_exec(-1)
stamp(6)
V.release(mQ)
mA = V.mark()
vK = V(32); vQB = V(16); vS = V(8); vFl = V(4); vQr = V(8); vQx = V(8)
vA1, vA2, vA3, vA4 = V(), V(), V(), V(); vKa = V(4, 1)
A(f'v_xor_b32 {vT0}, {vQ}, {vN}'); A(f'v_lshlrev_b32 {vT0}, 4, {vT0}'); A(f'v_lshl_add_u32 {vT0}, {vN}, 8, {vT0}')
A(f's_lshl_b32 s56, {sWAVE}, 13'); A(f's_add_u32 s56, s56, {KK}'); A(f'v_add_u32 {vKa[0]}, s56, {vT0}')
for ks in range(1, 4): A(f'v_xor_b32 {vKa[ks]}, {64*ks}, {vKa[0]}')
A(f'v_lshrrev_b32 {vT0}, 5, {vL}'); A(f'v_and_b32 {vT1}, 31, {vL}'); A(f'v_lshlrev_b32 {vA1}, 12, {vT0}'); A(f'v_lshl_add_u32 {vA1}, {vT1}, 4, {vA1}')
A(f's_lshl_b32 s56, {sWAVE}, 9'); A(f's_add_u32 s56, s56, {Q_}'); A(f'v_add_u32 {vA1}, s56, {vA1}')
A(f's_lshl_b32 s56, {sWAVE}, 8'); A(f's_add_u32 s56, s56, {QL}'); A(f'v_lshlrev_b32 {vA2}, 3, {vT1}'); A(f'v_lshl_add_u32 {vA2}, {vT0}, 2, {vA2}'); A(f'v_add_u32 {vA2}, s56, {vA2}')
A(f'v_lshlrev_b32 {vA3}, 8, {vC}'); A(f'v_lshl_add_u32 {vA3}, {vQ}, 4, {vA3}'); A(f'v_add_u32 {vA3}, {QL}, {vA3}')
vFw = V(); vOne = V()
A(f's_lshl_b32 s56, {sWAVE}, 2'); A(f's_add_u32 s56, s56, {FLG}'); A(f'v_mov_b32 {vFw}, s56'); A(f'v_mov_b32 {vOne}, 1')
vPw, vMw, vMr = V(), V(), V()
A(f's_lshl_b32 s56, {sWAVE}, 6'); A(f's_add_u32 s56, s56, {PL}'); A(f'v_lshlrev_b32 {vPw}, 8, {vC}'); A(f'v_lshl_add_u32 {vPw}, {vQ}, 3, {vPw}'); A(f'v_add_u32 {vPw}, s56, {vPw}')
A(f's_lshl_b32 s56, {sWAVE}, 5'); A(f's_add_u32 s56, s56, {MLL}'); A(f'v_lshl_add_u32 {vMw}, {vC}, 3, s56')
A(f'v_lshlrev_b32 {vMr}, 3, {vC}'); A(f'v_add_u32 {vMr}, {MLL}, {vMr}')
A(f's_add_u32 s57, {sWAVE}, {MK["K0"]}')
lds_wait(5, vZ, F_LP - FLG, 's57', vT0)
for T in range(2):
    for ks in range(4): A(f'ds_read_b128 {vK[16*T+4*ks:16*T+4*ks+4]}, {vKa[ks]} offset:{4096*T}')
A('s_waitcnt lgkmcnt(0)')
stamp(7)
poll(6, [f'global_load_dwordx4 {vQr[0:4]}, {vA1}, {pLB} sc1', f'global_load_dwordx4 {vQr[4:8]}, {vA1}, {pLB} offset:2048 sc1'], [vQr[i] for i in range(8)], [vQx[i] for i in range(8)], sT10, 0x3f, vCH)
stamp(8)
for i in range(4): A(f'v_add_f32 {vQx[i]}, {vQx[i]}, {vQx[4+i]}')
A(f'v_permlane32_swap_b32 {vQx[0]}, {vQx[2]}'); A(f'v_permlane32_swap_b32 {vQx[1]}, {vQx[3]}')
A(f'v_add_f32 {vQx[0]}, {vQx[0]}, {vQx[2]}'); A(f'v_add_f32 {vQx[1]}, {vQx[1]}, {vQx[3]}')
A(f'v_cvt_pk_bf16_f32 {vT0}, {vQx[0]}, {vQx[1]}')
A(f'ds_write_b32 {vA2}, {vT0}'); A(f'ds_write_b32 {vFw}, {vOne} offset:{F_QF - FLG}')
lds_wait4(7, vZ, F_QF - FLG, vFl, [f'ds_read_b128 {vQB[4*ks:4*ks+4]}, {vA3} offset:{64*ks}' for ks in range(4)] + [pure_read()])
pure_update()
for ks in range(4):
    for T in range(2): A(f'v_mfma_f32_16x16x32_bf16 {vS[4*T:4*T+4]}, {vK[16*T+4*ks:16*T+4*ks+4]}, {vQB[4*ks:4*ks+4]}, {0 if ks == 0 else vS[4*T:4*T+4]}')
vP = V(4); vML4 = V(4); vML = vML4[0:2]; vM = vML4[0]; vLs = vML4[1]
A('s_mov_b32 s56, 0x3db504f3')
for rep in range(2):
    for i in range(4): A(f'v_cvt_pk_bf16_f32 {vP[i]}, {vS[2*i]}, {vS[2*i+1]}')
    for i in range(4):
        A(f'v_lshlrev_b32 {vS[2*i]}, 16, {vP[i]}'); A(f'v_and_b32 {vS[2*i+1]}, {sHI}, {vP[i]}')
    if rep == 0:
        for i in range(8): A(f'v_mul_f32 {vS[i]}, s56, {vS[i]}')
A(f'v_max3_f32 {vM}, {vS[0]}, {vS[1]}, {vS[2]}'); A(f'v_max3_f32 {vT0}, {vS[3]}, {vS[4]}, {vS[5]}'); A(f'v_max3_f32 {vM}, {vM}, {vS[6]}, {vS[7]}'); A(f'v_max_f32 {vM}, {vM}, {vT0}')
xrow_allred('v_max_f32', vM, vT0)
for i in range(8): A(f'v_sub_f32 {vS[i]}, {vS[i]}, {vM}')
for i in range(8): A(f'v_mul_f32 {vS[i]}, {sL2E}, {vS[i]}')
for i in range(8): A(f'v_exp_f32 {vS[i]}, {vS[i]}')
for i in range(4): A(f'v_cvt_pk_bf16_f32 {vP[i]}, {vS[2*i]}, {vS[2*i+1]}')
set_exec(M_N4)
A(f'ds_write_b64 {vPw}, {vP[0:2]}'); A(f'ds_write_b64 {vPw}, {vP[2:4]} offset:32')
set_exec(-1)
A(f'v_add_f32 {vLs}, {vS[0]}, {vS[1]}'); A(f'v_add_f32 {vT1}, {vS[2]}, {vS[3]}'); A(f'v_add_f32 {vT2}, {vS[4]}, {vS[5]}'); A(f'v_add_f32 {vT3}, {vS[6]}, {vS[7]}')
A(f'v_add_f32 {vLs}, {vLs}, {vT1}'); A(f'v_add_f32 {vT2}, {vT2}, {vT3}'); A(f'v_add_f32 {vLs}, {vLs}, {vT2}')
xrow_allred('v_add_f32', vLs, vT0)
set_exec(0xf)
A(f'ds_write_b64 {vMw}, {vML}'); A(f'ds_write_b32 {vFw}, {vOne} offset:{F_PF - FLG}')
set_exec(-1)
stamp(9)
vVa = V(2, 1); vAst = V(); vMc = V(8); vF = V(4); vO = V(8); vAcc = V(8); vVt = V(8)
vPB = vQB
A(f'v_and_b32 {vT0}, 1, {vQ}'); A(f'v_lshl_add_u32 {vT0}, {vT0}, 2, {vR}'); A(f'v_lshlrev_b32 {vT0}, 1, {vT0}')
A(f'v_lshrrev_b32 {vT1}, 1, {vC}'); A(f's_lshl_b32 s56, {sWAVE}, 2'); A(f'v_add_u32 {vT1}, s56, {vT1}')
A(f'v_and_b32 {vT2}, 1, {vC}'); A(f'v_lshlrev_b32 {vT2}, 3, {vT2}'); A(f'v_lshl_add_u32 {vT2}, {v8qr}, 8, {vT2}'); A(f'v_add_u32 {vT2}, {VV}, {vT2}')
for j in range(2):
    if j: A(f'v_add_u32 {vT1}, 2, {vT1}')
    A(f'v_xor_b32 {vT3}, {vT1}, {vT0}'); A(f'v_lshl_add_u32 {vVa[j]}, {vT3}, 4, {vT2}')
A(f's_lshl_b32 s56, {sT}, 11'); A(f's_lshl_b32 s57, {sWAVE}, 7'); A('s_add_u32 s56, s56, s57'); A(f's_add_u32 s56, s56, {A_}')
A(f'v_lshlrev_b32 {vAst}, 9, {vC}'); A(f'v_lshl_add_u32 {vAst}, {vQ}, 4, {vAst}'); A(f'v_add_u32 {vAst}, s56, {vAst}')
lds_wait4(8, vZ, F_PF - FLG, vFl, [f'ds_read_b64 {vMc[2*c:2*c+2]}, {vMr} offset:{32*c}' for c in range(4)] + [f'ds_read_b128 {vPB[4*c:4*c+4]}, {vA3} offset:{PL - QL + 64*c}' for c in range(4)])
A(f'v_max3_f32 {vM}, {vMc[0]}, {vMc[2]}, {vMc[4]}'); A(f'v_max_f32 {vM}, {vM}, {vMc[6]}')
for c in range(4): A(f'v_sub_f32 {vF[c]}, {vMc[2*c]}, {vM}')
for c in range(4): A(f'v_mul_f32 {vF[c]}, {sL2E}, {vF[c]}')
for c in range(4): A(f'v_exp_f32 {vF[c]}, {vF[c]}')
A(f'v_mul_f32 {vLs}, {vF[0]}, {vMc[1]}')
for c in range(1, 4): A(f'v_fmac_f32 {vLs}, {vF[c]}, {vMc[2*c+1]}')
sk = nl('S')
A(f's_cmp_eq_u32 {sWAVE}, 0'); A(f's_cbranch_scc0 {sk}')
tagf(vM, vM, vTg); tagf(vLs, vLs, vTg)
A(f'v_mov_b32 {vML4[2]}, {sE}'); A(f'v_mov_b32 {vML4[3]}, {sE}')
A(f's_lshl_b32 s56, {sT}, 6'); A(f's_add_u32 s56, s56, {MLG}'); A(f'v_lshl_add_u32 {vT0}, {vL}, 4, s56')
set_exec(0xf)
lstore([f'global_store_dwordx4 {vT0}, {vML4}, {pLB}'])
set_exec(-1)
LAB(sk)
stamp(10)
for c in range(4):
    lds_wait(9, vZ, F_LP - FLG, MK['V0'] + c, vT0)
    for j in range(2):
        A(f'ds_read_b64_tr_b16 {vVt[4*j:4*j+2]}, {vVa[j]} offset:{8192*c}'); A(f'ds_read_b64_tr_b16 {vVt[4*j+2:4*j+4]}, {vVa[j]} offset:{8192*c + 1024}')
    if c > 0:
        for i in range(8):
            A(f'v_mul_f32 {vO[i]}, {vF[0]}, {vAcc[i]}' if c == 1 else f'v_fmac_f32 {vO[i]}, {vF[c-1]}, {vAcc[i]}')
    A('s_waitcnt lgkmcnt(2)')
    A(f'v_mfma_f32_16x16x32_bf16 {vAcc[0:4]}, {vVt[0:4]}, {vPB[4*c:4*c+4]}, 0')
    A('s_waitcnt lgkmcnt(0)')
    A(f'v_mfma_f32_16x16x32_bf16 {vAcc[4:8]}, {vVt[4:8]}, {vPB[4*c:4*c+4]}, 0')
for i in range(8): A(f'v_fmac_f32 {vO[i]}, {vF[3]}, {vAcc[i]}')
for i in range(8): tagf(vO[i], vO[i], vTg)
set_exec(M_N4)
lstore([f'global_store_dwordx4 {vAst}, {vO[0:4]}, {pLB}', f'global_store_dwordx4 {vAst}, {vO[4:8]}, {pLB} offset:64'])
set_exec(-1)
stamp(11)
V.release(mA)
vMk = V(8, 1); vBst = V()
mW = V.mark()
vWo = V(16); vA1, vA2, vA3, vA4 = V(), V(), V(), V(); vMr4 = V(8); vMx = V(4); vAr = V(8); vAx = V(8); vOb = V(2); vBm = V(4); vD = V(4); vW1, vW2 = V(), V()
A('s_lshl_b32 s56, s55, 4'); A(f's_add_u32 s56, s56, {MLG}'); A(f'v_lshl_add_u32 {vA1}, {vN}, 6, s56')
A('s_lshl_b32 s56, s55, 9'); A('s_lshl_b32 s57, s54, 6'); A('s_add_u32 s56, s56, s57'); A(f's_add_u32 s56, s56, {A_}')
A(f'v_lshlrev_b32 {vA2}, 11, {vN}'); A(f'v_lshl_add_u32 {vA2}, {vQ}, 4, {vA2}'); A(f'v_add_u32 {vA2}, s56, {vA2}'); A(f'v_add_u32 {vA3}, 32768, {vA2}')
poll(10, [f'global_load_dwordx4 {vMr4[0:4]}, {vA1}, {pLB} sc1', f'global_load_dwordx4 {vMr4[4:8]}, {vA1}, {pLB} offset:1024 sc1'], [vMr4[i] for i in (0, 1, 4, 5)], [vMx[i] for i in range(4)], sT10, 0x3f, vCH, full=[vMr4[i] for i in (2, 3, 6, 7)])
A(f'v_max_f32 {vT0}, {vMx[0]}, {vMx[2]}'); row_allred('v_max_f32', [vT0])
A(f'v_sub_f32 {vW1}, {vMx[0]}, {vT0}'); A(f'v_sub_f32 {vW2}, {vMx[2]}, {vT0}'); A(f'v_mul_f32 {vW1}, {sL2E}, {vW1}'); A(f'v_mul_f32 {vW2}, {sL2E}, {vW2}')
A(f'v_exp_f32 {vW1}, {vW1}'); A(f'v_exp_f32 {vW2}, {vW2}')
A(f'v_mul_f32 {vT0}, {vW1}, {vMx[1]}'); A(f'v_fmac_f32 {vT0}, {vW2}, {vMx[3]}'); row_allred('v_add_f32', [vT0])
A(f'v_rcp_f32 {vT0}, {vT0}'); A(f'v_mul_f32 {vW1}, {vW1}, {vT0}'); A(f'v_mul_f32 {vW2}, {vW2}, {vT0}')
A(f'v_lshl_add_u32 {vT0}, {vQ}, 2, {vR}'); A(f'v_and_b32 {vT1}, 7, {vT0}'); A(f'v_lshlrev_b32 {vA4}, 10, {vT0}'); A(f'v_lshl_add_u32 {vA4}, {vT1}, 5, {vA4}'); A(f'v_lshl_add_u32 {vA4}, {vC}, 3, {vA4}')
A(f's_lshl_b32 s56, {sWAVE}, 8'); A(f's_add_u32 s56, s56, {WO}'); A(f'v_add_u32 {vA4}, s56, {vA4}')
lds_wait(11, vZ, F_LP - FLG, MK['WO'], vT0)
for j in range(8):
    A(f'v_xor_b32 {vT0}, {32*j}, {vA4}'); A(f'ds_read_b64_tr_b16 {vWo[2*j:2*j+2]}, {vT0}')
for j in range(8):
    A(f'v_cmp_eq_u32 vcc, {j}, {vN}'); A(f'v_cndmask_b32 {vMk[j]}, 0, -1, vcc')
A(f's_lshl_b32 s56, {sT}, 11'); A(f's_lshl_b32 s57, {sWAVE}, 9'); A('s_add_u32 s56, s56, s57'); A(f's_add_u32 s56, s56, {B1}')
A(f'v_lshlrev_b32 {vBst}, 6, {vN}'); A(f'v_lshl_add_u32 {vBst}, {vQ}, 4, {vBst}'); A(f'v_add_u32 {vBst}, s56, {vBst}')
A('s_waitcnt lgkmcnt(0)')
stamp(12)
poll(12, [f'global_load_dwordx4 {vAr[0:4]}, {vA2}, {pLB} sc1', f'global_load_dwordx4 {vAr[4:8]}, {vA3}, {pLB} sc1'], [vAr[i] for i in range(8)], [vAx[i] for i in range(8)], sT10, 0x3f, vCH)
for i in range(4): A(f'v_mul_f32 {vAx[i]}, {vW1}, {vAx[i]}')
for i in range(4): A(f'v_fmac_f32 {vAx[i]}, {vW2}, {vAx[4+i]}')
row_allred('v_add_f32', [vAx[i] for i in range(4)])
A(f'v_cvt_pk_bf16_f32 {vOb[0]}, {vAx[0]}, {vAx[1]}'); A(f'v_cvt_pk_bf16_f32 {vOb[1]}, {vAx[2]}, {vAx[3]}')
for j in range(8):
    b = vBm[2*(j & 1):2*(j & 1)+2]
    A(f'v_and_b32 {b[0]}, {vMk[j]}, {vOb[0]}'); A(f'v_and_b32 {b[1]}, {vMk[j]}, {vOb[1]}')
    A(f'v_mfma_f32_16x16x16_bf16 {vD}, {vWo[2*j:2*j+2]}, {b}, {0 if j == 0 else vD}')
for r in range(4): tagf(vD[r], vD[r], vTg)
set_exec(M_N8)
lstore([f'global_store_dwordx4 {vBst}, {vD}, {pLB}'])
set_exec(-1)
stamp(13)
V.release(mW)
vGu = V(16); vDn = V(8); vSB = V(8); vT1v = V(8); vXr = V(8); vXx = V(8); vHp = V(4); vBm = V(8); vD = V(4)
vA1, vA2, vCst, vCld = V(), V(), V(), V(); vMd = V(2, 1); vSum, vSq = V(), V()
A(f's_and_b32 s56, {sT}, 15'); A(f'v_add_u32 {vT0}, s56, {vN}'); A(f'v_and_b32 {vT0}, 15, {vT0}'); A(f'v_lshlrev_b32 {vA1}, 7, {vT0}'); A(f'v_lshl_add_u32 {vA1}, {vQ}, 5, {vA1}')
A(f'v_add_u32 {vA2}, {X2}, {vA1}'); A(f'v_add_u32 {vA1}, {MV}, {vA1}')
poll(13, [f'global_load_dwordx4 {vXr[0:4]}, {vA1}, {pLB} sc1', f'global_load_dwordx4 {vXr[4:8]}, {vA1}, {pLB} offset:16 sc1'], [vXr[i] for i in range(8)], [vSB[i] for i in range(8)], sT16, 0xffff, vCH)
poll(14, [f'global_load_dwordx4 {vXr[0:4]}, {vA1}, {pLB} offset:2048 sc1', f'global_load_dwordx4 {vXr[4:8]}, {vA1}, {pLB} offset:2064 sc1'], [vXr[i] for i in range(8)], [vT1v[i] for i in range(8)], sT16, 0xffff, vCH)
A(f's_lshl_b32 s56, {sWAVE}, 7'); A(f's_add_u32 s56, s56, {GU}'); A(f'v_lshlrev_b32 {vT1}, 9, {v8qr}'); A(f'v_lshl_add_u32 {vT1}, {vC}, 3, {vT1}'); A(f'v_add_u32 {vT1}, s56, {vT1}')
lds_wait(15, vZ, F_LP - FLG, MK['GU'], vT0)
for j in range(4):
    A(f'ds_read_b64_tr_b16 {vGu[4*j:4*j+2]}, {vT1} offset:{32*j}'); A(f'ds_read_b64_tr_b16 {vGu[4*j+2:4*j+4]}, {vT1} offset:{32*j + 2048}')
A(f's_lshl_b32 s56, {sWAVE}, 8'); A(f's_add_u32 s56, s56, {DN}'); A(f'v_lshlrev_b32 {vT2}, 10, {vR}'); A(f'v_lshl_add_u32 {vT2}, {vQ}, 5, {vT2}'); A(f'v_lshl_add_u32 {vT2}, {vC}, 3, {vT2}'); A(f'v_add_u32 {vT2}, s56, {vT2}')
for jj in range(2):
    A(f'v_add_u32 {vT3}, {4*jj}, {vQ}'); A(f'v_cmp_eq_u32 vcc, {vT3}, {vN}'); A(f'v_cndmask_b32 {vMd[jj]}, 0, -1, vcc')
A(f's_lshl_b32 s56, {sT}, 10'); A(f's_lshl_b32 s57, {sWAVE}, 8'); A('s_add_u32 s56, s56, s57'); A(f's_add_u32 s56, s56, {A_}')
A(f'v_lshlrev_b32 {vCst}, 6, {vN}'); A(f'v_lshl_add_u32 {vCst}, {vQ}, 4, {vCst}'); A(f'v_add_u32 {vCst}, s56, {vCst}')
A(f'v_bfe_u32 {vT3}, {vL}, 1, 1'); A(f'v_lshrrev_b32 {vCld}, 2, {vL}'); A(f'v_lshl_add_u32 {vCld}, {vT3}, 4, {vCld}'); A(f'v_lshlrev_b32 {vCld}, 10, {vCld}')
A(f'v_and_b32 {vT3}, 1, {vL}'); A(f'v_lshl_add_u32 {vCld}, {vT3}, 4, {vCld}'); A(f's_lshl_b32 s56, {sT}, 5'); A(f's_add_u32 s56, s56, {A_}'); A(f'v_add_u32 {vCld}, s56, {vCld}')
lds_wait(16, vZ, F_LP - FLG, MK['DN'], vT0)
for jj in range(2):
    A(f'ds_read_b64_tr_b16 {vDn[4*jj:4*jj+2]}, {vT2} offset:{128*jj}'); A(f'ds_read_b64_tr_b16 {vDn[4*jj+2:4*jj+4]}, {vT2} offset:{128*jj + 4096}')
if 1:
    A(f's_mov_b32 s58, {M_N4 & 0xffffffff:#x}'); A(f's_cmp_eq_u32 {sWAVE}, 3'); A(f's_cselect_b32 s58, {M_N2 & 0xffffffff:#x}, s58')
A('s_waitcnt lgkmcnt(0)')
stamp(14)
poll(17, [f'global_load_dwordx4 {vXr[0:4]}, {vA2}, {pLB} sc1', f'global_load_dwordx4 {vXr[4:8]}, {vA2}, {pLB} offset:16 sc1'], [vXr[i] for i in range(8)], [vXx[i] for i in range(8)], sT16, 0xffff, vCH)
A(f'v_add_f32 {vSum}, {vXx[0]}, {vXx[1]}'); A(f'v_mul_f32 {vSq}, {vXx[0]}, {vXx[0]}')
A(f'v_add_f32 {vT0}, {vXx[2]}, {vXx[3]}'); A(f'v_mul_f32 {vT1}, {vXx[1]}, {vXx[1]}')
for i in range(2, 8): A(f'v_fmac_f32 {vSq if i % 2 == 0 else vT1}, {vXx[i]}, {vXx[i]}')
A(f'v_add_f32 {vT2}, {vXx[4]}, {vXx[5]}'); A(f'v_add_f32 {vT3}, {vXx[6]}, {vXx[7]}'); A(f'v_add_f32 {vSum}, {vSum}, {vT0}'); A(f'v_add_f32 {vT2}, {vT2}, {vT3}')
A(f'v_add_f32 {vSq}, {vSq}, {vT1}'); A(f'v_add_f32 {vSum}, {vSum}, {vT2}')
A(f'v_permlane32_swap_b32 {vSum}, {vSq}'); A(f'v_add_f32 {vSum}, {vSum}, {vSq}')
A(f'v_mov_b32 {vSq}, {vSum}'); A(f'v_permlane16_swap_b32 {vSum}, {vSq}'); A(f'v_add_f32 {vSum}, {vSum}, {vSq}')
row_allred('v_add_f32', [vSum])
A(f'v_mul_f32 {vSum}, 0x3b000000, {vSum}')
A(f'v_mov_b32 {vSq}, {vSum}'); A(f'v_permlane32_swap_b32 {vSum}, {vSq}')
A(f'v_fma_f32 {vSq}, -{vSum}, {vSum}, {vSq}'); A(f'v_max_f32 {vSq}, 0, {vSq}'); A(f'v_add_f32 {vSq}, 0x3727c5ac, {vSq}'); A(f'v_rsq_f32 {vSq}, {vSq}')
for i in range(8): A(f'v_sub_f32 {vXx[i]}, {vXx[i]}, {vSum}')
for i in range(8): A(f'v_mul_f32 {vT1v[i]}, {vSq}, {vT1v[i]}')
for i in range(8): A(f'v_fma_f32 {vXx[i]}, {vXx[i]}, {vT1v[i]}, {vSB[i]}')
for i in range(4): A(f'v_cvt_pk_bf16_f32 {vHp[i]}, {vXx[2*i]}, {vXx[2*i+1]}')
sk = nl('S')
for j in range(4):
    if j == 2: A(f's_cmp_eq_u32 {sWAVE}, 3'); A(f's_cbranch_scc1 {sk}')
    b = vBm[4*(j & 1):4*(j & 1)+4]
    for k in range(4): dpp('v_and_b32', b[k], vHp[k], vMk[j], 'row_newbcast:0')
    A(f'v_mfma_f32_16x16x32_bf16 {vD}, {vGu[4*j:4*j+4]}, {b}, {0 if j == 0 else vD}')
LAB(sk)
for r in range(4): tagf(vD[r], vD[r], vTgb)
A('s_mov_b32 exec_lo, s58'); A('s_mov_b32 exec_hi, s58')
lstore([f'global_store_dwordx4 {vCst}, {vD}, {pLB}'])
set_exec(-1)
A(f's_cmp_ge_u32 {sT}, 28'); A('s_cbranch_scc1 L_c_zero')
vG = vXx
poll(18, [f'global_load_dwordx4 {vXr[0:4]}, {vCld}, {pLB} sc1'], [vXr[i] for i in range(4)], [vG[i] for i in range(4)], sT10b, 0x3f, vCH)
A(f'v_permlane32_swap_b32 {vG[0]}, {vG[1]}'); A(f'v_permlane32_swap_b32 {vG[2]}, {vG[3]}')
A(f'v_add_f32 {vG[0]}, {vG[0]}, {vG[1]}'); A(f'v_add_f32 {vG[2]}, {vG[2]}, {vG[3]}')
A(f'v_permlane16_swap_b32 {vG[0]}, {vG[2]}'); A(f'v_add_f32 {vG[0]}, {vG[0]}, {vG[2]}')
dpp('v_add_f32', vG[0], vG[0], vG[0], 'row_ror:4'); dpp('v_add_f32', vG[0], vG[0], vG[0], 'row_ror:8')
rnd(vG[0], vG[0])
A(f'v_mul_f32 {vT0}, {sL2E}, {vG[0]}'); A(f'v_exp_f32 {vT0}, -{vT0}'); A(f'v_add_f32 {vT0}, 1.0, {vT0}'); A(f'v_rcp_f32 {vT0}, {vT0}'); rnd(vT0, vT0)
dpp('v_mul_f32', vT0, vG[0], vT0, 'quad_perm:[2,3,0,1]')
A(f'v_mov_b32 {vT1}, {vT0}'); A(f'v_permlane32_swap_b32 {vT0}, {vT1}'); A(f'v_cvt_pk_bf16_f32 {vT0}, {vT0}, {vT1}')
for k, ln in enumerate((0, 16, 1, 17)): A(f'v_readlane_b32 s{56+k}, {vT0}, {ln}')
for jj in range(2):
    b = vBm[4*jj:4*jj+4]
    for k in range(4): A(f'v_and_b32 {b[k]}, s{56+k}, {vMd[jj]}')
    A(f'v_mfma_f32_16x16x32_bf16 {vD}, {vDn[4*jj:4*jj+4]}, {b}, {0 if jj == 0 else vD}')
for r in range(4): tagf(vD[r], vD[r], vTgb)
LAB('L_c_pub')
set_exec(M_N8)
lstore([f'global_store_dwordx4 {vBst}, {vD}, {pLB}'])
set_exec(-1)
stamp(15)
end_wave()
LAB('L_c_zero')
for r in range(4): A(f'v_mov_b32 {vD[r]}, {vTgb}')
A('s_branch L_c_pub')
vg_compute = V.hi

LAB('L_loader')
V = Alloc('v', 1, 200)
vO1, vT0, vT1, vLin, vFlg, vMark = [V() for _ in range(6)]; vKo = V(4, 1); vVo = V(2, 1); vX = V()
A(f's_and_b32 s54, {sT}, 7'); A(f's_lshr_b32 s55, {sT}, 3')
A(f'v_lshrrev_b32 {vT0}, 3, {vL}'); A(f'v_and_b32 {vT1}, 7, {vL}'); A(f'v_lshlrev_b32 {vO1}, 13, {vT0}'); A(f'v_lshl_add_u32 {vO1}, {vT1}, 4, {vO1}')
A('s_lshl_b32 s56, s55, 20'); A(f's_lshl_b32 s57, {sG}, 10'); A('s_add_u32 s56, s56, s57'); A('s_lshl_b32 s57, s54, 7'); A('s_add_u32 s56, s56, s57')
A(f'v_add_u32 {vO1}, s56, {vO1}')
A('s_mov_b32 m0, 0')
items = []
for i in range(16):
    pre = [] if i == 0 else [f'v_add_u32 {vO1}, 65536, {vO1}', 's_add_u32 m0, m0, 1024']
    if i == 0: pre = ['s_waitcnt lgkmcnt(0)']
    items.append((pre, f'global_load_lds_dwordx4 {vO1}, {pWQ} nt', MK['WQ'] if i == 15 else None))
kv_setup = [f'v_lshrrev_b32 {vT0}, 4, {vL}', f'v_and_b32 {vT1}, 15, {vL}']
for m in range(4):
    kv_setup += [f'v_add_u32 {vX}, {4*m}, {vT0}', f'v_xor_b32 {vX}, {vX}, {vT1}', f'v_lshlrev_b32 {vX}, 4, {vX}', f'v_lshl_add_u32 {vKo[m]}, {vT0}, 8, {vX}']
for m in range(2):
    kv_setup += [f'v_add_u32 {vX}, {4*m}, {vT0}', f'v_lshlrev_b32 {vX}, 1, {vX}', f'v_xor_b32 {vX}, {vX}, {vT1}', f'v_lshlrev_b32 {vX}, 4, {vX}', f'v_lshl_add_u32 {vVo[m]}, {vT0}, 8, {vX}']
kv_setup += [f's_lshl_b32 s56, {sG}, 22', f's_lshl_b32 s57, {sT}, 15', 's_add_u32 s56, s56, s57', 's_add_u32 s56, s56, 0x300000',
             f's_add_u32 s58, {lo(pK)}, s56', f's_addc_u32 s59, {hi(pK)}, 0', f's_add_u32 s60, {lo(pV)}, s56', f's_addc_u32 s61, {hi(pV)}, 0',
             f'v_lshlrev_b32 {vLin}, 4, {vL}', f'v_mov_b32 {vFlg}, {F_LP}']
for i in range(32):
    pre = []
    if i == 0: pre = kv_setup + [f's_mov_b32 m0, {KK}']
    elif i % 4 == 0: pre = ['s_add_u32 s58, s58, 4096', 's_addc_u32 s59, s59, 0', 's_add_u32 m0, m0, 4096']
    items.append((pre, f'global_load_lds_dwordx4 {vKo[i % 4]}, s[58:59] offset:{1024*(i % 4)} nt', MK['K0'] + i // 8 if i % 8 == 7 else None))
for i in range(32):
    pre = []
    if i == 0: pre = [f's_mov_b32 m0, {VV}']
    elif i % 4 == 0: pre = ['s_add_u32 s60, s60, 4096', 's_addc_u32 s61, s61, 0', 's_add_u32 m0, m0, 4096']
    items.append((pre, f'global_load_lds_dwordx4 {vVo[(i >> 1) & 1]}, s[60:61] offset:{1024*(i % 4)} nt', MK['V0'] + i // 8 if i % 8 == 7 else None))
for o in order:
    if o == '|': items.append('gate'); continue
    if o == 'MR':
        for i in range(8):
            if i == 0:
                pre = [f'v_lshrrev_b32 {vT0}, 3, {vL}', f'v_and_b32 {vT1}, 7, {vL}', f'v_mul_u32_u24 {vO1}, 6144, {vT0}', f'v_lshl_add_u32 {vO1}, {vT1}, 4, {vO1}',
                       f's_lshr_b32 s56, {sT}, 2', f's_mul_i32 s56, s56, {64*6144}', f's_and_b32 s57, {sT}, 3', 's_lshl_b32 s57, s57, 10', 's_add_u32 s56, s56, s57',
                       f's_lshl_b32 s57, {sG}, 7', 's_add_u32 s56, s56, s57', 's_add_u32 s56, s56, 2048', f'v_add_u32 {vO1}, s56, {vO1}', f's_mov_b32 m0, {MR}']
            else: pre = [f'v_add_u32 {vO1}, {8*6144}, {vO1}', 's_add_u32 m0, m0, 1024']
            items.append((pre, f'global_load_lds_dwordx4 {vO1}, {pWM} nt', MK['MR'] if i == 7 else None))
    if o == 'WO':
        for i in range(16):
            pre = []
            if i == 0: pre = [f's_lshl_b32 s56, {sG}, 19', f's_lshl_b32 s57, {sT}, 14', 's_add_u32 s56, s56, s57', f's_add_u32 s58, {lo(pWO)}, s56', f's_addc_u32 s59, {hi(pWO)}, 0', f's_mov_b32 m0, {WO}']
            elif i % 4 == 0: pre = ['s_add_u32 s58, s58, 4096', 's_addc_u32 s59, s59, 0', 's_add_u32 m0, m0, 4096']
            pre = pre + [f'v_xor_b32 {vX}, {32*(i & 7)}, {vLin}']
            items.append((pre, f'global_load_lds_dwordx4 {vX}, s[58:59] offset:{1024*(i % 4)} nt', MK['WO'] if i == 15 else None))
    if o == 'GU':
        for i in range(16):
            if i == 0:
                pre = [f'v_lshrrev_b32 {vT0}, 5, {vL}', f'v_and_b32 {vT1}, 31, {vL}', f'v_mul_u32_u24 {vO1}, 3584, {vT0}', f'v_lshl_add_u32 {vO1}, {vT1}, 4, {vO1}',
                       f's_and_b32 s56, {sT}, 15', f's_mul_i32 s56, s56, {32*3584}', f's_mul_i32 s57, {sG}, 448', 's_add_u32 s56, s56, s57', f'v_add_u32 {vO1}, s56, {vO1}',
                       f's_cmp_ge_u32 {sT}, 16', f's_cselect_b32 s58, {lo(pWU)}, {lo(pWG)}', f's_cselect_b32 s59, {hi(pWU)}, {hi(pWG)}', f's_mov_b32 m0, {GU}']
            else: pre = [f'v_add_u32 {vO1}, {2*3584}, {vO1}', 's_add_u32 m0, m0, 1024']
            items.append((pre, ('gu', f'global_load_lds_dwordx4 {vO1}, s[58:59] nt'), MK['GU'] if i == 15 else None))
    if o == 'DN':
        for i in range(8):
            pre = []
            if i == 0: pre = [f's_min_u32 s57, {sT}, 27', f's_mul_i32 s56, {sG}, {224*1024}', 's_lshl_b32 s57, s57, 13', 's_add_u32 s56, s56, s57', f's_add_u32 s58, {lo(pWD)}, s56', f's_addc_u32 s59, {hi(pWD)}, 0', f's_mov_b32 m0, {DN}']
            elif i % 4 == 0: pre = ['s_add_u32 s58, s58, 4096', 's_addc_u32 s59, s59, 0', 's_add_u32 m0, m0, 4096']
            items.append((pre, f'global_load_lds_dwordx4 {vLin}, s[58:59] offset:{1024*(i % 4)} nt', MK['DN'] if i == 7 else None))
W = CFG['W']
def post(mark):
    A(f'v_mov_b32 {vMark}, {mark}'); A(f'ds_write_b32 {vFlg}, {vMark}')
    st = {MK['WQ']: 2, MK['K0'] + 3: 3, MK['V0'] + 3: 4, MK['WO']: 5, MK['MR']: 6, MK['GU']: 7, MK['DN']: 8}.get(mark)
    if st: stamp(st)
pend = []
def drain():
    while pend:
        mk = pend.pop(0)
        if mk is not None:
            A(f's_waitcnt vmcnt({len(pend)})'); post(mk)
did_bar = False
cnt = 0
for it in items:
    if it == 'gate':
        drain()
        if CFG['gateq']:
            lds_wait(20, vFlg, F_PF - FLG, 1, vT0)
        continue
    pre, ins, mk = it
    for x in pre: A(x)
    if isinstance(ins, tuple):
        A('s_mov_b32 exec_lo, 0x0fffffff'); A('s_mov_b32 exec_hi, 0x0fffffff'); A(ins[1]); A('s_mov_b64 exec, -1')
    else: A(ins)
    cnt += 1
    pend.append(mk)
    if cnt == min(W, 16) and not did_bar:
        stamp(1); A('s_barrier'); did_bar = True
    if len(pend) >= W:
        A(f's_waitcnt vmcnt({W-1})')
        mk0 = pend.pop(0)
        if mk0 is not None: post(mk0)
drain()
A('s_waitcnt lgkmcnt(0)')
end_wave()
vg_loader = V.hi

LAB('L_aux')
V = Alloc('v', 1, 200)
vN, vQ, vR, vC, vT0, vT1, vT2, vT3, vCH, vZ, vTg, vTgb, v8qr, vPx, vPe = [V() for _ in range(15)]
if CFG['pf']:
    A('s_getpc_b64 s[56:57]')
    LAB('L_pc')
    A('s_sub_u32 s56, s56, L_pc - L_start'); A('s_subb_u32 s57, s57, 0')
    A(f's_and_b32 s58, {sT}, 1'); A('s_lshl_b32 s58, s58, 13'); A(f'v_lshl_add_u32 {vT0}, {vL}, 7, s58'); A(f'v_min_u32 {vT0}, L_codeend - L_start - 4, {vT0}')
    A(f'global_load_dword {vT3}, {vT0}, s[56:57]')
A(f'v_lshlrev_b32 {vT1}, 2, {vL}'); A(f'v_add_u32 {vT1}, {FLG}, {vT1}'); A(f'v_mov_b32 {vT2}, 0')
set_exec(0xffff); A(f'ds_write_b32 {vT1}, {vT2}'); set_exec(-1)
common_consts()
A(f'v_and_b32 {vN}, 15, {vL}'); A(f'v_lshrrev_b32 {vQ}, 4, {vL}'); A(f'v_bfe_u32 {vR}, {vL}, 2, 2'); A(f'v_and_b32 {vC}, 3, {vL}'); A(f'v_lshl_add_u32 {v8qr}, {vQ}, 3, {vR}')
A(f'v_mov_b32 {vZ}, {FLG}')
vCc = V(8); vXc = V(); vFil = V(4)
A(f's_lshr_b32 s56, {sT}, 2'); A('s_lshl_b32 s56, s56, 7'); A(f'v_lshl_add_u32 {vT0}, {vQ}, 4, s56')
A(f's_lshl_b32 s56, {sT}, 5'); A(f'v_lshl_add_u32 {vT1}, {vN}, 1, s56')
A('s_getreg_b32 s52, hwreg(HW_REG_XCC_ID)'); A('s_and_b32 s52, s52, 15')
A('s_waitcnt lgkmcnt(0)')
A(f's_load_dword {sE}, {pWS}, {EP}')
A('s_barrier')
A(f'global_load_dwordx4 {vCc[0:4]}, {vT0}, {pC}'); A(f'global_load_dwordx4 {vCc[4:8]}, {vT0}, {pC} offset:64'); A(f'global_load_ushort {vXc}, {vT1}, {pX}')
lb_ptr()
A(f'v_lshlrev_b32 {vT0}, 7, {vL}'); A(f'global_load_dword {vT3}, {vT0}, {pLB} sc1'); A(f'v_add_u32 {vT0}, 0x2000, {vT0}')
set_exec(0x1ffff); A(f'global_load_dword {vT3}, {vT0}, {pLB} sc1'); set_exec(-1)
A('s_waitcnt lgkmcnt(0)'); epoch_consts()
A(f'v_mov_b32 {vTg}, {sT10}'); A(f'v_mov_b32 {vTgb}, {sT10b}')
A(f's_lshl_b32 s53, {sE}, 4'); A('s_or_b32 s53, s53, s52'); A(f'v_mov_b32 {vPe}, s53')
A(f's_lshl_b32 s56, {sT}, 2'); A(f's_add_u32 s56, s56, {PX}'); A(f'v_mov_b32 {vT0}, s56')
set_exec(1); A(f'global_store_dword {vT0}, {vPe}, {pLB}'); set_exec(-1)
A(f'v_and_b32 {vPx}, 31, {vL}'); A(f'v_lshlrev_b32 {vPx}, 2, {vPx}'); A(f'v_add_u32 {vPx}, {PX}, {vPx}')
for i in range(4): A(f'v_not_b32 {vFil[i]}, {vTg}')
A(f's_lshl_b32 s56, {sT}, 11'); A(f'v_lshl_add_u32 {vT0}, {vL}, 4, s56'); A(f'v_add_u32 {vT1}, {B1}, {vT0}'); A(f'v_add_u32 {vT0}, {A_}, {vT0}')
A(f'global_store_dwordx4 {vT0}, {vFil}, {pLB}'); A(f'global_store_dwordx4 {vT0}, {vFil}, {pLB} offset:1024')
A(f'global_store_dwordx4 {vT1}, {vFil}, {pLB}'); A(f'global_store_dwordx4 {vT1}, {vFil}, {pLB} offset:1024')
A(f's_lshr_b32 s56, {sT}, 3'); A('s_lshl_b32 s56, s56, 11'); A(f's_and_b32 s57, {sT}, 7'); A('s_lshl_b32 s57, s57, 8'); A('s_add_u32 s56, s56, s57'); A(f's_add_u32 s56, s56, {Q_}')
A(f'v_lshl_add_u32 {vT2}, {vL}, 4, s56')
set_exec(0xffff); A(f'global_store_dwordx4 {vT2}, {vFil}, {pLB}'); set_exec(-1)
A('s_waitcnt vmcnt(0)')
A(f'v_mov_b32 {vT0}, 1'); A(f'ds_write_b32 {vZ}, {vT0} offset:{F_PW - FLG}')
stamp(1)
def pure_probe(tries):
    lp, dn = nl('PP'), nl('PD')
    A(f's_cmp_eq_u32 {sPURE}, 1'); A(f's_cbranch_scc1 {dn}')
    A(f's_mov_b32 {sCNT}, {tries}')
    LAB(lp)
    A(f'global_load_dword {vT0}, {vPx}, {pLB} sc1'); A('s_waitcnt vmcnt(0)')
    A(f'v_cmp_ne_u32 vcc, {vT0}, {vPe}'); A(f's_cbranch_vccz {lp}_ok')
    A(f's_sub_u32 {sCNT}, {sCNT}, 1'); A(f's_cbranch_scc0 {lp}'); A(f's_branch {dn}')
    LAB(lp + '_ok')
    A(f's_mov_b32 {sPURE}, 1'); A(f'v_mov_b32 {vT0}, 1'); A(f'ds_write_b32 {vZ}, {vT0} offset:{F_PURE - FLG}')
    LAB(dn)
pure_probe(12)
stamp(9)
vU = V(2)
for i in range(8):
    A(f'v_lshlrev_b32 {vU[0]}, 16, {vCc[i]}'); A(f'v_and_b32 {vU[1]}, {sHI}, {vCc[i]}')
    silu_bf(vU[0], vU[0], vT0); silu_bf(vU[1], vU[1], vT1)
    A(f'v_cvt_pk_bf16_f32 {vCc[i]}, {vU[0]}, {vU[1]}')
A(f'v_lshlrev_b32 {vXc}, 16, {vXc}')
vMk = V(4, 1); vMrA = V(32); vBm = V(8); vD = V(4); vGa = V(8, 1); vRw = V(8, 2); vRx = V(8, 2); vMod, vGb = V(), V()
for j in range(4):
    A(f'v_cmp_eq_u32 vcc, {j}, {vN}'); A(f'v_cndmask_b32 {vMk[j]}, 0, -1, vcc')
A(f'v_lshlrev_b32 {vT1}, 7, {v8qr}'); A(f'v_lshl_add_u32 {vT1}, {vC}, 3, {vT1}'); A(f'v_add_u32 {vT1}, {MR}, {vT1}')
vSt = V()
A(f's_lshl_b32 s56, s2, 8'); A(f's_add_u32 s56, s56, {S_MR}'); A(f'v_lshlrev_b32 {vSt}, 6, {vN}'); A(f'v_lshl_add_u32 {vSt}, {vQ}, 4, {vSt}'); A(f'v_add_u32 {vSt}, s56, {vSt}')
A(f's_lshr_b32 s56, {sT}, 2'); A('s_lshl_b32 s56, s56, 8'); A(f's_and_b32 s57, {sT}, 3'); A('s_lshl_b32 s57, s57, 6'); A('s_add_u32 s56, s56, s57'); A(f's_add_u32 s56, s56, {S_MR}')
A(f'v_lshlrev_b32 {vGa[0]}, 11, {vQ}'); A(f'v_lshl_add_u32 {vGa[0]}, {vN}, 2, {vGa[0]}'); A(f'v_add_u32 {vGa[0]}, s56, {vGa[0]}')
for i in range(1, 8): A(f'v_add_u32 {vGa[i]}, {8192*i}, {vGa[0]}')
vB1a, vB1b, vG2s, vG2l, vX2s, vMVs, vOut = [V() for _ in range(7)]
A(f'v_lshrrev_b32 {vT2}, 2, {vL}'); A(f'v_lshlrev_b32 {vB1a}, 11, {vT2}'); A(f'v_lshl_add_u32 {vB1a}, {vC}, 4, {vB1a}')
A(f's_lshl_b32 s56, {sT}, 6'); A(f's_add_u32 s57, s56, {B1}'); A(f'v_add_u32 {vB1a}, s57, {vB1a}'); A(f'v_add_u32 {vB1b}, 32768, {vB1a}')
A(f'v_lshrrev_b32 {vT2}, 5, {vL}'); A(f'v_lshl_add_u32 {vG2s}, {vC}, 2, {vT2}'); A(f'v_and_b32 {vT2}, 1, {vQ}'); A(f'v_lshl_add_u32 {vG2s}, {vT2}, 1, {vG2s}')
A(f's_lshl_b32 s57, s2, 7'); A(f's_add_u32 s57, s57, {G2}'); A(f'v_lshl_add_u32 {vG2s}, {vG2s}, 2, s57')
A(f's_lshl_b32 s57, {sT}, 10'); A(f's_add_u32 s57, s57, {G2}'); A(f'v_lshlrev_b32 {vG2l}, 7, {vQ}'); A(f'v_lshl_add_u32 {vG2l}, {vN}, 2, {vG2l}'); A(f'v_add_u32 {vG2l}, s57, {vG2l}')
A(f's_add_u32 s57, s56, {X2}'); A(f'v_lshl_add_u32 {vX2s}, {vN}, 2, s57')
A(f's_add_u32 s57, s56, {MV - 2048}'); A(f'v_lshlrev_b32 {vMVs}, 11, {vQ}'); A(f'v_lshl_add_u32 {vMVs}, {vN}, 2, {vMVs}'); A(f'v_add_u32 {vMVs}, s57, {vMVs}')
A(f's_lshl_b32 s57, {sT}, 5'); A(f'v_lshl_add_u32 {vOut}, {vN}, 1, s57')
lds_wait(21, vZ, F_LP - FLG, MK['MR'], vT0, sleep=2)
for ks in range(2):
    for j in range(4):
        r = vMrA[16*ks+4*j:16*ks+4*j+4]
        A(f'ds_read_b64_tr_b16 {r[0:2]}, {vT1} offset:{4096*ks + 32*j}'); A(f'ds_read_b64_tr_b16 {r[2:4]}, {vT1} offset:{4096*ks + 32*j + 512}')
A('s_waitcnt lgkmcnt(0)')
first = True
for ks in range(2):
    for j in range(4):
        b = vBm[4*(j & 1):4*(j & 1)+4]
        for k in range(4): A(f'v_and_b32 {b[k]}, {vMk[j]}, {vCc[4*ks+k]}')
        A(f'v_mfma_f32_16x16x32_bf16 {vD}, {vMrA[16*ks+4*j:16*ks+4*j+4]}, {b}, {0 if first else vD}'); first = False
for r in range(4): tagf(vD[r], vD[r], vTg)
set_exec(M_N4); A(f'global_store_dwordx4 {vSt}, {vD}, {pWS} sc1'); set_exec(-1)
stamp(2)
pure_probe(1)
poll(22, [f'global_load_dword {vRw[i]}, {vGa[i]}, {pWS} sc1' for i in range(8)], [vRw[i] for i in range(8)], [vRx[i] for i in range(8)], sT10, 0x3f, vCH)
for a, b in ((0, 1), (2, 3), (4, 5), (6, 7), (0, 2), (4, 6), (0, 4)): A(f'v_add_f32 {vRx[a]}, {vRx[a]}, {vRx[b]}')
rnd(vMod, vRx[0])
A(f'v_add_f32 {vT0}, 1.0, {vMod}'); rnd(vT0, vT0)
A(f'v_cmp_eq_u32 vcc, 2, {vQ}'); A(f'v_cndmask_b32 {vT0}, {vMod}, {vT0}, vcc'); A(f'v_or_b32 {vT0}, {sT16}, {vT0}')
set_exec(0x0000ffffffff0000)
lstore([f'global_store_dword {vMVs}, {vT0}, {pLB}'])
set_exec(-1)
A(f'v_mov_b32 {vGb}, {vMod}'); A(f'v_mov_b32 {vT1}, {vMod}'); A(f'v_permlane16_swap_b32 {vT1}, {vGb}'); A(f'v_mov_b32 {vT1}, {vGb}'); A(f'v_permlane32_swap_b32 {vT1}, {vGb}')
stamp(3)
def reduce32(code, tag, goff):
    poll(code, [f'global_load_dwordx4 {vRw[0:4]}, {vB1a}, {pLB} sc1', f'global_load_dwordx4 {vRw[4:8]}, {vB1b}, {pLB} sc1'], [vRw[i] for i in range(8)], [vRx[i] for i in range(8)], tag, 0x3f, vCH)
    for i in range(4): A(f'v_add_f32 {vRx[i]}, {vRx[i]}, {vRx[4+i]}')
    A(f'v_permlane32_swap_b32 {vRx[0]}, {vRx[1]}'); A(f'v_permlane32_swap_b32 {vRx[2]}, {vRx[3]}')
    A(f'v_add_f32 {vRx[0]}, {vRx[0]}, {vRx[1]}'); A(f'v_add_f32 {vRx[2]}, {vRx[2]}, {vRx[3]}')
    A(f'v_permlane16_swap_b32 {vRx[0]}, {vRx[2]}'); A(f'v_add_f32 {vRx[0]}, {vRx[0]}, {vRx[2]}')
    dpp('v_add_f32', vRx[0], vRx[0], vRx[0], 'row_ror:4'); dpp('v_add_f32', vRx[0], vRx[0], vRx[0], 'row_ror:8')
    tagf(vRx[0], vRx[0], vTg)
    set_exec(M_N4)
    if goff: A(f'v_add_u32 {vG2s}, {goff}, {vG2s}')
    A(f'global_store_dword {vG2s}, {vRx[0]}, {pWS} sc1'); set_exec(-1)
def gather8(code):
    poll(code, [f'global_load_dword {vRw[0]}, {vG2l}, {pWS} sc1', f'global_load_dword {vRw[1]}, {vG2l}, {pWS} offset:512 sc1'], [vRw[0], vRw[1]], [vRx[0], vRx[1]], sT10, 0x3f, vCH)
    A(f'v_add_f32 {vRx[0]}, {vRx[0]}, {vRx[1]}'); xrow_allred('v_add_f32', vRx[0], vT0)
    rnd(vRx[0], vRx[0])
reduce32(23, sT10, 0)
stamp(4)
gather8(24)
stamp(5)
A(f'v_mul_f32 {vRx[0]}, {vMod}, {vRx[0]}'); rnd(vRx[0], vRx[0])
A(f'v_add_f32 {vXc}, {vXc}, {vRx[0]}'); rnd(vXc, vXc)
A(f'v_or_b32 {vT0}, {sT16}, {vXc}')
set_exec(0xffff)
lstore([f'global_store_dword {vX2s}, {vT0}, {pLB}'])
set_exec(-1)
stamp(6)
A(f'v_add_u32 {vG2s}, {G3 - G2}, {vG2s}'); A(f'v_add_u32 {vG2l}, {G3 - G2}, {vG2l}')
reduce32(25, sT10b, 0)
stamp(7)
A(f's_and_b32 s56, {sT}, 7'); A(f's_cmp_eq_u32 s56, {sG}'); A('s_cbranch_scc0 L_aux_end')
gather8(26)
A(f'v_mul_f32 {vRx[0]}, {vGb}, {vRx[0]}'); rnd(vRx[0], vRx[0])
A(f'v_add_f32 {vXc}, {vXc}, {vRx[0]}'); A(f'v_cvt_pk_bf16_f32 {vXc}, {vXc}, {vXc}')
set_exec(0xffff); A(f'global_store_short {vOut}, {vXc}, {pOUT}')
if CFG['dbgtime']:
    A('s_memrealtime s[94:95]'); A('s_waitcnt lgkmcnt(0)'); A('s_sub_u32 s94, s94, s92'); A(f's_lshl_b32 s94, s94, 1'); A(f's_or_b32 s94, s94, {sPURE}')
    set_exec(1); A(f's_lshl_b32 s56, {sT}, 2'); A(f'v_mov_b32 {vT0}, s56'); A(f'v_mov_b32 {vT1}, s94'); A(f'global_store_dword {vT0}, {vT1}, {pDBG}')
A('s_cmp_eq_u32 s2, 0'); A('s_cbranch_scc0 L_aux_end2')
set_exec(1); A(f'v_mov_b32 {vT0}, {EP}'); A(f'v_mov_b32 {vT1}, {sE}'); A(f'global_store_dword {vT0}, {vT1}, {pWS} sc1')
LAB('L_aux_end2')
set_exec(-1)
stamp(8)
LAB('L_aux_end')
end_wave()
vg_aux = V.hi

for sl, ins, bk in slow_paths:
    LAB(sl)
    for x in ins: A(x)
    A(f's_branch {bk}')
LAB('L_fail')
if CFG['dbgfail']:
    set_exec(1)
    A(f'v_mov_b32 v1, 128'); A(f's_lshl_b32 s56, s2, 16'); A(f's_lshl_b32 s57, {sWAVE}, 8'); A('s_or_b32 s56, s56, s57'); A(f's_or_b32 s56, s56, {sTMP}'); A('v_mov_b32 v2, s56')
    A(f'global_store_dword v1, v2, {pDBG} sc1')
    set_exec(-1)
if CFG['stamps']:
    LAB('L_stamps')
    A('s_waitcnt lgkmcnt(0)')
    A('v_mov_b32 v2, 0')
    for i in range(16): A(f'v_writelane_b32 v2, s{64+2*i}, {i}')
    A('s_mul_i32 s56, s2, 6'); A(f's_add_u32 s56, s56, {sWAVE}'); A('s_lshl_b32 s56, s56, 6'); A(f's_add_u32 s56, s56, {STAMPS}')
    A('v_lshl_add_u32 v1, v0, 2, s56')
    set_exec(0xffff); A(f'global_store_dword v1, v2, {pWS}')
LAB('L_exit')
A('s_endpgm')
LAB('L_codeend')

body = pad_hazards(L)
vg = max(vg_compute, vg_loader, vg_aux)
vg = (vg + 7) // 8 * 8
hdr = open('cdna_kernels/' + KN + '.s.ref').read().split('; Override launch')[0]
name = KN + '_kernel'
txt = hdr + f"""; @launch grid=(256,1,1) block=(384,1,1) lds={LDS_BYTES}
.amdgcn_target "amdgcn-amd-amdhsa--gfx950"
.text
.globl {name}
.p2align 8
.type {name},@function
{name}:
""" + '\n'.join(body) + f"""
.section .rodata,"a"
.p2align 6
.amdhsa_kernel {name}
  .amdhsa_next_free_vgpr {vg}
  .amdhsa_next_free_sgpr 96
  .amdhsa_accum_offset {vg}
  .amdhsa_group_segment_fixed_size 0
  .amdhsa_kernarg_size 112
  .amdhsa_user_sgpr_count 2
  .amdhsa_user_sgpr_kernarg_segment_ptr 1
  .amdhsa_system_sgpr_workgroup_id_x 1
  .amdhsa_float_denorm_mode_32 3
.end_amdhsa_kernel
"""
open(OUT, 'w').write(txt)
print('vgprs', vg_compute, vg_loader, vg_aux, 'lines', len(body), file=sys.stderr)
```

```python
import sys
from kasm import pad_hazards, Alloc, Reg

KN = 'adaLN_cond__sliding_block_cached__glu_gated_glu__decode'
CFG = dict(stamps=0, limit=200000, pf=1, dbgfail=1, amp=0, ptries=40,
           WA0=28, NA0=0, WA=28, WO0=24, NO0=0, WO1=24, WG=32, nt=1, only='', early=0, QK=3, qgap=4, GK=1, ggap=2, LK=1, lgap=1,
           qstart=4, prio=0, mrpos=0, rep=1, hint=4, qh=1, qsl=0, HK=3, hgap=3, ksw=1, kvi=1, ilv=0, X0=8, lprio=3, cprio=3)
for a in sys.argv[2:]:
    k, v = a.split('=')
    assert k in CFG, k
    CFG[k] = int(v) if v.lstrip('-').isdigit() else v
OUT = sys.argv[1]

EP = 0; S_MR = 0x8000; S_M = 0x10000; G2 = 0x20000; G3 = 0x30000
LB0 = 0x40000; LBS = 0x18000
H_ = 0; MV = 0x800; X2 = 0x1800; MLG = 0x2000; HINT = 0x2800; Q_ = 0x3000; A_ = 0x8000; B1 = 0x10000
STAMPS = 0x200000
KK = 0; VV = 0x10000; MR = 0x20000; MM = 0x24000
WQ = 0; WO = 0x8000; GU = 0x10000; DN = 0x18000
SC = 0x26000
QL = SC; QS = 320; MLL = SC + 0x600; GAB = SC + 0x700; HL = SC; OB = SC + 0x800; FLG = SC + 0x900; CL = SC + 0xA00
OS = 576
F_LP = FLG; F_PURE = FLG + 4; F_G1 = FLG + 8; F_QP = FLG + 12; F_Q = FLG + 16; F_WI = FLG + 20; F_B1 = FLG + 24; F_O = FLG + 28; F_GA = FLG + 32; F_GO = FLG + 40; F_MP = FLG + 44; F_SF = FLG + 48
LDS_BYTES = SC + 0xE00
NW = 10
sWAVE, sG, sT, sE, sT6, sT16, sT6b = 's3', 's4', 's5', 's6', 's7', 's8', 's9'
sU, sSL, sCNT, sTMP = 's10', 's11', 's14', 's15'
pX, pK, pV, pWQ, pWO, pBX, pWG, pWU, pWD, pC, pWM, pOUT, pDBG, pWS = [f's[{16+2*i}:{17+2*i}]' for i in range(14)]
pLB = 's[44:45]'; sPURE = 's46'; sMASK = 's47'; sSEL = 's48'; sHI = 's49'; sL2E = 's50'; sCM = 's12'; sCP = 's51'
def lo(p): return 's' + p[2:-1].split(':')[0]
def hi(p): return 's' + p[2:-1].split(':')[1]
TM = 0x3f

L = []
def A(x): L.append('    ' + x)
def LAB(x): L.append(x + ':')
uid = [0]
def nl(p='L'):
    uid[0] += 1; return f'{p}_{uid[0]}'
slow_paths = []
def stamp(i):
    if CFG['stamps'] and (CFG['stamps'] >> i) & 1: A(f's_memrealtime s[{64+2*i}:{65+2*i}]')
def set_exec(mask):
    if mask == -1: A('s_mov_b64 exec, -1'); return
    l, h = mask & 0xffffffff, mask >> 32
    if h == 0 and l <= 64: A(f's_mov_b64 exec, {l}'); return
    A(f's_mov_b32 exec_lo, {l:#x}'); A(f's_mov_b32 exec_hi, {h:#x}')
M_N0 = 0x0001000100010001; M_N4 = 0x000F000F000F000F; M_N8 = 0x00FF00FF00FF00FF; M_N2 = 0x0003000300030003; M_Q0 = 0x1111111111111111
def rnd(d, s):
    A(f'v_cvt_pk_bf16_f32 {d}, {s}, {s}'); A(f'v_and_b32 {d}, {sHI}, {d}')
def dpp(op, d, a, b, ctl, bank=0xf, row=0xf):
    if b is None: A(f'{op}_dpp {d}, {a} {ctl} row_mask:{row:#x} bank_mask:{bank:#x}')
    else: A(f'{op}_dpp {d}, {a}, {b} {ctl} row_mask:{row:#x} bank_mask:{bank:#x}')
def row_allred(op, regs, shifts=(8, 4, 2, 1)):
    for sh in shifts:
        for r in regs: dpp(op, r, r, r, f'row_ror:{sh}')
def xrow_allred(op, v, t):
    A(f'v_mov_b32 {t}, {v}'); A(f'v_permlane16_swap_b32 {v}, {t}'); A(f'{op} {v}, {v}, {t}')
    A(f'v_mov_b32 {t}, {v}'); A(f'v_permlane32_swap_b32 {v}, {t}'); A(f'{op} {v}, {v}, {t}')
def tred4(v):
    A(f'v_permlane32_swap_b32 {v[0]}, {v[1]}'); A(f'v_permlane32_swap_b32 {v[2]}, {v[3]}')
    A(f'v_add_f32 {v[0]}, {v[0]}, {v[1]}'); A(f'v_add_f32 {v[2]}, {v[2]}, {v[3]}')
    A(f'v_permlane16_swap_b32 {v[0]}, {v[2]}'); A(f'v_add_f32 {v[0]}, {v[0]}, {v[2]}')
def fail_branch(code, loop):
    A(f's_sub_u32 {sCNT}, {sCNT}, 1'); A(f's_cbranch_scc0 {loop}')
    if CFG['dbgfail']: A(f's_mov_b32 {sTMP}, {code}')
    A('s_branch L_fail')
def check(raw, out, tag, maskbits, chk, full=()):
    for r, o in zip(raw, out): A(f'v_xor_b32 {o}, {tag}, {r}')
    o = list(out)
    if len(o) == 1: A(f'v_and_b32 {chk}, {maskbits:#x}, {o[0]}'); o = None
    elif len(o) == 2: A(f'v_or_b32 {chk}, {o[0]}, {o[1]}'); o = []
    else: A(f'v_or3_b32 {chk}, {o[0]}, {o[1]}, {o[2]}'); o = o[3:]
    if o is not None:
        while len(o) >= 2: A(f'v_or3_b32 {chk}, {chk}, {o[0]}, {o[1]}'); o = o[2:]
        if o: A(f'v_or_b32 {chk}, {chk}, {o[0]}')
        A(f'v_and_b32 {chk}, {maskbits:#x}, {chk}')
    for r in full: A(f'v_xor_b32 {r}, {sE}, {r}'); A(f'v_or_b32 {chk}, {chk}, {r}')
    A(f'v_cmp_ne_u32 vcc, 0, {chk}')
def poll(code, loads, raw, out, tag, maskbits, chk, full=(), shadow=None, sleep=0, issued=False):
    lp, ok, lw = nl('P'), nl('OK'), nl('PW')
    A(f's_mov_b32 {sCNT}, {CFG["limit"]}')
    if shadow or issued:
        if not issued:
            for x in loads: A(x)
        if shadow: shadow()
        A(f's_branch {lw}')
    LAB(lp)
    if sleep: A(f's_sleep {sleep}')
    for x in loads: A(x)
    LAB(lw)
    A('s_waitcnt vmcnt(0)')
    check(raw, out, tag, maskbits, chk, full)
    A(f's_cbranch_vccz {ok}')
    fail_branch(code, lp)
    LAB(ok)
def ppoll(code, K, gap, mk, nld, sets, out, tag, maskbits, extra=()):
    if K == 1:
        poll(code, mk(sets[0]) + list(extra), [sets[0][i] for i in range(sets[0].n)], out, tag, maskbits, vCH); return
    lp, ok = nl('PP'), nl('OK')
    A(f's_mov_b32 {sCNT}, {CFG["limit"]}')
    for k in range(K - 1):
        for x in mk(sets[k]): A(x)
        if gap: A(f's_sleep {gap}')
    LAB(lp)
    for k in range(K):
        for x in mk(sets[(k + K - 1) % K]): A(x)
        for x in extra: A(x)
        A(f's_waitcnt vmcnt({(K-1)*nld})')
        check([sets[k][i] for i in range(sets[k].n)], out, tag, maskbits, vCH)
        A(f's_cbranch_vccz {ok}')
    fail_branch(code, lp)
    LAB(ok)
def lds_wait(code, off, val, tmp, sleep=0, vaddr=None, spec=()):
    lp, ok, ag = nl('W'), nl('OK'), nl('AG')
    va = vaddr or vZ
    if spec:
        A(f'ds_read_b32 {tmp}, {va} offset:{off - FLG}')
        for x in spec: A(x)
        A(f's_waitcnt lgkmcnt({min(15, len(spec))})')
        A(f'v_readfirstlane_b32 {sTMP}, {tmp}'); A(f's_cmp_ge_u32 {sTMP}, {val}'); A(f's_cbranch_scc1 {ok}')
    A(f's_mov_b32 {sCNT}, {CFG["limit"]}')
    LAB(lp)
    A(f'ds_read_b32 {tmp}, {va} offset:{off - FLG}')
    A('s_waitcnt lgkmcnt(0)')
    A(f'v_readfirstlane_b32 {sTMP}, {tmp}')
    A(f's_cmp_ge_u32 {sTMP}, {val}')
    A(f's_cbranch_scc1 {ag}')
    if sleep: A(f's_sleep {sleep}')
    fail_branch(code, lp)
    LAB(ag)
    for x in spec: A(x)
    LAB(ok)
def lds_wait8(code, off, fl, reads):
    lp, ok, again = nl('W'), nl('OK'), nl('AG')
    def flags():
        A(f'ds_read_b128 {fl[0:4]}, {vZ} offset:{off - FLG}'); A(f'ds_read_b128 {fl[4:8]}, {vZ} offset:{off - FLG + 16}')
    def test():
        A(f'v_and_b32 {fl[0]}, {fl[0]}, {fl[1]}')
        for i in (2, 4, 6): A(f'v_bitop3_b32 {fl[0]}, {fl[0]}, {fl[i]}, {fl[i+1]} bitop3:0x80')
        A(f'v_cmp_eq_u32 vcc, 0, {fl[0]}')
    A(f's_mov_b32 {sCNT}, {CFG["limit"]}')
    LAB(lp)
    flags()
    for x in reads: A(x)
    A(f's_waitcnt lgkmcnt({min(15, len(reads))})')
    test()
    A(f's_cbranch_vccz {ok}')
    fail_branch(code, lp)
    LAB(ok)
def pure_read(): return f'ds_read_b32 {vPU}, {vZ} offset:{F_PURE - FLG}'
def pure_update(): A(f'v_readfirstlane_b32 {sPURE}, {vPU}')
def lstore(instrs):
    sl, bk = nl('SL'), nl('BK')
    A(f's_cmp_eq_u32 {sPURE}, 1'); A(f's_cbranch_scc0 {sl}')
    for x in instrs: A(x)
    LAB(bk)
    slow_paths.append((sl, [x + ' sc1' for x in instrs], bk))
def tagf(d, s, vtag): A(f'v_and_or_b32 {d}, {s}, {sMASK}, {vtag}')
def epoch_wait():
    A('s_waitcnt lgkmcnt(0)')
    A(f's_add_u32 {sE}, {sE}, 1')
    A(f's_and_b32 {sT6}, {sE}, {TM:#x}'); A(f's_and_b32 {sT16}, {sE}, 0xffff'); A(f's_xor_b32 {sT6b}, {sT6}, 0x20')
    A(f'v_mov_b32 {vTg}, {sT6}'); A(f'v_mov_b32 {vTgb}, {sT6b}')
def silu_bf(d, c, t1):
    A(f'v_mul_f32 {t1}, {sL2E}, {c}'); A(f'v_exp_f32 {t1}, -{t1}'); A(f'v_add_f32 {t1}, 1.0, {t1}'); A(f'v_rcp_f32 {t1}, {t1}'); A(f'v_mul_f32 {d}, {c}, {t1}')
def end_wave():
    if CFG['stamps']: A('s_branch L_stamps')
    else: A('s_endpgm')
def flag(off): A(f'ds_write_b32 {vZ}, {vOne} offset:{off - FLG}')
NT = ' nt' if CFG['nt'] else ''
vL = 'v0'
MKA = dict(M=1, MR=2, K0=3, V0=11) if CFG['mrpos'] == 0 else dict(M=1, K0=2, MR=10, V0=11)
MKW = dict(WQ=1, WO=2, GU=3, DN=4)

LAB('L_start')
stamp(0)
if CFG['amp']: A('s_memrealtime s[92:93]')
A('s_cmp_ge_u32 s2, 256'); A('s_cbranch_scc1 L_exit')
A('s_load_dwordx16 s[16:31], s[0:1], 0'); A('s_load_dwordx8 s[32:39], s[0:1], 64'); A('s_load_dwordx4 s[40:43], s[0:1], 96')
A('v_lshrrev_b32 v1, 6, v0'); A('v_and_b32 v0, 63, v0'); A(f'v_readfirstlane_b32 {sWAVE}, v1')
A(f's_and_b32 {sG}, s2, 7')
if CFG['ilv']:
    A(f's_lshr_b32 {sU}, s2, 4'); A(f's_and_b32 {sT}, s2, 8'); A(f's_lshl_b32 {sT}, {sT}, 1'); A(f's_or_b32 {sT}, {sT}, {sU}')
else:
    A(f's_lshr_b32 {sT}, s2, 3'); A(f's_and_b32 {sU}, {sT}, 15')
A(f's_cmp_eq_u32 {sWAVE}, 8'); A('s_cbranch_scc1 L_loader')
if CFG['only'].startswith('loader'):
    A('s_waitcnt lgkmcnt(0)'); A('s_barrier'); A('s_branch L_stamps')

V = Alloc('v', 1, 168)
vN, vQ, vR, vC, vT0, vT1, vT2, vT3, vCH, vZ, vTg, vTgb, vPU, vOne, vC8, vQ16, vDUM = [V() for _ in range(17)]
mE = V.mark()
vX = V(4); vXd = V()
mP = V.mark()
A(f's_cmp_eq_u32 {sWAVE}, 9'); A('s_cbranch_scc1 L_i_9')
A(f's_cmp_ge_u32 {sT}, 16'); A('s_cbranch_scc1 L_i_W')
A(f's_lshr_b32 s56, {sU}, 2'); A('s_lshl_b32 s56, s56, 8'); A(f'v_lshl_add_u32 {vT2}, {vL}, 2, s56')
A('s_waitcnt lgkmcnt(0)')
A(f's_cmp_ge_u32 {sWAVE}, 4'); A('s_cbranch_scc0 L_i_done')
A(f'global_load_dword {vXd}, {vT2}, {pC}')
A('s_branch L_i_done')
LAB('L_i_W')
A(f'v_lshlrev_b32 {vT0}, 4, {vL}')
A(f's_add_u32 s57, {sWAVE}, 1'); A('s_and_b32 s57, s57, 1'); A(f's_lshl_b32 s56, {sU}, 1'); A('s_add_u32 s56, s56, s57'); A('s_lshl_b32 s56, s56, 5')
A(f'v_and_b32 {vT1}, 15, {vL}'); A(f'v_lshl_add_u32 {vT1}, {vT1}, 1, s56')
A(f's_sub_u32 s57, {sWAVE}, 1')
A('s_waitcnt lgkmcnt(0)')
A('s_cmp_lt_u32 s57, 2'); A('s_cbranch_scc0 L_i_done')
A(f'global_load_dwordx4 {vX}, {vT0}, {pX}'); A(f'global_load_ushort {vXd}, {vT1}, {pX}')
A('s_branch L_i_done')
LAB('L_i_9')
if CFG['cprio']: A(f's_setprio {CFG["cprio"]}')
if CFG['pf']:
    A('s_getpc_b64 s[56:57]')
    LAB('L_pc')
    A('s_sub_u32 s56, s56, L_pc - L_start'); A('s_subb_u32 s57, s57, 0')
    A(f's_and_b32 s58, {sT}, 3'); A('s_lshl_b32 s58, s58, 13'); A(f'v_lshl_add_u32 {vT0}, {vL}, 7, s58'); A(f'v_min_u32 {vT0}, L_codeend - L_start - 4, {vT0}')
    if CFG['pf'] == 2: A(f's_cmp_ge_u32 {sT}, 16'); A('s_cbranch_scc1 L_nopf')
    A(f'global_load_dword {vDUM}, {vT0}, s[56:57]')
    LAB('L_nopf')
A(f'v_lshlrev_b32 {vT1}, 2, {vL}'); A(f'v_add_u32 {vT1}, {FLG}, {vT1}'); A(f'v_mov_b32 {vT2}, 0')
set_exec(0xffffffff); A(f'ds_write_b32 {vT1}, {vT2}'); set_exec(-1)
A('s_getreg_b32 s52, hwreg(HW_REG_XCC_ID)'); A('s_and_b32 s52, s52, 15'); A('s_or_b32 s52, s52, 0x80')
A(f's_lshl_b32 s56, {sG}, 5'); A(f's_add_u32 s57, s56, {sT}'); A(f'v_mov_b32 {vT0}, s57'); A(f'v_mov_b32 {vT1}, s52')
A('s_waitcnt lgkmcnt(0)')
set_exec(1); A(f'global_store_byte {vT0}, {vT1}, {pDBG}'); set_exec(-1)
LAB('L_i_done')
A(f's_load_dword {sE}, {pWS}, {EP}')
A(f's_getreg_b32 {sCP}, hwreg(HW_REG_XCC_ID)'); A(f's_and_b32 {sCP}, {sCP}, {4 if CFG["rep"] else 0}'); A(f's_lshl_b32 {sCP}, {sCP}, 11')
A(f's_mov_b32 {sMASK}, {0xffffffff ^ TM:#x}'); A(f's_mov_b32 {sSEL}, 0x07060302'); A(f's_mov_b32 {sHI}, 0xffff0000'); A(f's_mov_b32 {sL2E}, 0x3fb8aa3b'); A(f's_mov_b32 {sPURE}, 0')
A(f's_mul_i32 s53, {sG}, {LBS}'); A(f's_add_u32 s53, s53, {LB0}'); A(f's_add_u32 {lo(pLB)}, {lo(pWS)}, s53'); A(f's_addc_u32 {hi(pLB)}, {hi(pWS)}, 0')
A(f'v_mov_b32 {vZ}, {FLG}'); A(f'v_mov_b32 {vOne}, 1')
A(f'v_and_b32 {vN}, 15, {vL}'); A(f'v_lshrrev_b32 {vQ}, 4, {vL}'); A(f'v_bfe_u32 {vR}, {vL}, 2, 2'); A(f'v_and_b32 {vC}, 3, {vL}')
A(f'v_lshlrev_b32 {vC8}, 3, {vC}'); A(f'v_lshlrev_b32 {vQ16}, 4, {vQ}')
w2, w5, w6, w7, w8 = 's59', 's60', 's61', 's62', 's63'
A(f's_lshl_b32 {w2}, {sWAVE}, 2'); A(f's_lshl_b32 {w5}, {sWAVE}, 5'); A(f's_lshl_b32 {w6}, {sWAVE}, 6'); A(f's_lshl_b32 {w7}, {sWAVE}, 7'); A(f's_lshl_b32 {w8}, {sWAVE}, 8')

def pure_phase():
    lp, dn = nl('PP'), nl('PD')
    A('s_mul_i32 s52, s52, 0x01010101'); A(f'v_and_b32 {vT1}, 7, {vL}'); A(f's_lshl_b32 s56, {sG}, 5'); A(f'v_lshl_add_u32 {vT1}, {vT1}, 2, s56')
    A(f's_mov_b32 {sCNT}, {CFG["ptries"]}')
    LAB(lp)
    A(f'global_load_dword {vT0}, {vT1}, {pDBG} sc1'); A('s_waitcnt vmcnt(0)')
    A(f'v_cmp_ne_u32 vcc, s52, {vT0}'); A(f's_cbranch_vccz {lp}_ok')
    A(f's_sub_u32 {sCNT}, {sCNT}, 1'); A(f's_cbranch_scc0 {lp}'); A(f's_branch {dn}')
    LAB(lp + '_ok')
    flag(F_PURE)
    LAB(dn)
    stamp(2)

A(f's_cmp_ge_u32 {sT}, 16'); A('s_cbranch_scc1 L_W')
A(f's_cmp_eq_u32 {sWAVE}, 9'); A('s_cbranch_scc1 L_A9')
aK = V(4, 1); aQB, aMw, aMr, aV, aOw, aOr, aAst, vFw, aR1 = [V() for _ in range(9)]; aGa = V(); vMg = V(4, 1)
A(f's_lshl_b32 s58, {sWAVE}, 13')
A(f'v_xor_b32 {vT0}, {vQ}, {vN}'); A(f'v_lshlrev_b32 {vT0}, 4, {vT0}'); A(f'v_lshl_add_u32 {vT0}, {vN}, 8, {vT0}'); A(f'v_add_u32 {aK[0]}, s58, {vT0}')
for ks in range(1, 4): A(f'v_xor_b32 {aK[ks]}, {64*ks}, {aK[0]}')
A(f'v_mul_u32_u24 {aQB}, {QS}, {vC}'); A(f'v_add3_u32 {aQB}, {aQB}, {vQ16}, {vZ}'); A(f'v_add_u32 {aQB}, {QL - FLG}, {aQB}')
A(f's_add_u32 s56, {w5}, {MLL}'); A(f'v_add_u32 {aMw}, s56, {vC8}')
A(f'v_lshl_add_u32 {aMr}, {vR}, 6, {vC8}'); A(f'v_add_u32 {aMr}, {MLL}, {aMr}')
A(f'v_lshl_add_u32 {vT0}, {vQ}, 2, {vR}'); A(f'v_and_b32 {vT1}, 7, {vT0}'); A(f'v_lshl_add_u32 {aV}, {vT0}, 8, {vC8}'); A(f'v_lshl_add_u32 {aV}, {vT1}, 5, {aV}')
A(f's_add_u32 s56, s58, {VV}'); A(f'v_add_u32 {aV}, s56, {aV}')
A(f'v_mul_u32_u24 {vT0}, {OS}, {vC}'); A(f'v_add_u32 {vT0}, {vT0}, {vQ16}'); A(f'v_lshl_add_u32 {aOw}, {vR}, 6, {vT0}'); A(f'v_add_u32 {aOw}, s58, {aOw}')
for k in range(4):
    A(f'v_cmp_eq_u32 vcc, {k}, {vR}'); A(f'v_cndmask_b32 {vMg[k]}, 0, -1, vcc')
A(f'v_lshl_add_u32 {aOr}, {vR}, 14, {vT0}'); A(f'v_add_u32 {aOr}, {w6}, {aOr}')
A(f's_lshl_b32 s57, {sU}, 11'); A(f's_add_u32 s56, s57, {w6}'); A(f's_add_u32 s56, s56, {A_}')
A(f'v_lshl_add_u32 {aAst}, {vC}, 9, {vQ16}'); A(f'v_add_u32 {aAst}, s56, {aAst}')
A(f's_and_b32 {sSL}, {sWAVE}, 1'); A(f's_lshl_b32 s56, {sU}, 1'); A(f's_add_u32 {sSL}, {sSL}, s56')
A(f'v_lshrrev_b32 {vT2}, 2, {vL}'); A(f'v_lshlrev_b32 {aR1}, 11, {vT2}'); A(f'v_lshl_add_u32 {aR1}, {vC}, 4, {aR1}')
A(f's_lshl_b32 s56, {sSL}, 6'); A(f's_add_u32 s57, s56, {B1}'); A(f'v_add_u32 {aR1}, s57, {aR1}')
A(f's_lshr_b32 s56, {sSL}, 2'); A('s_lshl_b32 s56, s56, 8'); A(f's_and_b32 s57, {sSL}, 3'); A('s_lshl_b32 s57, s57, 6'); A('s_add_u32 s56, s56, s57'); A(f's_add_u32 s56, s56, {S_MR}')
A(f'v_lshlrev_b32 {aGa}, 11, {vQ}'); A(f'v_lshl_add_u32 {aGa}, {vN}, 2, {aGa}'); A(f'v_add_u32 {aGa}, s56, {aGa}')
A('s_barrier')
epoch_wait()
stamp(1)
A(f's_cmp_ge_u32 {sWAVE}, 4'); A('s_cbranch_scc0 L_A_main')
m = V.mark()
vCc = V(16); vCm = V(8); vMa = V(16); vD = V(4); vSt, aM, aC = V(), V(), V()
A(f's_sub_u32 s56, {w8}, {1024 - CL}'); A(f'v_lshl_add_u32 {vT2}, {vL}, 2, s56'); A(f'v_add_u32 {aC}, s56, {vQ16}')
A(f's_sub_u32 s56, {w5}, {128 - MR}'); A(f'v_lshl_add_u32 {aM}, {vQ}, 3, {vR}'); A(f'v_lshl_add_u32 {aM}, {aM}, 7, {vC8}'); A(f'v_add_u32 {aM}, s56, {aM}')
vSt2 = V()
A(f's_lshl_b32 s56, {sU}, 3'); A(f's_add_u32 s56, s56, {sG}'); A('s_lshl_b32 s56, s56, 8'); A(f's_add_u32 s56, s56, {w6}'); A(f's_sub_u32 s56, s56, 256')
A(f's_add_u32 s57, s56, {S_MR}'); A(f'v_add_u32 {vSt2}, s57, {vQ16}')
A('s_and_b32 s57, s56, 0xffffe000'); A('s_add_u32 s56, s56, s57'); A(f's_add_u32 s56, s56, {S_M}'); A(f'v_lshl_add_u32 {vSt}, {vN}, 13, {vQ16}'); A(f'v_add_u32 {vSt}, s56, {vSt}')
A(f's_and_b32 s56, {sU}, 2'); A('s_lshl_b32 s56, s56, 6'); A(f'v_add_u32 {vT3}, s56, {aC}')
A('s_waitcnt vmcnt(0)')
A(f'v_lshlrev_b32 {vX[0]}, 16, {vXd}'); A(f'v_and_b32 {vX[1]}, {sHI}, {vXd}')
silu_bf(vX[0], vX[0], vT0); silu_bf(vX[1], vX[1], vT1)
A(f'v_cvt_pk_bf16_f32 {vXd}, {vX[0]}, {vX[1]}')
A(f'ds_write_b32 {vT2}, {vXd}')
A(f'ds_read_b128 {vCm[0:4]}, {vT3}'); A(f'ds_read_b128 {vCm[4:8]}, {vT3} offset:64')
for ks in range(4): A(f'ds_read_b128 {vCc[4*ks:4*ks+4]}, {aC} offset:{64*ks}')
mreads = lambda base, n: [x for ks in range(n) for x in (f'ds_read_b64_tr_b16 {vMa[4*ks:4*ks+2]}, {aM} offset:{base + 4096*ks}', f'ds_read_b64_tr_b16 {vMa[4*ks+2:4*ks+4]}, {aM} offset:{base + 4096*ks + 512}')]
lds_wait(20, F_LP, MKA['M'], vT0, spec=mreads(MM - MR, 2))
for ks in range(2):
    A(f's_waitcnt lgkmcnt({2-2*ks})')
    A(f'v_mfma_f32_16x16x32_bf16 {vD}, {vMa[4*ks:4*ks+4]}, {vCm[4*ks:4*ks+4]}, {0 if ks == 0 else vD}')
for r in range(4): tagf(vD[r], vD[r], vTg)
set_exec(M_N2 if CFG['rep'] else M_N0); A(f'global_store_dwordx4 {vSt}, {vD}, {pWS} sc1')
set_exec(1); A(f'ds_add_u32 {vZ}, {vOne} offset:{F_MP - FLG}'); set_exec(-1)
stamp(3)
lds_wait(21, F_LP, MKA['MR'], vT0, sleep=1)
for x in mreads(0, 4): A(x)
for ks in range(4):
    A(f's_waitcnt lgkmcnt({6-2*ks})')
    A(f'v_mfma_f32_16x16x32_bf16 {vD}, {vMa[4*ks:4*ks+4]}, {vCc[4*ks:4*ks+4]}, {0 if ks == 0 else vD}')
for r in range(4): tagf(vD[r], vD[r], vTg)
set_exec(M_N0); A(f'global_store_dwordx4 {vSt2}, {vD}, {pWS} sc1'); set_exec(-1)
stamp(4)
V.release(m)
LAB('L_A_main')
mA = V.mark()
vK = V(32); vV = V(32); vQB = V(16); vS = V(8); vP = V(4); vML4 = V(4); vML = vML4[0:2]; vM = vML4[0]; vLs = vML4[1]; vG4 = V(4)
A(f's_add_u32 s57, {sWAVE}, {MKA["K0"]}')
lds_wait(5, F_LP, 's57', vT0, sleep=1)
for T in range(2):
    for ks in range(4): A(f'ds_read_b128 {vK[16*T+4*ks:16*T+4*ks+4]}, {aK[ks]} offset:{4096*T}')
stamp(7)
A(f's_add_u32 s58, {sWAVE}, {MKA["V0"]}')
def v_reads():
    for j in range(8):
        A(f'v_xor_b32 {vT0}, {32*j}, {aV}'); A(f'ds_read_b64_tr_b16 {vV[4*j:4*j+2]}, {vT0}'); A(f'ds_read_b64_tr_b16 {vV[4*j+2:4*j+4]}, {vT0} offset:4096')
        if j == 5: A('s_waitcnt lgkmcnt(8)')
sVOK = 's13'
A(f's_mov_b32 {sVOK}, 0')
lp, ok, nv = nl('W'), nl('OK'), nl('NV')
A(f's_mov_b32 {sCNT}, {CFG["limit"]}')
LAB(lp)
A(f'ds_read_b32 {vT1}, {vZ} offset:{F_Q - FLG}'); A(f'ds_read_b32 {vT2}, {vZ} offset:{F_LP - FLG}')
A('s_waitcnt lgkmcnt(0)')
A(f'v_readfirstlane_b32 {sTMP}, {vT1}'); A(f'v_readfirstlane_b32 s56, {vT2}')
A(f's_cmp_eq_u32 {sTMP}, 1'); A(f's_cbranch_scc1 {ok}')
A(f's_cmp_eq_u32 {sVOK}, 1'); A(f's_cbranch_scc1 {nv}')
A('s_cmp_ge_u32 s56, s58'); A(f's_cbranch_scc0 {nv}')
v_reads(); A(f's_mov_b32 {sVOK}, 1')
LAB(nv)
if CFG['qsl']: A(f's_sleep {CFG["qsl"]}')
fail_branch(7, lp)
LAB(ok)
for ks in range(4): A(f'ds_read_b128 {vQB[4*ks:4*ks+4]}, {aQB} offset:{64*ks}')
A(pure_read())
stamp(8)
sk = nl('S')
A(f's_cmp_lt_u32 {sWAVE}, 2'); A(f's_cbranch_scc0 {sk}')
A(f'global_load_dword {vDUM}, {aR1}, {pLB} sc1')
LAB(sk)
ga_loads = []
for ks in range(4):
    A(f's_waitcnt lgkmcnt({4-ks})')
    for T in range(2): A(f'v_mfma_f32_16x16x32_bf16 {vS[4*T:4*T+4]}, {vK[16*T+4*ks:16*T+4*ks+4]}, {vQB[4*ks:4*ks+4]}, {0 if ks == 0 else vS[4*T:4*T+4]}')
sk = nl('S')
A(f's_and_b32 s56, {sWAVE}, 14'); A('s_cmp_eq_u32 s56, 2'); A(f's_cbranch_scc0 {sk}')
def ga_issue():
    for i in range(4):
        if i: A(f'v_add_u32 {vT0}, {8192*i}, {aGa}')
        A(f'global_load_dword {vG4[i]}, {vT0 if i else aGa}, {pWS} sc1')
ga_issue()
LAB(sk)
A('s_waitcnt lgkmcnt(0)'); pure_update()
A('s_mov_b32 s56, 0x3db504f3')
for i in range(4): A(f'v_cvt_pk_bf16_f32 {vP[i]}, {vS[2*i]}, {vS[2*i+1]}')
for i in range(4):
    A(f'v_lshlrev_b32 {vS[2*i]}, 16, {vP[i]}'); A(f'v_and_b32 {vS[2*i+1]}, {sHI}, {vP[i]}')
for i in range(8): A(f'v_mul_f32 {vS[i]}, s56, {vS[i]}')
for i in range(4): A(f'v_cvt_pk_bf16_f32 {vP[i]}, {vS[2*i]}, {vS[2*i+1]}')
for i in range(4):
    A(f'v_lshlrev_b32 {vS[2*i]}, 16, {vP[i]}'); A(f'v_and_b32 {vS[2*i+1]}, {sHI}, {vP[i]}')
A(f'v_max3_f32 {vM}, {vS[0]}, {vS[1]}, {vS[2]}'); A(f'v_max3_f32 {vT0}, {vS[3]}, {vS[4]}, {vS[5]}'); A(f'v_max3_f32 {vM}, {vM}, {vS[6]}, {vS[7]}'); A(f'v_max_f32 {vM}, {vM}, {vT0}')
xrow_allred('v_max_f32', vM, vT0)
A(f'v_mul_f32 {vT1}, {sL2E}, {vM}')
for i in range(8): A(f'v_fma_f32 {vS[i]}, {vS[i]}, {sL2E}, -{vT1}')
for i in range(8): A(f'v_exp_f32 {vS[i]}, {vS[i]}')
for i in range(4): A(f'v_cvt_pk_bf16_f32 {vP[i]}, {vS[2*i]}, {vS[2*i+1]}')
vPm = vQB; vAcc = vK[0:8]
A(f'v_add_f32 {vLs}, {vS[0]}, {vS[1]}'); A(f'v_add_f32 {vT1}, {vS[2]}, {vS[3]}'); A(f'v_add_f32 {vT2}, {vS[4]}, {vS[5]}'); A(f'v_add_f32 {vT3}, {vS[6]}, {vS[7]}')
A(f'v_add_f32 {vLs}, {vLs}, {vT1}'); A(f'v_add_f32 {vT2}, {vT2}, {vT3}')
A(f'v_and_b32 {vPm[0]}, {vMg[0]}, {vP[0]}'); A(f'v_add_f32 {vLs}, {vLs}, {vT2}'); A(f'v_mov_b32 {vT0}, {vLs}')
A(f'v_and_b32 {vPm[1]}, {vMg[0]}, {vP[1]}'); A(f'v_and_b32 {vPm[2]}, {vMg[0]}, {vP[2]}')
A(f'v_permlane16_swap_b32 {vLs}, {vT0}'); A(f'v_add_f32 {vLs}, {vLs}, {vT0}'); A(f'v_mov_b32 {vT0}, {vLs}')
A(f'v_and_b32 {vPm[3]}, {vMg[0]}, {vP[3]}'); A(f's_cmp_eq_u32 {sVOK}, 1')
A(f'v_permlane32_swap_b32 {vLs}, {vT0}'); A(f'v_add_f32 {vLs}, {vLs}, {vT0}')
set_exec(0xf); A(f'ds_write_b64 {aMw}, {vML}'); set_exec(1); A(f'ds_add_u32 {vZ}, {vOne} offset:{F_SF - FLG}'); set_exec(-1)
A(f's_cbranch_scc0 L_A_vlate')
LAB('L_A_vok')
stamp(9)
for k in range(4):
    A(f'v_mfma_f32_16x16x32_bf16 {vAcc[0:4]}, {vV[4*k:4*k+4]}, {vPm[4*k:4*k+4]}, {0 if k == 0 else vAcc[0:4]}')
    if k < 3:
        for p in range(2): A(f'v_and_b32 {vPm[4*k+4+p]}, {vMg[k+1]}, {vP[p]}')
    A(f'v_mfma_f32_16x16x32_bf16 {vAcc[4:8]}, {vV[16+4*k:20+4*k]}, {vPm[4*k:4*k+4]}, {0 if k == 0 else vAcc[4:8]}')
    if k < 3:
        for p in range(2, 4): A(f'v_and_b32 {vPm[4*k+4+p]}, {vMg[k+1]}, {vP[p]}')
A(f'ds_write_b128 {aOw}, {vAcc[0:4]}'); A(f'ds_write_b128 {aOw}, {vAcc[4:8]} offset:256')
A('s_waitcnt lgkmcnt(0)')
stamp(10)
A('s_barrier')
vFl = vV[0:8]; vMc = vV[8:12]; vOa = vV[12:20]; vF1, vF2 = vV[20], vV[21]; vO = vP
for x in [f'ds_read2_b64 {vMc}, {aMr} offset0:0 offset1:4', f'ds_read_b128 {vOa[0:4]}, {aOr}', f'ds_read_b128 {vOa[4:8]}, {aOr} offset:8192']: A(x)
A('s_waitcnt lgkmcnt(2)')
A(f'v_max_f32 {vM}, {vMc[0]}, {vMc[2]}'); row_allred('v_max_f32', [vM], (4, 8))
A(f'v_sub_f32 {vF1}, {vMc[0]}, {vM}'); A(f'v_sub_f32 {vF2}, {vMc[2]}, {vM}'); A(f'v_mul_f32 {vF1}, {sL2E}, {vF1}'); A(f'v_mul_f32 {vF2}, {sL2E}, {vF2}')
A(f'v_exp_f32 {vF1}, {vF1}'); A(f'v_exp_f32 {vF2}, {vF2}')
A('s_waitcnt lgkmcnt(0)')
for i in range(4): A(f'v_mul_f32 {vO[i]}, {vF1}, {vOa[i]}')
for i in range(4): A(f'v_fmac_f32 {vO[i]}, {vF2}, {vOa[4+i]}')
row_allred('v_add_f32', [vO[0], vO[1], vO[2], vO[3]], (4, 8))
for i in range(4): tagf(vO[i], vO[i], vTg)
set_exec(M_N4)
lstore([f'global_store_dwordx4 {aAst}, {vO}, {pLB}'])
set_exec(-1)
stamp(11)
A(f's_cmp_ge_u32 {sWAVE}, 4'); A('s_cbranch_scc1 L_A_end')
A(f's_cmp_ge_u32 {sWAVE}, 2'); A('s_cbranch_scc1 L_A_gat')
V.release(mA)
vRs = [V(4) for _ in range(4)]; vRx = V(4); vG2s, vG2l, vX2s, vOut, vXc, vGA = V(), V(), V(), V(), V(), V(2)
A(f's_lshl_b32 s57, {sSL}, 5'); A(f'v_lshl_add_u32 {vOut}, {vN}, 1, s57')
A(f'global_load_ushort {vXc}, {vOut}, {pX}')
A(f'v_lshrrev_b32 {vT2}, 5, {vL}'); A(f'v_lshl_add_u32 {vG2s}, {vC}, 2, {vT2}'); A(f'v_and_b32 {vT2}, 1, {vQ}'); A(f'v_lshl_add_u32 {vG2s}, {vT2}, 1, {vG2s}')
vG3s, vG3l = V(), V()
A(f's_lshl_b32 s56, {sSL}, 10'); A('s_and_b32 s57, s56, 0xffffe000'); A('s_add_u32 s56, s56, s57')
A(f's_lshl_b32 s57, {sG}, 7'); A('s_add_u32 s57, s57, s56'); A(f'v_lshl_add_u32 {vG2s}, {vG2s}, 2, s57')
A(f'v_lshlrev_b32 {vG2l}, 7, {vQ}'); A(f'v_lshl_add_u32 {vG2l}, {vN}, 2, {vG2l}'); A(f'v_add_u32 {vG2l}, s56, {vG2l}')
A(f's_and_b32 s57, {sSL}, {4 if CFG["rep"] else 0}'); A('s_lshl_b32 s57, s57, 11'); A(f's_add_u32 s57, s57, {G3}'); A(f'v_add_u32 {vG3s}, s57, {vG2s}'); A(f'v_add_u32 {vG3l}, s57, {vG2l}')
A(f'v_and_b32 {vT2}, 1, {vR}'); A(f'v_lshl_add_u32 {vG2s}, {vT2}, 13, {vG2s}'); A(f'v_add_u32 {vG2s}, {G2}, {vG2s}'); A(f's_add_u32 s57, {sCP}, {G2}'); A(f'v_add_u32 {vG2l}, s57, {vG2l}')
A(f's_lshl_b32 s56, {sSL}, 6'); A(f's_add_u32 s57, s56, {X2}'); A(f'v_lshl_add_u32 {vX2s}, {vN}, 2, s57')
def reduce16(code, tag, vS_, mask):
    ppoll(code, CFG['LK'], CFG['lgap'], lambda r: [f'global_load_dwordx4 {r}, {aR1}, {pLB} sc1'], 1, vRs, [vRx[i] for i in range(4)], tag, TM)
    tred4(vRx)
    row_allred('v_add_f32', [vRx[0]], (4, 8))
    tagf(vRx[0], vRx[0], vTg)
    set_exec(mask)
    A(f'global_store_dword {vS_}, {vRx[0]}, {pWS} sc1'); set_exec(-1)
def gather8(code, vG2l):
    ppoll(code, CFG['GK'], CFG['ggap'], lambda r: [f'global_load_dword {r[0]}, {vG2l}, {pWS} sc1', f'global_load_dword {r[1]}, {vG2l}, {pWS} offset:512 sc1'], 2, [r[0:2] for r in vRs], [vRx[0], vRx[1]], sT6, TM)
    A(f'v_add_f32 {vRx[0]}, {vRx[0]}, {vRx[1]}'); xrow_allred('v_add_f32', vRx[0], vT0)
    rnd(vRx[0], vRx[0])
reduce16(23, sT6, vG2s, M_N8 if CFG['rep'] else M_N4)
stamp(12)
A(f'v_add_u32 {vT1}, {w2}, {vZ}')
lds_wait(33, F_GA, 1, vT0, vaddr=vT1)
A(f's_add_u32 s56, {w7}, {GAB}'); A(f'v_lshl_add_u32 {vT1}, {vN}, 3, s56'); A(f'ds_read_b64 {vGA}, {vT1}'); A(pure_read())
A(f'v_lshlrev_b32 {vXc}, 16, {vXc}')
if max(CFG['LK'], CFG['GK']) > 1: A('s_waitcnt vmcnt(1)')
gather8(24, vG2l)
stamp(13)
A('s_waitcnt lgkmcnt(0)'); pure_update()
A(f'v_mul_f32 {vRx[0]}, {vGA[0]}, {vRx[0]}'); rnd(vRx[0], vRx[0])
A(f'v_add_f32 {vXc}, {vXc}, {vRx[0]}'); rnd(vXc, vXc)
A(f'v_or_b32 {vT0}, {sT16}, {vXc}')
set_exec(0xffff)
lstore([f'global_store_dword {vX2s}, {vT0}, {pLB}'])
set_exec(-1)
if max(CFG['LK'], CFG['GK']) > 1: A('s_waitcnt vmcnt(0)')
reduce16(25, sT6b, vG3s, M_N4)
stamp(14)
A(f's_and_b32 s56, {sSL}, 7'); A(f's_cmp_eq_u32 s56, {sG}'); A('s_cbranch_scc0 L_A_end')
if max(CFG['LK'], CFG['GK']) > 1: A('s_waitcnt vmcnt(1)')
gather8(26, vG3l)
A(f'v_mul_f32 {vRx[0]}, {vGA[1]}, {vRx[0]}'); rnd(vRx[0], vRx[0])
A(f'v_add_f32 {vXc}, {vXc}, {vRx[0]}'); A(f'v_cvt_pk_bf16_f32 {vXc}, {vXc}, {vXc}')
set_exec(0xffff); A(f'global_store_short {vOut}, {vXc}, {pOUT}')
A(f's_cmp_eq_u32 {sSL}, 0'); A('s_cbranch_scc0 L_A_end2')
set_exec(1); A(f'v_mov_b32 {vT0}, {EP}'); A(f'v_mov_b32 {vT1}, {sE}'); A(f'global_store_dword {vT0}, {vT1}, {pWS} sc1')
if CFG['amp']:
    A('s_memrealtime s[94:95]'); A('s_waitcnt lgkmcnt(0)'); A('s_sub_u32 s56, s94, s92'); A(f's_mul_i32 s56, s56, {1 + CFG["amp"]}'); A('s_min_u32 s56, s56, 100000')
    LAB('L_amp'); A('s_memrealtime s[94:95]'); A('s_waitcnt lgkmcnt(0)'); A('s_sub_u32 s57, s94, s92'); A('s_cmp_lt_u32 s57, s56'); A('s_cbranch_scc1 L_amp')
LAB('L_A_end2')
set_exec(-1)
stamp(15)
LAB('L_A_end')
end_wave()
LAB('L_A_gat')
V.release(mA)
vRx = V(4); vMod, vMVs = V(), V()
A(f's_lshl_b32 s56, {sSL}, 6'); A(f's_add_u32 s57, s56, {MV - 2048}'); A(f'v_lshlrev_b32 {vMVs}, 11, {vQ}'); A(f'v_lshl_add_u32 {vMVs}, {vN}, 2, {vMVs}'); A(f'v_add_u32 {vMVs}, s57, {vMVs}')
lp, ok, lw = nl('P'), nl('OK'), nl('PW')
A(f's_mov_b32 {sCNT}, {CFG["limit"]}'); A(f's_branch {lw}')
LAB(lp); ga_issue(); LAB(lw)
A('s_waitcnt vmcnt(0)')
check([vG4[i] for i in range(4)], [vRx[i] for i in range(4)], sT6, TM, vCH)
A(f's_cbranch_vccz {ok}'); fail_branch(22, lp); LAB(ok)
for a, b in ((0, 1), (2, 3), (0, 2)): A(f'v_add_f32 {vRx[a]}, {vRx[a]}, {vRx[b]}')
rnd(vMod, vRx[0])
A(f's_and_b32 s56, {sWAVE}, 1'); A('s_lshl_b32 s57, s56, 7'); A(f's_add_u32 s57, s57, {GAB}'); A(f'v_lshl_add_u32 {vT1}, {vN}, 3, s57'); A(f'v_lshrrev_b32 {vT2}, 1, {vQ}'); A(f'v_lshl_add_u32 {vT1}, {vT2}, 2, {vT1}')
set_exec(0xffff00000000ffff); A(f'ds_write_b32 {vT1}, {vMod}'); set_exec(-1)
A('s_lshl_b32 s56, s56, 2'); A(f'v_add_u32 {vT1}, s56, {vZ}'); A(f'ds_write_b32 {vT1}, {vOne} offset:{F_GA - FLG}')
A(f'v_add_f32 {vT0}, 1.0, {vMod}'); rnd(vT0, vT0)
A(f'v_cmp_eq_u32 vcc, 2, {vQ}'); A(f'v_cndmask_b32 {vT0}, {vMod}, {vT0}, vcc'); A(f'v_or_b32 {vT0}, {sT16}, {vT0}')
set_exec(0x0000ffffffff0000)
lstore([f'global_store_dword {vMVs}, {vT0}, {pLB}'])
set_exec(-1)
stamp(12)
end_wave()
LAB('L_A_vlate')
lds_wait(9, F_LP, 's58', vT0)
v_reads()
A('s_waitcnt lgkmcnt(0)')
A('s_branch L_A_vok')
vg_A = V.hi
LAB('L_A9')
V.release(mP)
aQld, aQw = V(), V(); vQs = [V(16) for _ in range(CFG['QK'])]; vQx = V(16); vQp = V(4)
A(f'v_lshlrev_b32 {aQld}, 4, {vL}'); A(f'v_add_u32 {aQld}, {Q_}, {aQld}')
A(f'v_lshrrev_b32 {vT0}, 5, {vL}'); A(f'v_mul_u32_u24 {vT0}, {QS}, {vT0}'); A(f'v_and_b32 {vT1}, 31, {vL}'); A(f'v_lshl_add_u32 {aQw}, {vT1}, 3, {vT0}'); A(f'v_add_u32 {aQw}, {QL}, {aQw}')
A('s_barrier')
epoch_wait()
pure_phase()
if CFG['qh']:
    A(f'v_and_b32 {vT3}, 3, {vL}'); A(f'v_lshlrev_b32 {vT3}, 9, {vT3}'); A(f's_lshl_b32 s56, {sU}, 7'); A('s_and_b32 s56, s56, 0x180'); A(f'v_add_u32 {vT3}, s56, {vT3}')
    A(f'global_load_dword {vDUM}, {aQld}, {pLB} sc1')
    for k in range(1, 4): A(f'global_load_dword {vDUM}, {aQld}, {pLB} offset:{1024*k} sc1')
    ppoll(43, CFG['HK'], CFG['hgap'], lambda r: [f'global_load_dword {r}, {vT3}, {pLB} sc1'], 1, [vQp[i] for i in range(CFG['HK'])], [vQx[0]], sT16, 0xffff)
else:
    lds_wait(37, F_LP, MKA['K0'] + CFG['qstart'], vT0, sleep=1)
stamp(7)
ppoll(6, CFG['QK'], CFG['qgap'], lambda r: [f'global_load_dwordx4 {r[4*k:4*k+4]}, {aQld}, {pLB} offset:{1024*k} sc1' for k in range(4)], 4, vQs, [vQx[i] for i in range(16)], sT6, TM)
for i in range(8): A(f'v_add_f32 {vQx[i]}, {vQx[i]}, {vQx[8+i]}')
for i in range(4): A(f'v_cvt_pk_bf16_f32 {vQp[i]}, {vQx[2*i]}, {vQx[2*i+1]}')
A(f'ds_write_b64 {aQw}, {vQp[0:2]}'); A(f'ds_write_b64 {aQw}, {vQp[2:4]} offset:{2*QS}'); flag(F_Q)
stamp(8)
vFl = vQx[0:8]; vMc = vQx[8:12]; vML4 = vQx[12:16]; vF1, vF2 = vQp[0], vQp[1]
A(f'v_lshl_add_u32 {vT3}, {vR}, 6, {vC8}'); A(f'v_add_u32 {vT3}, {MLL}, {vT3}')
A(f's_lshl_b32 s56, {sU}, 6'); A(f's_add_u32 s56, s56, {MLG}'); A(f'v_lshl_add_u32 {vT2}, {vL}, 4, s56')
A(f'v_mov_b32 {vML4[2]}, {sE}'); A(f'v_mov_b32 {vML4[3]}, {sE}')
lds_wait(39, F_SF, 8, vT0)
A(f'ds_read2_b64 {vMc}, {vT3} offset0:0 offset1:4'); A(pure_read())
A('s_waitcnt lgkmcnt(0)'); pure_update()
A(f'v_max_f32 {vML4[0]}, {vMc[0]}, {vMc[2]}'); row_allred('v_max_f32', [vML4[0]], (4, 8))
A(f'v_sub_f32 {vF1}, {vMc[0]}, {vML4[0]}'); A(f'v_sub_f32 {vF2}, {vMc[2]}, {vML4[0]}'); A(f'v_mul_f32 {vF1}, {sL2E}, {vF1}'); A(f'v_mul_f32 {vF2}, {sL2E}, {vF2}')
A(f'v_exp_f32 {vF1}, {vF1}'); A(f'v_exp_f32 {vF2}, {vF2}')
A(f'v_mul_f32 {vML4[1]}, {vF1}, {vMc[1]}'); A(f'v_fmac_f32 {vML4[1]}, {vF2}, {vMc[3]}'); row_allred('v_add_f32', [vML4[1]], (4, 8))
tagf(vML4[0], vML4[0], vTg); tagf(vML4[1], vML4[1], vTg)
set_exec(0xf)
lstore([f'global_store_dwordx4 {vT2}, {vML4}, {pLB}'])
set_exec(-1)
stamp(9)
end_wave()
vg_A = max(vg_A, V.hi)

LAB('L_W')
V.release(mP)
A(f's_cmp_eq_u32 {sWAVE}, 9'); A('s_cbranch_scc1 L_W9')
aWq, aH, aHw, aHr, aQst, aWo, aBst, aDst, aMV, aX2, aX2b, aGu, aDn, aCst, aCld, aOb, v8qr = [V() for _ in range(17)]
vMk = V(4, 1); vMd = V(4, 1)
A(f'v_lshl_add_u32 {v8qr}, {vQ}, 3, {vR}')
A(f's_and_b32 s54, {sU}, 7'); A(f's_lshr_b32 s55, {sU}, 3')
A(f'v_lshl_add_u32 {aWq}, {v8qr}, 7, {vC8}'); A(f'v_add_u32 {aWq}, {w5}, {aWq}')
A('s_lshl_b32 s56, s55, 10'); A(f'v_lshl_add_u32 {aH}, {vL}, 4, s56')
A(f's_lshl_b32 s58, {sWAVE}, 9'); A(f's_add_u32 s56, s58, {HL}'); A(f'v_lshl_add_u32 {aHw}, {vL}, 3, s56'); A(f'v_add_u32 {aHr}, s56, {vQ16}')
A('s_lshl_b32 s56, s55, 11'); A('s_lshl_b32 s57, s54, 8'); A('s_add_u32 s56, s56, s57'); A(f's_add_u32 s56, s56, {w6}'); A(f's_add_u32 s56, s56, {Q_}'); A(f'v_add_u32 {aQst}, s56, {vQ16}')
A(f'v_and_b32 {vT0}, 1, {vQ}'); A(f'v_lshl_add_u32 {vT0}, {vT0}, 2, {vR}'); A(f'v_lshlrev_b32 {vT0}, 5, {vT0}')
A(f'v_add_u32 {vT1}, {w7}, {vC8}'); A(f'v_xor_b32 {vT1}, {vT1}, {vT0}'); A(f'v_lshl_add_u32 {aWo}, {v8qr}, 10, {vT1}'); A(f'v_add_u32 {aWo}, {WO}, {aWo}')
A(f'v_add_u32 {aOb}, {OB}, {vQ16}')
A(f'v_lshl_add_u32 {vT0}, {vN}, 6, {vQ16}')
A(f's_lshl_b32 s57, {sU}, 11'); A(f's_add_u32 s57, s57, {B1}'); A(f's_add_u32 s56, s57, {w8}'); A(f'v_add_u32 {aBst}, s56, {vT0}')
A('s_add_u32 s56, s57, s58'); A(f'v_add_u32 {aDst}, s56, {vT0}')
A(f's_lshl_b32 s56, {sU}, 10'); A(f's_add_u32 s56, s56, {w8}'); A(f's_add_u32 s56, s56, {A_}'); A(f'v_add_u32 {aCst}, s56, {vT0}')
A(f'v_lshlrev_b32 {vT0}, 4, {vR}'); A(f'v_and_b32 {vT1}, 2, {vL}'); A(f'v_lshl_add_u32 {vT0}, {vT1}, 2, {vT0}'); A(f'v_lshl_add_u32 {vT0}, {vQ}, 1, {vT0}'); A(f'v_and_b32 {vT1}, 1, {vL}'); A(f'v_add_u32 {vT0}, {vT0}, {vT1}')
A('s_lshl_b32 s56, s54, 8'); A(f'v_lshl_add_u32 {vT0}, {vT0}, 4, s56'); A(f'v_and_b32 {vT0}, 2047, {vT0}')
A(f'v_add_u32 {aX2}, {X2}, {vT0}'); A(f'v_add_u32 {aMV}, {MV}, {vT0}'); A(f'v_xor_b32 {vT0}, 1024, {vT0}'); A(f'v_add_u32 {aX2b}, {X2}, {vT0}')
A(f's_add_u32 s56, {w7}, {GU}'); A(f'v_lshl_add_u32 {aGu}, {v8qr}, 9, {vC8}'); A(f'v_add_u32 {aGu}, s56, {aGu}')
A(f'v_and_b32 {vT0}, 1, {vQ}'); A(f'v_lshl_add_u32 {vT0}, {vT0}, 3, {vR}'); A(f'v_lshl_add_u32 {aDn}, {vT0}, 10, {vC8}'); A(f'v_lshrrev_b32 {vT1}, 1, {vQ}'); A(f'v_lshl_add_u32 {aDn}, {vT1}, 5, {aDn}')
A(f's_add_u32 s56, {w8}, {DN}'); A(f'v_add_u32 {aDn}, s56, {aDn}')
A(f'v_bfe_u32 {vT0}, {vL}, 2, 1'); A(f'v_lshrrev_b32 {aCld}, 3, {vL}'); A(f'v_lshl_add_u32 {aCld}, {vT0}, 3, {aCld}'); A(f'v_lshlrev_b32 {aCld}, 10, {aCld}')
A(f'v_lshl_add_u32 {aCld}, {vC}, 4, {aCld}'); A(f's_lshl_b32 s56, {sU}, 6'); A(f's_add_u32 s56, s56, {A_}'); A(f'v_add_u32 {aCld}, s56, {aCld}')
for j in range(4):
    A(f'v_cmp_eq_u32 vcc, {j}, {vN}'); A(f'v_cndmask_b32 {vMk[j]}, 0, -1, vcc')
for jj in range(4):
    if jj: A(f'v_add_u32 {vT1}, 2, {vT1}')
    A(f'v_cmp_eq_u32 vcc, {vT1}, {vN}'); A(f'v_cndmask_b32 {vMd[jj]}, 0, -1, vcc')
A(f's_mov_b32 {sCM}, {M_N4 & 0xffffffff:#x}'); A(f's_cmp_eq_u32 {sWAVE}, 3'); A(f's_cselect_b32 {sCM}, {M_N2 & 0xffffffff:#x}, {sCM}')
A('s_barrier')
epoch_wait()
stamp(1)
A(f's_cmp_ge_u32 {sWAVE}, 4'); A('s_cbranch_scc1 L_W_att')
A(f's_sub_u32 s57, {sWAVE}, 1'); A('s_cmp_lt_u32 s57, 2'); A('s_cbranch_scc0 L_W_main')
m = V.mark()
vWq = V(32); mH = V.mark()
vMean, vVar, vAd, vAd2, vHs = V(), V(), V(), V(), V(); vU = V(8); vRs = [V(4) for _ in range(CFG['GK'])]; vSa, vCa = vU[0], vU[1]
A(f's_lshl_b32 {sSL}, {sU}, 1'); A(f's_add_u32 {sSL}, {sSL}, s57')
A(f's_lshl_b32 s56, {sSL}, 6'); A(f'v_lshl_add_u32 {vHs}, {vN}, 2, s56')
A(f's_and_b32 s56, {sSL}, 3'); A('s_lshl_b32 s56, s56, 6'); A(f's_lshr_b32 s57, {sSL}, 2'); A('s_lshl_b32 s57, s57, 8'); A('s_add_u32 s56, s56, s57'); A(f's_add_u32 s56, s56, {S_M}'); A(f's_add_u32 s56, s56, {sCP}')
A(f'v_lshlrev_b32 {vT0}, 12, {vQ}'); A(f'v_and_b32 {vT1}, 0x2000, {vT0}'); A(f'v_add_u32 {vT0}, {vT0}, {vT1}'); A(f'v_lshlrev_b32 {vT1}, 2, {vN}'); A(f'v_add3_u32 {vAd}, {vT0}, {vT1}, s56'); A(f'v_add_u32 {vAd2}, 32768, {vAd}')
A('s_waitcnt vmcnt(0)')
for j in range(4):
    A(f'v_lshlrev_b32 {vU[2*j]}, 16, {vX[j]}'); A(f'v_and_b32 {vU[2*j+1]}, {sHI}, {vX[j]}')
A(f'v_add_f32 {vMean}, {vU[0]}, {vU[1]}')
for j in range(2, 8): A(f'v_add_f32 {vMean}, {vMean}, {vU[j]}')
row_allred('v_add_f32', [vMean]); xrow_allred('v_add_f32', vMean, vT0)
A(f'v_mul_f32 {vMean}, 0x3b000000, {vMean}')
for j in range(8): A(f'v_sub_f32 {vU[j]}, {vU[j]}, {vMean}')
A(f'v_mul_f32 {vVar}, {vU[0]}, {vU[0]}')
for j in range(1, 8): A(f'v_fmac_f32 {vVar}, {vU[j]}, {vU[j]}')
row_allred('v_add_f32', [vVar]); xrow_allred('v_add_f32', vVar, vT0)
A(f'v_mul_f32 {vVar}, 0x3b000000, {vVar}')
rnd(vMean, vMean); rnd(vVar, vVar)
A(f'v_add_f32 {vVar}, 0x3727c5ac, {vVar}'); rnd(vVar, vVar)
A(f'v_sqrt_f32 {vVar}, {vVar}'); rnd(vVar, vVar)
A(f'v_lshlrev_b32 {vXd}, 16, {vXd}'); A(f'v_sub_f32 {vXd}, {vXd}, {vMean}'); rnd(vXd, vXd)
A(f'v_rcp_f32 {vT0}, {vVar}'); A(f'v_mul_f32 {vT1}, {vXd}, {vT0}'); A(f'v_fma_f32 {vT2}, -{vT1}, {vVar}, {vXd}'); A(f'v_fma_f32 {vXd}, {vT2}, {vT0}, {vT1}')
rnd(vXd, vXd)
stamp(2)
mQ = V.mark()
def wq_read(vWq):
    lds_wait(3, F_LP, MKW['WQ'], vT0)
    for ks in range(8):
        A(f'ds_read_b64_tr_b16 {vWq[4*ks:4*ks+2]}, {aWq} offset:{WQ + ks*4096}'); A(f'ds_read_b64_tr_b16 {vWq[4*ks+2:4*ks+4]}, {aWq} offset:{WQ + ks*4096 + 512}')
        if ks == 3: A('s_waitcnt lgkmcnt(4)')
wq_read(vWq)
ppoll(1, CFG['GK'], CFG['ggap'], lambda r: [f'global_load_dword {r[0]}, {vAd}, {pWS} sc1', f'global_load_dword {r[1]}, {vAd}, {pWS} offset:2048 sc1', f'global_load_dword {r[2]}, {vAd2}, {pWS} sc1', f'global_load_dword {r[3]}, {vAd2}, {pWS} offset:2048 sc1'], 4, vRs, [vU[i] for i in range(4)], sT6, TM, extra=[pure_read()])
stamp(3)
A(f'v_add_f32 {vSa}, {vSa}, {vU[2]}'); A(f'v_add_f32 {vCa}, {vCa}, {vU[3]}')
A(f'v_permlane32_swap_b32 {vSa}, {vCa}'); A(f'v_add_f32 {vSa}, {vSa}, {vCa}')
A(f'v_mov_b32 {vCa}, {vSa}'); A(f'v_permlane16_swap_b32 {vSa}, {vCa}'); A(f'v_add_f32 {vSa}, {vSa}, {vCa}')
rnd(vSa, vSa)
A(f'v_mov_b32 {vCa}, {vSa}'); A(f'v_permlane32_swap_b32 {vSa}, {vCa}')
A(f'v_add_f32 {vCa}, 1.0, {vCa}'); rnd(vCa, vCa)
A(f'v_mul_f32 {vCa}, {vXd}, {vCa}'); rnd(vCa, vCa)
A(f'v_add_f32 {vCa}, {vCa}, {vSa}'); rnd(vCa, vCa)
A(f'v_or_b32 {vCa}, {sT16}, {vCa}')
A('s_waitcnt lgkmcnt(0)'); pure_update()
set_exec(0xffff)
lstore([f'global_store_dword {vHs}, {vCa}, {pLB} offset:{H_}'])
set_exec(-1)
flag(F_G1)
A('s_branch L_W_q')
LAB('L_W_main')
A(f'global_load_dword {vDUM}, {aH}, {pLB} sc1')
wq_read(vWq)
stamp(4)
lds_wait(30, F_G1, 1, vT0, sleep=1)
LAB('L_W_q')
V.release(mH)
vHB = V(32); vAq = V(4); vHs2 = [V(4) for _ in range(CFG['LK'])]; vHx = V(4); vHp = V(2)
ppoll(4, CFG['LK'], CFG['lgap'], lambda r: [f'global_load_dwordx4 {r}, {aH}, {pLB} offset:{H_} sc1'], 1, vHs2, [vHx[i] for i in range(4)], sT16, 0xffff, extra=[pure_read()])
stamp(5)
A(f'v_perm_b32 {vHp[0]}, {vHx[1]}, {vHx[0]}, {sSEL}'); A(f'v_perm_b32 {vHp[1]}, {vHx[3]}, {vHx[2]}, {sSEL}')
A(f'ds_write_b64 {aHw}, {vHp}')
for ks in range(8): A(f'ds_read_b128 {vHB[4*ks:4*ks+4]}, {aHr} offset:{64*ks}')
for ks in range(8):
    A(f's_waitcnt lgkmcnt({7-ks})')
    if ks == 0: pure_update()
    A(f'v_mfma_f32_16x16x32_bf16 {vAq}, {vWq[4*ks:4*ks+4]}, {vHB[4*ks:4*ks+4]}, {0 if ks == 0 else vAq}')
for r in range(4): tagf(vAq[r], vAq[r], vTg)
set_exec(M_N0)
lstore([f'global_store_dwordx4 {aQst}, {vAq}, {pLB}'])
set_exec(-1)
flag(F_QP)
stamp(6)
A('s_waitcnt vmcnt(0)')
V.release(m)
LAB('L_W_att')
vWo = V(16); vOb = V(4); vBm = V(8); vD = V(4)
lds_wait(11, F_LP, MKW['WO'], vT0, sleep=1)
for j in range(4):
    A(f'v_xor_b32 {vT0}, {32*j}, {aWo}'); A(f'ds_read_b64_tr_b16 {vWo[4*j:4*j+2]}, {vT0}'); A(f'ds_read_b64_tr_b16 {vWo[4*j+2:4*j+4]}, {vT0} offset:4096')
A(pure_read())
A('s_waitcnt lgkmcnt(0)'); pure_update()
stamp(7)
A('s_barrier')
A(f'ds_read_b128 {vOb}, {aOb}')
A('s_waitcnt lgkmcnt(0)')
for j in range(4):
    b = vBm[4*(j & 1):4*(j & 1)+4]
    for p in range(4): A(f'v_and_b32 {b[p]}, {vMk[j]}, {vOb[p]}')
    A(f'v_mfma_f32_16x16x32_bf16 {vD}, {vWo[4*j:4*j+4]}, {b}, {0 if j == 0 else vD}')
for r in range(4): tagf(vD[r], vD[r], vTg)
set_exec(M_N4)
lstore([f'global_store_dwordx4 {aBst}, {vD}, {pLB}'])
set_exec(-1)
set_exec(1); A(f'ds_add_u32 {vZ}, {vOne} offset:{F_B1 - FLG}'); set_exec(-1)
stamp(10)
A(f's_cmp_ge_u32 {sWAVE}, 4'); A('s_cbranch_scc1 L_W_end')
V.release(m)
vGu = V(32); vDn = V(16); vSB = V(4); vT1v = V(4); vXs = [V(8) for _ in range(CFG['LK'])]; vXr = vXs[0]; vXx = V(8); vHp = V(2); vBm = V(8); vD = V(4); vSum, vSq = V(), V()
A(f'global_load_dword {vDUM}, {aX2}, {pLB} sc1'); A(f'global_load_dword {vDUM}, {aX2b}, {pLB} sc1')
poll(13, [f'global_load_dwordx4 {vXr[0:4]}, {aMV}, {pLB} sc1', f'global_load_dwordx4 {vXr[4:8]}, {aMV}, {pLB} offset:2048 sc1'], [vXr[i] for i in range(8)], [vSB[i] for i in range(4)] + [vT1v[i] for i in range(4)], sT16, 0xffff, vCH, sleep=1)
stamp(11)
lds_wait(15, F_LP, MKW['GU'], vT0, sleep=1)
for j in range(4):
    for ks in range(2):
        r = vGu[8*j+4*ks:8*j+4*ks+4]
        A(f'ds_read_b64_tr_b16 {r[0:2]}, {aGu} offset:{32*j + 16384*ks}'); A(f'ds_read_b64_tr_b16 {r[2:4]}, {aGu} offset:{32*j + 16384*ks + 2048}')
    if j == 1: A('s_waitcnt lgkmcnt(4)')
lds_wait(16, F_LP, MKW['DN'], vT0)
for jj in range(4):
    A(f'ds_read_b64_tr_b16 {vDn[4*jj:4*jj+2]}, {aDn} offset:{64*jj}'); A(f'ds_read_b64_tr_b16 {vDn[4*jj+2:4*jj+4]}, {aDn} offset:{64*jj + 4096}')
A('s_waitcnt lgkmcnt(0)')
stamp(12)
ppoll(17, CFG['LK'], CFG['lgap'], lambda r: [f'global_load_dwordx4 {r[0:4]}, {aX2}, {pLB} sc1', f'global_load_dwordx4 {r[4:8]}, {aX2b}, {pLB} sc1'], 2, vXs, [vXx[i] for i in range(8)], sT16, 0xffff)
stamp(13)
A(f'v_add_f32 {vSum}, {vXx[0]}, {vXx[1]}'); A(f'v_mul_f32 {vSq}, {vXx[0]}, {vXx[0]}')
A(f'v_add_f32 {vT0}, {vXx[2]}, {vXx[3]}'); A(f'v_mul_f32 {vT1}, {vXx[1]}, {vXx[1]}')
for i in range(2, 8): A(f'v_fmac_f32 {vSq if i % 2 == 0 else vT1}, {vXx[i]}, {vXx[i]}')
A(f'v_add_f32 {vT2}, {vXx[4]}, {vXx[5]}'); A(f'v_add_f32 {vT3}, {vXx[6]}, {vXx[7]}'); A(f'v_add_f32 {vSum}, {vSum}, {vT0}'); A(f'v_add_f32 {vT2}, {vT2}, {vT3}')
A(f'v_add_f32 {vSq}, {vSq}, {vT1}'); A(f'v_add_f32 {vSum}, {vSum}, {vT2}')
A(f'v_permlane32_swap_b32 {vSum}, {vSq}'); A(f'v_add_f32 {vSum}, {vSum}, {vSq}')
A(f'v_mov_b32 {vSq}, {vSum}'); A(f'v_permlane16_swap_b32 {vSum}, {vSq}'); A(f'v_add_f32 {vSum}, {vSum}, {vSq}')
row_allred('v_add_f32', [vSum])
A(f'v_mul_f32 {vSum}, 0x3b000000, {vSum}')
A(f'v_mov_b32 {vSq}, {vSum}'); A(f'v_permlane32_swap_b32 {vSum}, {vSq}')
A(f'v_fma_f32 {vSq}, -{vSum}, {vSum}, {vSq}'); A(f'v_max_f32 {vSq}, 0, {vSq}'); A(f'v_add_f32 {vSq}, 0x3727c5ac, {vSq}'); A(f'v_rsq_f32 {vSq}, {vSq}')
for i in range(4): A(f'v_sub_f32 {vXx[i]}, {vXx[i]}, {vSum}')
for i in range(4): A(f'v_mul_f32 {vT1v[i]}, {vSq}, {vT1v[i]}')
for i in range(4): A(f'v_fma_f32 {vXx[i]}, {vXx[i]}, {vT1v[i]}, {vSB[i]}')
for i in range(2): A(f'v_cvt_pk_bf16_f32 {vHp[i]}, {vXx[2*i]}, {vXx[2*i+1]}')
k = 0
sk = nl('S')
for j in range(4):
    if j == 2: A(f's_cmp_eq_u32 {sWAVE}, 3'); A(f's_cbranch_scc1 {sk}')
    for ks in range(2):
        b = vBm[4*(k & 1):4*(k & 1)+4]
        for p in range(4): dpp('v_and_b32', b[p], vHp[p & 1], vMk[j], f'row_newbcast:{2*ks + (p >> 1)}')
        A(f'v_mfma_f32_16x16x32_bf16 {vD}, {vGu[8*j+4*ks:8*j+4*ks+4]}, {b}, {0 if k == 0 else vD}'); k += 1
LAB(sk)
for r in range(4): tagf(vD[r], vD[r], vTgb)
A(f's_mov_b32 exec_lo, {sCM}'); A(f's_mov_b32 exec_hi, {sCM}')
lstore([f'global_store_dwordx4 {aCst}, {vD}, {pLB}'])
set_exec(-1)
stamp(14)
vG = vXx
A(f's_cmp_ge_u32 {sU}, 14'); A('s_cbranch_scc1 L_W_zero')
if CFG['LK'] > 1: A('s_waitcnt vmcnt(1)')
ppoll(18, CFG['LK'], CFG['lgap'], lambda r: [f'global_load_dwordx4 {r}, {aCld}, {pLB} sc1'], 1, [r[0:4] for r in vXs], [vG[i] for i in range(4)], sT6b, TM)
tred4(vG)
dpp('v_add_f32', vG[0], vG[0], vG[0], 'row_ror:8')
rnd(vG[0], vG[0])
A(f'v_mul_f32 {vT0}, {sL2E}, {vG[0]}'); A(f'v_exp_f32 {vT0}, -{vT0}'); A(f'v_add_f32 {vT0}, 1.0, {vT0}'); A(f'v_rcp_f32 {vT0}, {vT0}'); rnd(vT0, vT0)
dpp('v_mul_f32', vT0, vG[0], vT0, 'row_ror:12')
A(f'v_mov_b32 {vT1}, {vT0}'); A(f'v_permlane32_swap_b32 {vT0}, {vT1}'); A(f'v_cvt_pk_bf16_f32 {vT0}, {vT0}, {vT1}')
A(f'v_mov_b32 {vT1}, {vT0}'); A(f'v_permlane16_swap_b32 {vT0}, {vT1}')
vHh = vSB
for rowm, q0 in ((0x5, 0), (0xa, 2)):
    dpp('v_mov_b32', vHh[0], vT0, None, f'row_newbcast:{q0}', row=rowm); dpp('v_mov_b32', vHh[1], vT1, None, f'row_newbcast:{q0}', row=rowm)
    dpp('v_mov_b32', vHh[2], vT0, None, f'row_newbcast:{q0+1}', row=rowm); dpp('v_mov_b32', vHh[3], vT1, None, f'row_newbcast:{q0+1}', row=rowm)
for jj in range(4):
    b = vBm[4*(jj & 1):4*(jj & 1)+4]
    for p in range(4): A(f'v_and_b32 {b[p]}, {vMd[jj]}, {vHh[p]}')
    A(f'v_mfma_f32_16x16x32_bf16 {vD}, {vDn[4*jj:4*jj+4]}, {b}, {0 if jj == 0 else vD}')
for r in range(4): tagf(vD[r], vD[r], vTgb)
LAB('L_W_pub')
set_exec(M_N8)
lstore([f'global_store_dwordx4 {aDst}, {vD}, {pLB}'])
set_exec(-1)
stamp(15)
LAB('L_W_end')
end_wave()
LAB('L_W_zero')
for r in range(4): A(f'v_mov_b32 {vD[r]}, {vTgb}')
A('s_branch L_W_pub')
vg_W = V.hi
LAB('L_W9')
V.release(mP)
aML, aA1, aA2, aOw = V(), V(), V(), V(); vMr = V(8); vMx = V(4); vAs = [V(8) for _ in range(CFG['LK'])]; vAx = V(8); vW1, vW2 = V(), V()
A(f'v_lshrrev_b32 {vT0}, 3, {vL}'); A(f'v_and_b32 {vT1}, 7, {vL}')
A(f's_lshr_b32 s57, {sU}, 2'); A('s_lshl_b32 s56, s57, 4'); A(f's_add_u32 s56, s56, {MLG}'); A(f'v_lshl_add_u32 {aML}, {vT0}, 6, s56')
A('s_lshl_b32 s56, s57, 9'); A(f's_and_b32 s57, {sU}, 3'); A('s_lshl_b32 s57, s57, 7'); A('s_add_u32 s56, s56, s57'); A(f's_add_u32 s56, s56, {A_}')
A(f'v_lshlrev_b32 {aA1}, 11, {vT0}'); A(f'v_lshl_add_u32 {aA1}, {vT1}, 4, {aA1}'); A(f'v_add_u32 {aA1}, s56, {aA1}'); A(f'v_add_u32 {aA2}, 16384, {aA1}')
A(f'v_lshrrev_b32 {vT0}, 5, {vL}'); A(f'v_lshl_add_u32 {aOw}, {vT1}, 2, {vT0}'); A(f'v_and_b32 {vT0}, 1, {vQ}'); A(f'v_lshl_add_u32 {aOw}, {vT0}, 1, {aOw}'); A(f'v_lshlrev_b32 {aOw}, 1, {aOw}'); A(f'v_add_u32 {aOw}, {OB}, {aOw}')
A('s_barrier')
epoch_wait()
pure_phase()
lds_wait(35, F_QP, 1, vT0, sleep=2)
A(f's_lshl_b32 s56, {sU}, 7'); A(f's_add_u32 s56, s56, {HINT}'); A(f'v_mov_b32 {vT3}, s56')
lp, ok = nl('P'), nl('OK')
A(f's_mov_b32 {sCNT}, {CFG["limit"]}')
LAB(lp)
A(f'global_load_dword {vT0}, {vT3}, {pLB} sc1'); A('s_waitcnt vmcnt(0)')
A(f'v_cmp_ne_u32 vcc, {sE}, {vT0}'); A(f's_cbranch_vccz {ok}')
fail_branch(44, lp)
LAB(ok)
flag(F_GO)
stamp(6)
A(f'global_load_dword {vDUM}, {aA1}, {pLB} sc1'); A(f'global_load_dword {vDUM}, {aA2}, {pLB} sc1'); A(f'global_load_dword {vDUM}, {aML}, {pLB} sc1'); A(f'global_load_dword {vDUM}, {aML}, {pLB} offset:512 sc1')
lds_wait(36, F_WI, 1, vT0, sleep=1)
stamp(7)
a_loads = lambda r: [f'global_load_dwordx4 {r[0:4]}, {aA1}, {pLB} sc1', f'global_load_dwordx4 {r[4:8]}, {aA2}, {pLB} sc1']
poll(10, [f'global_load_dwordx4 {vMr[0:4]}, {aML}, {pLB} sc1', f'global_load_dwordx4 {vMr[4:8]}, {aML}, {pLB} offset:512 sc1'], [vMr[i] for i in (0, 1, 4, 5)], [vMx[i] for i in range(4)], sT6, TM, vCH, full=[vMr[i] for i in (2, 3, 6, 7)])
def weights():
    A(f'v_max_f32 {vT0}, {vMx[0]}, {vMx[2]}'); row_allred('v_max_f32', [vT0], (8,)); xrow_allred('v_max_f32', vT0, vT1)
    A(f'v_sub_f32 {vW1}, {vMx[0]}, {vT0}'); A(f'v_sub_f32 {vW2}, {vMx[2]}, {vT0}'); A(f'v_mul_f32 {vW1}, {sL2E}, {vW1}'); A(f'v_mul_f32 {vW2}, {sL2E}, {vW2}')
    A(f'v_exp_f32 {vW1}, {vW1}'); A(f'v_exp_f32 {vW2}, {vW2}')
    A(f'v_mul_f32 {vT0}, {vW1}, {vMx[1]}'); A(f'v_fmac_f32 {vT0}, {vW2}, {vMx[3]}'); row_allred('v_add_f32', [vT0], (8,)); xrow_allred('v_add_f32', vT0, vT1)
    A(f'v_rcp_f32 {vT0}, {vT0}'); A(f'v_mul_f32 {vW1}, {vW1}, {vT0}'); A(f'v_mul_f32 {vW2}, {vW2}, {vT0}')
    stamp(8)
poll(12, a_loads(vAs[0]), [vAs[0][i] for i in range(8)], [vAx[i] for i in range(8)], sT6, TM, vCH, shadow=weights)
stamp(9)
for i in range(4): A(f'v_mul_f32 {vAx[i]}, {vW1}, {vAx[i]}')
for i in range(4): A(f'v_fmac_f32 {vAx[i]}, {vW2}, {vAx[4+i]}')
tred4(vAx)
dpp('v_add_f32', vAx[0], vAx[0], vAx[0], 'row_ror:8')
A(f'v_cvt_pk_bf16_f32 {vT0}, {vAx[0]}, {vAx[0]}')
A(f'ds_write_b16 {aOw}, {vT0}'); A('s_waitcnt lgkmcnt(0)'); A('s_barrier')
end_wave()
vg_W = max(vg_W, V.hi)

LAB('L_loader')
if CFG['lprio']: A(f's_setprio {CFG["lprio"]}')
V = Alloc('v', 1, 64)
vO1, vT0, vT1, vLin, vZ, vMark, vX, vOne = [V() for _ in range(8)]; vKo = V(4, 1); vVo = V(2, 1)
adv = lambda p: [f's_add_u32 s{p}, s{p}, 4096', f's_addc_u32 s{p+1}, s{p+1}, 0', 's_add_u32 m0, m0, 4096']
pend = []
def post(mark, st):
    A(f'v_mov_b32 {vMark}, {mark}'); A(f'ds_write_b32 {vZ}, {vMark}')
    if st.get(mark): stamp(st[mark])
def retire_to(n, st):
    while len(pend) > n:
        mk = pend.pop(0)
        if mk is not None or len(pend) == n:
            A(f's_waitcnt vmcnt({len(pend)})')
            if mk is not None: post(mk, st)
def run(items, st, bar):
    for win, pre, ins, mk in items:
        if len(pend) >= win:
            if not bar: stamp(1); A('s_barrier'); bar = True
            retire_to(win - 1, st)
        for x in pre: A(x)
        if isinstance(ins, tuple):
            A('s_mov_b32 exec_lo, 0x0fffffff'); A('s_mov_b32 exec_hi, 0x0fffffff'); A(ins[1]); A('s_mov_b64 exec, -1')
        else: A(ins)
        pend.append(mk)
    return bar
A(f'v_mov_b32 {vZ}, {FLG}'); A(f'v_mov_b32 {vOne}, 1'); A(f'v_lshlrev_b32 {vLin}, 4, {vL}')
A(f's_cmp_ge_u32 {sT}, 16'); A('s_cbranch_scc1 L_loaderW')
vO2 = V()
for x in [f'v_lshrrev_b32 {vT0}, 3, {vL}', f'v_and_b32 {vT1}, 7, {vL}', f'v_mul_u32_u24 {vO1}, 6144, {vT0}', f'v_lshl_add_u32 {vO1}, {vT1}, 4, {vO1}',
          f's_lshl_b32 s58, {sG}, 7',
          f's_lshr_b32 s56, {sU}, 1', f's_mul_i32 s56, s56, {64*6144}', f's_and_b32 s57, {sU}, 1', 's_lshl_b32 s57, s57, 10', 's_add_u32 s56, s56, s57', 's_add_u32 s56, s56, s58', f'v_add_u32 {vO2}, s56, {vO1}',
          f's_mov_b32 m0, {MM}', 's_waitcnt lgkmcnt(0)']: A(x)
setup = [f's_lshr_b32 s56, {sU}, 2', f's_mul_i32 s56, s56, {128*6144}', f's_and_b32 s57, {sU}, 3', 's_lshl_b32 s57, s57, 10', 's_add_u32 s56, s56, s57',
         's_add_u32 s56, s56, s58', 's_add_u32 s56, s56, 2048', f'v_add_u32 {vO1}, s56, {vO1}',
         f'v_lshrrev_b32 {vT0}, 4, {vL}', f'v_and_b32 {vT1}, 15, {vL}']
for m in range(4):
    setup += [f'v_add_u32 {vX}, {4*m}, {vT0}', f'v_xor_b32 {vX}, {vX}, {vT1}' if CFG['ksw'] else f'v_mov_b32 {vX}, {vT1}', f'v_lshlrev_b32 {vX}, 4, {vX}', f'v_lshl_add_u32 {vKo[m]}, {vT0}, 8, {vX}']
for m in range(2):
    setup += [f'v_add_u32 {vX}, {4*m}, {vT0}', f'v_lshlrev_b32 {vX}, 1, {vX}', f'v_xor_b32 {vX}, {vX}, {vT1}', f'v_lshlrev_b32 {vX}, 4, {vX}', f'v_lshl_add_u32 {vVo[m]}, {vT0}, 8, {vX}']
setup += [f's_lshl_b32 s56, {sG}, 22', f's_lshl_b32 s57, {sU}, {12 if CFG["kvi"] else 16}', 's_add_u32 s56, s56, s57', 's_add_u32 s56, s56, 0x300000',
          f's_add_u32 s62, {lo(pK)}, s56', f's_addc_u32 s63, {hi(pK)}, 0', f's_add_u32 s60, {lo(pV)}, s56', f's_addc_u32 s61, {hi(pV)}, 0']
if CFG['kvi']:
    def advk(p, c):
        d = 17 if CFG['kvi'] == 1 else 16
        if CFG['kvi'] == 2: return [f's_add_u32 s{p}, s{p}, 65536', f's_addc_u32 s{p+1}, s{p+1}, 0', 's_add_u32 m0, m0, 4096']
        return [f's_cmp_eq_u32 {sU}, {16 - c}', f's_cselect_b32 s56, 4096, s55', f's_add_u32 s{p}, s{p}, s56', f's_addc_u32 s{p+1}, s{p+1}, 0', 's_add_u32 m0, m0, 4096']
    setup += [f's_mov_b32 s55, {17*4096}']
else:
    advk = lambda p, c: adv(p)
sec = {}
sec['M'] = [[0, [] if i == 0 else [f'v_add_u32 {vO2}, {8*6144}, {vO2}', 's_add_u32 m0, m0, 1024'], f'global_load_lds_dwordx4 {vO2}, {pWM}{NT}', MKA['M'] if i == 7 else None] for i in range(8)]
sec['MR'] = [[0, [f's_mov_b32 m0, {MR}'] if i == 0 else [f'v_add_u32 {vO1}, {8*6144}, {vO1}', 's_add_u32 m0, m0, 1024'], f'global_load_lds_dwordx4 {vO1}, {pWM}{NT}', MKA['MR'] if i == 15 else None] for i in range(16)]
sec['K'] = [[0, [f's_mov_b32 m0, {KK}'] if i == 0 else advk(62, i // 4) if i % 4 == 0 else [], f'global_load_lds_dwordx4 {vKo[i % 4]}, s[62:63] offset:{1024*(i % 4)}{NT}', MKA['K0'] + i // 8 if i % 8 == 7 else None] for i in range(64)]
sec['V'] = [[0, [f's_mov_b32 m0, {VV}'] if i == 0 else advk(60, i // 4) if i % 4 == 0 else [], f'global_load_lds_dwordx4 {vVo[i & 1]}, s[60:61] offset:{1024*(i % 4)}{NT}', MKA['V0'] + i // 8 if i % 8 == 7 else None] for i in range(64)]
items = sec['M'] + (sec['MR'] + sec['K'] if CFG['mrpos'] == 0 else sec['K'] + sec['MR']) + sec['V']
items[8][1] = setup + items[8][1]
for i, it in enumerate(items): it[0] = CFG['WA0'] if i < CFG['WA0'] + CFG['NA0'] else CFG['WA']
stA = {MKA['K0'] + 7: 3, MKA['V0'] + 7: 4, MKA['MR']: 6, MKA['M']: 2}
hint_at = len(items) - 64 + 8 * CFG['hint']
def hint():
    A('s_waitcnt lgkmcnt(0)'); A(f's_add_u32 {sE}, {sE}, 1'); A(f'v_mov_b32 {vMark}, {sE}')
    A(f's_mul_i32 s53, {sG}, {LBS}'); A(f's_lshl_b32 s56, {sU}, 7'); A('s_add_u32 s53, s53, s56'); A(f's_add_u32 s53, s53, {LB0 + HINT}'); A(f'v_mov_b32 {vX}, s53')
items[8][1] = [f's_load_dword {sE}, {pWS}, {EP}'] + items[8][1]
n0 = 8 + CFG['X0']
run([(63, *x[1:]) for x in items[:n0]], stA, True)
stamp(1); A('s_barrier')
retire_to(CFG['X0'], stA)
if not CFG['only']: lds_wait(45, F_MP, 4, vT0)
run(items[n0:hint_at], stA, True)
hint()
A(f'ds_read_b32 {vT0}, {vZ} offset:{F_PURE - FLG}'); A('s_waitcnt lgkmcnt(0)'); A(f'v_readfirstlane_b32 {sPURE}, {vT0}')
set_exec(1)
lstore([f'global_store_dword {vX}, {vMark}, {pWS}'])
set_exec(-1)
pend.append(None)
run(items[hint_at:], stA, True)
retire_to(0, stA)
A('s_waitcnt lgkmcnt(0)')
end_wave()
LAB('L_loaderW')
A(f's_and_b32 s54, {sU}, 7'); A(f's_lshr_b32 s55, {sU}, 3')
A(f'v_lshrrev_b32 {vT0}, 3, {vL}'); A(f'v_and_b32 {vT1}, 7, {vL}'); A(f'v_lshlrev_b32 {vO1}, 13, {vT0}'); A(f'v_lshl_add_u32 {vO1}, {vT1}, 4, {vO1}')
A('s_lshl_b32 s56, s55, 21'); A(f's_lshl_b32 s57, {sG}, 10'); A('s_add_u32 s56, s56, s57'); A('s_lshl_b32 s57, s54, 7'); A('s_add_u32 s56, s56, s57')
A(f'v_add_u32 {vO1}, s56, {vO1}'); A(f's_mov_b32 m0, {WQ}')
A('s_waitcnt lgkmcnt(0)')
stW = {1: 2, 2: 5, 3: 7, 4: 8}
items = []
for i in range(32):
    items.append((63, [] if i == 0 else [f'v_add_u32 {vO1}, 65536, {vO1}', 's_add_u32 m0, m0, 1024'], f'global_load_lds_dwordx4 {vO1}, {pWQ}{NT}', MKW['WQ'] if i == 31 else None))
run(items, stW, True)
stamp(1); A('s_barrier')
retire_to(0, stW)
if CFG['only'] == 'loaderA': end_wave()
if CFG['only'] != 'loader': lds_wait(41, F_GO, 1, vT0, sleep=1)
items = []
for i in range(32):
    pre = []
    if i == 0: pre = [f's_lshl_b32 s56, {sG}, 19', f's_lshl_b32 s57, {sU}, 15', 's_add_u32 s56, s56, s57', f's_add_u32 s58, {lo(pWO)}, s56', f's_addc_u32 s59, {hi(pWO)}, 0', f's_mov_b32 m0, {WO}']
    elif i % 4 == 0: pre = adv(58)
    f = (i & 3) | ((i >> 1) & 4)
    pre = pre + [f'v_xor_b32 {vX}, {32*f}, {vLin}']
    items.append((CFG['WO0'] if i < CFG['WO0'] + CFG['NO0'] else CFG['WO1'], pre, f'global_load_lds_dwordx4 {vX}, s[58:59] offset:{1024*(i % 4)}{NT}', MKW['WO'] if i == 31 else None))
run(items, stW, True)
items = []
for i in range(32):
    if i == 0:
        pre = [f'v_lshrrev_b32 {vT0}, 5, {vL}', f'v_and_b32 {vT1}, 31, {vL}', f'v_mul_u32_u24 {vO1}, 3584, {vT0}', f'v_lshl_add_u32 {vO1}, {vT1}, 4, {vO1}',
               f's_mul_i32 s56, s54, {64*3584}', f's_mul_i32 s57, {sG}, 448', 's_add_u32 s56, s56, s57', f'v_add_u32 {vO1}, s56, {vO1}',
               's_cmp_ge_u32 s55, 1', f's_cselect_b32 s58, {lo(pWU)}, {lo(pWG)}', f's_cselect_b32 s59, {hi(pWU)}, {hi(pWG)}', f's_mov_b32 m0, {GU}']
    else: pre = [f'v_add_u32 {vO1}, {2*3584}, {vO1}', 's_add_u32 m0, m0, 1024']
    items.append((CFG['WG'], pre, ('gu', f'global_load_lds_dwordx4 {vO1}, s[58:59]{NT}'), MKW['GU'] if i == 31 else None))
for i in range(16):
    pre = []
    if i == 0: pre = [f's_min_u32 s57, {sU}, 13', f's_mul_i32 s56, {sG}, {224*1024}', 's_lshl_b32 s57, s57, 14', 's_add_u32 s56, s56, s57', f's_add_u32 s58, {lo(pWD)}, s56', f's_addc_u32 s59, {hi(pWD)}, 0', f's_mov_b32 m0, {DN}']
    elif i % 4 == 0: pre = adv(58)
    items.append((CFG['WG'], pre, f'global_load_lds_dwordx4 {vLin}, s[58:59] offset:{1024*(i % 4)}{NT}', MKW['DN'] if i == 15 else None))
ne = CFG['early']
run([(CFG['WO1'], *x[1:]) for x in items[:ne]], stW, True)
flag(F_WI)
retire_to(0, stW)
if not CFG['only']: A('s_waitcnt lgkmcnt(0)'); A('s_barrier')
if CFG['only'] != 'loader' and ne < 48: lds_wait(42, F_B1, 8, vT0)
run(items[ne:], stW, True)
retire_to(0, stW)
A('s_waitcnt lgkmcnt(0)')
end_wave()

for sl, ins, bk in slow_paths:
    LAB(sl)
    for x in ins: A(x)
    A(f's_branch {bk}')
LAB('L_fail')
if CFG['dbgfail']:
    set_exec(1)
    A(f'v_mov_b32 v1, 0x1ffff0'); A(f's_lshl_b32 s56, s2, 16'); A(f's_lshl_b32 s57, {sWAVE}, 8'); A('s_or_b32 s56, s56, s57'); A(f's_or_b32 s56, s56, {sTMP}'); A('v_mov_b32 v2, s56')
    A(f'global_store_dword v1, v2, {pWS} sc1')
    set_exec(-1)
if CFG['stamps']:
    LAB('L_stamps')
    A('s_waitcnt lgkmcnt(0)')
    A('v_mov_b32 v2, 0')
    for i in range(16): A(f'v_writelane_b32 v2, s{64+2*i}, {i}')
    A(f's_lshl_b32 s56, {sT}, 3'); A(f's_add_u32 s56, s56, {sG}'); A(f's_mul_i32 s56, s56, {NW}'); A(f's_add_u32 s56, s56, {sWAVE}'); A('s_lshl_b32 s56, s56, 6'); A(f's_add_u32 s56, s56, {STAMPS}')
    A('v_lshl_add_u32 v1, v0, 2, s56')
    set_exec(0xffff); A(f'global_store_dword v1, v2, {pWS}')
LAB('L_exit')
A('s_endpgm')
LAB('L_codeend')

body = pad_hazards(L)
vg = (max(vg_A, vg_W) + 7) // 8 * 8
hdr = open('cdna_kernels/' + KN + '.s.ref').read().split('; Override launch')[0]
name = KN + '_kernel'
txt = hdr + f"""; @launch grid=(256,1,1) block=({64*NW},1,1) lds={LDS_BYTES}
.amdgcn_target "amdgcn-amd-amdhsa--gfx950"
.text
.globl {name}
.p2align 8
.type {name},@function
{name}:
""" + '\n'.join(body) + f"""
.section .rodata,"a"
.p2align 6
.amdhsa_kernel {name}
  .amdhsa_next_free_vgpr {vg}
  .amdhsa_next_free_sgpr 100
  .amdhsa_accum_offset {vg}
  .amdhsa_group_segment_fixed_size 0
  .amdhsa_kernarg_size 112
  .amdhsa_user_sgpr_count 2
  .amdhsa_user_sgpr_kernarg_segment_ptr 1
  .amdhsa_system_sgpr_workgroup_id_x 1
  .amdhsa_float_denorm_mode_32 3
.end_amdhsa_kernel
"""
open(OUT, 'w').write(txt)
print('vgprs', vg_A, vg_W, 'lines', len(body), file=sys.stderr)
```

```python
import sys
from kasm import pad_hazards, Alloc, Reg

KN = 'adaLN_cond__sliding_block_cached__glu_gated_glu__decode'
CFG = dict(stamps=0, limit=200000, pf=1, dbgfail=1, amp=0, ptries=40,
           WA0=28, NA0=0, WA=28, WO0=24, NO0=0, WO1=24, WG=32, nt=1, only='', early=0, QK=3, qgap=4, GK=1, ggap=2, LK=1, lgap=1,
           qstart=4, prio=0, mrpos=0, rep=1, hint=4, qh=1, qsl=0, HK=3, hgap=3, ksw=1, near=4, gat2=1, GK2=3, gd2=0, gat3=1, GK3=3, gd3=0, mrg=0, tlb=0, gat=1, gat1=0, G1K=1, gpt=0, mpt=0, gdly=0, gsw=1, mpw=1, hall=0, hret=63, kvi=1, ilv=0, X0=8, lprio=3, cprio=3)
CFG.update(WA0=56, WA=56, QK=4, qgap=9, qh=0, qstart=2, qsl=0, X0=16, hint=6, hall=1, WO0=32, WO1=32, WG=32, kvi=2, GK=3, ggap=4, gpt=2)
for a in sys.argv[2:]:
    k, v = a.split('=')
    assert k in CFG, k
    CFG[k] = int(v) if v.lstrip('-').isdigit() else v
OUT = sys.argv[1]

EP = 0; S_MR = 0x8000; S_M = 0x10000; G2 = 0x20000; G3 = 0x30000
LB0 = 0x40000; LBS = 0x18000
H_ = 0; MV = 0x800; X2 = 0x1800; MLG = 0x2000; HINT = 0x2800; Q_ = 0x3000; A_ = 0x8000; B1 = 0x10000
PROBE = 0x110000
STAMPS = 0x200000
KK = 0; VV = 0x10000; MR = 0x20000; MM = 0x24000
GU = 0; DN = 0x8000; OL = MR
WQ = 0; WO = 0x8000
SC = 0x26000
QL = SC; QS = 320; MLL = SC + 0x600; GAB = SC + 0x700; HL = SC; OB = SC + 0x800; FLG = SC + 0x900; CL = SC + 0xA00
OS = 576
F_LP = FLG; F_PURE = FLG + 4; F_G1 = FLG + 8; F_QP = FLG + 12; F_Q = FLG + 56; F_MD = FLG + 60; F_AP = FLG + 16; F_WI = FLG + 20; F_B1 = FLG + 24; F_O = FLG + 28; F_GA = FLG + 32; F_GO = FLG + 40; F_MP = FLG + 44; F_CP = FLG + 36; F_SF = FLG + 48
LDS_BYTES = SC + 0xE00
NW = 10
sWAVE, sG, sT, sE, sT6, sT16, sT6b = 's3', 's4', 's5', 's6', 's7', 's8', 's9'
sU, sSL, sCNT, sTMP = 's10', 's11', 's14', 's15'
pX, pK, pV, pWQ, pWO, pBX, pWG, pWU, pWD, pC, pWM, pOUT, pDBG, pWS = [f's[{16+2*i}:{17+2*i}]' for i in range(14)]
pLB = 's[44:45]'; sPURE = 's46'; sMASK = 's47'; sSEL = 's48'; sHI = 's49'; sL2E = 's50'; sCM = 's12'; sCP = 's51'
def lo(p): return 's' + p[2:-1].split(':')[0]
def hi(p): return 's' + p[2:-1].split(':')[1]
TM = 0x3f

L = []
def A(x): L.append('    ' + x)
def LAB(x): L.append(x + ':')
uid = [0]
def nl(p='L'):
    uid[0] += 1; return f'{p}_{uid[0]}'
slow_paths = []
def stamp(i):
    if CFG['stamps'] and (CFG['stamps'] >> i) & 1: A(f's_memrealtime s[{64+2*i}:{65+2*i}]')
def set_exec(mask):
    if mask == -1: A('s_mov_b64 exec, -1'); return
    l, h = mask & 0xffffffff, mask >> 32
    if h == 0 and l <= 64: A(f's_mov_b64 exec, {l}'); return
    A(f's_mov_b32 exec_lo, {l:#x}'); A(f's_mov_b32 exec_hi, {h:#x}')
M_N0 = 0x0001000100010001; M_N4 = 0x000F000F000F000F; M_N8 = 0x00FF00FF00FF00FF; M_N2 = 0x0003000300030003; M_Q0 = 0x1111111111111111
def rnd(d, s):
    A(f'v_cvt_pk_bf16_f32 {d}, {s}, {s}'); A(f'v_and_b32 {d}, {sHI}, {d}')
def dpp(op, d, a, b, ctl, bank=0xf, row=0xf):
    if b is None: A(f'{op}_dpp {d}, {a} {ctl} row_mask:{row:#x} bank_mask:{bank:#x}')
    else: A(f'{op}_dpp {d}, {a}, {b} {ctl} row_mask:{row:#x} bank_mask:{bank:#x}')
def row_allred(op, regs, shifts=(8, 4, 2, 1)):
    for sh in shifts:
        for r in regs: dpp(op, r, r, r, f'row_ror:{sh}')
def xrow_allred(op, v, t):
    A(f'v_mov_b32 {t}, {v}'); A(f'v_permlane16_swap_b32 {v}, {t}'); A(f'{op} {v}, {v}, {t}')
    A(f'v_mov_b32 {t}, {v}'); A(f'v_permlane32_swap_b32 {v}, {t}'); A(f'{op} {v}, {v}, {t}')
def tred4(v):
    A(f'v_permlane32_swap_b32 {v[0]}, {v[1]}'); A(f'v_permlane32_swap_b32 {v[2]}, {v[3]}')
    A(f'v_add_f32 {v[0]}, {v[0]}, {v[1]}'); A(f'v_add_f32 {v[2]}, {v[2]}, {v[3]}')
    A(f'v_permlane16_swap_b32 {v[0]}, {v[2]}'); A(f'v_add_f32 {v[0]}, {v[0]}, {v[2]}')
def fail_branch(code, loop):
    A(f's_sub_u32 {sCNT}, {sCNT}, 1'); A(f's_cbranch_scc0 {loop}')
    if CFG['dbgfail']: A(f's_mov_b32 {sTMP}, {code}')
    A('s_branch L_fail')
def check(raw, out, tag, maskbits, chk, full=()):
    for r, o in zip(raw, out): A(f'v_xor_b32 {o}, {tag}, {r}')
    o = list(out)
    if len(o) == 1: A(f'v_and_b32 {chk}, {maskbits:#x}, {o[0]}'); o = None
    elif len(o) == 2: A(f'v_or_b32 {chk}, {o[0]}, {o[1]}'); o = []
    else: A(f'v_or3_b32 {chk}, {o[0]}, {o[1]}, {o[2]}'); o = o[3:]
    if o is not None:
        while len(o) >= 2: A(f'v_or3_b32 {chk}, {chk}, {o[0]}, {o[1]}'); o = o[2:]
        if o: A(f'v_or_b32 {chk}, {chk}, {o[0]}')
        A(f'v_and_b32 {chk}, {maskbits:#x}, {chk}')
    for r in full: A(f'v_xor_b32 {r}, {sE}, {r}'); A(f'v_or_b32 {chk}, {chk}, {r}')
    A(f'v_cmp_ne_u32 vcc, 0, {chk}')
def poll(code, loads, raw, out, tag, maskbits, chk, full=(), shadow=None, sleep=0, issued=False):
    lp, ok, lw = nl('P'), nl('OK'), nl('PW')
    A(f's_mov_b32 {sCNT}, {CFG["limit"]}')
    if shadow or issued:
        if not issued:
            for x in loads: A(x)
        if shadow: shadow()
        A(f's_branch {lw}')
    LAB(lp)
    if sleep: A(f's_sleep {sleep}')
    for x in loads: A(x)
    LAB(lw)
    A('s_waitcnt vmcnt(0)')
    check(raw, out, tag, maskbits, chk, full)
    A(f's_cbranch_vccz {ok}')
    fail_branch(code, lp)
    LAB(ok)
def ppoll(code, K, gap, mk, nld, sets, out, tag, maskbits, extra=()):
    if K == 1:
        poll(code, mk(sets[0]) + list(extra), [sets[0][i] for i in range(sets[0].n)], out, tag, maskbits, vCH); return
    lp, ok = nl('PP'), nl('OK')
    A(f's_mov_b32 {sCNT}, {CFG["limit"]}')
    for k in range(K - 1):
        for x in mk(sets[k]): A(x)
        if gap: A(f's_sleep {gap}')
    LAB(lp)
    for k in range(K):
        for x in mk(sets[(k + K - 1) % K]): A(x)
        for x in extra: A(x)
        A(f's_waitcnt vmcnt({(K-1)*nld})')
        check([sets[k][i] for i in range(sets[k].n)], out, tag, maskbits, vCH)
        A(f's_cbranch_vccz {ok}')
    fail_branch(code, lp)
    LAB(ok)
def lds_wait(code, off, val, tmp, sleep=0, vaddr=None, spec=()):
    lp, ok, ag = nl('W'), nl('OK'), nl('AG')
    va = vaddr or vZ
    if spec:
        A(f'ds_read_b32 {tmp}, {va} offset:{off - FLG}')
        for x in spec: A(x)
        A(f's_waitcnt lgkmcnt({min(15, len(spec))})')
        A(f'v_readfirstlane_b32 {sTMP}, {tmp}'); A(f's_cmp_ge_u32 {sTMP}, {val}'); A(f's_cbranch_scc1 {ok}')
    A(f's_mov_b32 {sCNT}, {CFG["limit"]}')
    LAB(lp)
    A(f'ds_read_b32 {tmp}, {va} offset:{off - FLG}')
    A('s_waitcnt lgkmcnt(0)')
    A(f'v_readfirstlane_b32 {sTMP}, {tmp}')
    A(f's_cmp_ge_u32 {sTMP}, {val}')
    A(f's_cbranch_scc1 {ag}')
    if sleep: A(f's_sleep {sleep}')
    fail_branch(code, lp)
    LAB(ag)
    for x in spec: A(x)
    LAB(ok)
def lds_wait8(code, off, fl, reads):
    lp, ok, again = nl('W'), nl('OK'), nl('AG')
    def flags():
        A(f'ds_read_b128 {fl[0:4]}, {vZ} offset:{off - FLG}'); A(f'ds_read_b128 {fl[4:8]}, {vZ} offset:{off - FLG + 16}')
    def test():
        A(f'v_and_b32 {fl[0]}, {fl[0]}, {fl[1]}')
        for i in (2, 4, 6): A(f'v_bitop3_b32 {fl[0]}, {fl[0]}, {fl[i]}, {fl[i+1]} bitop3:0x80')
        A(f'v_cmp_eq_u32 vcc, 0, {fl[0]}')
    A(f's_mov_b32 {sCNT}, {CFG["limit"]}')
    LAB(lp)
    flags()
    for x in reads: A(x)
    A(f's_waitcnt lgkmcnt({min(15, len(reads))})')
    test()
    A(f's_cbranch_vccz {ok}')
    fail_branch(code, lp)
    LAB(ok)
def gld(d, a, off=0, key='gat'):
    o = f' offset:{off}' if off else ''
    if CFG[key]: return f'global_atomic_add {d}, {a}, {vZero}, {pWS}{o} sc0 sc1'
    return f'global_load_dword {d}, {a}, {pWS}{o} sc1'
def near_update():
    if not CFG['near']: return
    A(f'ds_read_b32 {vT0}, {vZ} offset:{F_CP - FLG}'); A('s_waitcnt lgkmcnt(0)'); A(f'v_readfirstlane_b32 s56, {vT0}')
    A('s_cmp_eq_u32 s56, 1'); A(f's_cselect_b32 {sCP}, 0, {sCP}'); A('s_cmp_eq_u32 s56, 2'); A(f's_cselect_b32 {sCP}, 0x2000, {sCP}')
def pure_read(): return f'ds_read_b32 {vPU}, {vZ} offset:{F_PURE - FLG}'
def pure_update(): A(f'v_readfirstlane_b32 {sPURE}, {vPU}')
def lstore(instrs):
    sl, bk = nl('SL'), nl('BK')
    A(f's_cmp_eq_u32 {sPURE}, 1'); A(f's_cbranch_scc0 {sl}')
    for x in instrs: A(x)
    LAB(bk)
    slow_paths.append((sl, [x + ' sc1' for x in instrs], bk))
def tagf(d, s, vtag): A(f'v_and_or_b32 {d}, {s}, {sMASK}, {vtag}')
def epoch_wait():
    A('s_waitcnt lgkmcnt(0)')
    A(f's_add_u32 {sE}, {sE}, 1')
    A(f's_and_b32 {sT6}, {sE}, {TM:#x}'); A(f's_and_b32 {sT16}, {sE}, 0xffff'); A(f's_xor_b32 {sT6b}, {sT6}, 0x20')
    A(f'v_mov_b32 {vTg}, {sT6}'); A(f'v_mov_b32 {vTgb}, {sT6b}')
def silu_bf(d, c, t1):
    A(f'v_mul_f32 {t1}, {sL2E}, {c}'); A(f'v_exp_f32 {t1}, -{t1}'); A(f'v_add_f32 {t1}, 1.0, {t1}'); A(f'v_rcp_f32 {t1}, {t1}'); A(f'v_mul_f32 {d}, {c}, {t1}')
def end_wave():
    if CFG['stamps']: A('s_branch L_stamps')
    else: A('s_endpgm')
def flag(off): A(f'ds_write_b32 {vZ}, {vOne} offset:{off - FLG}')
NT = ' nt' if CFG['nt'] else ''
vL = 'v0'
MKA = dict(M=1, MR=2, K0=3, V0=11, GU=19, DN=20)
MKW = dict(WQ=1, WO=2)

LAB('L_start')
stamp(0)
if CFG['amp']: A('s_memrealtime s[92:93]')
A('s_cmp_ge_u32 s2, 256'); A('s_cbranch_scc1 L_exit')
A('s_load_dwordx16 s[16:31], s[0:1], 0'); A('s_load_dwordx8 s[32:39], s[0:1], 64'); A('s_load_dwordx4 s[40:43], s[0:1], 96')
A('v_lshrrev_b32 v1, 6, v0'); A('v_and_b32 v0, 63, v0'); A(f'v_readfirstlane_b32 {sWAVE}, v1')
A(f's_and_b32 {sG}, s2, 7')
if CFG['ilv']:
    A(f's_lshr_b32 {sU}, s2, 4'); A(f's_and_b32 {sT}, s2, 8'); A(f's_lshl_b32 {sT}, {sT}, 1'); A(f's_or_b32 {sT}, {sT}, {sU}')
else:
    A(f's_lshr_b32 {sT}, s2, 3'); A(f's_and_b32 {sU}, {sT}, 15')
A(f's_cmp_eq_u32 {sWAVE}, 8'); A('s_cbranch_scc1 L_loader')
if CFG['only'].startswith('loader'):
    A('s_waitcnt lgkmcnt(0)'); A('s_barrier'); A('s_branch L_stamps')

V = Alloc('v', 1, 168)
vN, vQ, vR, vC, vT0, vT1, vT2, vT3, vCH, vZ, vTg, vTgb, vPU, vOne, vC8, vQ16, vDUM, vZero = [V() for _ in range(18)]
mE = V.mark()
vX = V(4); vXd = V()
mP = V.mark()
A(f's_cmp_eq_u32 {sWAVE}, 9'); A('s_cbranch_scc1 L_i_9')
A(f's_cmp_ge_u32 {sT}, 16'); A('s_cbranch_scc1 L_i_W')
A(f's_lshr_b32 s56, {sU}, 2'); A('s_lshl_b32 s56, s56, 8'); A(f'v_lshl_add_u32 {vT2}, {vL}, 2, s56')
A('s_waitcnt lgkmcnt(0)')
A(f's_cmp_ge_u32 {sWAVE}, 4'); A('s_cbranch_scc0 L_i_done')
A(f'global_load_dword {vXd}, {vT2}, {pC}')
A('s_branch L_i_done')
LAB('L_i_W')
A(f'v_lshlrev_b32 {vT0}, 4, {vL}')
A(f's_add_u32 s57, {sWAVE}, 1'); A('s_and_b32 s57, s57, 1'); A(f's_lshl_b32 s56, {sU}, 1'); A('s_add_u32 s56, s56, s57'); A('s_lshl_b32 s56, s56, 5')
A(f'v_and_b32 {vT1}, 15, {vL}'); A(f'v_lshl_add_u32 {vT1}, {vT1}, 1, s56')
A(f's_sub_u32 s57, {sWAVE}, 1')
A('s_waitcnt lgkmcnt(0)')
A('s_cmp_lt_u32 s57, 2'); A('s_cbranch_scc0 L_i_done')
A(f'global_load_dwordx4 {vX}, {vT0}, {pX}'); A(f'global_load_ushort {vXd}, {vT1}, {pX}')
A('s_branch L_i_done')
LAB('L_i_9')
if CFG['cprio']: A(f's_setprio {CFG["cprio"]}')
if CFG['pf']:
    A('s_getpc_b64 s[56:57]')
    LAB('L_pc')
    A('s_sub_u32 s56, s56, L_pc - L_start'); A('s_subb_u32 s57, s57, 0')
    A(f's_and_b32 s58, {sT}, 3'); A('s_lshl_b32 s58, s58, 13'); A(f'v_lshl_add_u32 {vT0}, {vL}, 7, s58'); A(f'v_min_u32 {vT0}, L_codeend - L_start - 4, {vT0}')
    if CFG['pf'] == 2: A(f's_cmp_ge_u32 {sT}, 16'); A('s_cbranch_scc1 L_nopf')
    A(f'global_load_dword {vDUM}, {vT0}, s[56:57]')
    LAB('L_nopf')
A(f'v_lshlrev_b32 {vT1}, 2, {vL}'); A(f'v_add_u32 {vT1}, {FLG}, {vT1}'); A(f'v_mov_b32 {vT2}, 0')
set_exec(0xffffffff); A(f'ds_write_b32 {vT1}, {vT2}'); set_exec(-1)
A('s_getreg_b32 s52, hwreg(HW_REG_XCC_ID)'); A('s_and_b32 s52, s52, 15'); A('s_or_b32 s52, s52, 0x80')
A(f's_lshl_b32 s56, {sG}, 5'); A(f's_add_u32 s57, s56, {sT}'); A(f'v_mov_b32 {vT0}, s57'); A(f'v_mov_b32 {vT1}, s52')
A('s_waitcnt lgkmcnt(0)')
set_exec(1); A(f'global_store_byte {vT0}, {vT1}, {pDBG}'); set_exec(-1)
if CFG['tlb']:
    sh = CFG['tlb']
    A(f'v_lshlrev_b32 {vT2}, {sh}, {vL}')
    for tt, ptr, mul, add, span in ((17, pK, 1 << 22, 0x300000, 1 << 20), (18, pV, 1 << 22, 0x300000, 1 << 20), (19, pWO, 1 << 19, 0, 1 << 19), (20, pWD, 224 * 1024, 0, 224 * 1024),
                                    (21, pWG, 448, 0, 512 * 3584), (22, pWU, 448, 0, 512 * 3584)):
        sk = nl('S'); nlan = min(64, (span + (1 << sh) - 1) >> sh)
        A(f's_cmp_eq_u32 {sT}, {tt}'); A(f's_cbranch_scc0 {sk}')
        A(f's_mul_i32 s56, {sG}, {mul}'); A(f's_add_u32 s56, s56, {add}'); A(f'v_add_u32 {vT3}, s56, {vT2}')
        set_exec((1 << nlan) - 1 if nlan < 64 else -1); A(f'global_load_dword {vDUM}, {vT3}, {ptr}{NT}'); set_exec(-1)
        LAB(sk)
LAB('L_i_done')
A(f's_load_dword {sE}, {pWS}, {EP}')
A(f's_getreg_b32 {sCP}, hwreg(HW_REG_XCC_ID)'); A(f's_and_b32 {sCP}, {sCP}, {4 if CFG["rep"] else 0}'); A(f's_lshl_b32 {sCP}, {sCP}, 11')
A(f's_mov_b32 {sMASK}, {0xffffffff ^ TM:#x}'); A(f's_mov_b32 {sSEL}, 0x07060302'); A(f's_mov_b32 {sHI}, 0xffff0000'); A(f's_mov_b32 {sL2E}, 0x3fb8aa3b'); A(f's_mov_b32 {sPURE}, 0')
A(f's_mul_i32 s53, {sG}, {LBS}'); A(f's_add_u32 s53, s53, {LB0}'); A(f's_add_u32 {lo(pLB)}, {lo(pWS)}, s53'); A(f's_addc_u32 {hi(pLB)}, {hi(pWS)}, 0')
A(f'v_mov_b32 {vZ}, {FLG}'); A(f'v_mov_b32 {vOne}, 1'); A(f'v_mov_b32 {vZero}, 0')
A(f'v_and_b32 {vN}, 15, {vL}'); A(f'v_lshrrev_b32 {vQ}, 4, {vL}'); A(f'v_bfe_u32 {vR}, {vL}, 2, 2'); A(f'v_and_b32 {vC}, 3, {vL}')
A(f'v_lshlrev_b32 {vC8}, 3, {vC}'); A(f'v_lshlrev_b32 {vQ16}, 4, {vQ}')
w2, w5, w6, w7, w8 = 's59', 's60', 's61', 's62', 's63'
A(f's_lshl_b32 {w2}, {sWAVE}, 2'); A(f's_lshl_b32 {w5}, {sWAVE}, 5'); A(f's_lshl_b32 {w6}, {sWAVE}, 6'); A(f's_lshl_b32 {w7}, {sWAVE}, 7'); A(f's_lshl_b32 {w8}, {sWAVE}, 8')

def pure_phase():
    lp, dn = nl('PP'), nl('PD')
    A('s_mul_i32 s52, s52, 0x01010101'); A(f'v_and_b32 {vT1}, 7, {vL}'); A(f's_lshl_b32 s56, {sG}, 5'); A(f'v_lshl_add_u32 {vT1}, {vT1}, 2, s56')
    A(f's_mov_b32 {sCNT}, {CFG["ptries"]}')
    LAB(lp)
    A(f'global_load_dword {vT0}, {vT1}, {pDBG} sc1'); A('s_waitcnt vmcnt(0)')
    A(f'v_cmp_ne_u32 vcc, s52, {vT0}'); A(f's_cbranch_vccz {lp}_ok')
    A(f's_sub_u32 {sCNT}, {sCNT}, 1'); A(f's_cbranch_scc0 {lp}'); A(f's_branch {dn}')
    LAB(lp + '_ok')
    flag(F_PURE)
    LAB(dn)
    stamp(2)

A(f's_cmp_ge_u32 {sT}, 16'); A('s_cbranch_scc1 L_W')
A(f's_cmp_eq_u32 {sWAVE}, 9'); A('s_cbranch_scc1 L_A9')
aK = V(4, 1); aQB, aMw, aMr, aV, aOw, aOr, aAst = [V() for _ in range(7)]; vMg = V(4, 1)
A(f's_lshl_b32 s58, {sWAVE}, 13')
A(f'v_xor_b32 {vT0}, {vQ}, {vN}'); A(f'v_lshlrev_b32 {vT0}, 4, {vT0}'); A(f'v_lshl_add_u32 {vT0}, {vN}, 8, {vT0}'); A(f'v_add_u32 {aK[0]}, s58, {vT0}')
for ks in range(1, 4): A(f'v_xor_b32 {aK[ks]}, {64*ks}, {aK[0]}')
A(f'v_mul_u32_u24 {aQB}, {QS}, {vC}'); A(f'v_add3_u32 {aQB}, {aQB}, {vQ16}, {vZ}'); A(f'v_add_u32 {aQB}, {QL - FLG}, {aQB}')
A(f's_add_u32 s56, {w5}, {MLL}'); A(f'v_add_u32 {aMw}, s56, {vC8}')
A(f'v_lshl_add_u32 {aMr}, {vR}, 6, {vC8}'); A(f'v_add_u32 {aMr}, {MLL}, {aMr}')
A(f'v_lshl_add_u32 {vT0}, {vQ}, 2, {vR}'); A(f'v_and_b32 {vT1}, 7, {vT0}'); A(f'v_lshl_add_u32 {aV}, {vT0}, 8, {vC8}'); A(f'v_lshl_add_u32 {aV}, {vT1}, 5, {aV}')
A(f's_add_u32 s56, s58, {VV}'); A(f'v_add_u32 {aV}, s56, {aV}')
A(f'v_mul_u32_u24 {vT0}, {OS}, {vC}'); A(f'v_add_u32 {vT0}, {vT0}, {vQ16}'); A(f's_mul_i32 s56, {sWAVE}, {4*OS}'); A(f's_add_u32 s56, s56, {OL}'); A(f'v_lshl_add_u32 {aOw}, {vR}, 6, {vT0}'); A(f'v_add_u32 {aOw}, s56, {aOw}')
for k in range(4):
    A(f'v_cmp_eq_u32 vcc, {k}, {vR}'); A(f'v_cndmask_b32 {vMg[k]}, 0, -1, vcc')
A(f'v_mul_u32_u24 {aOr}, {8*OS}, {vR}'); A(f's_add_u32 s56, {w6}, {OL}'); A(f'v_add3_u32 {aOr}, {aOr}, {vT0}, s56')
A(f's_lshl_b32 s57, {sU}, 11'); A(f's_add_u32 s56, s57, {w6}'); A(f's_add_u32 s56, s56, {A_}')
A(f'v_lshl_add_u32 {aAst}, {vC}, 9, {vQ16}'); A(f'v_add_u32 {aAst}, s56, {aAst}')
A('s_barrier')
epoch_wait()
stamp(1)
A(f's_cmp_ge_u32 {sWAVE}, 4'); A('s_cbranch_scc0 L_A_main')
m = V.mark()
vCc = V(16); vCm = V(8); vMa = V(16); vD = V(4); vSt, aM, aC = V(), V(), V()
A(f's_sub_u32 s56, {w8}, {1024 - CL}'); A(f'v_lshl_add_u32 {vT2}, {vL}, 2, s56'); A(f'v_add_u32 {aC}, s56, {vQ16}')
A(f's_sub_u32 s56, {w5}, {128 - MR}'); A(f'v_lshl_add_u32 {aM}, {vQ}, 3, {vR}'); A(f'v_lshl_add_u32 {aM}, {aM}, 7, {vC8}'); A(f'v_add_u32 {aM}, s56, {aM}')
vSt2 = V()
A(f's_lshl_b32 s56, {sU}, 3'); A(f's_add_u32 s56, s56, {sG}'); A('s_lshl_b32 s56, s56, 8'); A(f's_add_u32 s56, s56, {w6}'); A(f's_sub_u32 s56, s56, 256')
A(f's_add_u32 s57, s56, {S_MR}'); A(f'v_add_u32 {vSt2}, s57, {vQ16}')
A('s_and_b32 s57, s56, 0xffffe000'); A('s_add_u32 s56, s56, s57'); A(f's_add_u32 s56, s56, {S_M}'); A(f'v_lshl_add_u32 {vSt}, {vN}, 13, {vQ16}'); A(f'v_add_u32 {vSt}, s56, {vSt}')
A(f's_and_b32 s56, {sU}, 2'); A('s_lshl_b32 s56, s56, 6'); A(f'v_add_u32 {vT3}, s56, {aC}')
A('s_waitcnt vmcnt(0)')
if CFG['mpt']:
    set_exec(M_N2); A(f'global_load_dword {vDUM}, {vSt}, {pWS}'); set_exec(-1)
A(f'v_lshlrev_b32 {vX[0]}, 16, {vXd}'); A(f'v_and_b32 {vX[1]}, {sHI}, {vXd}')
silu_bf(vX[0], vX[0], vT0); silu_bf(vX[1], vX[1], vT1)
A(f'v_cvt_pk_bf16_f32 {vXd}, {vX[0]}, {vX[1]}')
A(f'ds_write_b32 {vT2}, {vXd}')
A(f'ds_read_b128 {vCm[0:4]}, {vT3}'); A(f'ds_read_b128 {vCm[4:8]}, {vT3} offset:64')
for ks in range(4): A(f'ds_read_b128 {vCc[4*ks:4*ks+4]}, {aC} offset:{64*ks}')
mreads = lambda base, n: [x for ks in range(n) for x in (f'ds_read_b64_tr_b16 {vMa[4*ks:4*ks+2]}, {aM} offset:{base + 4096*ks}', f'ds_read_b64_tr_b16 {vMa[4*ks+2:4*ks+4]}, {aM} offset:{base + 4096*ks + 512}')]
lds_wait(20, F_LP, MKA['M'], vT0, spec=mreads(MM - MR, 2))
for ks in range(2):
    A(f's_waitcnt lgkmcnt({2-2*ks})')
    A(f'v_mfma_f32_16x16x32_bf16 {vD}, {vMa[4*ks:4*ks+4]}, {vCm[4*ks:4*ks+4]}, {0 if ks == 0 else vD}')
for r in range(4): tagf(vD[r], vD[r], vTg)
set_exec(M_N2 if CFG['rep'] else M_N0); A(f'global_store_dwordx4 {vSt}, {vD}, {pWS} sc1')
set_exec(1); A(f'ds_add_u32 {vZ}, {vOne} offset:{F_MP - FLG}'); set_exec(-1)
stamp(3)
lds_wait(21, F_LP, MKA['MR'], vT0, sleep=1)
for x in mreads(0, 4): A(x)
for ks in range(4):
    A(f's_waitcnt lgkmcnt({6-2*ks})')
    A(f'v_mfma_f32_16x16x32_bf16 {vD}, {vMa[4*ks:4*ks+4]}, {vCc[4*ks:4*ks+4]}, {0 if ks == 0 else vD}')
for r in range(4): tagf(vD[r], vD[r], vTg)
set_exec(M_N0); A(f'global_store_dwordx4 {vSt2}, {vD}, {pWS} sc1'); set_exec(1); A(f'ds_add_u32 {vZ}, {vOne} offset:{F_MD - FLG}'); set_exec(-1)
stamp(4)
V.release(m)
LAB('L_A_main')
mA = V.mark()
vK = V(32); vV = V(32); vQB = V(16); vS = V(8); vP = V(4); vML4 = V(4); vML = vML4[0:2]; vM = vML4[0]; vLs = vML4[1]
A(f's_add_u32 s57, {sWAVE}, {MKA["K0"]}')
lds_wait(5, F_LP, 's57', vT0, sleep=1)
for T in range(2):
    for ks in range(4): A(f'ds_read_b128 {vK[16*T+4*ks:16*T+4*ks+4]}, {aK[ks]} offset:{4096*T}')
stamp(7)
A(f's_add_u32 s58, {sWAVE}, {MKA["V0"]}')
def v_reads():
    for j in range(8):
        A(f'v_xor_b32 {vT0}, {32*j}, {aV}'); A(f'ds_read_b64_tr_b16 {vV[4*j:4*j+2]}, {vT0}'); A(f'ds_read_b64_tr_b16 {vV[4*j+2:4*j+4]}, {vT0} offset:4096')
        if j == 5: A('s_waitcnt lgkmcnt(8)')
sVOK = 's13'
A(f's_mov_b32 {sVOK}, 0')
lp, ok, nv = nl('W'), nl('OK'), nl('NV')
A(f's_mov_b32 {sCNT}, {CFG["limit"]}')
LAB(lp)
A(f'ds_read_b64 {vP[0:2]}, {vZ} offset:{F_Q - FLG}'); A(f'ds_read_b32 {vT2}, {vZ} offset:{F_LP - FLG}')
A('s_waitcnt lgkmcnt(0)')
A(f'v_add_u32 {vT1}, {vP[0]}, {vP[1]}'); A(f'v_readfirstlane_b32 s56, {vT2}'); A(f'v_readfirstlane_b32 {sTMP}, {vT1}')
A(f's_cmp_eq_u32 {sTMP}, 5'); A(f's_cbranch_scc1 {ok}')
A(f's_cmp_eq_u32 {sVOK}, 1'); A(f's_cbranch_scc1 {nv}')
A('s_cmp_ge_u32 s56, s58'); A(f's_cbranch_scc0 {nv}')
v_reads(); A(f's_mov_b32 {sVOK}, 1')
LAB(nv)
if CFG['qsl']: A(f's_sleep {CFG["qsl"]}')
fail_branch(7, lp)
LAB(ok)
for ks in range(4): A(f'ds_read_b128 {vQB[4*ks:4*ks+4]}, {aQB} offset:{64*ks}')
A(pure_read())
stamp(8)
for ks in range(4):
    A(f's_waitcnt lgkmcnt({4-ks})')
    for T in range(2): A(f'v_mfma_f32_16x16x32_bf16 {vS[4*T:4*T+4]}, {vK[16*T+4*ks:16*T+4*ks+4]}, {vQB[4*ks:4*ks+4]}, {0 if ks == 0 else vS[4*T:4*T+4]}')
A('s_waitcnt lgkmcnt(0)'); pure_update()
A('s_mov_b32 s56, 0x3db504f3')
for i in range(4): A(f'v_cvt_pk_bf16_f32 {vP[i]}, {vS[2*i]}, {vS[2*i+1]}')
for i in range(4):
    A(f'v_lshlrev_b32 {vS[2*i]}, 16, {vP[i]}'); A(f'v_and_b32 {vS[2*i+1]}, {sHI}, {vP[i]}')
for i in range(8): A(f'v_mul_f32 {vS[i]}, s56, {vS[i]}')
for i in range(4): A(f'v_cvt_pk_bf16_f32 {vP[i]}, {vS[2*i]}, {vS[2*i+1]}')
for i in range(4):
    A(f'v_lshlrev_b32 {vS[2*i]}, 16, {vP[i]}'); A(f'v_and_b32 {vS[2*i+1]}, {sHI}, {vP[i]}')
A(f'v_max3_f32 {vM}, {vS[0]}, {vS[1]}, {vS[2]}'); A(f'v_max3_f32 {vT0}, {vS[3]}, {vS[4]}, {vS[5]}'); A(f'v_max3_f32 {vM}, {vM}, {vS[6]}, {vS[7]}'); A(f'v_max_f32 {vM}, {vM}, {vT0}')
xrow_allred('v_max_f32', vM, vT0)
A(f'v_mul_f32 {vT1}, {sL2E}, {vM}')
for i in range(8): A(f'v_fma_f32 {vS[i]}, {vS[i]}, {sL2E}, -{vT1}')
for i in range(8): A(f'v_exp_f32 {vS[i]}, {vS[i]}')
for i in range(4): A(f'v_cvt_pk_bf16_f32 {vP[i]}, {vS[2*i]}, {vS[2*i+1]}')
vPm = vQB; vAcc = vK[0:8]
A(f'v_add_f32 {vLs}, {vS[0]}, {vS[1]}'); A(f'v_add_f32 {vT1}, {vS[2]}, {vS[3]}'); A(f'v_add_f32 {vT2}, {vS[4]}, {vS[5]}'); A(f'v_add_f32 {vT3}, {vS[6]}, {vS[7]}')
A(f'v_add_f32 {vLs}, {vLs}, {vT1}'); A(f'v_add_f32 {vT2}, {vT2}, {vT3}')
A(f'v_and_b32 {vPm[0]}, {vMg[0]}, {vP[0]}'); A(f'v_add_f32 {vLs}, {vLs}, {vT2}'); A(f'v_mov_b32 {vT0}, {vLs}')
A(f'v_and_b32 {vPm[1]}, {vMg[0]}, {vP[1]}'); A(f'v_and_b32 {vPm[2]}, {vMg[0]}, {vP[2]}')
A(f'v_permlane16_swap_b32 {vLs}, {vT0}'); A(f'v_add_f32 {vLs}, {vLs}, {vT0}'); A(f'v_mov_b32 {vT0}, {vLs}')
A(f'v_and_b32 {vPm[3]}, {vMg[0]}, {vP[3]}'); A(f's_cmp_eq_u32 {sVOK}, 1')
A(f'v_permlane32_swap_b32 {vLs}, {vT0}'); A(f'v_add_f32 {vLs}, {vLs}, {vT0}')
set_exec(0xf); A(f'ds_write_b64 {aMw}, {vML}'); set_exec(1); A(f'ds_add_u32 {vZ}, {vOne} offset:{F_SF - FLG}'); set_exec(-1)
A(f's_cbranch_scc0 L_A_vlate')
LAB('L_A_vok')
stamp(9)
for k in range(4):
    A(f'v_mfma_f32_16x16x32_bf16 {vAcc[0:4]}, {vV[4*k:4*k+4]}, {vPm[4*k:4*k+4]}, {0 if k == 0 else vAcc[0:4]}')
    if k < 3:
        for p in range(2): A(f'v_and_b32 {vPm[4*k+4+p]}, {vMg[k+1]}, {vP[p]}')
    A(f'v_mfma_f32_16x16x32_bf16 {vAcc[4:8]}, {vV[16+4*k:20+4*k]}, {vPm[4*k:4*k+4]}, {0 if k == 0 else vAcc[4:8]}')
    if k < 3:
        for p in range(2, 4): A(f'v_and_b32 {vPm[4*k+4+p]}, {vMg[k+1]}, {vP[p]}')
A(f'ds_write_b128 {aOw}, {vAcc[0:4]}'); A(f'ds_write_b128 {aOw}, {vAcc[4:8]} offset:256')
A('s_waitcnt lgkmcnt(0)')
stamp(10)
A('s_barrier')
vFl = vV[0:8]; vMc = vV[8:12]; vOa = vV[12:20]; vF1, vF2 = vV[20], vV[21]; vO = vP
for x in [f'ds_read2_b64 {vMc}, {aMr} offset0:0 offset1:4', f'ds_read_b128 {vOa[0:4]}, {aOr}', f'ds_read_b128 {vOa[4:8]}, {aOr} offset:{4*OS}']: A(x)
A('s_waitcnt lgkmcnt(2)')
A(f'v_max_f32 {vM}, {vMc[0]}, {vMc[2]}'); row_allred('v_max_f32', [vM], (4, 8))
A(f'v_sub_f32 {vF1}, {vMc[0]}, {vM}'); A(f'v_sub_f32 {vF2}, {vMc[2]}, {vM}'); A(f'v_mul_f32 {vF1}, {sL2E}, {vF1}'); A(f'v_mul_f32 {vF2}, {sL2E}, {vF2}')
A(f'v_exp_f32 {vF1}, {vF1}'); A(f'v_exp_f32 {vF2}, {vF2}')
A('s_waitcnt lgkmcnt(0)')
for i in range(4): A(f'v_mul_f32 {vO[i]}, {vF1}, {vOa[i]}')
for i in range(4): A(f'v_fmac_f32 {vO[i]}, {vF2}, {vOa[4+i]}')
row_allred('v_add_f32', [vO[0], vO[1], vO[2], vO[3]], (4, 8))
for i in range(4): tagf(vO[i], vO[i], vTg)
set_exec(M_N4)
lstore([f'global_store_dwordx4 {aAst}, {vO}, {pLB}'])
set_exec(1); A(f'ds_add_u32 {vZ}, {vOne} offset:{F_AP - FLG}'); set_exec(-1)
stamp(11)
A(f's_cmp_ge_u32 {sWAVE}, 4'); A('s_cbranch_scc1 L_A_end')
V.release(mP)
aDst, aMV, aX2, aX2b, aGu, aDn, aCst, aCld, v8qr = [V() for _ in range(9)]
vMk = V(4, 1); vMd = V(4, 1)
A(f'v_lshl_add_u32 {v8qr}, {vQ}, 3, {vR}')
A(f's_and_b32 s54, {sU}, 7'); A(f's_lshl_b32 s58, {sWAVE}, 9')
A(f'v_lshl_add_u32 {vT0}, {vN}, 6, {vQ16}')
A(f's_lshl_b32 s57, {sU}, 11'); A(f's_add_u32 s57, s57, {B1}'); A('s_add_u32 s56, s57, s58'); A(f'v_add_u32 {aDst}, s56, {vT0}')
A(f's_lshl_b32 s56, {sU}, 10'); A(f's_add_u32 s56, s56, {w8}'); A(f's_add_u32 s56, s56, {A_}'); A(f'v_add_u32 {aCst}, s56, {vT0}')
A(f'v_lshlrev_b32 {vT0}, 4, {vR}'); A(f'v_and_b32 {vT1}, 2, {vL}'); A(f'v_lshl_add_u32 {vT0}, {vT1}, 2, {vT0}'); A(f'v_lshl_add_u32 {vT0}, {vQ}, 1, {vT0}'); A(f'v_and_b32 {vT1}, 1, {vL}'); A(f'v_add_u32 {vT0}, {vT0}, {vT1}')
A('s_lshl_b32 s56, s54, 8'); A(f'v_lshl_add_u32 {vT0}, {vT0}, 4, s56'); A(f'v_and_b32 {vT0}, 2047, {vT0}')
A(f'v_add_u32 {aX2}, {X2}, {vT0}'); A(f'v_add_u32 {aMV}, {MV}, {vT0}'); A(f'v_xor_b32 {vT0}, 1024, {vT0}'); A(f'v_add_u32 {aX2b}, {X2}, {vT0}')
A(f'v_and_b32 {vT0}, 1, {vQ}'); A(f'v_lshl_add_u32 {vT0}, {vT0}, 2, {vR}'); A(f'v_lshlrev_b32 {vT0}, 5, {vT0}'); A(f'v_add_u32 {vT1}, {w7}, {vC8}')
if CFG['gsw']: A(f'v_xor_b32 {vT1}, {vT1}, {vT0}')
A(f'v_lshl_add_u32 {aGu}, {v8qr}, 9, {vT1}'); A(f'v_add_u32 {aGu}, {GU}, {aGu}')
A(f'v_and_b32 {vT0}, 1, {vQ}'); A(f'v_lshl_add_u32 {vT0}, {vT0}, 3, {vR}'); A(f'v_lshl_add_u32 {aDn}, {vT0}, 10, {vC8}'); A(f'v_lshrrev_b32 {vT1}, 1, {vQ}'); A(f'v_lshl_add_u32 {aDn}, {vT1}, 5, {aDn}')
A(f's_add_u32 s56, {w8}, {DN}'); A(f'v_add_u32 {aDn}, s56, {aDn}')
if CFG['gsw']:
    A(f'v_and_b32 {vT0}, 1, {vQ}'); A(f'v_lshl_add_u32 {vT0}, {vR}, 1, {vT0}'); A(f'v_lshlrev_b32 {vT0}, 5, {vT0}'); A(f'v_xor_b32 {aDn}, {aDn}, {vT0}')
A(f'v_bfe_u32 {vT0}, {vL}, 2, 1'); A(f'v_lshrrev_b32 {aCld}, 3, {vL}'); A(f'v_lshl_add_u32 {aCld}, {vT0}, 3, {aCld}'); A(f'v_lshlrev_b32 {aCld}, 10, {aCld}')
A(f'v_lshl_add_u32 {aCld}, {vC}, 4, {aCld}'); A(f's_lshl_b32 s56, {sU}, 6'); A(f's_add_u32 s56, s56, {A_}'); A(f'v_add_u32 {aCld}, s56, {aCld}')
for j in range(4):
    A(f'v_cmp_eq_u32 vcc, {j}, {vN}'); A(f'v_cndmask_b32 {vMk[j]}, 0, -1, vcc')
for jj in range(4):
    if jj: A(f'v_add_u32 {vT1}, 2, {vT1}')
    A(f'v_cmp_eq_u32 vcc, {vT1}, {vN}'); A(f'v_cndmask_b32 {vMd[jj]}, 0, -1, vcc')
A(f's_mov_b32 {sCM}, {M_N4 & 0xffffffff:#x}'); A(f's_cmp_eq_u32 {sWAVE}, 3'); A(f's_cselect_b32 {sCM}, {M_N2 & 0xffffffff:#x}, {sCM}')
vGu = V(32); vDn = V(16); vSB = V(4); vT1v = V(4); vXs = [V(8) for _ in range(CFG['LK'])]; vXr = vXs[0]; vXx = V(8); vHp = V(2); vBm = V(8); vD = V(4); vSum, vSq = V(), V()
A(f'global_load_dword {vDUM}, {aX2}, {pLB} sc1'); A(f'global_load_dword {vDUM}, {aX2b}, {pLB} sc1')
poll(13, [f'global_load_dwordx4 {vXr[0:4]}, {aMV}, {pLB} sc1', f'global_load_dwordx4 {vXr[4:8]}, {aMV}, {pLB} offset:2048 sc1'], [vXr[i] for i in range(8)], [vSB[i] for i in range(4)] + [vT1v[i] for i in range(4)], sT16, 0xffff, vCH, sleep=1)
stamp(5)
lds_wait(15, F_LP, MKA['GU'], vT0, sleep=1)
for j in range(4):
    A(f'v_xor_b32 {vT1}, {32*j}, {aGu}')
    for ks in range(2):
        r = vGu[8*j+4*ks:8*j+4*ks+4]
        A(f'ds_read_b64_tr_b16 {r[0:2]}, {vT1} offset:{16384*ks}'); A(f'ds_read_b64_tr_b16 {r[2:4]}, {vT1} offset:{16384*ks + 2048}')
    if j == 1: A('s_waitcnt lgkmcnt(4)')
lds_wait(16, F_LP, MKA['DN'], vT0)
for jj in range(4):
    A(f'v_xor_b32 {vT1}, {64*jj}, {aDn}'); A(f'ds_read_b64_tr_b16 {vDn[4*jj:4*jj+2]}, {vT1}'); A(f'ds_read_b64_tr_b16 {vDn[4*jj+2:4*jj+4]}, {vT1} offset:4096')
A('s_waitcnt lgkmcnt(0)')
stamp(6)
ppoll(17, CFG['LK'], CFG['lgap'], lambda r: [f'global_load_dwordx4 {r[0:4]}, {aX2}, {pLB} sc1', f'global_load_dwordx4 {r[4:8]}, {aX2b}, {pLB} sc1'], 2, vXs, [vXx[i] for i in range(8)], sT16, 0xffff)
stamp(12)
A(f'v_add_f32 {vSum}, {vXx[0]}, {vXx[1]}'); A(f'v_mul_f32 {vSq}, {vXx[0]}, {vXx[0]}')
A(f'v_add_f32 {vT0}, {vXx[2]}, {vXx[3]}'); A(f'v_mul_f32 {vT1}, {vXx[1]}, {vXx[1]}')
for i in range(2, 8): A(f'v_fmac_f32 {vSq if i % 2 == 0 else vT1}, {vXx[i]}, {vXx[i]}')
A(f'v_add_f32 {vT2}, {vXx[4]}, {vXx[5]}'); A(f'v_add_f32 {vT3}, {vXx[6]}, {vXx[7]}'); A(f'v_add_f32 {vSum}, {vSum}, {vT0}'); A(f'v_add_f32 {vT2}, {vT2}, {vT3}')
A(f'v_add_f32 {vSq}, {vSq}, {vT1}'); A(f'v_add_f32 {vSum}, {vSum}, {vT2}')
A(f'v_permlane32_swap_b32 {vSum}, {vSq}'); A(f'v_add_f32 {vSum}, {vSum}, {vSq}')
A(f'v_mov_b32 {vSq}, {vSum}'); A(f'v_permlane16_swap_b32 {vSum}, {vSq}'); A(f'v_add_f32 {vSum}, {vSum}, {vSq}')
row_allred('v_add_f32', [vSum])
A(f'v_mul_f32 {vSum}, 0x3b000000, {vSum}')
A(f'v_mov_b32 {vSq}, {vSum}'); A(f'v_permlane32_swap_b32 {vSum}, {vSq}')
A(f'v_fma_f32 {vSq}, -{vSum}, {vSum}, {vSq}'); A(f'v_max_f32 {vSq}, 0, {vSq}'); A(f'v_add_f32 {vSq}, 0x3727c5ac, {vSq}'); A(f'v_rsq_f32 {vSq}, {vSq}')
for i in range(4): A(f'v_sub_f32 {vXx[i]}, {vXx[i]}, {vSum}')
for i in range(4): A(f'v_mul_f32 {vT1v[i]}, {vSq}, {vT1v[i]}')
for i in range(4): A(f'v_fma_f32 {vXx[i]}, {vXx[i]}, {vT1v[i]}, {vSB[i]}')
for i in range(2): A(f'v_cvt_pk_bf16_f32 {vHp[i]}, {vXx[2*i]}, {vXx[2*i+1]}')
k = 0
sk = nl('S')
for j in range(4):
    if j == 2: A(f's_cmp_eq_u32 {sWAVE}, 3'); A(f's_cbranch_scc1 {sk}')
    for ks in range(2):
        b = vBm[4*(k & 1):4*(k & 1)+4]
        for p in range(4): dpp('v_and_b32', b[p], vHp[p & 1], vMk[j], f'row_newbcast:{2*ks + (p >> 1)}')
        A(f'v_mfma_f32_16x16x32_bf16 {vD}, {vGu[8*j+4*ks:8*j+4*ks+4]}, {b}, {0 if k == 0 else vD}'); k += 1
LAB(sk)
for r in range(4): tagf(vD[r], vD[r], vTgb)
A(f's_mov_b32 exec_lo, {sCM}'); A(f's_mov_b32 exec_hi, {sCM}')
lstore([f'global_store_dwordx4 {aCst}, {vD}, {pLB}'])
set_exec(-1)
stamp(13)
vG = vXx
A(f's_cmp_ge_u32 {sU}, 14'); A('s_cbranch_scc1 L_A_zero')
if CFG['LK'] > 1: A('s_waitcnt vmcnt(1)')
ppoll(18, CFG['LK'], CFG['lgap'], lambda r: [f'global_load_dwordx4 {r}, {aCld}, {pLB} sc1'], 1, [r[0:4] for r in vXs], [vG[i] for i in range(4)], sT6b, TM)
tred4(vG)
dpp('v_add_f32', vG[0], vG[0], vG[0], 'row_ror:8')
rnd(vG[0], vG[0])
A(f'v_mul_f32 {vT0}, {sL2E}, {vG[0]}'); A(f'v_exp_f32 {vT0}, -{vT0}'); A(f'v_add_f32 {vT0}, 1.0, {vT0}'); A(f'v_rcp_f32 {vT0}, {vT0}'); rnd(vT0, vT0)
dpp('v_mul_f32', vT0, vG[0], vT0, 'row_ror:12')
A(f'v_mov_b32 {vT1}, {vT0}'); A(f'v_permlane32_swap_b32 {vT0}, {vT1}'); A(f'v_cvt_pk_bf16_f32 {vT0}, {vT0}, {vT1}')
A(f'v_mov_b32 {vT1}, {vT0}'); A(f'v_permlane16_swap_b32 {vT0}, {vT1}')
vHh = vSB
for rowm, q0 in ((0x5, 0), (0xa, 2)):
    dpp('v_mov_b32', vHh[0], vT0, None, f'row_newbcast:{q0}', row=rowm); dpp('v_mov_b32', vHh[1], vT1, None, f'row_newbcast:{q0}', row=rowm)
    dpp('v_mov_b32', vHh[2], vT0, None, f'row_newbcast:{q0+1}', row=rowm); dpp('v_mov_b32', vHh[3], vT1, None, f'row_newbcast:{q0+1}', row=rowm)
for jj in range(4):
    b = vBm[4*(jj & 1):4*(jj & 1)+4]
    for p in range(4): A(f'v_and_b32 {b[p]}, {vMd[jj]}, {vHh[p]}')
    A(f'v_mfma_f32_16x16x32_bf16 {vD}, {vDn[4*jj:4*jj+4]}, {b}, {0 if jj == 0 else vD}')
for r in range(4): tagf(vD[r], vD[r], vTgb)
LAB('L_A_pub')
set_exec(M_N8)
lstore([f'global_store_dwordx4 {aDst}, {vD}, {pLB}'])
set_exec(-1)
stamp(14)
LAB('L_A_end')
end_wave()
LAB('L_A_zero')
for r in range(4): A(f'v_mov_b32 {vD[r]}, {vTgb}')
A('s_branch L_A_pub')
LAB('L_A_vlate')
lds_wait(9, F_LP, 's58', vT0)
v_reads()
A('s_waitcnt lgkmcnt(0)')
A('s_branch L_A_vok')
vg_A = V.hi
LAB('L_A9')
V.release(mP)
aQld, aQw = V(), V(); vQs = [V(16) for _ in range(CFG['QK'])]; vQx = V(16); vQp = V(4)
A(f'v_lshlrev_b32 {aQld}, 4, {vL}'); A(f'v_add_u32 {aQld}, {Q_}, {aQld}')
A(f'v_lshrrev_b32 {vT0}, 5, {vL}'); A(f'v_mul_u32_u24 {vT0}, {QS}, {vT0}'); A(f'v_and_b32 {vT1}, 31, {vL}'); A(f'v_lshl_add_u32 {aQw}, {vT1}, 3, {vT0}'); A(f'v_add_u32 {aQw}, {QL}, {aQw}')
A('s_barrier')
epoch_wait()
pure_phase()
if CFG['qh'] >= 2:
    for k in range(4): A(f'global_load_dword {vDUM}, {aQld}, {pLB} offset:{1024*k} sc1')
    base = Q_ if CFG['qh'] == 2 else H_
    A(f's_and_b32 s56, {sU}, 3'); A(f's_lshl_b32 s56, s56, {8 if CFG["qh"] == 2 else 7}'); A(f's_add_u32 s56, s56, {base}'); A(f's_add_u32 s56, {lo(pLB)}, s56'); A(f's_addc_u32 s57, {hi(pLB)}, 0')
    lp, ok = nl('QS'), nl('OK')
    A(f's_mov_b32 {sCNT}, {CFG["limit"]}')
    LAB(lp)
    for k in range(4): A(f's_load_dword s{52+k}, s[56:57], {(1024*k + 192) if CFG["qh"] == 2 else 512*k} glc')
    A('s_waitcnt lgkmcnt(0)')
    tg, mk_ = (sT6, TM) if CFG['qh'] == 2 else (sT16, 0xffff)
    for i in range(4): A(f's_xor_b32 s{52+i}, s{52+i}, {tg}')
    A('s_or_b32 s52, s52, s53'); A('s_or_b32 s54, s54, s55'); A('s_or_b32 s52, s52, s54')
    A(f's_and_b32 s52, s52, {mk_:#x}'); A(f's_cbranch_scc0 {ok}')
    if CFG['hgap']: A(f's_sleep {CFG["hgap"]}')
    fail_branch(43, lp)
    LAB(ok)
elif CFG['qh']:
    A(f'v_and_b32 {vT3}, 3, {vL}'); A(f'v_lshlrev_b32 {vT3}, 9, {vT3}'); A(f's_lshl_b32 s56, {sU}, 7'); A('s_and_b32 s56, s56, 0x180'); A(f'v_add_u32 {vT3}, s56, {vT3}')
    A(f'global_load_dword {vDUM}, {aQld}, {pLB} sc1')
    for k in range(1, 4): A(f'global_load_dword {vDUM}, {aQld}, {pLB} offset:{1024*k} sc1')
    ppoll(43, CFG['HK'], CFG['hgap'], lambda r: [f'global_load_dword {r}, {vT3}, {pLB} sc1'], 1, [vQp[i] for i in range(CFG['HK'])], [vQx[0]], sT16, 0xffff)
else:
    lds_wait(37, F_LP, MKA['K0'] + CFG['qstart'], vT0, sleep=1)
stamp(7)
ppoll(6, CFG['QK'], CFG['qgap'], lambda r: [f'global_load_dwordx4 {r[4*k:4*k+4]}, {aQld}, {pLB} offset:{1024*k} sc1' for k in range(4)], 4, vQs, [vQx[i] for i in range(16)], sT6, TM)
for i in range(8): A(f'v_add_f32 {vQx[i]}, {vQx[i]}, {vQx[8+i]}')
for i in range(4): A(f'v_cvt_pk_bf16_f32 {vQp[i]}, {vQx[2*i]}, {vQx[2*i+1]}')
A(f'ds_write_b64 {aQw}, {vQp[0:2]}'); A(f'ds_write_b64 {aQw}, {vQp[2:4]} offset:{2*QS}'); flag(F_Q)
stamp(8)
vFl = vQx[0:8]; vMc = vQx[8:12]; vML4 = vQx[12:16]; vF1, vF2 = vQp[0], vQp[1]
A(f'v_lshl_add_u32 {vT3}, {vR}, 6, {vC8}'); A(f'v_add_u32 {vT3}, {MLL}, {vT3}')
A(f's_lshl_b32 s56, {sU}, 6'); A(f's_add_u32 s56, s56, {MLG}'); A(f'v_lshl_add_u32 {vT2}, {vL}, 4, s56')
A(f'v_mov_b32 {vML4[2]}, {sE}'); A(f'v_mov_b32 {vML4[3]}, {sE}')
lds_wait(39, F_SF, 8, vT0)
A(f'ds_read2_b64 {vMc}, {vT3} offset0:0 offset1:4'); A(pure_read())
A('s_waitcnt lgkmcnt(0)'); pure_update()
A(f'v_max_f32 {vML4[0]}, {vMc[0]}, {vMc[2]}'); row_allred('v_max_f32', [vML4[0]], (4, 8))
A(f'v_sub_f32 {vF1}, {vMc[0]}, {vML4[0]}'); A(f'v_sub_f32 {vF2}, {vMc[2]}, {vML4[0]}'); A(f'v_mul_f32 {vF1}, {sL2E}, {vF1}'); A(f'v_mul_f32 {vF2}, {sL2E}, {vF2}')
A(f'v_exp_f32 {vF1}, {vF1}'); A(f'v_exp_f32 {vF2}, {vF2}')
A(f'v_mul_f32 {vML4[1]}, {vF1}, {vMc[1]}'); A(f'v_fmac_f32 {vML4[1]}, {vF2}, {vMc[3]}'); row_allred('v_add_f32', [vML4[1]], (4, 8))
tagf(vML4[0], vML4[0], vTg); tagf(vML4[1], vML4[1], vTg)
set_exec(0xf)
lstore([f'global_store_dwordx4 {vT2}, {vML4}, {pLB}'])
set_exec(-1)
stamp(9)
end_wave()
vg_A = max(vg_A, V.hi)

LAB('L_W')
V.release(mP)
sRED = 's13'
A(f's_mov_b32 {sRED}, 0')
A(f's_cmp_eq_u32 {sWAVE}, 9'); A('s_cbranch_scc1 L_W9')
aWq, aH, aHw, aHr, aQst, aWo, aBst, aOb, v8qr, vXc = [V() for _ in range(10)]
vMk = V(4, 1)
A(f'v_lshl_add_u32 {v8qr}, {vQ}, 3, {vR}')
A(f's_and_b32 s54, {sU}, 7'); A(f's_lshr_b32 s55, {sU}, 3')
A(f'v_lshl_add_u32 {aWq}, {v8qr}, 7, {vC8}'); A(f'v_add_u32 {aWq}, {w5}, {aWq}')
A('s_lshl_b32 s56, s55, 10'); A(f'v_lshl_add_u32 {aH}, {vL}, 4, s56')
A(f's_lshl_b32 s58, {sWAVE}, 9'); A(f's_add_u32 s56, s58, {HL}'); A(f'v_lshl_add_u32 {aHw}, {vL}, 3, s56'); A(f'v_add_u32 {aHr}, s56, {vQ16}')
A('s_lshl_b32 s56, s55, 11'); A('s_lshl_b32 s57, s54, 8'); A('s_add_u32 s56, s56, s57'); A(f's_add_u32 s56, s56, {w6}'); A(f's_add_u32 s56, s56, {Q_}'); A(f'v_add_u32 {aQst}, s56, {vQ16}')
A(f'v_and_b32 {vT0}, 1, {vQ}'); A(f'v_lshl_add_u32 {vT0}, {vT0}, 2, {vR}'); A(f'v_lshlrev_b32 {vT0}, 5, {vT0}')
A(f'v_add_u32 {vT1}, {w7}, {vC8}'); A(f'v_xor_b32 {vT1}, {vT1}, {vT0}'); A(f'v_lshl_add_u32 {aWo}, {v8qr}, 10, {vT1}'); A(f'v_add_u32 {aWo}, {WO}, {aWo}')
A(f'v_add_u32 {aOb}, {OB}, {vQ16}')
A(f'v_lshl_add_u32 {vT0}, {vN}, 6, {vQ16}')
A(f's_lshl_b32 s57, {sU}, 11'); A(f's_add_u32 s57, s57, {B1}'); A(f's_add_u32 s56, s57, {w8}'); A(f'v_add_u32 {aBst}, s56, {vT0}')
for j in range(4):
    A(f'v_cmp_eq_u32 vcc, {j}, {vN}'); A(f'v_cndmask_b32 {vMk[j]}, 0, -1, vcc')
A('s_barrier')
epoch_wait()
stamp(1)
if CFG['near']:
    sk = nl('S')
    A(f's_cmp_eq_u32 {sWAVE}, 4'); A(f's_cbranch_scc0 {sk}')
    A(f's_lshl_b32 s56, {sU}, 3'); A(f's_add_u32 s56, s56, {sG}'); A('s_lshl_b32 s56, s56, 7'); A('s_and_b32 s57, s56, 0x2000'); A('s_add_u32 s56, s56, s57'); A(f's_add_u32 s56, s56, {PROBE}')
    A(f's_add_u32 s56, {lo(pWS)}, s56'); A(f's_addc_u32 s57, {hi(pWS)}, 0')
    A('s_mov_b32 s52, -1'); A('s_mov_b32 s53, -1')
    for rep in range(CFG['near']):
        for c in range(2):
            A('s_memtime s[84:85]'); A('s_waitcnt lgkmcnt(0)')
            A(f's_load_dword s54, s[56:57], {8192*c} glc'); A('s_waitcnt lgkmcnt(0)')
            A('s_memtime s[86:87]'); A('s_waitcnt lgkmcnt(0)')
            A('s_sub_u32 s54, s86, s84'); A(f's_min_u32 s{52+c}, s{52+c}, s54')
        A('s_cmp_lt_u32 s52, s53'); A('s_cselect_b32 s54, 1, 2'); A(f'v_mov_b32 {vT0}, s54'); A(f'ds_write_b32 {vZ}, {vT0} offset:{F_CP - FLG}')
    if CFG['stamps']: A('s_mov_b32 s88, s52'); A('s_mov_b32 s90, s53')
    stamp(2)
    LAB(sk)
A(f's_cmp_ge_u32 {sWAVE}, 4'); A('s_cbranch_scc1 L_W_att')
A(f's_sub_u32 s57, {sWAVE}, 1'); A('s_cmp_lt_u32 s57, 2'); A('s_cbranch_scc0 L_W_main')
A(f's_mov_b32 {sRED}, 1')
m = V.mark()
vWq = V(32); mH = V.mark()
vMean, vVar, vAd, vAd2, vHs = V(), V(), V(), V(), V(); vU = V(8); vRs = [V(4) for _ in range(CFG['G1K'])]; vSa, vCa = vU[0], vU[1]
A(f's_lshl_b32 {sSL}, {sU}, 1'); A(f's_add_u32 {sSL}, {sSL}, s57')
A(f's_lshl_b32 s56, {sSL}, 6'); A(f'v_lshl_add_u32 {vHs}, {vN}, 2, s56')
A(f's_and_b32 s56, {sSL}, 3'); A('s_lshl_b32 s56, s56, 6'); A(f's_lshr_b32 s57, {sSL}, 2'); A('s_lshl_b32 s57, s57, 8'); A('s_add_u32 s56, s56, s57'); A(f's_add_u32 s56, s56, {S_M}')
A(f'v_lshlrev_b32 {vT0}, 12, {vQ}'); A(f'v_and_b32 {vT1}, 0x2000, {vT0}'); A(f'v_add_u32 {vT0}, {vT0}, {vT1}'); A(f'v_lshlrev_b32 {vT1}, 2, {vN}'); A(f'v_add3_u32 {vAd}, {vT0}, {vT1}, s56'); A(f'v_add_u32 {vAd2}, 32768, {vAd}')
A('s_waitcnt vmcnt(0)')
for j in range(4):
    A(f'v_lshlrev_b32 {vU[2*j]}, 16, {vX[j]}'); A(f'v_and_b32 {vU[2*j+1]}, {sHI}, {vX[j]}')
A(f'v_add_f32 {vMean}, {vU[0]}, {vU[1]}')
for j in range(2, 8): A(f'v_add_f32 {vMean}, {vMean}, {vU[j]}')
row_allred('v_add_f32', [vMean]); xrow_allred('v_add_f32', vMean, vT0)
A(f'v_mul_f32 {vMean}, 0x3b000000, {vMean}')
for j in range(8): A(f'v_sub_f32 {vU[j]}, {vU[j]}, {vMean}')
A(f'v_mul_f32 {vVar}, {vU[0]}, {vU[0]}')
for j in range(1, 8): A(f'v_fmac_f32 {vVar}, {vU[j]}, {vU[j]}')
row_allred('v_add_f32', [vVar]); xrow_allred('v_add_f32', vVar, vT0)
A(f'v_mul_f32 {vVar}, 0x3b000000, {vVar}')
rnd(vMean, vMean); rnd(vVar, vVar)
A(f'v_add_f32 {vVar}, 0x3727c5ac, {vVar}'); rnd(vVar, vVar)
A(f'v_sqrt_f32 {vVar}, {vVar}'); rnd(vVar, vVar)
A(f'v_lshlrev_b32 {vXc}, 16, {vXd}'); A(f'v_sub_f32 {vXd}, {vXc}, {vMean}'); rnd(vXd, vXd)
A(f'v_rcp_f32 {vT0}, {vVar}'); A(f'v_mul_f32 {vT1}, {vXd}, {vT0}'); A(f'v_fma_f32 {vT2}, -{vT1}, {vVar}, {vXd}'); A(f'v_fma_f32 {vXd}, {vT2}, {vT0}, {vT1}')
rnd(vXd, vXd)
stamp(2)
mQ = V.mark()
def wq_read(vWq):
    lds_wait(3, F_LP, MKW['WQ'], vT0)
    for ks in range(8):
        A(f'ds_read_b64_tr_b16 {vWq[4*ks:4*ks+2]}, {aWq} offset:{WQ + ks*4096}'); A(f'ds_read_b64_tr_b16 {vWq[4*ks+2:4*ks+4]}, {aWq} offset:{WQ + ks*4096 + 512}')
        if ks == 3: A('s_waitcnt lgkmcnt(4)')
wq_read(vWq)
near_update(); A(f'v_add_u32 {vAd}, {sCP}, {vAd}'); A(f'v_add_u32 {vAd2}, {sCP}, {vAd2}')
ppoll(1, CFG['G1K'], CFG['ggap'], lambda r: [gld(r[0], vAd, 0, 'gat1'), gld(r[1], vAd, 2048, 'gat1'), gld(r[2], vAd2, 0, 'gat1'), gld(r[3], vAd2, 2048, 'gat1')], 4, vRs, [vU[i] for i in range(4)], sT6, TM, extra=[pure_read()])
stamp(3)
A(f'v_add_f32 {vSa}, {vSa}, {vU[2]}'); A(f'v_add_f32 {vCa}, {vCa}, {vU[3]}')
A(f'v_permlane32_swap_b32 {vSa}, {vCa}'); A(f'v_add_f32 {vSa}, {vSa}, {vCa}')
A(f'v_mov_b32 {vCa}, {vSa}'); A(f'v_permlane16_swap_b32 {vSa}, {vCa}'); A(f'v_add_f32 {vSa}, {vSa}, {vCa}')
rnd(vSa, vSa)
A(f'v_mov_b32 {vCa}, {vSa}'); A(f'v_permlane32_swap_b32 {vSa}, {vCa}')
A(f'v_add_f32 {vCa}, 1.0, {vCa}'); rnd(vCa, vCa)
A(f'v_mul_f32 {vCa}, {vXd}, {vCa}'); rnd(vCa, vCa)
A(f'v_add_f32 {vCa}, {vCa}, {vSa}'); rnd(vCa, vCa)
A(f'v_or_b32 {vCa}, {sT16}, {vCa}')
A('s_waitcnt lgkmcnt(0)'); pure_update()
set_exec(0xffff)
lstore([f'global_store_dword {vHs}, {vCa}, {pLB} offset:{H_}'])
set_exec(-1)
flag(F_G1)
A('s_branch L_W_q')
LAB('L_W_main')
A(f'global_load_dword {vDUM}, {aH}, {pLB} sc1')
wq_read(vWq)
stamp(4)
lds_wait(30, F_G1, 1, vT0, sleep=1)
LAB('L_W_q')
V.release(mH)
vHB = V(32); vAq = V(4); vHs2 = [V(4) for _ in range(CFG['LK'])]; vHx = V(4); vHp = V(2)
ppoll(4, CFG['LK'], CFG['lgap'], lambda r: [f'global_load_dwordx4 {r}, {aH}, {pLB} offset:{H_} sc1'], 1, vHs2, [vHx[i] for i in range(4)], sT16, 0xffff, extra=[pure_read()])
stamp(5)
A(f'v_perm_b32 {vHp[0]}, {vHx[1]}, {vHx[0]}, {sSEL}'); A(f'v_perm_b32 {vHp[1]}, {vHx[3]}, {vHx[2]}, {sSEL}')
A(f'ds_write_b64 {aHw}, {vHp}')
for ks in range(8): A(f'ds_read_b128 {vHB[4*ks:4*ks+4]}, {aHr} offset:{64*ks}')
for ks in range(8):
    A(f's_waitcnt lgkmcnt({7-ks})')
    if ks == 0: pure_update()
    A(f'v_mfma_f32_16x16x32_bf16 {vAq}, {vWq[4*ks:4*ks+4]}, {vHB[4*ks:4*ks+4]}, {0 if ks == 0 else vAq}')
for r in range(4): tagf(vAq[r], vAq[r], vTg)
set_exec(M_N0)
lstore([f'global_store_dwordx4 {aQst}, {vAq}, {pLB}'])
set_exec(-1)
flag(F_QP)
stamp(6)
A('s_waitcnt vmcnt(0)')
V.release(m)
A(f's_cmp_eq_u32 {sRED}, 1'); A('s_cbranch_scc0 L_W_att')
vRs = [V(4) for _ in range(4)]; vRx = V(4); vG2s, vG2l, vX2s, vOut, aR1, aGa, vMod, vGb, vMVs = [V() for _ in range(9)]; vG4 = V(4)
A(f's_lshl_b32 s57, {sSL}, 5'); A(f'v_lshl_add_u32 {vOut}, {vN}, 1, s57')
A(f'v_lshrrev_b32 {vT2}, 5, {vL}'); A(f'v_lshl_add_u32 {vG2s}, {vC}, 2, {vT2}'); A(f'v_and_b32 {vT2}, 1, {vQ}'); A(f'v_lshl_add_u32 {vG2s}, {vT2}, 1, {vG2s}')
vG3s, vG3l = V(), V()
A(f's_lshl_b32 s56, {sSL}, 10'); A('s_and_b32 s57, s56, 0xffffe000'); A('s_add_u32 s56, s56, s57')
A(f's_lshl_b32 s57, {sG}, 7'); A('s_add_u32 s57, s57, s56'); A(f'v_lshl_add_u32 {vG2s}, {vG2s}, 2, s57')
A(f'v_lshlrev_b32 {vG2l}, 7, {vQ}'); A(f'v_lshl_add_u32 {vG2l}, {vN}, 2, {vG2l}'); A(f'v_add_u32 {vG2l}, s56, {vG2l}')
A(f'v_and_b32 {vT2}, 1, {vR}'); A(f'v_lshl_add_u32 {vG2s}, {vT2}, 13, {vG2s}'); A(f'v_add_u32 {vG2s}, {G2}, {vG2s}')
A(f'v_add_u32 {vG3s}, {G3 - G2}, {vG2s}')
A(f's_lshl_b32 s56, {sSL}, 6'); A(f's_add_u32 s57, s56, {X2}'); A(f'v_lshl_add_u32 {vX2s}, {vN}, 2, s57')
if CFG['gpt'] == 1:
    set_exec(M_N8); A(f'global_load_dword {vDUM}, {vG2s}, {pWS}'); A(f'global_load_dword {vDUM}, {vG3s}, {pWS}'); set_exec(-1)
if CFG['gpt'] == 2:
    A(f'v_not_b32 {vT0}, {vTg}'); set_exec(M_N8); A(f'global_store_dword {vG2s}, {vT0}, {pWS} sc1'); A(f'global_store_dword {vG3s}, {vT0}, {pWS} sc1'); set_exec(-1)
A(f'v_lshrrev_b32 {vT2}, 2, {vL}'); A(f'v_lshlrev_b32 {aR1}, 11, {vT2}'); A(f'v_lshl_add_u32 {aR1}, {vC}, 4, {aR1}')
A(f's_lshl_b32 s56, {sSL}, 6'); A(f's_add_u32 s57, s56, {B1}'); A(f'v_add_u32 {aR1}, s57, {aR1}')
A(f's_add_u32 s57, s56, {MV - 2048}'); A(f'v_lshlrev_b32 {vMVs}, 11, {vQ}'); A(f'v_lshl_add_u32 {vMVs}, {vN}, 2, {vMVs}'); A(f'v_add_u32 {vMVs}, s57, {vMVs}')
A(f's_lshr_b32 s56, {sSL}, 2'); A('s_lshl_b32 s56, s56, 8'); A(f's_and_b32 s57, {sSL}, 3'); A('s_lshl_b32 s57, s57, 6'); A('s_add_u32 s56, s56, s57'); A(f's_add_u32 s56, s56, {S_MR}')
A(f'v_lshlrev_b32 {aGa}, 11, {vQ}'); A(f'v_lshl_add_u32 {aGa}, {vN}, 2, {aGa}'); A(f'v_add_u32 {aGa}, s56, {aGa}')
A(f'global_load_dword {vDUM}, {aR1}, {pLB} sc1')
def ga_issue():
    for i in range(4):
        if i: A(f'v_add_u32 {vT0}, {8192*i}, {aGa}')
        A(f'global_load_dword {vG4[i]}, {vT0 if i else aGa}, {pWS} sc1')
lds_wait(46, F_GO if CFG['mrg'] else F_WI, 1, vT0, sleep=1)
lp, ok = nl('P'), nl('OK')
A(f's_mov_b32 {sCNT}, {CFG["limit"]}')
LAB(lp); ga_issue()
A('s_waitcnt vmcnt(0)')
check([vG4[i] for i in range(4)], [vRx[i] for i in range(4)], sT6, TM, vCH)
A(f's_cbranch_vccz {ok}'); fail_branch(22, lp); LAB(ok)
for a, b in ((0, 1), (2, 3), (0, 2)): A(f'v_add_f32 {vRx[a]}, {vRx[a]}, {vRx[b]}')
rnd(vMod, vRx[0])
A(f'v_add_f32 {vT0}, 1.0, {vMod}'); rnd(vT0, vT0)
A(f'v_cmp_eq_u32 vcc, 2, {vQ}'); A(f'v_cndmask_b32 {vT0}, {vMod}, {vT0}, vcc'); A(f'v_or_b32 {vT0}, {sT16}, {vT0}')
set_exec(0x0000ffffffff0000)
lstore([f'global_store_dword {vMVs}, {vT0}, {pLB}'])
set_exec(-1)
A(f'v_mov_b32 {vGb}, {vMod}'); A(f'v_mov_b32 {vT1}, {vMod}'); A(f'v_permlane16_swap_b32 {vT1}, {vGb}'); A(f'v_mov_b32 {vT1}, {vGb}'); A(f'v_permlane32_swap_b32 {vT1}, {vGb}')
near_update()
A(f's_add_u32 s57, {sCP}, {G2}'); A(f'v_add_u32 {vG2l}, s57, {vG2l}'); A(f'v_add_u32 {vG3l}, {G3 - G2}, {vG2l}')
stamp(11)
LAB('L_W_att')
vWo = V(16); vOb = V(4); vBm = V(8); vD = V(4)
lds_wait(11, F_LP, MKW['WO'], vT0, sleep=1)
for j in range(4):
    A(f'v_xor_b32 {vT0}, {32*j}, {aWo}'); A(f'ds_read_b64_tr_b16 {vWo[4*j:4*j+2]}, {vT0}'); A(f'ds_read_b64_tr_b16 {vWo[4*j+2:4*j+4]}, {vT0} offset:4096')
A(pure_read())
A('s_waitcnt lgkmcnt(0)'); pure_update()
stamp(7)
A('s_barrier')
A(f'ds_read_b128 {vOb}, {aOb}')
A('s_waitcnt lgkmcnt(0)')
for j in range(4):
    b = vBm[4*(j & 1):4*(j & 1)+4]
    for p in range(4): A(f'v_and_b32 {b[p]}, {vMk[j]}, {vOb[p]}')
    A(f'v_mfma_f32_16x16x32_bf16 {vD}, {vWo[4*j:4*j+4]}, {b}, {0 if j == 0 else vD}')
for r in range(4): tagf(vD[r], vD[r], vTg)
set_exec(M_N4)
lstore([f'global_store_dwordx4 {aBst}, {vD}, {pLB}'])
set_exec(-1)
stamp(10)
A(f's_cmp_eq_u32 {sRED}, 1'); A('s_cbranch_scc0 L_W_end')
def reduce16(code, tag, vS_, mask):
    ppoll(code, CFG['LK'], CFG['lgap'], lambda r: [f'global_load_dwordx4 {r}, {aR1}, {pLB} sc1'], 1, vRs, [vRx[i] for i in range(4)], tag, TM)
    tred4(vRx)
    row_allred('v_add_f32', [vRx[0]], (4, 8))
    tagf(vRx[0], vRx[0], vTg)
    set_exec(mask)
    A(f'global_store_dword {vS_}, {vRx[0]}, {pWS} sc1'); set_exec(-1)
def gather8(code, vG2l, n):
    if CFG['gd' + n]: A(f's_sleep {CFG["gd" + n]}')
    ppoll(code, CFG['GK' + n], CFG['ggap'], lambda r: [gld(r[0], vG2l, 0, 'gat' + n), gld(r[1], vG2l, 512, 'gat' + n)], 2, [r[0:2] for r in vRs], [vRx[0], vRx[1]], sT6, TM)
    A(f'v_add_f32 {vRx[0]}, {vRx[0]}, {vRx[1]}'); xrow_allred('v_add_f32', vRx[0], vT0)
    rnd(vRx[0], vRx[0])
reduce16(23, sT6, vG2s, M_N8 if CFG['rep'] else M_N4)
stamp(12)
if True: A('s_waitcnt vmcnt(1)')
gather8(24, vG2l, '2')
stamp(13)
A(f'v_mul_f32 {vRx[0]}, {vMod}, {vRx[0]}'); rnd(vRx[0], vRx[0])
A(f'v_add_f32 {vXc}, {vXc}, {vRx[0]}'); rnd(vXc, vXc)
A(f'v_or_b32 {vT0}, {sT16}, {vXc}')
set_exec(0xffff)
lstore([f'global_store_dword {vX2s}, {vT0}, {pLB}'])
set_exec(-1)
if True: A('s_waitcnt vmcnt(0)')
reduce16(25, sT6b, vG3s, M_N8 if CFG['rep'] else M_N4)
stamp(14)
A(f's_and_b32 s56, {sSL}, 7'); A(f's_cmp_eq_u32 s56, {sG}'); A('s_cbranch_scc0 L_W_end')
if True: A('s_waitcnt vmcnt(1)')
gather8(26, vG3l, '3')
A(f'v_mul_f32 {vRx[0]}, {vGb}, {vRx[0]}'); rnd(vRx[0], vRx[0])
A(f'v_add_f32 {vXc}, {vXc}, {vRx[0]}'); A(f'v_cvt_pk_bf16_f32 {vXc}, {vXc}, {vXc}')
set_exec(0xffff); A(f'global_store_short {vOut}, {vXc}, {pOUT}')
A(f's_cmp_eq_u32 {sSL}, 0'); A('s_cbranch_scc0 L_W_end2')
set_exec(1); A(f'v_mov_b32 {vT0}, {EP}'); A(f'v_mov_b32 {vT1}, {sE}'); A(f'global_store_dword {vT0}, {vT1}, {pWS} sc1')
if CFG['amp']:
    A('s_memrealtime s[94:95]'); A('s_waitcnt lgkmcnt(0)'); A('s_sub_u32 s56, s94, s92'); A(f's_mul_i32 s56, s56, {1 + CFG["amp"]}'); A('s_min_u32 s56, s56, 100000')
    LAB('L_amp'); A('s_memrealtime s[94:95]'); A('s_waitcnt lgkmcnt(0)'); A('s_sub_u32 s57, s94, s92'); A('s_cmp_lt_u32 s57, s56'); A('s_cbranch_scc1 L_amp')
LAB('L_W_end2')
set_exec(-1)
stamp(15)
LAB('L_W_end')
end_wave()

vg_W = V.hi
LAB('L_W9')
V.release(mP)
aML, aA1, aA2, aOw = V(), V(), V(), V(); vMr = V(8); vMx = V(4); vAs = [V(8) for _ in range(CFG['LK'])]; vAx = V(8); vW1, vW2 = V(), V()
A(f'v_lshrrev_b32 {vT0}, 3, {vL}'); A(f'v_and_b32 {vT1}, 7, {vL}')
A(f's_lshr_b32 s57, {sU}, 2'); A('s_lshl_b32 s56, s57, 4'); A(f's_add_u32 s56, s56, {MLG}'); A(f'v_lshl_add_u32 {aML}, {vT0}, 6, s56')
A('s_lshl_b32 s56, s57, 9'); A(f's_and_b32 s57, {sU}, 3'); A('s_lshl_b32 s57, s57, 7'); A('s_add_u32 s56, s56, s57'); A(f's_add_u32 s56, s56, {A_}')
A(f'v_lshlrev_b32 {aA1}, 11, {vT0}'); A(f'v_lshl_add_u32 {aA1}, {vT1}, 4, {aA1}'); A(f'v_add_u32 {aA1}, s56, {aA1}'); A(f'v_add_u32 {aA2}, 16384, {aA1}')
A(f'v_lshrrev_b32 {vT0}, 5, {vL}'); A(f'v_lshl_add_u32 {aOw}, {vT1}, 2, {vT0}'); A(f'v_and_b32 {vT0}, 1, {vQ}'); A(f'v_lshl_add_u32 {aOw}, {vT0}, 1, {aOw}'); A(f'v_lshlrev_b32 {aOw}, 1, {aOw}'); A(f'v_add_u32 {aOw}, {OB}, {aOw}')
A('s_barrier')
epoch_wait()
pure_phase()
lds_wait(35, F_QP, 1, vT0, sleep=2)
if CFG['hall']:
    A(f'v_lshlrev_b32 {vT3}, 3, {vN}'); A(f'v_add_u32 {vT3}, {HINT}, {vT3}')
else:
    A(f's_lshl_b32 s56, {sU}, 3'); A(f's_add_u32 s56, s56, {HINT}'); A(f'v_mov_b32 {vT3}, s56')
lp, ok = nl('P'), nl('OK')
A(f's_mov_b32 {sCNT}, {CFG["limit"]}')
LAB(lp)
A(f'global_load_dword {vT0}, {vT3}, {pLB} sc1'); A('s_waitcnt vmcnt(0)')
A(f'v_cmp_ne_u32 vcc, {sE}, {vT0}'); A(f's_cbranch_vccz {ok}')
fail_branch(44, lp)
LAB(ok)
flag(F_GO)
stamp(6)
A(f'global_load_dword {vDUM}, {aA1}, {pLB} sc1'); A(f'global_load_dword {vDUM}, {aA2}, {pLB} sc1'); A(f'global_load_dword {vDUM}, {aML}, {pLB} sc1'); A(f'global_load_dword {vDUM}, {aML}, {pLB} offset:512 sc1')
lds_wait(36, F_WI, 1, vT0, sleep=1)
stamp(7)
a_loads = lambda r: [f'global_load_dwordx4 {r[0:4]}, {aA1}, {pLB} sc1', f'global_load_dwordx4 {r[4:8]}, {aA2}, {pLB} sc1']
poll(10, [f'global_load_dwordx4 {vMr[0:4]}, {aML}, {pLB} sc1', f'global_load_dwordx4 {vMr[4:8]}, {aML}, {pLB} offset:512 sc1'], [vMr[i] for i in (0, 1, 4, 5)], [vMx[i] for i in range(4)], sT6, TM, vCH, full=[vMr[i] for i in (2, 3, 6, 7)])
def weights():
    A(f'v_max_f32 {vT0}, {vMx[0]}, {vMx[2]}'); row_allred('v_max_f32', [vT0], (8,)); xrow_allred('v_max_f32', vT0, vT1)
    A(f'v_sub_f32 {vW1}, {vMx[0]}, {vT0}'); A(f'v_sub_f32 {vW2}, {vMx[2]}, {vT0}'); A(f'v_mul_f32 {vW1}, {sL2E}, {vW1}'); A(f'v_mul_f32 {vW2}, {sL2E}, {vW2}')
    A(f'v_exp_f32 {vW1}, {vW1}'); A(f'v_exp_f32 {vW2}, {vW2}')
    A(f'v_mul_f32 {vT0}, {vW1}, {vMx[1]}'); A(f'v_fmac_f32 {vT0}, {vW2}, {vMx[3]}'); row_allred('v_add_f32', [vT0], (8,)); xrow_allred('v_add_f32', vT0, vT1)
    A(f'v_rcp_f32 {vT0}, {vT0}'); A(f'v_mul_f32 {vW1}, {vW1}, {vT0}'); A(f'v_mul_f32 {vW2}, {vW2}, {vT0}')
    stamp(8)
poll(12, a_loads(vAs[0]), [vAs[0][i] for i in range(8)], [vAx[i] for i in range(8)], sT6, TM, vCH, shadow=weights)
stamp(9)
for i in range(4): A(f'v_mul_f32 {vAx[i]}, {vW1}, {vAx[i]}')
for i in range(4): A(f'v_fmac_f32 {vAx[i]}, {vW2}, {vAx[4+i]}')
tred4(vAx)
dpp('v_add_f32', vAx[0], vAx[0], vAx[0], 'row_ror:8')
A(f'v_cvt_pk_bf16_f32 {vT0}, {vAx[0]}, {vAx[0]}')
A(f'ds_write_b16 {aOw}, {vT0}'); A('s_waitcnt lgkmcnt(0)'); A('s_barrier')
end_wave()
vg_W = max(vg_W, V.hi)

LAB('L_loader')
if CFG['lprio']: A(f's_setprio {CFG["lprio"]}')
V = Alloc('v', 1, 64)
vO1, vT0, vT1, vLin, vZ, vMark, vX, vOne = [V() for _ in range(8)]; vKo = V(4, 1); vVo = V(2, 1)
adv = lambda p: [f's_add_u32 s{p}, s{p}, 4096', f's_addc_u32 s{p+1}, s{p+1}, 0', 's_add_u32 m0, m0, 4096']
pend = []
def post(mark, st):
    A(f'v_mov_b32 {vMark}, {mark}'); A(f'ds_write_b32 {vZ}, {vMark}')
    if st.get(mark): stamp(st[mark])
def retire_to(n, st):
    while len(pend) > n:
        mk = pend.pop(0)
        if mk is not None or len(pend) == n:
            A(f's_waitcnt vmcnt({len(pend)})')
            if mk is not None: post(mk, st)
def run(items, st, bar):
    for win, pre, ins, mk in items:
        if len(pend) >= win:
            if not bar: stamp(1); A('s_barrier'); bar = True
            retire_to(win - 1, st)
        for x in pre: A(x)
        if isinstance(ins, tuple):
            A(f's_mov_b64 exec, {ins[0]}'); A(ins[1]); A('s_mov_b64 exec, -1')
        else: A(ins)
        pend.append(mk)
    return bar
A(f'v_mov_b32 {vZ}, {FLG}'); A(f'v_mov_b32 {vOne}, 1'); A(f'v_lshlrev_b32 {vLin}, 4, {vL}')
A(f's_cmp_ge_u32 {sT}, 16'); A('s_cbranch_scc1 L_loaderW')
vO2 = V()
for x in [f'v_lshrrev_b32 {vT0}, 3, {vL}', f'v_and_b32 {vT1}, 7, {vL}', f'v_mul_u32_u24 {vO1}, 6144, {vT0}', f'v_lshl_add_u32 {vO1}, {vT1}, 4, {vO1}',
          f's_lshl_b32 s58, {sG}, 7',
          f's_lshr_b32 s56, {sU}, 1', f's_mul_i32 s56, s56, {64*6144}', f's_and_b32 s57, {sU}, 1', 's_lshl_b32 s57, s57, 10', 's_add_u32 s56, s56, s57', 's_add_u32 s56, s56, s58', f'v_add_u32 {vO2}, s56, {vO1}',
          f's_mov_b32 m0, {MM}', 's_waitcnt lgkmcnt(0)']: A(x)
setup = [f's_lshr_b32 s56, {sU}, 2', f's_mul_i32 s56, s56, {128*6144}', f's_and_b32 s57, {sU}, 3', 's_lshl_b32 s57, s57, 10', 's_add_u32 s56, s56, s57',
         's_add_u32 s56, s56, s58', 's_add_u32 s56, s56, 2048', f'v_add_u32 {vO1}, s56, {vO1}',
         f'v_lshrrev_b32 {vT0}, 4, {vL}', f'v_and_b32 {vT1}, 15, {vL}']
for m in range(4):
    setup += [f'v_add_u32 {vX}, {4*m}, {vT0}', f'v_xor_b32 {vX}, {vX}, {vT1}' if CFG['ksw'] else f'v_mov_b32 {vX}, {vT1}', f'v_lshlrev_b32 {vX}, 4, {vX}', f'v_lshl_add_u32 {vKo[m]}, {vT0}, 8, {vX}']
for m in range(2):
    setup += [f'v_add_u32 {vX}, {4*m}, {vT0}', f'v_lshlrev_b32 {vX}, 1, {vX}', f'v_xor_b32 {vX}, {vX}, {vT1}', f'v_lshlrev_b32 {vX}, 4, {vX}', f'v_lshl_add_u32 {vVo[m]}, {vT0}, 8, {vX}']
setup += [f's_lshl_b32 s56, {sG}, 22', f's_lshl_b32 s57, {sU}, {12 if CFG["kvi"] else 16}', 's_add_u32 s56, s56, s57', 's_add_u32 s56, s56, 0x300000',
          f's_add_u32 s62, {lo(pK)}, s56', f's_addc_u32 s63, {hi(pK)}, 0', f's_add_u32 s60, {lo(pV)}, s56', f's_addc_u32 s61, {hi(pV)}, 0']
if CFG['kvi']:
    def advk(p, c):
        d = 17 if CFG['kvi'] == 1 else 16
        if CFG['kvi'] == 2: return [f's_add_u32 s{p}, s{p}, 65536', f's_addc_u32 s{p+1}, s{p+1}, 0', 's_add_u32 m0, m0, 4096']
        return [f's_cmp_eq_u32 {sU}, {16 - c}', f's_cselect_b32 s56, 4096, s55', f's_add_u32 s{p}, s{p}, s56', f's_addc_u32 s{p+1}, s{p+1}, 0', 's_add_u32 m0, m0, 4096']
    setup += [f's_mov_b32 s55, {17*4096}']
else:
    advk = lambda p, c: adv(p)
sec = {}
sec['M'] = [[0, [] if i == 0 else [f'v_add_u32 {vO2}, {8*6144}, {vO2}', 's_add_u32 m0, m0, 1024'], f'global_load_lds_dwordx4 {vO2}, {pWM}{NT}', MKA['M'] if i == 7 else None] for i in range(8)]
sec['MR'] = [[0, [f's_mov_b32 m0, {MR}'] if i == 0 else [f'v_add_u32 {vO1}, {8*6144}, {vO1}', 's_add_u32 m0, m0, 1024'], f'global_load_lds_dwordx4 {vO1}, {pWM}{NT}', MKA['MR'] if i == 15 else None] for i in range(16)]
sec['K'] = [[0, [f's_mov_b32 m0, {KK}'] if i == 0 else advk(62, i // 4) if i % 4 == 0 else [], f'global_load_lds_dwordx4 {vKo[i % 4]}, s[62:63] offset:{1024*(i % 4)}{NT}', MKA['K0'] + i // 8 if i % 8 == 7 else None] for i in range(64)]
sec['V'] = [[0, [f's_mov_b32 m0, {VV}'] if i == 0 else advk(60, i // 4) if i % 4 == 0 else [], f'global_load_lds_dwordx4 {vVo[i & 1]}, s[60:61] offset:{1024*(i % 4)}{NT}', MKA['V0'] + i // 8 if i % 8 == 7 else None] for i in range(64)]
items = sec['M'] + sec['MR'] + sec['K'] + sec['V']
items[8][1] = setup + items[8][1]
for i, it in enumerate(items): it[0] = CFG['WA0'] if i < CFG['WA0'] + CFG['NA0'] else CFG['WA']
stA = {MKA['K0'] + 7: 3, MKA['V0'] + 7: 4, MKA['MR']: 6, MKA['M']: 2}
hint_at = len(items) - 64 + 8 * CFG['hint']
def hint():
    A('s_waitcnt lgkmcnt(0)'); A(f's_add_u32 {sE}, {sE}, 1'); A(f'v_mov_b32 {vMark}, {sE}')
    A(f's_mul_i32 s53, {sG}, {LBS}'); A(f's_lshl_b32 s56, {sU}, 3'); A('s_add_u32 s53, s53, s56'); A(f's_add_u32 s53, s53, {LB0 + HINT}'); A(f'v_mov_b32 {vX}, s53')
items[8][1] = [f's_load_dword {sE}, {pWS}, {EP}'] + items[8][1]
n0 = 8 + CFG['X0']
run([(63, *x[1:]) for x in items[:n0]], stA, True)
stamp(1); A('s_barrier')
retire_to(CFG['X0'], stA)
n1 = n0 + (CFG['mpw'] - 1 if CFG['mpw'] else 0)
run(items[n0:n1], stA, True)
if not CFG['only'] and CFG['mpw']: lds_wait(45, F_MP, 4, vT0)
run(items[n1:hint_at], stA, True)
retire_to(min(len(pend), CFG['hret']), stA)
hint()
A(f'ds_read_b32 {vT0}, {vZ} offset:{F_PURE - FLG}'); A('s_waitcnt lgkmcnt(0)'); A(f'v_readfirstlane_b32 {sPURE}, {vT0}')
set_exec(1)
lstore([f'global_store_dword {vX}, {vMark}, {pWS}'])
set_exec(-1)
pend.append(None)
run(items[hint_at:], stA, True)
retire_to(0, stA)
A(f's_and_b32 s54, {sU}, 7'); A(f's_lshr_b32 s55, {sU}, 3')
items = []
vGx = V(4, 1)
for i in range(32):
    if i == 0:
        pre = [f'v_lshrrev_b32 {vT0}, 5, {vL}', f'v_and_b32 {vT1}, 31, {vL}', f'v_mul_u32_u24 {vO1}, 3584, {vT0}',
               f's_mul_i32 s56, s54, {64*3584}', f's_mul_i32 s57, {sG}, 448', 's_add_u32 s56, s56, s57', f'v_add_u32 {vO1}, s56, {vO1}']
        for v in range(4):
            f0 = 2 * (v & 1) + 4 * (v >> 1)
            pre += [f'v_add_u32 {vX}, {f0}, {vT0}', f'v_lshlrev_b32 {vX}, 1, {vX}', f'v_xor_b32 {vX}, {vX}, {vT1}' if CFG['gsw'] else f'v_mov_b32 {vX}, {vT1}',
                    f'v_cmp_gt_u32 s[{84+2*v}:{85+2*v}], 28, {vX}', f'v_lshl_add_u32 {vGx[v]}, {vX}, 4, {vO1}']
        pre += ['s_cmp_ge_u32 s55, 1', f's_cselect_b32 s58, {lo(pWU)}, {lo(pWG)}', f's_cselect_b32 s59, {hi(pWU)}, {hi(pWG)}', f's_mov_b32 m0, {GU}']
    else: pre = [f's_add_u32 s58, s58, {2*3584}', 's_addc_u32 s59, s59, 0', 's_add_u32 m0, m0, 1024']
    v = (i & 1) | (((i >> 2) & 1) << 1)
    items.append((CFG['WG'], pre, (f's[{84+2*v}:{85+2*v}]', f'global_load_lds_dwordx4 {vGx[v]}, s[58:59]{NT}'), MKA['GU'] if i == 31 else None))
for i in range(16):
    pre = []
    if i == 0: pre = [f's_min_u32 s57, {sU}, 13', f's_mul_i32 s56, {sG}, {224*1024}', 's_lshl_b32 s57, s57, 14', 's_add_u32 s56, s56, s57', f's_add_u32 s58, {lo(pWD)}, s56', f's_addc_u32 s59, {hi(pWD)}, 0', f's_mov_b32 m0, {DN}']
    elif i % 4 == 0: pre = adv(58)
    fd = ((i & 3) << 1) | ((i >> 3) & 1)
    pre = pre + [f'v_xor_b32 {vX}, {32*fd if CFG["gsw"] else 0}, {vLin}']
    items.append((CFG['WG'], pre, f'global_load_lds_dwordx4 {vX}, s[58:59] offset:{1024*(i % 4)}{NT}', MKA['DN'] if i == 15 else None))
for x in items[0][1]: A(x)
items[0] = (items[0][0], [], *items[0][2:])
if not CFG['only']:
    A('s_waitcnt lgkmcnt(0)'); A('s_barrier')
    lds_wait(42, F_AP, 8, vT0)
stA.update({MKA['GU']: 7, MKA['DN']: 8})
run(items, stA, True)
retire_to(0, stA)
A('s_waitcnt lgkmcnt(0)')
end_wave()
LAB('L_loaderW')
A(f's_and_b32 s54, {sU}, 7'); A(f's_lshr_b32 s55, {sU}, 3')
A(f'v_lshrrev_b32 {vT0}, 3, {vL}'); A(f'v_and_b32 {vT1}, 7, {vL}'); A(f'v_lshlrev_b32 {vO1}, 13, {vT0}'); A(f'v_lshl_add_u32 {vO1}, {vT1}, 4, {vO1}')
A('s_lshl_b32 s56, s55, 21'); A(f's_lshl_b32 s57, {sG}, 10'); A('s_add_u32 s56, s56, s57'); A('s_lshl_b32 s57, s54, 7'); A('s_add_u32 s56, s56, s57')
A(f'v_add_u32 {vO1}, s56, {vO1}'); A(f's_mov_b32 m0, {WQ}')
A('s_waitcnt lgkmcnt(0)')
stW = {1: 2, 2: 5, 3: 7, 4: 8}
items = []
for i in range(32):
    items.append((63, [] if i == 0 else [f'v_add_u32 {vO1}, 65536, {vO1}', 's_add_u32 m0, m0, 1024'], f'global_load_lds_dwordx4 {vO1}, {pWQ}{NT}', MKW['WQ'] if i == 31 else None))
run(items, stW, True)
stamp(1); A('s_barrier')
retire_to(0, stW)
if CFG['only'] == 'loaderA': end_wave()
if CFG['only'] != 'loader': lds_wait(41, F_GO, 1, vT0, sleep=1)
items = []
for i in range(32):
    pre = []
    if i == 0: pre = [f's_lshl_b32 s56, {sG}, 19', f's_lshl_b32 s57, {sU}, 15', 's_add_u32 s56, s56, s57', f's_add_u32 s58, {lo(pWO)}, s56', f's_addc_u32 s59, {hi(pWO)}, 0', f's_mov_b32 m0, {WO}']
    elif i % 4 == 0: pre = adv(58)
    f = (i & 3) | ((i >> 1) & 4)
    pre = pre + [f'v_xor_b32 {vX}, {32*f}, {vLin}']
    items.append((CFG['WO0'] if i < CFG['WO0'] + CFG['NO0'] else CFG['WO1'], pre, f'global_load_lds_dwordx4 {vX}, s[58:59] offset:{1024*(i % 4)}{NT}', MKW['WO'] if i == 31 else None))
run(items, stW, True)
flag(F_WI)
retire_to(0, stW)
if not CFG['only']: A('s_waitcnt lgkmcnt(0)'); A('s_barrier')
A('s_waitcnt lgkmcnt(0)')
end_wave()

for sl, ins, bk in slow_paths:
    LAB(sl)
    for x in ins: A(x)
    A(f's_branch {bk}')
LAB('L_fail')
if CFG['dbgfail']:
    set_exec(1)
    A(f'v_mov_b32 v1, 0x1ffff0'); A(f's_lshl_b32 s56, s2, 16'); A(f's_lshl_b32 s57, {sWAVE}, 8'); A('s_or_b32 s56, s56, s57'); A(f's_or_b32 s56, s56, {sTMP}'); A('v_mov_b32 v2, s56')
    A(f'global_store_dword v1, v2, {pWS} sc1')
    set_exec(-1)
if CFG['stamps']:
    LAB('L_stamps')
    A('s_waitcnt lgkmcnt(0)')
    A('v_mov_b32 v2, 0')
    for i in range(16): A(f'v_writelane_b32 v2, s{64+2*i}, {i}')
    A(f's_lshl_b32 s56, {sT}, 3'); A(f's_add_u32 s56, s56, {sG}'); A(f's_mul_i32 s56, s56, {NW}'); A(f's_add_u32 s56, s56, {sWAVE}'); A('s_lshl_b32 s56, s56, 6'); A(f's_add_u32 s56, s56, {STAMPS}')
    A('v_lshl_add_u32 v1, v0, 2, s56')
    set_exec(0xffff); A(f'global_store_dword v1, v2, {pWS}')
LAB('L_exit')
A('s_endpgm')
LAB('L_codeend')

body = pad_hazards(L)
vg = (max(vg_A, vg_W) + 7) // 8 * 8
hdr = open('cdna_kernels/' + KN + '.s.ref').read().split('; Override launch')[0]
name = KN + '_kernel'
txt = hdr + f"""; @launch grid=(256,1,1) block=({64*NW},1,1) lds={LDS_BYTES}
.amdgcn_target "amdgcn-amd-amdhsa--gfx950"
.text
.globl {name}
.p2align 8
.type {name},@function
{name}:
""" + '\n'.join(body) + f"""
.section .rodata,"a"
.p2align 6
.amdhsa_kernel {name}
  .amdhsa_next_free_vgpr {vg}
  .amdhsa_next_free_sgpr 100
  .amdhsa_accum_offset {vg}
  .amdhsa_group_segment_fixed_size 0
  .amdhsa_kernarg_size 112
  .amdhsa_user_sgpr_count 2
  .amdhsa_user_sgpr_kernarg_segment_ptr 1
  .amdhsa_system_sgpr_workgroup_id_x 1
  .amdhsa_float_denorm_mode_32 3
.end_amdhsa_kernel
"""
open(OUT, 'w').write(txt)
print('vgprs', vg_A, vg_W, 'lines', len(body), file=sys.stderr)
```

```python
import sys
from kasm import pad_hazards, Alloc, Reg

KN = 'adaLN_cond__sliding_block_cached__glu_gated_glu__decode'
CFG = dict(stamps=0, limit=200000, pf=1, dbgfail=1, amp=0, ptries=40,
           WA0=28, NA0=0, WA=28, WO0=24, NO0=0, WO1=24, WG=32, nt=1, only='', early=0, QK=3, qgap=4, GK=1, ggap=2, LK=1, lgap=1,
           qstart=4, prio=0, mrpos=0, rep=1, hint=4, qh=1, qsl=0, HK=3, hgap=3, ksw=1, mlb=1, fpre=1, vgate=8, trace=0, near=4, gat2=1, GK2=3, gd2=0, gat3=1, GK3=3, gd3=0, mrg=0, tlb=0, gat=1, gat1=0, G1K=1, gpt=0, mpt=0, gdly=0, gsw=1, mpw=1, hall=0, hret=63, kvi=1, ilv=0, X0=8, lprio=3, cprio=3)
CFG.update(WA0=56, WA=56, QK=4, qgap=9, qh=0, qstart=2, qsl=0, X0=16, hint=6, hall=1, WO0=32, WO1=32, WG=32, kvi=2, GK=3, ggap=4, gpt=2)
for a in sys.argv[2:]:
    k, v = a.split('=')
    assert k in CFG, k
    CFG[k] = int(v) if v.lstrip('-').isdigit() else v
OUT = sys.argv[1]

EP = 0; S_MR = 0x8000; S_M = 0x10000; G2 = 0x20000; G3 = 0x30000
LB0 = 0x40000; LBS = 0x18000
H_ = 0; MV = 0x800; X2 = 0x1800; MLG = 0x2000; HINT = 0x2800; Q_ = 0x3000; A_ = 0x8000; B1 = 0x10000
PROBE = 0x110000
STAMPS = 0x200000
KK = 0; VV = 0x10000; MM = 0x20000; OL = 0x22000
GU = 0; DN = 0x8000
WQ = 0; WO = 0x8000; MR = 0x10000
SC = 0x26800
QL = SC; QS = 320; MLL = SC + 0x600; GAB = SC + 0x700; HL = SC; OB = SC + 0x800; FLG = SC + 0x900; CL = SC + 0xA00
OS = 576
F_LP = FLG; F_PURE = FLG + 4; F_G1 = FLG + 8; F_QP = FLG + 12; F_Q = FLG + 56; F_MD = FLG + 60; F_AP = FLG + 16; F_WI = FLG + 20; F_B1 = FLG + 24; F_O = FLG + 28; F_GA = FLG + 32; F_GO = FLG + 40; F_MP = FLG + 44; F_CP = FLG + 36; F_SF = FLG + 48
LDS_BYTES = SC + 0xE00
NW = 10
sWAVE, sG, sT, sE, sT6, sT16, sT6b = 's3', 's4', 's5', 's6', 's7', 's8', 's9'
sU, sSL, sCNT, sTMP = 's10', 's11', 's14', 's15'
pX, pK, pV, pWQ, pWO, pBX, pWG, pWU, pWD, pC, pWM, pOUT, pDBG, pWS = [f's[{16+2*i}:{17+2*i}]' for i in range(14)]
pLB = 's[44:45]'; sPURE = 's46'; sMASK = 's47'; sSEL = 's48'; sHI = 's49'; sL2E = 's50'; sCM = 's12'; sCP = 's51'
def lo(p): return 's' + p[2:-1].split(':')[0]
def hi(p): return 's' + p[2:-1].split(':')[1]
TM = 0x3f

L = []
def A(x): L.append('    ' + x)
def LAB(x): L.append(x + ':')
uid = [0]
def nl(p='L'):
    uid[0] += 1; return f'{p}_{uid[0]}'
slow_paths = []
def stamp(i):
    if CFG['stamps'] and (CFG['stamps'] >> i) & 1: A(f's_memrealtime s[{64+2*i}:{65+2*i}]')
def set_exec(mask):
    if mask == -1: A('s_mov_b64 exec, -1'); return
    l, h = mask & 0xffffffff, mask >> 32
    if h == 0 and l <= 64: A(f's_mov_b64 exec, {l}'); return
    A(f's_mov_b32 exec_lo, {l:#x}'); A(f's_mov_b32 exec_hi, {h:#x}')
M_N0 = 0x0001000100010001; M_N4 = 0x000F000F000F000F; M_N8 = 0x00FF00FF00FF00FF; M_N2 = 0x0003000300030003; M_Q0 = 0x1111111111111111
def rnd(d, s):
    A(f'v_cvt_pk_bf16_f32 {d}, {s}, {s}'); A(f'v_and_b32 {d}, {sHI}, {d}')
def dpp(op, d, a, b, ctl, bank=0xf, row=0xf):
    if b is None: A(f'{op}_dpp {d}, {a} {ctl} row_mask:{row:#x} bank_mask:{bank:#x}')
    else: A(f'{op}_dpp {d}, {a}, {b} {ctl} row_mask:{row:#x} bank_mask:{bank:#x}')
def row_allred(op, regs, shifts=(8, 4, 2, 1)):
    for sh in shifts:
        for r in regs: dpp(op, r, r, r, f'row_ror:{sh}')
def xrow_allred(op, v, t):
    A(f'v_mov_b32 {t}, {v}'); A(f'v_permlane16_swap_b32 {v}, {t}'); A(f'{op} {v}, {v}, {t}')
    A(f'v_mov_b32 {t}, {v}'); A(f'v_permlane32_swap_b32 {v}, {t}'); A(f'{op} {v}, {v}, {t}')
def tred4(v):
    A(f'v_permlane32_swap_b32 {v[0]}, {v[1]}'); A(f'v_permlane32_swap_b32 {v[2]}, {v[3]}')
    A(f'v_add_f32 {v[0]}, {v[0]}, {v[1]}'); A(f'v_add_f32 {v[2]}, {v[2]}, {v[3]}')
    A(f'v_permlane16_swap_b32 {v[0]}, {v[2]}'); A(f'v_add_f32 {v[0]}, {v[0]}, {v[2]}')
def fail_branch(code, loop):
    A(f's_sub_u32 {sCNT}, {sCNT}, 1'); A(f's_cbranch_scc0 {loop}')
    if CFG['dbgfail']: A(f's_mov_b32 {sTMP}, {code}')
    A('s_branch L_fail')
def check(raw, out, tag, maskbits, chk, full=()):
    for r, o in zip(raw, out): A(f'v_xor_b32 {o}, {tag}, {r}')
    o = list(out)
    if len(o) == 1: A(f'v_and_b32 {chk}, {maskbits:#x}, {o[0]}'); o = None
    elif len(o) == 2: A(f'v_or_b32 {chk}, {o[0]}, {o[1]}'); o = []
    else: A(f'v_or3_b32 {chk}, {o[0]}, {o[1]}, {o[2]}'); o = o[3:]
    if o is not None:
        while len(o) >= 2: A(f'v_or3_b32 {chk}, {chk}, {o[0]}, {o[1]}'); o = o[2:]
        if o: A(f'v_or_b32 {chk}, {chk}, {o[0]}')
        A(f'v_and_b32 {chk}, {maskbits:#x}, {chk}')
    for r in full: A(f'v_xor_b32 {r}, {sE}, {r}'); A(f'v_or_b32 {chk}, {chk}, {r}')
    A(f'v_cmp_ne_u32 vcc, 0, {chk}')
def poll(code, loads, raw, out, tag, maskbits, chk, full=(), shadow=None, sleep=0, issued=False):
    lp, ok, lw = nl('P'), nl('OK'), nl('PW')
    A(f's_mov_b32 {sCNT}, {CFG["limit"]}')
    if shadow or issued:
        if not issued:
            for x in loads: A(x)
        if shadow: shadow()
        A(f's_branch {lw}')
    LAB(lp)
    if sleep: A(f's_sleep {sleep}')
    for x in loads: A(x)
    LAB(lw)
    A('s_waitcnt vmcnt(0)')
    check(raw, out, tag, maskbits, chk, full)
    A(f's_cbranch_vccz {ok}')
    fail_branch(code, lp)
    LAB(ok)
def ppoll(code, K, gap, mk, nld, sets, out, tag, maskbits, extra=()):
    if K == 1:
        poll(code, mk(sets[0]) + list(extra), [sets[0][i] for i in range(sets[0].n)], out, tag, maskbits, vCH); return
    lp, ok = nl('PP'), nl('OK')
    A(f's_mov_b32 {sCNT}, {CFG["limit"]}')
    for k in range(K - 1):
        for x in mk(sets[k]): A(x)
        if gap: A(f's_sleep {gap}')
    LAB(lp)
    for k in range(K):
        for x in mk(sets[(k + K - 1) % K]): A(x)
        for x in extra: A(x)
        A(f's_waitcnt vmcnt({(K-1)*nld})')
        check([sets[k][i] for i in range(sets[k].n)], out, tag, maskbits, vCH)
        A(f's_cbranch_vccz {ok}')
    fail_branch(code, lp)
    LAB(ok)
def lds_wait(code, off, val, tmp, sleep=0, vaddr=None, spec=()):
    lp, ok, ag = nl('W'), nl('OK'), nl('AG')
    va = vaddr or vZ
    if spec:
        A(f'ds_read_b32 {tmp}, {va} offset:{off - FLG}')
        for x in spec: A(x)
        A(f's_waitcnt lgkmcnt({min(15, len(spec))})')
        A(f'v_readfirstlane_b32 {sTMP}, {tmp}'); A(f's_cmp_ge_u32 {sTMP}, {val}'); A(f's_cbranch_scc1 {ok}')
    A(f's_mov_b32 {sCNT}, {CFG["limit"]}')
    LAB(lp)
    A(f'ds_read_b32 {tmp}, {va} offset:{off - FLG}')
    A('s_waitcnt lgkmcnt(0)')
    A(f'v_readfirstlane_b32 {sTMP}, {tmp}')
    A(f's_cmp_ge_u32 {sTMP}, {val}')
    A(f's_cbranch_scc1 {ag}')
    if sleep: A(f's_sleep {sleep}')
    fail_branch(code, lp)
    LAB(ag)
    for x in spec: A(x)
    LAB(ok)
def lds_wait8(code, off, fl, reads):
    lp, ok, again = nl('W'), nl('OK'), nl('AG')
    def flags():
        A(f'ds_read_b128 {fl[0:4]}, {vZ} offset:{off - FLG}'); A(f'ds_read_b128 {fl[4:8]}, {vZ} offset:{off - FLG + 16}')
    def test():
        A(f'v_and_b32 {fl[0]}, {fl[0]}, {fl[1]}')
        for i in (2, 4, 6): A(f'v_bitop3_b32 {fl[0]}, {fl[0]}, {fl[i]}, {fl[i+1]} bitop3:0x80')
        A(f'v_cmp_eq_u32 vcc, 0, {fl[0]}')
    A(f's_mov_b32 {sCNT}, {CFG["limit"]}')
    LAB(lp)
    flags()
    for x in reads: A(x)
    A(f's_waitcnt lgkmcnt({min(15, len(reads))})')
    test()
    A(f's_cbranch_vccz {ok}')
    fail_branch(code, lp)
    LAB(ok)
def gld(d, a, off=0, key='gat'):
    o = f' offset:{off}' if off else ''
    if CFG[key]: return f'global_atomic_add {d}, {a}, {vZero}, {pWS}{o} sc0 sc1'
    return f'global_load_dword {d}, {a}, {pWS}{o} sc1'
def near_update():
    if not CFG['near']: return
    A(f'ds_read_b32 {vT0}, {vZ} offset:{F_CP - FLG}'); A('s_waitcnt lgkmcnt(0)'); A(f'v_readfirstlane_b32 s56, {vT0}')
    A('s_cmp_eq_u32 s56, 1'); A(f's_cselect_b32 {sCP}, 0, {sCP}'); A('s_cmp_eq_u32 s56, 2'); A(f's_cselect_b32 {sCP}, 0x2000, {sCP}')
def pure_read(): return f'ds_read_b32 {vPU}, {vZ} offset:{F_PURE - FLG}'
def pure_update(): A(f'v_readfirstlane_b32 {sPURE}, {vPU}')
def lstore(instrs):
    sl, bk = nl('SL'), nl('BK')
    A(f's_cmp_eq_u32 {sPURE}, 1'); A(f's_cbranch_scc0 {sl}')
    for x in instrs: A(x)
    LAB(bk)
    slow_paths.append((sl, [x + ' sc1' for x in instrs], bk))
def tagf(d, s, vtag): A(f'v_and_or_b32 {d}, {s}, {sMASK}, {vtag}')
def epoch_wait():
    A('s_waitcnt lgkmcnt(0)')
    A(f's_add_u32 {sE}, {sE}, 1')
    A(f's_and_b32 {sT6}, {sE}, {TM:#x}'); A(f's_and_b32 {sT16}, {sE}, 0xffff'); A(f's_xor_b32 {sT6b}, {sT6}, 0x20')
    A(f'v_mov_b32 {vTg}, {sT6}'); A(f'v_mov_b32 {vTgb}, {sT6b}')
def silu_bf(d, c, t1):
    A(f'v_mul_f32 {t1}, {sL2E}, {c}'); A(f'v_exp_f32 {t1}, -{t1}'); A(f'v_add_f32 {t1}, 1.0, {t1}'); A(f'v_rcp_f32 {t1}, {t1}'); A(f'v_mul_f32 {d}, {c}, {t1}')
def end_wave():
    if CFG['stamps']: A('s_branch L_stamps')
    else: A('s_endpgm')
def flag(off): A(f'ds_write_b32 {vZ}, {vOne} offset:{off - FLG}')
NT = ' nt' if CFG['nt'] else ''
vL = 'v0'
MKA = dict(M=1, K0=2, V0=10, GU=18, DN=19)
MKW = dict(WQ=1, MR=2, WO=3)

LAB('L_start')
stamp(0)
if CFG['amp']: A('s_memrealtime s[92:93]')
A('s_cmp_ge_u32 s2, 256'); A('s_cbranch_scc1 L_exit')
A('s_load_dwordx16 s[16:31], s[0:1], 0'); A('s_load_dwordx8 s[32:39], s[0:1], 64'); A('s_load_dwordx4 s[40:43], s[0:1], 96')
A('v_lshrrev_b32 v1, 6, v0'); A('v_and_b32 v0, 63, v0'); A(f'v_readfirstlane_b32 {sWAVE}, v1')
A(f's_and_b32 {sG}, s2, 7'); A(f's_lshr_b32 {sT}, s2, 3'); A(f's_and_b32 {sU}, {sT}, 15')
V = Alloc('v', 1, 168)
vN, vQ, vR, vC, vT0, vT1, vT2, vT3, vCH, vZ, vTg, vTgb, vPU, vOne, vC8, vQ16, vDUM, vZero = [V() for _ in range(18)]
vX = V(4); vXd = V()
mP = V.mark()
A(f's_cmp_lt_u32 {sWAVE}, 8'); A('s_cbranch_scc1 L_i_c')
A(f's_cmp_eq_u32 {sWAVE}, 9'); A('s_cbranch_scc0 L_i_8')
if CFG['pf']:
    A('s_getpc_b64 s[56:57]')
    LAB('L_pc')
    A('s_sub_u32 s56, s56, L_pc - L_start'); A('s_subb_u32 s57, s57, 0')
    A(f's_and_b32 s58, {sT}, 3'); A('s_lshl_b32 s58, s58, 13'); A(f'v_lshl_add_u32 {vT0}, {vL}, 7, s58'); A(f'v_min_u32 {vT0}, L_codeend - L_start - 4, {vT0}')
    A(f'global_load_dword {vDUM}, {vT0}, s[56:57]')
A('s_branch L_i_9')
LAB('L_i_8')
if CFG['lprio']: A(f's_setprio {CFG["lprio"]}')
A(f'v_lshrrev_b32 v2, 3, {vL}'); A(f'v_and_b32 v3, 7, {vL}'); A(f's_lshl_b32 s58, {sG}, 7')
A(f's_cmp_ge_u32 {sT}, 16'); A('s_cbranch_scc1 L_i_8W')
A('v_mul_u32_u24 v1, 6144, v2'); A(f's_lshr_b32 s56, {sU}, 1'); A(f's_mul_i32 s56, s56, {64*6144}'); A(f's_and_b32 s57, {sU}, 1'); A('s_lshl_b32 s57, s57, 10')
A('s_add_u32 s56, s56, s57'); A('s_add_u32 s56, s56, s58'); A(f's_mov_b32 m0, {MM}'); A(f's_mov_b32 s59, {8*6144}'); A('s_mov_b32 s60, 1')
A('s_waitcnt lgkmcnt(0)'); A(f's_mov_b64 s[62:63], {pWM}')
A('s_branch L_i_8go')
LAB('L_i_8W')
A('v_lshlrev_b32 v1, 13, v2'); A(f's_lshr_b32 s56, {sU}, 3'); A('s_lshl_b32 s56, s56, 21'); A(f's_and_b32 s57, {sU}, 7'); A('s_lshl_b32 s57, s57, 7')
A('s_add_u32 s56, s56, s57'); A('s_lshl_b32 s58, s58, 3'); A('s_add_u32 s56, s56, s58'); A(f's_mov_b32 m0, {WQ}'); A('s_mov_b32 s59, 65536'); A('s_mov_b32 s60, 4')
A('s_waitcnt lgkmcnt(0)'); A(f's_mov_b64 s[62:63], {pWQ}')
LAB('L_i_8go')
A('v_lshl_add_u32 v1, v3, 4, v1'); A('v_add_u32 v1, s56, v1')
LAB('L_i_8loop')
for _ in range(8): A(f'global_load_lds_dwordx4 v1, s[62:63]{NT}'); A('s_add_u32 m0, m0, 1024'); A('v_add_u32 v1, s59, v1')
A('s_sub_u32 s60, s60, 1'); A('s_cmp_lg_u32 s60, 0'); A('s_cbranch_scc1 L_i_8loop')
A('s_branch L_loader')
LAB('L_i_c')
if CFG['only'].startswith('loader'):
    A('s_waitcnt lgkmcnt(0)'); A('s_barrier'); A('s_branch L_stamps')
A(f's_cmp_ge_u32 {sWAVE}, 4'); A('s_cbranch_scc0 L_i_03')
A(f's_lshr_b32 s56, {sU}, 2'); A('s_lshl_b32 s56, s56, 8'); A(f'v_lshl_add_u32 {vT2}, {vL}, 2, s56')
A('s_waitcnt lgkmcnt(0)')
A(f'global_load_dword {vXd}, {vT2}, {pC}')
A('s_branch L_i_done')
LAB('L_i_03')
A(f'v_lshlrev_b32 {vT0}, 4, {vL}')
A(f's_add_u32 s57, {sWAVE}, 1'); A('s_and_b32 s57, s57, 1'); A(f's_lshl_b32 s56, {sU}, 1'); A('s_add_u32 s56, s56, s57'); A('s_lshl_b32 s56, s56, 5')
A(f'v_and_b32 {vT1}, 15, {vL}'); A(f'v_lshl_add_u32 {vT1}, {vT1}, 1, s56')
A(f's_sub_u32 s57, {sWAVE}, 1'); A(f's_lshr_b32 s56, {sT}, 4'); A('s_xor_b32 s56, s56, 1'); A('s_lshl_b32 s56, s56, 1'); A('s_or_b32 s57, s57, s56')
A('s_waitcnt lgkmcnt(0)')
A('s_cmp_lt_u32 s57, 2'); A('s_cbranch_scc0 L_i_done')
A(f'global_load_dwordx4 {vX}, {vT0}, {pX}'); A(f'global_load_ushort {vXd}, {vT1}, {pX}')
A('s_branch L_i_done')
LAB('L_i_9')
if CFG['only'].startswith('loader'):
    A('s_waitcnt lgkmcnt(0)'); A('s_barrier'); A('s_branch L_stamps')
if CFG['cprio']: A(f's_setprio {CFG["cprio"]}')
A(f'v_lshlrev_b32 {vT1}, 2, {vL}'); A(f'v_add_u32 {vT1}, {FLG}, {vT1}'); A(f'v_mov_b32 {vT2}, 0')
set_exec(0xffffffff); A(f'ds_write_b32 {vT1}, {vT2}'); set_exec(-1)
A('s_getreg_b32 s52, hwreg(HW_REG_XCC_ID)'); A('s_and_b32 s52, s52, 15'); A('s_or_b32 s52, s52, 0x80')
A(f's_lshl_b32 s56, {sG}, 5'); A(f's_add_u32 s57, s56, {sT}'); A(f'v_mov_b32 {vT0}, s57'); A(f'v_mov_b32 {vT1}, s52')
A('s_waitcnt lgkmcnt(0)')
set_exec(1); A(f'global_store_byte {vT0}, {vT1}, {pDBG}'); set_exec(-1)
LAB('L_i_done')
A(f's_load_dword {sE}, {pWS}, {EP}')
A(f's_getreg_b32 {sCP}, hwreg(HW_REG_XCC_ID)'); A(f's_and_b32 {sCP}, {sCP}, {4 if CFG["rep"] else 0}'); A(f's_lshl_b32 {sCP}, {sCP}, 11')
A(f's_mov_b32 {sMASK}, {0xffffffff ^ TM:#x}'); A(f's_mov_b32 {sSEL}, 0x07060302'); A(f's_mov_b32 {sHI}, 0xffff0000'); A(f's_mov_b32 {sL2E}, 0x3fb8aa3b'); A(f's_mov_b32 {sPURE}, 0')
A(f's_mul_i32 s53, {sG}, {LBS}'); A(f's_add_u32 s53, s53, {LB0}'); A(f's_add_u32 {lo(pLB)}, {lo(pWS)}, s53'); A(f's_addc_u32 {hi(pLB)}, {hi(pWS)}, 0')
A(f'v_mov_b32 {vZ}, {FLG}'); A(f'v_mov_b32 {vOne}, 1'); A(f'v_mov_b32 {vZero}, 0')
A(f'v_and_b32 {vN}, 15, {vL}'); A(f'v_lshrrev_b32 {vQ}, 4, {vL}'); A(f'v_bfe_u32 {vR}, {vL}, 2, 2'); A(f'v_and_b32 {vC}, 3, {vL}')
A(f'v_lshlrev_b32 {vC8}, 3, {vC}'); A(f'v_lshlrev_b32 {vQ16}, 4, {vQ}')
w2, w5, w6, w7, w8 = 's59', 's60', 's61', 's62', 's63'
A(f's_lshl_b32 {w2}, {sWAVE}, 2'); A(f's_lshl_b32 {w5}, {sWAVE}, 5'); A(f's_lshl_b32 {w6}, {sWAVE}, 6'); A(f's_lshl_b32 {w7}, {sWAVE}, 7'); A(f's_lshl_b32 {w8}, {sWAVE}, 8')

def pure_phase():
    lp, dn = nl('PP'), nl('PD')
    A('s_mul_i32 s52, s52, 0x01010101'); A(f'v_and_b32 {vT1}, 7, {vL}'); A(f's_lshl_b32 s56, {sG}, 5'); A(f'v_lshl_add_u32 {vT1}, {vT1}, 2, s56')
    A(f's_mov_b32 {sCNT}, {CFG["ptries"]}')
    LAB(lp)
    A(f'global_load_dword {vT0}, {vT1}, {pDBG} sc1'); A('s_waitcnt vmcnt(0)')
    A(f'v_cmp_ne_u32 vcc, s52, {vT0}'); A(f's_cbranch_vccz {lp}_ok')
    A(f's_sub_u32 {sCNT}, {sCNT}, 1'); A(f's_cbranch_scc0 {lp}'); A(f's_branch {dn}')
    LAB(lp + '_ok')
    flag(F_PURE)
    LAB(dn)
    stamp(2)

A(f's_cmp_ge_u32 {sT}, 16'); A('s_cbranch_scc1 L_W')
A(f's_cmp_eq_u32 {sWAVE}, 9'); A('s_cbranch_scc1 L_A9')
aK = V(4, 1); aQB, aMw, aMr, aV, aOw, aOr, aAst = [V() for _ in range(7)]; vMg = V(4, 1)
A(f's_lshl_b32 s58, {sWAVE}, 13')
A(f'v_xor_b32 {vT0}, {vQ}, {vN}'); A(f'v_lshlrev_b32 {vT0}, 4, {vT0}'); A(f'v_lshl_add_u32 {vT0}, {vN}, 8, {vT0}'); A(f'v_add_u32 {aK[0]}, s58, {vT0}')
for ks in range(1, 4): A(f'v_xor_b32 {aK[ks]}, {64*ks}, {aK[0]}')
A(f'v_mul_u32_u24 {aQB}, {QS}, {vC}'); A(f'v_add3_u32 {aQB}, {aQB}, {vQ16}, {vZ}'); A(f'v_add_u32 {aQB}, {QL - FLG}, {aQB}')
A(f's_add_u32 s56, {w5}, {MLL}'); A(f'v_add_u32 {aMw}, s56, {vC8}')
A(f'v_lshl_add_u32 {aMr}, {vR}, 6, {vC8}'); A(f'v_add_u32 {aMr}, {MLL}, {aMr}')
A(f'v_lshl_add_u32 {vT0}, {vQ}, 2, {vR}'); A(f'v_and_b32 {vT1}, 7, {vT0}'); A(f'v_lshl_add_u32 {aV}, {vT0}, 8, {vC8}'); A(f'v_lshl_add_u32 {aV}, {vT1}, 5, {aV}')
A(f's_add_u32 s56, s58, {VV}'); A(f'v_add_u32 {aV}, s56, {aV}')
A(f'v_mul_u32_u24 {vT0}, {OS}, {vC}'); A(f'v_add_u32 {vT0}, {vT0}, {vQ16}'); A(f's_mul_i32 s56, {sWAVE}, {4*OS}'); A(f's_add_u32 s56, s56, {OL}'); A(f'v_lshl_add_u32 {aOw}, {vR}, 6, {vT0}'); A(f'v_add_u32 {aOw}, s56, {aOw}')
for k in range(4):
    A(f'v_cmp_eq_u32 vcc, {k}, {vR}'); A(f'v_cndmask_b32 {vMg[k]}, 0, -1, vcc')
A(f'v_mul_u32_u24 {aOr}, {8*OS}, {vR}'); A(f's_add_u32 s56, {w6}, {OL}'); A(f'v_add3_u32 {aOr}, {aOr}, {vT0}, s56')
A(f's_lshl_b32 s57, {sU}, 11'); A(f's_add_u32 s56, s57, {w6}'); A(f's_add_u32 s56, s56, {A_}')
A(f'v_lshl_add_u32 {aAst}, {vC}, 9, {vQ16}'); A(f'v_add_u32 {aAst}, s56, {aAst}')
A('s_barrier')
epoch_wait()
stamp(1)
A(f's_cmp_ge_u32 {sWAVE}, 4'); A('s_cbranch_scc0 L_A_main')
def mod_tile(base, nks, koff_expr, vSt, mark, mask, code, sleep, before_wait=None):
    vCc = V(4 * nks); vMa = V(4 * nks); vD = V(4); aM, aC = V(), V()
    A(f's_sub_u32 s56, {w8}, {1024 - CL}'); A(f'v_lshl_add_u32 {vT2}, {vL}, 2, s56'); koff_expr(); A(f'v_add_u32 {aC}, s56, {vQ16}')
    A(f's_sub_u32 s56, {w5}, {128 - base}'); A(f'v_lshl_add_u32 {aM}, {vQ}, 3, {vR}'); A(f'v_lshl_add_u32 {aM}, {aM}, 7, {vC8}'); A(f'v_add_u32 {aM}, s56, {aM}')
    A('s_waitcnt vmcnt(0)')
    A(f'v_lshlrev_b32 {vX[0]}, 16, {vXd}'); A(f'v_and_b32 {vX[1]}, {sHI}, {vXd}')
    silu_bf(vX[0], vX[0], vT0); silu_bf(vX[1], vX[1], vT1)
    A(f'v_cvt_pk_bf16_f32 {vXd}, {vX[0]}, {vX[1]}')
    A(f'ds_write_b32 {vT2}, {vXd}')
    for ks in range(nks): A(f'ds_read_b128 {vCc[4*ks:4*ks+4]}, {aC} offset:{64*ks}')
    if before_wait: before_wait()
    reads = [x for ks in range(nks) for x in (f'ds_read_b64_tr_b16 {vMa[4*ks:4*ks+2]}, {aM} offset:{4096*ks}', f'ds_read_b64_tr_b16 {vMa[4*ks+2:4*ks+4]}, {aM} offset:{4096*ks + 512}')]
    lds_wait(code, F_LP, mark, vT0, spec=reads, sleep=sleep)
    for ks in range(nks):
        A(f's_waitcnt lgkmcnt({2*(nks-1-ks)})')
        A(f'v_mfma_f32_16x16x32_bf16 {vD}, {vMa[4*ks:4*ks+4]}, {vCc[4*ks:4*ks+4]}, {0 if ks == 0 else vD}')
    for r in range(4): tagf(vD[r], vD[r], vTg)
    set_exec(mask); A(f'global_store_dwordx4 {vSt}, {vD}, {pWS} sc1')
m = V.mark()
vSt = V()
A(f's_lshl_b32 s56, {sU}, 3'); A(f's_add_u32 s56, s56, {sG}'); A('s_lshl_b32 s56, s56, 8'); A(f's_add_u32 s56, s56, {w6}'); A(f's_sub_u32 s56, s56, 256')
A('s_and_b32 s57, s56, 0xffffe000'); A('s_add_u32 s56, s56, s57'); A(f's_add_u32 s56, s56, {S_M}'); A(f'v_lshl_add_u32 {vSt}, {vN}, 13, {vQ16}'); A(f'v_add_u32 {vSt}, s56, {vSt}')
mod_tile(MM, 2, lambda: (A(f's_and_b32 s57, {sU}, 2'), A('s_lshl_b32 s57, s57, 6'), A('s_add_u32 s56, s56, s57')), vSt, MKA['M'], M_N2, 20, 0)
set_exec(1); A(f'ds_add_u32 {vZ}, {vOne} offset:{F_MP - FLG}'); set_exec(-1)
stamp(3)
V.release(m)
LAB('L_A_main')
mA = V.mark()
vK = V(32); vV = V(32); vQB = V(16); vS = V(8); vP = V(4); vML4 = V(4); vML = vML4[0:2]; vM = vML4[0]; vLs = vML4[1]
A(f's_add_u32 s57, {sWAVE}, {MKA["K0"]}')
lds_wait(5, F_LP, 's57', vT0, sleep=1)
for T in range(2):
    for ks in range(4): A(f'ds_read_b128 {vK[16*T+4*ks:16*T+4*ks+4]}, {aK[ks]} offset:{4096*T}')
stamp(7)
A(f's_add_u32 s58, {sWAVE}, {MKA["V0"]}')
def v_reads():
    for j in range(8):
        A(f'v_xor_b32 {vT0}, {32*j}, {aV}'); A(f'ds_read_b64_tr_b16 {vV[4*j:4*j+2]}, {vT0}'); A(f'ds_read_b64_tr_b16 {vV[4*j+2:4*j+4]}, {vT0} offset:4096')
        if j == 5: A('s_waitcnt lgkmcnt(8)')
sVOK = 's13'
A(f's_mov_b32 {sVOK}, 0')
lp, ok, nv = nl('W'), nl('OK'), nl('NV')
A(f's_mov_b32 {sCNT}, {CFG["limit"]}')
LAB(lp)
A(f'ds_read_b32 {vT1}, {vZ} offset:{F_Q - FLG}'); A(f'ds_read_b32 {vT2}, {vZ} offset:{F_LP - FLG}')
A('s_waitcnt lgkmcnt(0)')
A(f'v_readfirstlane_b32 {sTMP}, {vT1}'); A(f'v_readfirstlane_b32 s56, {vT2}')
A(f's_cmp_eq_u32 {sTMP}, 1'); A(f's_cbranch_scc1 {ok}')
A(f's_cmp_eq_u32 {sVOK}, 1'); A(f's_cbranch_scc1 {nv}')
A('s_cmp_ge_u32 s56, s58'); A(f's_cbranch_scc0 {nv}')
v_reads(); A(f's_mov_b32 {sVOK}, 1')
LAB(nv)
if CFG['qsl']: A(f's_sleep {CFG["qsl"]}')
fail_branch(7, lp)
LAB(ok)
for ks in range(4): A(f'ds_read_b128 {vQB[4*ks:4*ks+4]}, {aQB} offset:{64*ks}')
A(pure_read())
stamp(8)
for ks in range(4):
    A(f's_waitcnt lgkmcnt({4-ks})')
    for T in range(2): A(f'v_mfma_f32_16x16x32_bf16 {vS[4*T:4*T+4]}, {vK[16*T+4*ks:16*T+4*ks+4]}, {vQB[4*ks:4*ks+4]}, {0 if ks == 0 else vS[4*T:4*T+4]}')
A('s_waitcnt lgkmcnt(0)'); pure_update()
A('s_mov_b32 s56, 0x3db504f3')
for i in range(4): A(f'v_cvt_pk_bf16_f32 {vP[i]}, {vS[2*i]}, {vS[2*i+1]}')
for i in range(4):
    A(f'v_lshlrev_b32 {vS[2*i]}, 16, {vP[i]}'); A(f'v_and_b32 {vS[2*i+1]}, {sHI}, {vP[i]}')
for i in range(8): A(f'v_mul_f32 {vS[i]}, s56, {vS[i]}')
for i in range(4): A(f'v_cvt_pk_bf16_f32 {vP[i]}, {vS[2*i]}, {vS[2*i+1]}')
for i in range(4):
    A(f'v_lshlrev_b32 {vS[2*i]}, 16, {vP[i]}'); A(f'v_and_b32 {vS[2*i+1]}, {sHI}, {vP[i]}')
A(f'v_max3_f32 {vM}, {vS[0]}, {vS[1]}, {vS[2]}'); A(f'v_max3_f32 {vT0}, {vS[3]}, {vS[4]}, {vS[5]}'); A(f'v_max3_f32 {vM}, {vM}, {vS[6]}, {vS[7]}'); A(f'v_max_f32 {vM}, {vM}, {vT0}')
xrow_allred('v_max_f32', vM, vT0)
A(f'v_mul_f32 {vT1}, {sL2E}, {vM}')
for i in range(8): A(f'v_fma_f32 {vS[i]}, {vS[i]}, {sL2E}, -{vT1}')
for i in range(8): A(f'v_exp_f32 {vS[i]}, {vS[i]}')
for i in range(4): A(f'v_cvt_pk_bf16_f32 {vP[i]}, {vS[2*i]}, {vS[2*i+1]}')
vPm = vQB; vAcc = vK[0:8]
A(f'v_add_f32 {vLs}, {vS[0]}, {vS[1]}'); A(f'v_add_f32 {vT1}, {vS[2]}, {vS[3]}'); A(f'v_add_f32 {vT2}, {vS[4]}, {vS[5]}'); A(f'v_add_f32 {vT3}, {vS[6]}, {vS[7]}')
A(f'v_add_f32 {vLs}, {vLs}, {vT1}'); A(f'v_add_f32 {vT2}, {vT2}, {vT3}')
A(f'v_and_b32 {vPm[0]}, {vMg[0]}, {vP[0]}'); A(f'v_add_f32 {vLs}, {vLs}, {vT2}'); A(f'v_mov_b32 {vT0}, {vLs}')
A(f'v_and_b32 {vPm[1]}, {vMg[0]}, {vP[1]}'); A(f'v_and_b32 {vPm[2]}, {vMg[0]}, {vP[2]}')
A(f'v_permlane16_swap_b32 {vLs}, {vT0}'); A(f'v_add_f32 {vLs}, {vLs}, {vT0}'); A(f'v_mov_b32 {vT0}, {vLs}')
A(f'v_and_b32 {vPm[3]}, {vMg[0]}, {vP[3]}'); A(f's_cmp_eq_u32 {sVOK}, 1')
A(f'v_permlane32_swap_b32 {vLs}, {vT0}'); A(f'v_add_f32 {vLs}, {vLs}, {vT0}')
set_exec(0xf); A(f'ds_write_b64 {aMw}, {vML}'); set_exec(1); A(f'ds_add_u32 {vZ}, {vOne} offset:{F_SF - FLG}'); set_exec(-1)
vMc = vS[0:4]; vF1, vF2 = vS[4], vS[5]; vOa = vK[8:16]; vO = vP
def factors():
    A(f'v_max_f32 {vT0}, {vMc[0]}, {vMc[2]}'); row_allred('v_max_f32', [vT0], (4, 8))
    A(f'v_sub_f32 {vF1}, {vMc[0]}, {vT0}'); A(f'v_sub_f32 {vF2}, {vMc[2]}, {vT0}'); A(f'v_mul_f32 {vF1}, {sL2E}, {vF1}'); A(f'v_mul_f32 {vF2}, {sL2E}, {vF2}')
    A(f'v_exp_f32 {vF1}, {vF1}'); A(f'v_exp_f32 {vF2}, {vF2}')
def pv(counted):
    for k in range(4):
        if counted: A(f's_waitcnt lgkmcnt({min(15, 12 - 4*k + 2)})')
        A(f'v_mfma_f32_16x16x32_bf16 {vAcc[0:4]}, {vV[4*k:4*k+4]}, {vPm[4*k:4*k+4]}, {0 if k == 0 else vAcc[0:4]}')
        if k < 3 and not counted:
            for p in range(2): A(f'v_and_b32 {vPm[4*k+4+p]}, {vMg[k+1]}, {vP[p]}')
        if counted: A(f's_waitcnt lgkmcnt({12 - 4*k})')
        A(f'v_mfma_f32_16x16x32_bf16 {vAcc[4:8]}, {vV[16+4*k:20+4*k]}, {vPm[4*k:4*k+4]}, {0 if k == 0 else vAcc[4:8]}')
        if k < 3 and not counted:
            for p in range(2, 4): A(f'v_and_b32 {vPm[4*k+4+p]}, {vMg[k+1]}, {vP[p]}')
ml_read = f'ds_read2_b64 {vMc}, {aMr} offset0:0 offset1:4'
A(f's_cbranch_scc0 L_A_vlate')
stamp(9)
A(f'ds_read_b32 {vT1}, {vZ} offset:{F_SF - FLG}'); A(ml_read)
pv(False)
A('s_waitcnt lgkmcnt(0)')
A(f'v_readfirstlane_b32 {sVOK}, {vT1}')
A(f'ds_write_b128 {aOw}, {vAcc[0:4]}'); A(f'ds_write_b128 {aOw}, {vAcc[4:8]} offset:256')
factors()
LAB('L_A_pvdone')
A('s_waitcnt lgkmcnt(0)')
stamp(10)
A('s_barrier')
A(f'ds_read_b128 {vOa[0:4]}, {aOr}'); A(f'ds_read_b128 {vOa[4:8]}, {aOr} offset:{4*OS}')
sk = nl('S')
A(f's_cmp_eq_u32 {sVOK}, 8'); A(f's_cbranch_scc1 {sk}')
A(ml_read); A('s_waitcnt lgkmcnt(0)'); factors()
LAB(sk)
A('s_waitcnt lgkmcnt(0)')
for i in range(4): A(f'v_mul_f32 {vO[i]}, {vF1}, {vOa[i]}')
for i in range(4): A(f'v_fmac_f32 {vO[i]}, {vF2}, {vOa[4+i]}')
row_allred('v_add_f32', [vO[0], vO[1], vO[2], vO[3]], (4, 8))
for i in range(4): tagf(vO[i], vO[i], vTg)
set_exec(M_N4)
lstore([f'global_store_dwordx4 {aAst}, {vO}, {pLB}'])
set_exec(1); A(f'ds_add_u32 {vZ}, {vOne} offset:{F_AP - FLG}'); set_exec(-1)
stamp(11)
A(f's_cmp_ge_u32 {sWAVE}, 4'); A('s_cbranch_scc1 L_A_end')
V.release(mP)
aDst, aMV, aX2, aX2b, aGu, aDn, aCst, aCld, v8qr = [V() for _ in range(9)]
vMk = V(4, 1); vMd = V(4, 1)
A(f'v_lshl_add_u32 {v8qr}, {vQ}, 3, {vR}')
A(f's_and_b32 s54, {sU}, 7'); A(f's_lshl_b32 s58, {sWAVE}, 9')
A(f'v_lshl_add_u32 {vT0}, {vN}, 6, {vQ16}')
A(f's_lshl_b32 s57, {sU}, 11'); A(f's_add_u32 s57, s57, {B1}'); A('s_add_u32 s56, s57, s58'); A(f'v_add_u32 {aDst}, s56, {vT0}')
A(f's_lshl_b32 s56, {sU}, 10'); A(f's_add_u32 s56, s56, {w8}'); A(f's_add_u32 s56, s56, {A_}'); A(f'v_add_u32 {aCst}, s56, {vT0}')
A(f'v_lshlrev_b32 {vT0}, 4, {vR}'); A(f'v_and_b32 {vT1}, 2, {vL}'); A(f'v_lshl_add_u32 {vT0}, {vT1}, 2, {vT0}'); A(f'v_lshl_add_u32 {vT0}, {vQ}, 1, {vT0}'); A(f'v_and_b32 {vT1}, 1, {vL}'); A(f'v_add_u32 {vT0}, {vT0}, {vT1}')
A('s_lshl_b32 s56, s54, 8'); A(f'v_lshl_add_u32 {vT0}, {vT0}, 4, s56'); A(f'v_and_b32 {vT0}, 2047, {vT0}')
A(f'v_add_u32 {aX2}, {X2}, {vT0}'); A(f'v_add_u32 {aMV}, {MV}, {vT0}'); A(f'v_xor_b32 {vT0}, 1024, {vT0}'); A(f'v_add_u32 {aX2b}, {X2}, {vT0}')
A(f'v_and_b32 {vT0}, 1, {vQ}'); A(f'v_lshl_add_u32 {vT0}, {vT0}, 2, {vR}'); A(f'v_lshlrev_b32 {vT0}, 5, {vT0}'); A(f'v_add_u32 {vT1}, {w7}, {vC8}')
if CFG['gsw']: A(f'v_xor_b32 {vT1}, {vT1}, {vT0}')
A(f'v_lshl_add_u32 {aGu}, {v8qr}, 9, {vT1}'); A(f'v_add_u32 {aGu}, {GU}, {aGu}')
A(f'v_and_b32 {vT0}, 1, {vQ}'); A(f'v_lshl_add_u32 {vT0}, {vT0}, 3, {vR}'); A(f'v_lshl_add_u32 {aDn}, {vT0}, 10, {vC8}'); A(f'v_lshrrev_b32 {vT1}, 1, {vQ}'); A(f'v_lshl_add_u32 {aDn}, {vT1}, 5, {aDn}')
A(f's_add_u32 s56, {w8}, {DN}'); A(f'v_add_u32 {aDn}, s56, {aDn}')
if CFG['gsw']:
    A(f'v_and_b32 {vT0}, 1, {vQ}'); A(f'v_lshl_add_u32 {vT0}, {vR}, 1, {vT0}'); A(f'v_lshlrev_b32 {vT0}, 5, {vT0}'); A(f'v_xor_b32 {aDn}, {aDn}, {vT0}')
A(f'v_bfe_u32 {vT0}, {vL}, 2, 1'); A(f'v_lshrrev_b32 {aCld}, 3, {vL}'); A(f'v_lshl_add_u32 {aCld}, {vT0}, 3, {aCld}'); A(f'v_lshlrev_b32 {aCld}, 10, {aCld}')
A(f'v_lshl_add_u32 {aCld}, {vC}, 4, {aCld}'); A(f's_lshl_b32 s56, {sU}, 6'); A(f's_add_u32 s56, s56, {A_}'); A(f'v_add_u32 {aCld}, s56, {aCld}')
for j in range(4):
    A(f'v_cmp_eq_u32 vcc, {j}, {vN}'); A(f'v_cndmask_b32 {vMk[j]}, 0, -1, vcc')
for jj in range(4):
    if jj: A(f'v_add_u32 {vT1}, 2, {vT1}')
    A(f'v_cmp_eq_u32 vcc, {vT1}, {vN}'); A(f'v_cndmask_b32 {vMd[jj]}, 0, -1, vcc')
A(f's_mov_b32 {sCM}, {M_N4 & 0xffffffff:#x}'); A(f's_cmp_eq_u32 {sWAVE}, 3'); A(f's_cselect_b32 {sCM}, {M_N2 & 0xffffffff:#x}, {sCM}')
vGu = V(32); vDn = V(16); vSB = V(4); vT1v = V(4); vXs = [V(8) for _ in range(CFG['LK'])]; vXr = vXs[0]; vXx = V(8); vHp = V(2); vBm = V(8); vD = V(4); vSum, vSq = V(), V()
A(f'global_load_dword {vDUM}, {aX2}, {pLB} sc1'); A(f'global_load_dword {vDUM}, {aX2b}, {pLB} sc1')
poll(13, [f'global_load_dwordx4 {vXr[0:4]}, {aMV}, {pLB} sc1', f'global_load_dwordx4 {vXr[4:8]}, {aMV}, {pLB} offset:2048 sc1'], [vXr[i] for i in range(8)], [vSB[i] for i in range(4)] + [vT1v[i] for i in range(4)], sT16, 0xffff, vCH, sleep=1)
stamp(5)
lds_wait(15, F_LP, MKA['GU'], vT0, sleep=1)
for j in range(4):
    A(f'v_xor_b32 {vT1}, {32*j}, {aGu}')
    for ks in range(2):
        r = vGu[8*j+4*ks:8*j+4*ks+4]
        A(f'ds_read_b64_tr_b16 {r[0:2]}, {vT1} offset:{16384*ks}'); A(f'ds_read_b64_tr_b16 {r[2:4]}, {vT1} offset:{16384*ks + 2048}')
    if j == 1: A('s_waitcnt lgkmcnt(4)')
lds_wait(16, F_LP, MKA['DN'], vT0)
for jj in range(4):
    A(f'v_xor_b32 {vT1}, {64*jj}, {aDn}'); A(f'ds_read_b64_tr_b16 {vDn[4*jj:4*jj+2]}, {vT1}'); A(f'ds_read_b64_tr_b16 {vDn[4*jj+2:4*jj+4]}, {vT1} offset:4096')
A('s_waitcnt lgkmcnt(0)')
stamp(6)
ppoll(17, CFG['LK'], CFG['lgap'], lambda r: [f'global_load_dwordx4 {r[0:4]}, {aX2}, {pLB} sc1', f'global_load_dwordx4 {r[4:8]}, {aX2b}, {pLB} sc1'], 2, vXs, [vXx[i] for i in range(8)], sT16, 0xffff)
stamp(12)
A(f'v_add_f32 {vSum}, {vXx[0]}, {vXx[1]}'); A(f'v_mul_f32 {vSq}, {vXx[0]}, {vXx[0]}')
A(f'v_add_f32 {vT0}, {vXx[2]}, {vXx[3]}'); A(f'v_mul_f32 {vT1}, {vXx[1]}, {vXx[1]}')
for i in range(2, 8): A(f'v_fmac_f32 {vSq if i % 2 == 0 else vT1}, {vXx[i]}, {vXx[i]}')
A(f'v_add_f32 {vT2}, {vXx[4]}, {vXx[5]}'); A(f'v_add_f32 {vT3}, {vXx[6]}, {vXx[7]}'); A(f'v_add_f32 {vSum}, {vSum}, {vT0}'); A(f'v_add_f32 {vT2}, {vT2}, {vT3}')
A(f'v_add_f32 {vSq}, {vSq}, {vT1}'); A(f'v_add_f32 {vSum}, {vSum}, {vT2}')
A(f'v_permlane32_swap_b32 {vSum}, {vSq}'); A(f'v_add_f32 {vSum}, {vSum}, {vSq}')
A(f'v_mov_b32 {vSq}, {vSum}'); A(f'v_permlane16_swap_b32 {vSum}, {vSq}'); A(f'v_add_f32 {vSum}, {vSum}, {vSq}')
row_allred('v_add_f32', [vSum])
A(f'v_mul_f32 {vSum}, 0x3b000000, {vSum}')
A(f'v_mov_b32 {vSq}, {vSum}'); A(f'v_permlane32_swap_b32 {vSum}, {vSq}')
A(f'v_fma_f32 {vSq}, -{vSum}, {vSum}, {vSq}'); A(f'v_max_f32 {vSq}, 0, {vSq}'); A(f'v_add_f32 {vSq}, 0x3727c5ac, {vSq}'); A(f'v_rsq_f32 {vSq}, {vSq}')
for i in range(4): A(f'v_sub_f32 {vXx[i]}, {vXx[i]}, {vSum}')
for i in range(4): A(f'v_mul_f32 {vT1v[i]}, {vSq}, {vT1v[i]}')
for i in range(4): A(f'v_fma_f32 {vXx[i]}, {vXx[i]}, {vT1v[i]}, {vSB[i]}')
for i in range(2): A(f'v_cvt_pk_bf16_f32 {vHp[i]}, {vXx[2*i]}, {vXx[2*i+1]}')
k = 0
sk = nl('S')
for j in range(4):
    if j == 2: A(f's_cmp_eq_u32 {sWAVE}, 3'); A(f's_cbranch_scc1 {sk}')
    for ks in range(2):
        b = vBm[4*(k & 1):4*(k & 1)+4]
        for p in range(4): dpp('v_and_b32', b[p], vHp[p & 1], vMk[j], f'row_newbcast:{2*ks + (p >> 1)}')
        A(f'v_mfma_f32_16x16x32_bf16 {vD}, {vGu[8*j+4*ks:8*j+4*ks+4]}, {b}, {0 if k == 0 else vD}'); k += 1
LAB(sk)
for r in range(4): tagf(vD[r], vD[r], vTgb)
A(f's_mov_b32 exec_lo, {sCM}'); A(f's_mov_b32 exec_hi, {sCM}')
lstore([f'global_store_dwordx4 {aCst}, {vD}, {pLB}'])
set_exec(-1)
stamp(13)
vG = vXx
A(f's_cmp_ge_u32 {sU}, 14'); A('s_cbranch_scc1 L_A_zero')
if CFG['LK'] > 1: A('s_waitcnt vmcnt(1)')
ppoll(18, CFG['LK'], CFG['lgap'], lambda r: [f'global_load_dwordx4 {r}, {aCld}, {pLB} sc1'], 1, [r[0:4] for r in vXs], [vG[i] for i in range(4)], sT6b, TM)
tred4(vG)
dpp('v_add_f32', vG[0], vG[0], vG[0], 'row_ror:8')
rnd(vG[0], vG[0])
A(f'v_mul_f32 {vT0}, {sL2E}, {vG[0]}'); A(f'v_exp_f32 {vT0}, -{vT0}'); A(f'v_add_f32 {vT0}, 1.0, {vT0}'); A(f'v_rcp_f32 {vT0}, {vT0}'); rnd(vT0, vT0)
dpp('v_mul_f32', vT0, vG[0], vT0, 'row_ror:12')
A(f'v_mov_b32 {vT1}, {vT0}'); A(f'v_permlane32_swap_b32 {vT0}, {vT1}'); A(f'v_cvt_pk_bf16_f32 {vT0}, {vT0}, {vT1}')
A(f'v_mov_b32 {vT1}, {vT0}'); A(f'v_permlane16_swap_b32 {vT0}, {vT1}')
vHh = vSB
for rowm, q0 in ((0x5, 0), (0xa, 2)):
    dpp('v_mov_b32', vHh[0], vT0, None, f'row_newbcast:{q0}', row=rowm); dpp('v_mov_b32', vHh[1], vT1, None, f'row_newbcast:{q0}', row=rowm)
    dpp('v_mov_b32', vHh[2], vT0, None, f'row_newbcast:{q0+1}', row=rowm); dpp('v_mov_b32', vHh[3], vT1, None, f'row_newbcast:{q0+1}', row=rowm)
for jj in range(4):
    b = vBm[4*(jj & 1):4*(jj & 1)+4]
    for p in range(4): A(f'v_and_b32 {b[p]}, {vMd[jj]}, {vHh[p]}')
    A(f'v_mfma_f32_16x16x32_bf16 {vD}, {vDn[4*jj:4*jj+4]}, {b}, {0 if jj == 0 else vD}')
for r in range(4): tagf(vD[r], vD[r], vTgb)
LAB('L_A_pub')
set_exec(M_N8)
lstore([f'global_store_dwordx4 {aDst}, {vD}, {pLB}'])
set_exec(-1)
stamp(14)
LAB('L_A_end')
end_wave()
LAB('L_A_zero')
for r in range(4): A(f'v_mov_b32 {vD[r]}, {vTgb}')
A('s_branch L_A_pub')
LAB('L_A_vlate')
for k in range(1, 4):
    for p in range(4): A(f'v_and_b32 {vPm[4*k+p]}, {vMg[k]}, {vP[p]}')
lp, ok, nf = nl('W'), nl('OK'), nl('NF')
A(f's_mov_b32 {sCNT}, {CFG["limit"]}')
LAB(lp)
A(f'ds_read_b32 {vT2}, {vZ} offset:{F_LP - FLG}'); A(f'ds_read_b32 {vT1}, {vZ} offset:{F_SF - FLG}'); A(ml_read)
A('s_waitcnt lgkmcnt(0)')
A(f'v_readfirstlane_b32 {sTMP}, {vT2}'); A(f'v_readfirstlane_b32 {sVOK}, {vT1}')
A(f's_cmp_ge_u32 {sTMP}, s58'); A(f's_cbranch_scc1 {ok}')
fail_branch(9, lp)
LAB(ok)
for k in range(4):
    for j in (k, 4 + k):
        A(f'v_xor_b32 {vT0}, {32*j}, {aV}'); A(f'ds_read_b64_tr_b16 {vV[4*j:4*j+2]}, {vT0}'); A(f'ds_read_b64_tr_b16 {vV[4*j+2:4*j+4]}, {vT0} offset:4096')
    if k == 2: factors(); A('s_waitcnt lgkmcnt(10)')
stamp(9)
pv(True)
A(f'ds_write_b128 {aOw}, {vAcc[0:4]}'); A(f'ds_write_b128 {aOw}, {vAcc[4:8]} offset:256')
A('s_branch L_A_pvdone')
vg_A = V.hi
LAB('L_A9')
V.release(mP)
aQld, aQw = V(), V(); vQs = [V(16) for _ in range(CFG['QK'])]; vQx = V(16); vQp = V(4)
A(f'v_lshlrev_b32 {aQld}, 4, {vL}'); A(f'v_add_u32 {aQld}, {Q_}, {aQld}')
A(f'v_lshrrev_b32 {vT0}, 5, {vL}'); A(f'v_mul_u32_u24 {vT0}, {QS}, {vT0}'); A(f'v_and_b32 {vT1}, 31, {vL}'); A(f'v_lshl_add_u32 {aQw}, {vT1}, 3, {vT0}'); A(f'v_add_u32 {aQw}, {QL}, {aQw}')
A('s_barrier')
epoch_wait()
pure_phase()
lds_wait(37, F_LP, MKA['K0'] + CFG['qstart'], vT0, sleep=1)
stamp(7)
ppoll(6, CFG['QK'], CFG['qgap'], lambda r: [f'global_load_dwordx4 {r[4*k:4*k+4]}, {aQld}, {pLB} offset:{1024*k} sc1' for k in range(4)], 4, vQs, [vQx[i] for i in range(16)], sT6, TM)
for i in range(8): A(f'v_add_f32 {vQx[i]}, {vQx[i]}, {vQx[8+i]}')
for i in range(4): A(f'v_cvt_pk_bf16_f32 {vQp[i]}, {vQx[2*i]}, {vQx[2*i+1]}')
A(f'ds_write_b64 {aQw}, {vQp[0:2]}'); A(f'ds_write_b64 {aQw}, {vQp[2:4]} offset:{2*QS}'); flag(F_Q)
stamp(8)
vFl = vQx[0:8]; vMc = vQx[8:12]; vML4 = vQx[12:16]; vF1, vF2 = vQp[0], vQp[1]
A(f'v_lshl_add_u32 {vT3}, {vR}, 6, {vC8}'); A(f'v_add_u32 {vT3}, {MLL}, {vT3}')
A(f's_lshl_b32 s56, {sU}, 6'); A(f's_add_u32 s56, s56, {MLG}'); A(f'v_lshl_add_u32 {vT2}, {vL}, 4, s56')
A(f'v_mov_b32 {vML4[2]}, {sE}'); A(f'v_mov_b32 {vML4[3]}, {sE}')
if CFG['mlb']: A('s_waitcnt lgkmcnt(0)'); A('s_barrier')
else: lds_wait(39, F_SF, 8, vT0)
A(f'ds_read2_b64 {vMc}, {vT3} offset0:0 offset1:4'); A(pure_read())
A('s_waitcnt lgkmcnt(0)'); pure_update()
A(f'v_max_f32 {vML4[0]}, {vMc[0]}, {vMc[2]}'); row_allred('v_max_f32', [vML4[0]], (4, 8))
A(f'v_sub_f32 {vF1}, {vMc[0]}, {vML4[0]}'); A(f'v_sub_f32 {vF2}, {vMc[2]}, {vML4[0]}'); A(f'v_mul_f32 {vF1}, {sL2E}, {vF1}'); A(f'v_mul_f32 {vF2}, {sL2E}, {vF2}')
A(f'v_exp_f32 {vF1}, {vF1}'); A(f'v_exp_f32 {vF2}, {vF2}')
A(f'v_mul_f32 {vML4[1]}, {vF1}, {vMc[1]}'); A(f'v_fmac_f32 {vML4[1]}, {vF2}, {vMc[3]}'); row_allred('v_add_f32', [vML4[1]], (4, 8))
tagf(vML4[0], vML4[0], vTg); tagf(vML4[1], vML4[1], vTg)
set_exec(0xf)
lstore([f'global_store_dwordx4 {vT2}, {vML4}, {pLB}'])
set_exec(-1)
stamp(9)
end_wave()
vg_A = max(vg_A, V.hi)

LAB('L_W')
V.release(mP)
sRED = 's13'
A(f's_mov_b32 {sRED}, 0')
A(f's_cmp_eq_u32 {sWAVE}, 9'); A('s_cbranch_scc1 L_W9')
aWq, aH, aHw, aHr, aQst, aWo, aBst, aOb, v8qr, vXc = [V() for _ in range(10)]
vMk = V(4, 1)
A(f'v_lshl_add_u32 {v8qr}, {vQ}, 3, {vR}')
A(f's_and_b32 s54, {sU}, 7'); A(f's_lshr_b32 s55, {sU}, 3')
A(f'v_lshl_add_u32 {aWq}, {v8qr}, 7, {vC8}'); A(f'v_add_u32 {aWq}, {w5}, {aWq}')
A('s_lshl_b32 s56, s55, 10'); A(f'v_lshl_add_u32 {aH}, {vL}, 4, s56')
A(f's_lshl_b32 s58, {sWAVE}, 9'); A(f's_add_u32 s56, s58, {HL}'); A(f'v_lshl_add_u32 {aHw}, {vL}, 3, s56'); A(f'v_add_u32 {aHr}, s56, {vQ16}')
A('s_lshl_b32 s56, s55, 11'); A('s_lshl_b32 s57, s54, 8'); A('s_add_u32 s56, s56, s57'); A(f's_add_u32 s56, s56, {w6}'); A(f's_add_u32 s56, s56, {Q_}'); A(f'v_add_u32 {aQst}, s56, {vQ16}')
A(f'v_and_b32 {vT0}, 1, {vQ}'); A(f'v_lshl_add_u32 {vT0}, {vT0}, 2, {vR}'); A(f'v_lshlrev_b32 {vT0}, 5, {vT0}')
A(f'v_add_u32 {vT1}, {w7}, {vC8}'); A(f'v_xor_b32 {vT1}, {vT1}, {vT0}'); A(f'v_lshl_add_u32 {aWo}, {v8qr}, 10, {vT1}'); A(f'v_add_u32 {aWo}, {WO}, {aWo}')
A(f'v_add_u32 {aOb}, {OB}, {vQ16}')
A(f'v_lshl_add_u32 {vT0}, {vN}, 6, {vQ16}')
A(f's_lshl_b32 s57, {sU}, 11'); A(f's_add_u32 s57, s57, {B1}'); A(f's_add_u32 s56, s57, {w8}'); A(f'v_add_u32 {aBst}, s56, {vT0}')
for j in range(4):
    A(f'v_cmp_eq_u32 vcc, {j}, {vN}'); A(f'v_cndmask_b32 {vMk[j]}, 0, -1, vcc')
A('s_barrier')
epoch_wait()
stamp(1)
def probe():
    if CFG['near']:
        sk = nl('S')
        A(f's_cmp_eq_u32 {sWAVE}, 7'); A(f's_cbranch_scc0 {sk}')
        A(f's_lshl_b32 s56, {sU}, 3'); A(f's_add_u32 s56, s56, {sG}'); A('s_lshl_b32 s56, s56, 7'); A('s_and_b32 s57, s56, 0x2000'); A('s_add_u32 s56, s56, s57'); A(f's_add_u32 s56, s56, {PROBE}')
        A(f's_add_u32 s56, {lo(pWS)}, s56'); A(f's_addc_u32 s57, {hi(pWS)}, 0')
        A('s_mov_b32 s52, -1'); A('s_mov_b32 s53, -1')
        for rep in range(CFG['near']):
            for c in range(2):
                A('s_memtime s[84:85]'); A('s_waitcnt lgkmcnt(0)')
                A(f's_load_dword s54, s[56:57], {8192*c} glc'); A('s_waitcnt lgkmcnt(0)')
                A('s_memtime s[86:87]'); A('s_waitcnt lgkmcnt(0)')
                A('s_sub_u32 s54, s86, s84'); A(f's_min_u32 s{52+c}, s{52+c}, s54')
            A('s_cmp_lt_u32 s52, s53'); A('s_cselect_b32 s54, 1, 2'); A(f'v_mov_b32 {vT0}, s54'); A(f'ds_write_b32 {vZ}, {vT0} offset:{F_CP - FLG}')
        if CFG['stamps']: A('s_mov_b32 s88, s52'); A('s_mov_b32 s90, s53')
        stamp(2)
        LAB(sk)
A(f's_cmp_ge_u32 {sWAVE}, 4'); A('s_cbranch_scc0 L_W_03')
m = V.mark()
vSt = V()
A(f's_lshl_b32 s56, {sU}, 3'); A(f's_add_u32 s56, s56, {sG}'); A('s_lshl_b32 s56, s56, 8'); A(f's_add_u32 s56, s56, {w6}'); A(f's_add_u32 s56, s56, {S_MR - 256}'); A(f'v_add_u32 {vSt}, s56, {vQ16}')
mod_tile(MR, 4, lambda: None, vSt, MKW['MR'], M_N0, 21, 2, before_wait=probe)
set_exec(-1)
stamp(4)
A('s_branch L_W_att')
V.release(m)
LAB('L_W_03')
A(f's_sub_u32 s57, {sWAVE}, 1'); A('s_cmp_lt_u32 s57, 2'); A('s_cbranch_scc0 L_W_main')
A(f's_mov_b32 {sRED}, 1')
m = V.mark()
vWq = V(32); mH = V.mark()
vMean, vVar, vAd, vAd2, vHs = V(), V(), V(), V(), V(); vU = V(8); vRs = [V(4) for _ in range(CFG['G1K'])]; vSa, vCa = vU[0], vU[1]
A(f's_lshl_b32 {sSL}, {sU}, 1'); A(f's_add_u32 {sSL}, {sSL}, s57')
A(f's_lshl_b32 s56, {sSL}, 6'); A(f'v_lshl_add_u32 {vHs}, {vN}, 2, s56')
A(f's_and_b32 s56, {sSL}, 3'); A('s_lshl_b32 s56, s56, 6'); A(f's_lshr_b32 s57, {sSL}, 2'); A('s_lshl_b32 s57, s57, 8'); A('s_add_u32 s56, s56, s57'); A(f's_add_u32 s56, s56, {S_M}')
A(f'v_lshlrev_b32 {vT0}, 12, {vQ}'); A(f'v_and_b32 {vT1}, 0x2000, {vT0}'); A(f'v_add_u32 {vT0}, {vT0}, {vT1}'); A(f'v_lshlrev_b32 {vT1}, 2, {vN}'); A(f'v_add3_u32 {vAd}, {vT0}, {vT1}, s56'); A(f'v_add_u32 {vAd2}, 32768, {vAd}')
A('s_waitcnt vmcnt(0)')
for j in range(4):
    A(f'v_lshlrev_b32 {vU[2*j]}, 16, {vX[j]}'); A(f'v_and_b32 {vU[2*j+1]}, {sHI}, {vX[j]}')
A(f'v_add_f32 {vMean}, {vU[0]}, {vU[1]}')
for j in range(2, 8): A(f'v_add_f32 {vMean}, {vMean}, {vU[j]}')
row_allred('v_add_f32', [vMean]); xrow_allred('v_add_f32', vMean, vT0)
A(f'v_mul_f32 {vMean}, 0x3b000000, {vMean}')
for j in range(8): A(f'v_sub_f32 {vU[j]}, {vU[j]}, {vMean}')
A(f'v_mul_f32 {vVar}, {vU[0]}, {vU[0]}')
for j in range(1, 8): A(f'v_fmac_f32 {vVar}, {vU[j]}, {vU[j]}')
row_allred('v_add_f32', [vVar]); xrow_allred('v_add_f32', vVar, vT0)
A(f'v_mul_f32 {vVar}, 0x3b000000, {vVar}')
rnd(vMean, vMean); rnd(vVar, vVar)
A(f'v_add_f32 {vVar}, 0x3727c5ac, {vVar}'); rnd(vVar, vVar)
A(f'v_sqrt_f32 {vVar}, {vVar}'); rnd(vVar, vVar)
A(f'v_lshlrev_b32 {vXc}, 16, {vXd}'); A(f'v_sub_f32 {vXd}, {vXc}, {vMean}'); rnd(vXd, vXd)
A(f'v_rcp_f32 {vT0}, {vVar}'); A(f'v_mul_f32 {vT1}, {vXd}, {vT0}'); A(f'v_fma_f32 {vT2}, -{vT1}, {vVar}, {vXd}'); A(f'v_fma_f32 {vXd}, {vT2}, {vT0}, {vT1}')
rnd(vXd, vXd)
stamp(2)
mQ = V.mark()
def wq_read(vWq):
    lds_wait(3, F_LP, MKW['WQ'], vT0)
    for ks in range(8):
        A(f'ds_read_b64_tr_b16 {vWq[4*ks:4*ks+2]}, {aWq} offset:{WQ + ks*4096}'); A(f'ds_read_b64_tr_b16 {vWq[4*ks+2:4*ks+4]}, {aWq} offset:{WQ + ks*4096 + 512}')
        if ks == 3: A('s_waitcnt lgkmcnt(4)')
wq_read(vWq)
near_update(); A(f'v_add_u32 {vAd}, {sCP}, {vAd}'); A(f'v_add_u32 {vAd2}, {sCP}, {vAd2}')
ppoll(1, CFG['G1K'], CFG['ggap'], lambda r: [gld(r[0], vAd, 0, 'gat1'), gld(r[1], vAd, 2048, 'gat1'), gld(r[2], vAd2, 0, 'gat1'), gld(r[3], vAd2, 2048, 'gat1')], 4, vRs, [vU[i] for i in range(4)], sT6, TM, extra=[pure_read()])
stamp(3)
A(f'v_add_f32 {vSa}, {vSa}, {vU[2]}'); A(f'v_add_f32 {vCa}, {vCa}, {vU[3]}')
A(f'v_permlane32_swap_b32 {vSa}, {vCa}'); A(f'v_add_f32 {vSa}, {vSa}, {vCa}')
A(f'v_mov_b32 {vCa}, {vSa}'); A(f'v_permlane16_swap_b32 {vSa}, {vCa}'); A(f'v_add_f32 {vSa}, {vSa}, {vCa}')
rnd(vSa, vSa)
A(f'v_mov_b32 {vCa}, {vSa}'); A(f'v_permlane32_swap_b32 {vSa}, {vCa}')
A(f'v_add_f32 {vCa}, 1.0, {vCa}'); rnd(vCa, vCa)
A(f'v_mul_f32 {vCa}, {vXd}, {vCa}'); rnd(vCa, vCa)
A(f'v_add_f32 {vCa}, {vCa}, {vSa}'); rnd(vCa, vCa)
A(f'v_or_b32 {vCa}, {sT16}, {vCa}')
A('s_waitcnt lgkmcnt(0)'); pure_update()
set_exec(0xffff)
lstore([f'global_store_dword {vHs}, {vCa}, {pLB} offset:{H_}'])
set_exec(-1)
flag(F_G1)
A('s_branch L_W_q')
LAB('L_W_main')
A(f'global_load_dword {vDUM}, {aH}, {pLB} sc1')
wq_read(vWq)
stamp(4)
lds_wait(30, F_G1, 1, vT0, sleep=1)
LAB('L_W_q')
V.release(mH)
vHB = V(32); vAq = V(4); vHs2 = [V(4) for _ in range(CFG['LK'])]; vHx = V(4); vHp = V(2)
ppoll(4, CFG['LK'], CFG['lgap'], lambda r: [f'global_load_dwordx4 {r}, {aH}, {pLB} offset:{H_} sc1'], 1, vHs2, [vHx[i] for i in range(4)], sT16, 0xffff, extra=[pure_read()])
stamp(5)
A(f'v_perm_b32 {vHp[0]}, {vHx[1]}, {vHx[0]}, {sSEL}'); A(f'v_perm_b32 {vHp[1]}, {vHx[3]}, {vHx[2]}, {sSEL}')
A(f'ds_write_b64 {aHw}, {vHp}')
for ks in range(8): A(f'ds_read_b128 {vHB[4*ks:4*ks+4]}, {aHr} offset:{64*ks}')
for ks in range(8):
    A(f's_waitcnt lgkmcnt({7-ks})')
    if ks == 0: pure_update()
    A(f'v_mfma_f32_16x16x32_bf16 {vAq}, {vWq[4*ks:4*ks+4]}, {vHB[4*ks:4*ks+4]}, {0 if ks == 0 else vAq}')
for r in range(4): tagf(vAq[r], vAq[r], vTg)
set_exec(M_N0)
lstore([f'global_store_dwordx4 {aQst}, {vAq}, {pLB}'])
set_exec(-1)
flag(F_QP)
stamp(6)
A('s_waitcnt vmcnt(0)')
V.release(m)
A(f's_cmp_eq_u32 {sRED}, 1'); A('s_cbranch_scc0 L_W_att')
vRs = [V(4) for _ in range(4)]; vRx = V(4); vG2s, vG2l, vX2s, vOut, aR1, aGa, vMod, vGb, vMVs = [V() for _ in range(9)]; vG4 = V(4)
A(f's_lshl_b32 s57, {sSL}, 5'); A(f'v_lshl_add_u32 {vOut}, {vN}, 1, s57')
A(f'v_lshrrev_b32 {vT2}, 5, {vL}'); A(f'v_lshl_add_u32 {vG2s}, {vC}, 2, {vT2}'); A(f'v_and_b32 {vT2}, 1, {vQ}'); A(f'v_lshl_add_u32 {vG2s}, {vT2}, 1, {vG2s}')
vG3s, vG3l = V(), V()
A(f's_lshl_b32 s56, {sSL}, 10'); A('s_and_b32 s57, s56, 0xffffe000'); A('s_add_u32 s56, s56, s57')
A(f's_lshl_b32 s57, {sG}, 7'); A('s_add_u32 s57, s57, s56'); A(f'v_lshl_add_u32 {vG2s}, {vG2s}, 2, s57')
A(f'v_lshlrev_b32 {vG2l}, 7, {vQ}'); A(f'v_lshl_add_u32 {vG2l}, {vN}, 2, {vG2l}'); A(f'v_add_u32 {vG2l}, s56, {vG2l}')
A(f'v_and_b32 {vT2}, 1, {vR}'); A(f'v_lshl_add_u32 {vG2s}, {vT2}, 13, {vG2s}'); A(f'v_add_u32 {vG2s}, {G2}, {vG2s}')
A(f'v_add_u32 {vG3s}, {G3 - G2}, {vG2s}')
A(f's_lshl_b32 s56, {sSL}, 6'); A(f's_add_u32 s57, s56, {X2}'); A(f'v_lshl_add_u32 {vX2s}, {vN}, 2, s57')
if CFG['gpt'] == 1:
    set_exec(M_N8); A(f'global_load_dword {vDUM}, {vG2s}, {pWS}'); A(f'global_load_dword {vDUM}, {vG3s}, {pWS}'); set_exec(-1)
if CFG['gpt'] == 2:
    A(f'v_not_b32 {vT0}, {vTg}'); set_exec(M_N8); A(f'global_store_dword {vG2s}, {vT0}, {pWS} sc1'); A(f'global_store_dword {vG3s}, {vT0}, {pWS} sc1'); set_exec(-1)
A(f'v_lshrrev_b32 {vT2}, 2, {vL}'); A(f'v_lshlrev_b32 {aR1}, 11, {vT2}'); A(f'v_lshl_add_u32 {aR1}, {vC}, 4, {aR1}')
A(f's_lshl_b32 s56, {sSL}, 6'); A(f's_add_u32 s57, s56, {B1}'); A(f'v_add_u32 {aR1}, s57, {aR1}')
A(f's_add_u32 s57, s56, {MV - 2048}'); A(f'v_lshlrev_b32 {vMVs}, 11, {vQ}'); A(f'v_lshl_add_u32 {vMVs}, {vN}, 2, {vMVs}'); A(f'v_add_u32 {vMVs}, s57, {vMVs}')
A(f's_lshr_b32 s56, {sSL}, 2'); A('s_lshl_b32 s56, s56, 8'); A(f's_and_b32 s57, {sSL}, 3'); A('s_lshl_b32 s57, s57, 6'); A('s_add_u32 s56, s56, s57'); A(f's_add_u32 s56, s56, {S_MR}')
A(f'v_lshlrev_b32 {aGa}, 11, {vQ}'); A(f'v_lshl_add_u32 {aGa}, {vN}, 2, {aGa}'); A(f'v_add_u32 {aGa}, s56, {aGa}')
A(f'global_load_dword {vDUM}, {aR1}, {pLB} sc1')
def ga_issue():
    for i in range(4):
        if i: A(f'v_add_u32 {vT0}, {8192*i}, {aGa}')
        A(f'global_load_dword {vG4[i]}, {vT0 if i else aGa}, {pWS} sc1')
lds_wait(46, F_GO if CFG['mrg'] else F_WI, 1, vT0, sleep=1)
lp, ok = nl('P'), nl('OK')
A(f's_mov_b32 {sCNT}, {CFG["limit"]}')
LAB(lp); ga_issue()
A('s_waitcnt vmcnt(0)')
check([vG4[i] for i in range(4)], [vRx[i] for i in range(4)], sT6, TM, vCH)
A(f's_cbranch_vccz {ok}'); fail_branch(22, lp); LAB(ok)
for a, b in ((0, 1), (2, 3), (0, 2)): A(f'v_add_f32 {vRx[a]}, {vRx[a]}, {vRx[b]}')
rnd(vMod, vRx[0])
A(f'v_add_f32 {vT0}, 1.0, {vMod}'); rnd(vT0, vT0)
A(f'v_cmp_eq_u32 vcc, 2, {vQ}'); A(f'v_cndmask_b32 {vT0}, {vMod}, {vT0}, vcc'); A(f'v_or_b32 {vT0}, {sT16}, {vT0}')
set_exec(0x0000ffffffff0000)
lstore([f'global_store_dword {vMVs}, {vT0}, {pLB}'])
set_exec(-1)
A(f'v_mov_b32 {vGb}, {vMod}'); A(f'v_mov_b32 {vT1}, {vMod}'); A(f'v_permlane16_swap_b32 {vT1}, {vGb}'); A(f'v_mov_b32 {vT1}, {vGb}'); A(f'v_permlane32_swap_b32 {vT1}, {vGb}')
near_update()
A(f's_add_u32 s57, {sCP}, {G2}'); A(f'v_add_u32 {vG2l}, s57, {vG2l}'); A(f'v_add_u32 {vG3l}, {G3 - G2}, {vG2l}')
stamp(11)
LAB('L_W_att')
vWo = V(16); vOb = V(4); vBm = V(8); vD = V(4)
lds_wait(11, F_LP, MKW['WO'], vT0, sleep=1)
for j in range(4):
    A(f'v_xor_b32 {vT0}, {32*j}, {aWo}'); A(f'ds_read_b64_tr_b16 {vWo[4*j:4*j+2]}, {vT0}'); A(f'ds_read_b64_tr_b16 {vWo[4*j+2:4*j+4]}, {vT0} offset:4096')
A(pure_read())
A('s_waitcnt lgkmcnt(0)'); pure_update()
stamp(7)
A('s_barrier')
A(f'ds_read_b128 {vOb}, {aOb}')
A('s_waitcnt lgkmcnt(0)')
for j in range(4):
    b = vBm[4*(j & 1):4*(j & 1)+4]
    for p in range(4): A(f'v_and_b32 {b[p]}, {vMk[j]}, {vOb[p]}')
    A(f'v_mfma_f32_16x16x32_bf16 {vD}, {vWo[4*j:4*j+4]}, {b}, {0 if j == 0 else vD}')
for r in range(4): tagf(vD[r], vD[r], vTg)
set_exec(M_N4)
lstore([f'global_store_dwordx4 {aBst}, {vD}, {pLB}'])
set_exec(-1)
stamp(10)
A(f's_cmp_eq_u32 {sRED}, 1'); A('s_cbranch_scc0 L_W_end')
def reduce16(code, tag, vS_, mask):
    ppoll(code, CFG['LK'], CFG['lgap'], lambda r: [f'global_load_dwordx4 {r}, {aR1}, {pLB} sc1'], 1, vRs, [vRx[i] for i in range(4)], tag, TM)
    tred4(vRx)
    row_allred('v_add_f32', [vRx[0]], (4, 8))
    tagf(vRx[0], vRx[0], vTg)
    set_exec(mask)
    A(f'global_store_dword {vS_}, {vRx[0]}, {pWS} sc1'); set_exec(-1)
def gather8(code, vG2l, n):
    if CFG['gd' + n]: A(f's_sleep {CFG["gd" + n]}')
    ppoll(code, CFG['GK' + n], CFG['ggap'], lambda r: [gld(r[0], vG2l, 0, 'gat' + n), gld(r[1], vG2l, 512, 'gat' + n)], 2, [r[0:2] for r in vRs], [vRx[0], vRx[1]], sT6, TM)
    A(f'v_add_f32 {vRx[0]}, {vRx[0]}, {vRx[1]}'); xrow_allred('v_add_f32', vRx[0], vT0)
    rnd(vRx[0], vRx[0])
reduce16(23, sT6, vG2s, M_N8 if CFG['rep'] else M_N4)
stamp(12)
if True: A('s_waitcnt vmcnt(1)')
gather8(24, vG2l, '2')
stamp(13)
A(f'v_mul_f32 {vRx[0]}, {vMod}, {vRx[0]}'); rnd(vRx[0], vRx[0])
A(f'v_add_f32 {vXc}, {vXc}, {vRx[0]}'); rnd(vXc, vXc)
A(f'v_or_b32 {vT0}, {sT16}, {vXc}')
set_exec(0xffff)
lstore([f'global_store_dword {vX2s}, {vT0}, {pLB}'])
set_exec(-1)
if True: A('s_waitcnt vmcnt(0)')
reduce16(25, sT6b, vG3s, M_N8 if CFG['rep'] else M_N4)
stamp(14)
A(f's_and_b32 s56, {sSL}, 7'); A(f's_cmp_eq_u32 s56, {sG}'); A('s_cbranch_scc0 L_W_end')
if True: A('s_waitcnt vmcnt(1)')
gather8(26, vG3l, '3')
A(f'v_mul_f32 {vRx[0]}, {vGb}, {vRx[0]}'); rnd(vRx[0], vRx[0])
A(f'v_add_f32 {vXc}, {vXc}, {vRx[0]}'); A(f'v_cvt_pk_bf16_f32 {vXc}, {vXc}, {vXc}')
set_exec(0xffff); A(f'global_store_short {vOut}, {vXc}, {pOUT}')
A(f's_cmp_eq_u32 {sSL}, 0'); A('s_cbranch_scc0 L_W_end2')
set_exec(1); A(f'v_mov_b32 {vT0}, {EP}'); A(f'v_mov_b32 {vT1}, {sE}'); A(f'global_store_dword {vT0}, {vT1}, {pWS} sc1')
if CFG['amp']:
    A('s_memrealtime s[94:95]'); A('s_waitcnt lgkmcnt(0)'); A('s_sub_u32 s56, s94, s92'); A(f's_mul_i32 s56, s56, {1 + CFG["amp"]}'); A('s_min_u32 s56, s56, 100000')
    LAB('L_amp'); A('s_memrealtime s[94:95]'); A('s_waitcnt lgkmcnt(0)'); A('s_sub_u32 s57, s94, s92'); A('s_cmp_lt_u32 s57, s56'); A('s_cbranch_scc1 L_amp')
LAB('L_W_end2')
set_exec(-1)
stamp(15)
LAB('L_W_end')
end_wave()

vg_W = V.hi
LAB('L_W9')
V.release(mP)
aML, aA1, aA2, aOw = V(), V(), V(), V(); vMr = V(8); vMx = V(4); vAs = [V(8) for _ in range(CFG['LK'])]; vAx = V(8); vW1, vW2 = V(), V()
A(f'v_lshrrev_b32 {vT0}, 3, {vL}'); A(f'v_and_b32 {vT1}, 7, {vL}')
A(f's_lshr_b32 s57, {sU}, 2'); A('s_lshl_b32 s56, s57, 4'); A(f's_add_u32 s56, s56, {MLG}'); A(f'v_lshl_add_u32 {aML}, {vT0}, 6, s56')
A('s_lshl_b32 s56, s57, 9'); A(f's_and_b32 s57, {sU}, 3'); A('s_lshl_b32 s57, s57, 7'); A('s_add_u32 s56, s56, s57'); A(f's_add_u32 s56, s56, {A_}')
A(f'v_lshlrev_b32 {aA1}, 11, {vT0}'); A(f'v_lshl_add_u32 {aA1}, {vT1}, 4, {aA1}'); A(f'v_add_u32 {aA1}, s56, {aA1}'); A(f'v_add_u32 {aA2}, 16384, {aA1}')
A(f'v_lshrrev_b32 {vT0}, 5, {vL}'); A(f'v_lshl_add_u32 {aOw}, {vT1}, 2, {vT0}'); A(f'v_and_b32 {vT0}, 1, {vQ}'); A(f'v_lshl_add_u32 {aOw}, {vT0}, 1, {aOw}'); A(f'v_lshlrev_b32 {aOw}, 1, {aOw}'); A(f'v_add_u32 {aOw}, {OB}, {aOw}')
A('s_barrier')
epoch_wait()
pure_phase()
lds_wait(35, F_QP, 1, vT0, sleep=2)
if CFG['hall']:
    A(f'v_lshlrev_b32 {vT3}, 3, {vN}'); A(f'v_add_u32 {vT3}, {HINT}, {vT3}')
else:
    A(f's_lshl_b32 s56, {sU}, 3'); A(f's_add_u32 s56, s56, {HINT}'); A(f'v_mov_b32 {vT3}, s56')
lp, ok = nl('P'), nl('OK')
A(f's_mov_b32 {sCNT}, {CFG["limit"]}')
LAB(lp)
A(f'global_load_dword {vT0}, {vT3}, {pLB} sc1'); A('s_waitcnt vmcnt(0)')
A(f'v_cmp_ne_u32 vcc, {sE}, {vT0}'); A(f's_cbranch_vccz {ok}')
fail_branch(44, lp)
LAB(ok)
flag(F_GO)
stamp(6)
A(f'global_load_dword {vDUM}, {aA1}, {pLB} sc1'); A(f'global_load_dword {vDUM}, {aA2}, {pLB} sc1'); A(f'global_load_dword {vDUM}, {aML}, {pLB} sc1'); A(f'global_load_dword {vDUM}, {aML}, {pLB} offset:512 sc1')
lds_wait(36, F_WI, 1, vT0, sleep=1)
stamp(7)
a_loads = lambda r: [f'global_load_dwordx4 {r[0:4]}, {aA1}, {pLB} sc1', f'global_load_dwordx4 {r[4:8]}, {aA2}, {pLB} sc1']
ml_loads = [f'global_load_dwordx4 {vMr[0:4]}, {aML}, {pLB} sc1', f'global_load_dwordx4 {vMr[4:8]}, {aML}, {pLB} offset:512 sc1']
def weights():
    A(f'v_max_f32 {vT0}, {vMx[0]}, {vMx[2]}'); row_allred('v_max_f32', [vT0], (8,)); xrow_allred('v_max_f32', vT0, vT1)
    A(f'v_sub_f32 {vW1}, {vMx[0]}, {vT0}'); A(f'v_sub_f32 {vW2}, {vMx[2]}, {vT0}'); A(f'v_mul_f32 {vW1}, {sL2E}, {vW1}'); A(f'v_mul_f32 {vW2}, {sL2E}, {vW2}')
    A(f'v_exp_f32 {vW1}, {vW1}'); A(f'v_exp_f32 {vW2}, {vW2}')
    A(f'v_mul_f32 {vT0}, {vW1}, {vMx[1]}'); A(f'v_fmac_f32 {vT0}, {vW2}, {vMx[3]}'); row_allred('v_add_f32', [vT0], (8,)); xrow_allred('v_add_f32', vT0, vT1)
    A(f'v_rcp_f32 {vT0}, {vT0}'); A(f'v_mul_f32 {vW1}, {vW1}, {vT0}'); A(f'v_mul_f32 {vW2}, {vW2}, {vT0}')
    stamp(8)
if CFG['mlb']:
    poll(12, ml_loads + a_loads(vAs[0]), [vMr[i] for i in (0, 1, 4, 5)] + [vAs[0][i] for i in range(8)], [vMx[i] for i in range(4)] + [vAx[i] for i in range(8)], sT6, TM, vCH, full=[vMr[i] for i in (2, 3, 6, 7)])
    weights()
else:
    poll(10, ml_loads, [vMr[i] for i in (0, 1, 4, 5)], [vMx[i] for i in range(4)], sT6, TM, vCH, full=[vMr[i] for i in (2, 3, 6, 7)])
    poll(12, a_loads(vAs[0]), [vAs[0][i] for i in range(8)], [vAx[i] for i in range(8)], sT6, TM, vCH, shadow=weights)
stamp(9)
for i in range(4): A(f'v_mul_f32 {vAx[i]}, {vW1}, {vAx[i]}')
for i in range(4): A(f'v_fmac_f32 {vAx[i]}, {vW2}, {vAx[4+i]}')
tred4(vAx)
dpp('v_add_f32', vAx[0], vAx[0], vAx[0], 'row_ror:8')
A(f'v_cvt_pk_bf16_f32 {vT0}, {vAx[0]}, {vAx[0]}')
A(f'ds_write_b16 {aOw}, {vT0}'); A('s_waitcnt lgkmcnt(0)'); A('s_barrier')
end_wave()
vg_W = max(vg_W, V.hi)

LAB('L_loader')
V = Alloc('v', 1, 64)
vO1, vT0, vT1, vLin, vZ, vMark, vX, vOne = [V() for _ in range(8)]; vKo = V(4, 1); vVo = V(2, 1)
adv = lambda p: [f's_add_u32 s{p}, s{p}, 4096', f's_addc_u32 s{p+1}, s{p+1}, 0', 's_add_u32 m0, m0, 4096']
pend = []
def post(mark, st):
    A(f'v_mov_b32 {vMark}, {mark}')
    if CFG['vgate'] < 8: set_exec(1); A(f'ds_max_u32 {vZ}, {vMark}'); set_exec(-1)
    else: A(f'ds_write_b32 {vZ}, {vMark}')
    if st.get(mark): stamp(st[mark])
def retire_to(n, st):
    while len(pend) > n:
        mk = pend.pop(0)
        if mk is not None or len(pend) == n:
            A(f's_waitcnt vmcnt({len(pend)})')
            if mk is not None: post(mk, st)
def run(items, st, bar):
    for win, pre, ins, mk in items:
        if len(pend) >= win:
            if not bar: stamp(1); A('s_barrier'); bar = True
            retire_to(win - 1, st)
        for x in pre: A(x)
        if isinstance(ins, tuple):
            A(f's_mov_b64 exec, {ins[0]}'); A(ins[1]); A('s_mov_b64 exec, -1')
        else: A(ins)
        pend.append(mk)
    return bar
A(f'v_mov_b32 {vZ}, {FLG}'); A(f'v_mov_b32 {vOne}, 1'); A(f'v_lshlrev_b32 {vLin}, 4, {vL}')
A(f's_cmp_ge_u32 {sT}, 16'); A('s_cbranch_scc1 L_loaderW')
setup = [f'v_lshrrev_b32 {vT0}, 4, {vL}', f'v_and_b32 {vT1}, 15, {vL}']
for m in range(4):
    setup += [f'v_add_u32 {vX}, {4*m}, {vT0}', f'v_xor_b32 {vX}, {vX}, {vT1}' if CFG['ksw'] else f'v_mov_b32 {vX}, {vT1}', f'v_lshlrev_b32 {vX}, 4, {vX}', f'v_lshl_add_u32 {vKo[m]}, {vT0}, 8, {vX}']
for m in range(2):
    setup += [f'v_add_u32 {vX}, {4*m}, {vT0}', f'v_lshlrev_b32 {vX}, 1, {vX}', f'v_xor_b32 {vX}, {vX}, {vT1}', f'v_lshlrev_b32 {vX}, 4, {vX}', f'v_lshl_add_u32 {vVo[m]}, {vT0}, 8, {vX}']
setup += [f's_lshl_b32 s56, {sG}, 22', f's_lshl_b32 s57, {sU}, {12 if CFG["kvi"] else 16}', 's_add_u32 s56, s56, s57', 's_add_u32 s56, s56, 0x300000',
          f's_add_u32 s62, {lo(pK)}, s56', f's_addc_u32 s63, {hi(pK)}, 0', f's_add_u32 s60, {lo(pV)}, s56', f's_addc_u32 s61, {hi(pV)}, 0']
if CFG['kvi']:
    def advk(p, c):
        d = 17 if CFG['kvi'] == 1 else 16
        if CFG['kvi'] == 2: return [f's_add_u32 s{p}, s{p}, 65536', f's_addc_u32 s{p+1}, s{p+1}, 0', 's_add_u32 m0, m0, 4096']
        return [f's_cmp_eq_u32 {sU}, {16 - c}', f's_cselect_b32 s56, 4096, s55', f's_add_u32 s{p}, s{p}, s56', f's_addc_u32 s{p+1}, s{p+1}, 0', 's_add_u32 m0, m0, 4096']
    setup += [f's_mov_b32 s55, {17*4096}']
else:
    advk = lambda p, c: adv(p)
sec = {}
sec['K'] = [[0, [f's_mov_b32 m0, {KK}'] if i == 0 else advk(62, i // 4) if i % 4 == 0 else [], f'global_load_lds_dwordx4 {vKo[i % 4]}, s[62:63] offset:{1024*(i % 4)}{NT}', MKA['K0'] + i // 8 if i % 8 == 7 else None] for i in range(64)]
sec['V'] = [[0, [f's_mov_b32 m0, {VV}'] if i == 0 else advk(60, i // 4) if i % 4 == 0 else [], f'global_load_lds_dwordx4 {vVo[i & 1]}, s[60:61] offset:{1024*(i % 4)}{NT}', MKA['V0'] + i // 8 if i % 8 == 7 else None] for i in range(64)]
items = [None] * 8 + sec['K'] + sec['V']
items[8][1] = setup + items[8][1]
for i, it in list(enumerate(items))[8:]: it[0] = CFG['WA0'] if i < CFG['WA0'] + CFG['NA0'] else CFG['WA']
stA = {MKA['K0'] + 7: 3, MKA['V0'] + 7: 4, MKA['M']: 2}
if CFG['trace']:
    stA = {MKA['M']: 2, MKA['K0'] + 1: 3, MKA['K0'] + 3: 4, MKA['K0'] + 5: 5, MKA['K0'] + 7: 6}
    stA.update({MKA['V0'] + i: 7 + i for i in range(8)})
hint_at = len(items) - 64 + 8 * CFG['hint']
def hint():
    A('s_waitcnt lgkmcnt(0)'); A(f's_add_u32 {sE}, {sE}, 1'); A(f'v_mov_b32 {vMark}, {sE}')
    A(f's_mul_i32 s53, {sG}, {LBS}'); A(f's_lshl_b32 s56, {sU}, 3'); A('s_add_u32 s53, s53, s56'); A(f's_add_u32 s53, s53, {LB0 + HINT}'); A(f'v_mov_b32 {vX}, s53')
items[8][1] = [f's_load_dword {sE}, {pWS}, {EP}'] + items[8][1]
n0 = 8 + CFG['X0']
pend += [None] * 7 + [MKA['M']]
run([(63, *x[1:]) for x in items[8:n0]], stA, True)
stamp(1); A('s_barrier')
retire_to(CFG['X0'], stA)
n1 = n0 + (CFG['mpw'] - 1 if CFG['mpw'] else 0)
run(items[n0:n1], stA, True)
if not CFG['only'] and CFG['mpw']: lds_wait(45, F_MP, 4, vT0)
gate_at = len(items) - 64 + 8 * CFG['vgate']
def do_hint():
    retire_to(min(len(pend), CFG['hret']), stA)
    hint()
    A(f'ds_read_b32 {vT0}, {vZ} offset:{F_PURE - FLG}'); A('s_waitcnt lgkmcnt(0)'); A(f'v_readfirstlane_b32 {sPURE}, {vT0}')
    set_exec(1)
    lstore([f'global_store_dword {vX}, {vMark}, {pWS}'])
    set_exec(-1)
    pend.append(None)
def do_gate():
    if CFG['only'] or CFG['vgate'] >= 8: return
    dn = nl('GD')
    marks = [(len(pend) - 1 - i, mk) for i, mk in enumerate(pend) if mk is not None]
    for left, mk in marks:
        A(f'ds_read_b32 {vT0}, {vZ} offset:{F_Q - FLG}'); A('s_waitcnt lgkmcnt(0)'); A(f'v_readfirstlane_b32 {sTMP}, {vT0}'); A(f's_cmp_eq_u32 {sTMP}, 1'); A(f's_cbranch_scc1 {dn}')
        A(f's_waitcnt vmcnt({left})'); post(mk, {})
    lds_wait(47, F_Q, 1, vT0)
    LAB(dn)
pos = n1
for at, fn in sorted([(gate_at, do_gate), (hint_at + 0.5, do_hint)], key=lambda x: x[0]):
    run(items[pos:int(at)], stA, True); pos = max(pos, int(at)); fn()
run(items[pos:], stA, True)
retire_to(0, stA)
A(f's_and_b32 s54, {sU}, 7'); A(f's_lshr_b32 s55, {sU}, 3')
items = []
vGx = V(4, 1)
for i in range(32):
    if i == 0:
        pre = [f'v_lshrrev_b32 {vT0}, 5, {vL}', f'v_and_b32 {vT1}, 31, {vL}', f'v_mul_u32_u24 {vO1}, 3584, {vT0}',
               f's_mul_i32 s56, s54, {64*3584}', f's_mul_i32 s57, {sG}, 448', 's_add_u32 s56, s56, s57', f'v_add_u32 {vO1}, s56, {vO1}']
        for v in range(4):
            f0 = 2 * (v & 1) + 4 * (v >> 1)
            pre += [f'v_add_u32 {vX}, {f0}, {vT0}', f'v_lshlrev_b32 {vX}, 1, {vX}', f'v_xor_b32 {vX}, {vX}, {vT1}' if CFG['gsw'] else f'v_mov_b32 {vX}, {vT1}',
                    f'v_cmp_gt_u32 s[{84+2*v}:{85+2*v}], 28, {vX}', f'v_lshl_add_u32 {vGx[v]}, {vX}, 4, {vO1}']
        pre += ['s_cmp_ge_u32 s55, 1', f's_cselect_b32 s58, {lo(pWU)}, {lo(pWG)}', f's_cselect_b32 s59, {hi(pWU)}, {hi(pWG)}', f's_mov_b32 m0, {GU}']
    else: pre = [f's_add_u32 s58, s58, {2*3584}', 's_addc_u32 s59, s59, 0', 's_add_u32 m0, m0, 1024']
    v = (i & 1) | (((i >> 2) & 1) << 1)
    items.append((CFG['WG'], pre, (f's[{84+2*v}:{85+2*v}]', f'global_load_lds_dwordx4 {vGx[v]}, s[58:59]{NT}'), MKA['GU'] if i == 31 else None))
for i in range(16):
    pre = []
    if i == 0: pre = [f's_min_u32 s57, {sU}, 13', f's_mul_i32 s56, {sG}, {224*1024}', 's_lshl_b32 s57, s57, 14', 's_add_u32 s56, s56, s57', f's_add_u32 s58, {lo(pWD)}, s56', f's_addc_u32 s59, {hi(pWD)}, 0', f's_mov_b32 m0, {DN}']
    elif i % 4 == 0: pre = adv(58)
    fd = ((i & 3) << 1) | ((i >> 3) & 1)
    pre = pre + [f'v_xor_b32 {vX}, {32*fd if CFG["gsw"] else 0}, {vLin}']
    items.append((CFG['WG'], pre, f'global_load_lds_dwordx4 {vX}, s[58:59] offset:{1024*(i % 4)}{NT}', MKA['DN'] if i == 15 else None))
for x in items[0][1]: A(x)
items[0] = (items[0][0], [], *items[0][2:])
if not CFG['only']:
    A('s_waitcnt lgkmcnt(0)'); A('s_barrier')
    lds_wait(42, F_AP, 8, vT0)
if not CFG['trace']: stA.update({MKA['GU']: 7, MKA['DN']: 8})
run(items, stA, True)
retire_to(0, stA)
A('s_waitcnt lgkmcnt(0)')
end_wave()
LAB('L_loaderW')
A(f's_and_b32 s54, {sU}, 7'); A(f's_lshr_b32 s55, {sU}, 3')
stW = {MKW['WQ']: 2, MKW['MR']: 6, MKW['WO']: 5}
pend += [None] * 31 + [MKW['WQ']]
for x in [f'v_lshrrev_b32 {vT0}, 3, {vL}', f'v_and_b32 {vT1}, 7, {vL}', f'v_mul_u32_u24 {vO1}, 6144, {vT0}', f'v_lshl_add_u32 {vO1}, {vT1}, 4, {vO1}',
          f's_lshr_b32 s56, {sU}, 2', f's_mul_i32 s56, s56, {128*6144}', f's_and_b32 s57, {sU}, 3', 's_lshl_b32 s57, s57, 10', 's_add_u32 s56, s56, s57',
          f's_lshl_b32 s57, {sG}, 7', 's_add_u32 s56, s56, s57', 's_add_u32 s56, s56, 2048', f'v_add_u32 {vO1}, s56, {vO1}']: A(x)
stamp(1); A('s_barrier')
retire_to(0, stW)
if CFG['only'] == 'loaderA': end_wave()
if not CFG['only']: lds_wait(48, F_QP, 1, vT0, sleep=1)
run([(63, [f's_mov_b32 m0, {MR}'] if i == 0 else [f'v_add_u32 {vO1}, {8*6144}, {vO1}', 's_add_u32 m0, m0, 1024'], f'global_load_lds_dwordx4 {vO1}, {pWM}{NT}', MKW['MR'] if i == 15 else None) for i in range(16)], stW, True)
retire_to(0, stW)
if CFG['only'] != 'loader': lds_wait(41, F_GO, 1, vT0, sleep=1)
items = []
for i in range(32):
    pre = []
    if i == 0: pre = [f's_lshl_b32 s56, {sG}, 19', f's_lshl_b32 s57, {sU}, 15', 's_add_u32 s56, s56, s57', f's_add_u32 s58, {lo(pWO)}, s56', f's_addc_u32 s59, {hi(pWO)}, 0', f's_mov_b32 m0, {WO}']
    elif i % 4 == 0: pre = adv(58)
    f = (i & 3) | ((i >> 1) & 4)
    pre = pre + [f'v_xor_b32 {vX}, {32*f}, {vLin}']
    items.append((CFG['WO0'] if i < CFG['WO0'] + CFG['NO0'] else CFG['WO1'], pre, f'global_load_lds_dwordx4 {vX}, s[58:59] offset:{1024*(i % 4)}{NT}', MKW['WO'] if i == 31 else None))
run(items, stW, True)
flag(F_WI)
retire_to(0, stW)
if not CFG['only']: A('s_waitcnt lgkmcnt(0)'); A('s_barrier')
A('s_waitcnt lgkmcnt(0)')
end_wave()

for sl, ins, bk in slow_paths:
    LAB(sl)
    for x in ins: A(x)
    A(f's_branch {bk}')
LAB('L_fail')
if CFG['dbgfail']:
    set_exec(1)
    A(f'v_mov_b32 v1, 0x1ffff0'); A(f's_lshl_b32 s56, s2, 16'); A(f's_lshl_b32 s57, {sWAVE}, 8'); A('s_or_b32 s56, s56, s57'); A(f's_or_b32 s56, s56, {sTMP}'); A('v_mov_b32 v2, s56')
    A(f'global_store_dword v1, v2, {pWS} sc1')
    set_exec(-1)
if CFG['stamps']:
    LAB('L_stamps')
    A('s_waitcnt lgkmcnt(0)')
    A('v_mov_b32 v2, 0')
    for i in range(16): A(f'v_writelane_b32 v2, s{64+2*i}, {i}')
    A(f's_lshl_b32 s56, {sT}, 3'); A(f's_add_u32 s56, s56, {sG}'); A(f's_mul_i32 s56, s56, {NW}'); A(f's_add_u32 s56, s56, {sWAVE}'); A('s_lshl_b32 s56, s56, 6'); A(f's_add_u32 s56, s56, {STAMPS}')
    A('v_lshl_add_u32 v1, v0, 2, s56')
    set_exec(0xffff); A(f'global_store_dword v1, v2, {pWS}')
LAB('L_exit')
A('s_endpgm')
LAB('L_codeend')

body = pad_hazards(L)
vg = (max(vg_A, vg_W) + 7) // 8 * 8
hdr = open('cdna_kernels/' + KN + '.s.ref').read().split('; Override launch')[0]
name = KN + '_kernel'
txt = hdr + f"""; @launch grid=(256,1,1) block=({64*NW},1,1) lds={LDS_BYTES}
.amdgcn_target "amdgcn-amd-amdhsa--gfx950"
.text
.globl {name}
.p2align 8
.type {name},@function
{name}:
""" + '\n'.join(body) + f"""
.section .rodata,"a"
.p2align 6
.amdhsa_kernel {name}
  .amdhsa_next_free_vgpr {vg}
  .amdhsa_next_free_sgpr 100
  .amdhsa_accum_offset {vg}
  .amdhsa_group_segment_fixed_size 0
  .amdhsa_kernarg_size 112
  .amdhsa_user_sgpr_count 2
  .amdhsa_user_sgpr_kernarg_segment_ptr 1
  .amdhsa_system_sgpr_workgroup_id_x 1
  .amdhsa_float_denorm_mode_32 3
.end_amdhsa_kernel
"""
open(OUT, 'w').write(txt)
print('vgprs', vg_A, vg_W, 'lines', len(body), file=sys.stderr)
```

```python
import sys
from kasm import pad_hazards, Alloc, Reg

KN = 'adaLN_cond__sliding_block_cached__glu_gated_glu__decode'
CFG = dict(stamps=0, limit=200000, pf=1, dbgfail=1, amp=0, ptries=40,
           WA0=28, NA0=0, WA=28, WO0=24, NO0=0, WO1=24, WG=32, nt=1, only='', early=0, QK=3, qgap=4, GK=1, ggap=2, LK=1, lgap=1,
           qstart=4, prio=0, mrpos=0, rep=1, hint=4, qh=1, qsl=0, HK=3, hgap=3, ksw=1, pv=0, pvf='nt', mlb=0, fpre=1, vgate=8, trace=0, near=4, gat2=1, GK2=3, gd2=0, gat3=1, GK3=3, gd3=0, mrg=0, tlb=0, gat=1, gat1=0, G1K=1, gpt=0, mpt=0, gdly=0, gsw=1, mpw=1, hall=0, hret=63, kvi=1, ilv=0, X0=8, lprio=3, cprio=3)
CFG.update(WA0=36, WA=36, QK=4, qgap=6, qh=0, qstart=2, qsl=0, X0=16, hint=2, GK2=1, gd2=6, hall=1, WO0=32, WO1=32, WG=32, kvi=2, GK=3, ggap=4, gpt=2)
for a in sys.argv[2:]:
    k, v = a.split('=')
    assert k in CFG, k
    CFG[k] = int(v) if v.lstrip('-').isdigit() else v
OUT = sys.argv[1]

EP = 0; S_MR = 0x8000; S_M = 0x10000; G2 = 0x20000; G3 = 0x30000
LB0 = 0x40000; LBS = 0x18000
H_ = 0; MV = 0x800; X2 = 0x1800; MLG = 0x2000; GAB = 0x2400 + 0x4000; HINT = 0x2800; Q_ = 0x3000; A_ = 0x8000; B1 = 0x10000
PROBE = 0x110000
STAMPS = 0x200000
KK = 0; VV = 0x10000; MM = 0x20000; OL = 0x22000
GU = 0; DN = 0x8000
WQ = 0; WO = 0x8000; MR = 0x10000
SC = 0x26800
QL = SC; QS = 320; MLL = SC + 0x600; HL = SC; OB = SC + 0x800; FLG = SC + 0x900; CL = SC + 0xA00
OS = 576
F_LP = FLG; F_PF = FLG + 4; F_PURE = FLG + 52; F_G1 = FLG + 8; F_QP = FLG + 12; F_Q = FLG + 56; F_MD = FLG + 60; F_AP = FLG + 16; F_WI = FLG + 20; F_B1 = FLG + 24; F_O = FLG + 28; F_GA = FLG + 32; F_GO = FLG + 40; F_MP = FLG + 44; F_CP = FLG + 36; F_SF = FLG + 48
PB = OL; PBS = 256
LDS_BYTES = SC + 0xE00
NO = 5
NW = 10
sWAVE, sG, sT, sE, sT6, sT16, sT6b = 's3', 's4', 's5', 's6', 's7', 's8', 's9'
sU, sSL, sCNT, sTMP = 's10', 's11', 's14', 's15'
pX, pK, pV, pWQ, pWO, pBX, pWG, pWU, pWD, pC, pWM, pOUT, pDBG, pWS = [f's[{16+2*i}:{17+2*i}]' for i in range(14)]
pLB = 's[44:45]'; sPURE = 's46'; sMASK = 's47'; sSEL = 's48'; sHI = 's49'; sL2E = 's50'; sCM = 's12'; sCP = 's51'
def lo(p): return 's' + p[2:-1].split(':')[0]
def hi(p): return 's' + p[2:-1].split(':')[1]
TM = 0x3f

L = []
def A(x): L.append('    ' + x)
def LAB(x): L.append(x + ':')
uid = [0]
def nl(p='L'):
    uid[0] += 1; return f'{p}_{uid[0]}'
slow_paths = []
def stamp(i):
    if CFG['stamps'] and (CFG['stamps'] >> i) & 1: A(f's_memrealtime s[{64+2*i}:{65+2*i}]')
def set_exec(mask):
    if mask == -1: A('s_mov_b64 exec, -1'); return
    l, h = mask & 0xffffffff, mask >> 32
    if h == 0 and l <= 64: A(f's_mov_b64 exec, {l}'); return
    A(f's_mov_b32 exec_lo, {l:#x}'); A(f's_mov_b32 exec_hi, {h:#x}')
M_N0 = 0x0001000100010001; M_N4 = 0x000F000F000F000F; M_N8 = 0x00FF00FF00FF00FF; M_N2 = 0x0003000300030003; M_Q0 = 0x1111111111111111
def rnd(d, s):
    A(f'v_cvt_pk_bf16_f32 {d}, {s}, {s}'); A(f'v_and_b32 {d}, {sHI}, {d}')
def dpp(op, d, a, b, ctl, bank=0xf, row=0xf):
    if b is None: A(f'{op}_dpp {d}, {a} {ctl} row_mask:{row:#x} bank_mask:{bank:#x}')
    else: A(f'{op}_dpp {d}, {a}, {b} {ctl} row_mask:{row:#x} bank_mask:{bank:#x}')
def row_allred(op, regs, shifts=(8, 4, 2, 1)):
    for sh in shifts:
        for r in regs: dpp(op, r, r, r, f'row_ror:{sh}')
def xrow_allred(op, v, t):
    A(f'v_mov_b32 {t}, {v}'); A(f'v_permlane16_swap_b32 {v}, {t}'); A(f'{op} {v}, {v}, {t}')
    A(f'v_mov_b32 {t}, {v}'); A(f'v_permlane32_swap_b32 {v}, {t}'); A(f'{op} {v}, {v}, {t}')
def tred4(v):
    A(f'v_permlane32_swap_b32 {v[0]}, {v[1]}'); A(f'v_permlane32_swap_b32 {v[2]}, {v[3]}')
    A(f'v_add_f32 {v[0]}, {v[0]}, {v[1]}'); A(f'v_add_f32 {v[2]}, {v[2]}, {v[3]}')
    A(f'v_permlane16_swap_b32 {v[0]}, {v[2]}'); A(f'v_add_f32 {v[0]}, {v[0]}, {v[2]}')
def fail_branch(code, loop):
    A(f's_sub_u32 {sCNT}, {sCNT}, 1'); A(f's_cbranch_scc0 {loop}')
    if CFG['dbgfail']: A(f's_mov_b32 {sTMP}, {code}')
    A('s_branch L_fail')
def check(raw, out, tag, maskbits, chk, full=()):
    for r, o in zip(raw, out): A(f'v_xor_b32 {o}, {tag}, {r}')
    o = list(out)
    if len(o) == 1: A(f'v_and_b32 {chk}, {maskbits:#x}, {o[0]}'); o = None
    elif len(o) == 2: A(f'v_or_b32 {chk}, {o[0]}, {o[1]}'); o = []
    else: A(f'v_or3_b32 {chk}, {o[0]}, {o[1]}, {o[2]}'); o = o[3:]
    if o is not None:
        while len(o) >= 2: A(f'v_or3_b32 {chk}, {chk}, {o[0]}, {o[1]}'); o = o[2:]
        if o: A(f'v_or_b32 {chk}, {chk}, {o[0]}')
        A(f'v_and_b32 {chk}, {maskbits:#x}, {chk}')
    for r in full: A(f'v_xor_b32 {r}, {sE}, {r}'); A(f'v_or_b32 {chk}, {chk}, {r}')
    A(f'v_cmp_ne_u32 vcc, 0, {chk}')
def poll(code, loads, raw, out, tag, maskbits, chk, full=(), shadow=None, sleep=0, issued=False):
    lp, ok, lw = nl('P'), nl('OK'), nl('PW')
    A(f's_mov_b32 {sCNT}, {CFG["limit"]}')
    if shadow or issued:
        if not issued:
            for x in loads: A(x)
        if shadow: shadow()
        A(f's_branch {lw}')
    LAB(lp)
    if sleep: A(f's_sleep {sleep}')
    for x in loads: A(x)
    LAB(lw)
    A('s_waitcnt vmcnt(0)')
    check(raw, out, tag, maskbits, chk, full)
    A(f's_cbranch_vccz {ok}')
    fail_branch(code, lp)
    LAB(ok)
def ppoll(code, K, gap, mk, nld, sets, out, tag, maskbits, extra=()):
    if K == 1:
        poll(code, mk(sets[0]) + list(extra), [sets[0][i] for i in range(sets[0].n)], out, tag, maskbits, vCH); return
    lp, ok = nl('PP'), nl('OK')
    A(f's_mov_b32 {sCNT}, {CFG["limit"]}')
    for k in range(K - 1):
        for x in mk(sets[k]): A(x)
        if gap: A(f's_sleep {gap}')
    LAB(lp)
    for k in range(K):
        for x in mk(sets[(k + K - 1) % K]): A(x)
        for x in extra: A(x)
        A(f's_waitcnt vmcnt({(K-1)*nld})')
        check([sets[k][i] for i in range(sets[k].n)], out, tag, maskbits, vCH)
        A(f's_cbranch_vccz {ok}')
    fail_branch(code, lp)
    LAB(ok)
def lds_wait(code, off, val, tmp, sleep=0, vaddr=None, spec=()):
    lp, ok, ag = nl('W'), nl('OK'), nl('AG')
    va = vaddr or vZ
    if spec:
        A(f'ds_read_b32 {tmp}, {va} offset:{off - FLG}')
        for x in spec: A(x)
        A(f's_waitcnt lgkmcnt({min(15, len(spec))})')
        A(f'v_readfirstlane_b32 {sTMP}, {tmp}'); A(f's_cmp_ge_u32 {sTMP}, {val}'); A(f's_cbranch_scc1 {ok}')
    A(f's_mov_b32 {sCNT}, {CFG["limit"]}')
    LAB(lp)
    A(f'ds_read_b32 {tmp}, {va} offset:{off - FLG}')
    A('s_waitcnt lgkmcnt(0)')
    A(f'v_readfirstlane_b32 {sTMP}, {tmp}')
    A(f's_cmp_ge_u32 {sTMP}, {val}')
    A(f's_cbranch_scc1 {ag}')
    if sleep: A(f's_sleep {sleep}')
    fail_branch(code, lp)
    LAB(ag)
    for x in spec: A(x)
    LAB(ok)
def lds_wait8(code, off, fl, reads):
    lp, ok, again = nl('W'), nl('OK'), nl('AG')
    def flags():
        A(f'ds_read_b128 {fl[0:4]}, {vZ} offset:{off - FLG}'); A(f'ds_read_b128 {fl[4:8]}, {vZ} offset:{off - FLG + 16}')
    def test():
        A(f'v_and_b32 {fl[0]}, {fl[0]}, {fl[1]}')
        for i in (2, 4, 6): A(f'v_bitop3_b32 {fl[0]}, {fl[0]}, {fl[i]}, {fl[i+1]} bitop3:0x80')
        A(f'v_cmp_eq_u32 vcc, 0, {fl[0]}')
    A(f's_mov_b32 {sCNT}, {CFG["limit"]}')
    LAB(lp)
    flags()
    for x in reads: A(x)
    A(f's_waitcnt lgkmcnt({min(15, len(reads))})')
    test()
    A(f's_cbranch_vccz {ok}')
    fail_branch(code, lp)
    LAB(ok)
def gld(d, a, off=0, key='gat'):
    o = f' offset:{off}' if off else ''
    if CFG[key]: return f'global_atomic_add {d}, {a}, {vZero}, {pWS}{o} sc0 sc1'
    return f'global_load_dword {d}, {a}, {pWS}{o} sc1'
def near_update():
    if not CFG['near']: return
    A(f'ds_read_b32 {vT0}, {vZ} offset:{F_CP - FLG}'); A('s_waitcnt lgkmcnt(0)'); A(f'v_readfirstlane_b32 s56, {vT0}')
    A('s_cmp_eq_u32 s56, 1'); A(f's_cselect_b32 {sCP}, 0, {sCP}'); A('s_cmp_eq_u32 s56, 2'); A(f's_cselect_b32 {sCP}, 0x2000, {sCP}')
def pure_read(): return f'ds_read_b32 {vPU}, {vZ} offset:{F_PURE - FLG}'
def pure_update(): A(f'v_readfirstlane_b32 {sPURE}, {vPU}')
def lstore(instrs):
    sl, bk = nl('SL'), nl('BK')
    A(f's_cmp_eq_u32 {sPURE}, 1'); A(f's_cbranch_scc0 {sl}')
    for x in instrs: A(x)
    LAB(bk)
    slow_paths.append((sl, [x + ' sc1' for x in instrs], bk))
def tagf(d, s, vtag): A(f'v_and_or_b32 {d}, {s}, {sMASK}, {vtag}')
def epoch_wait():
    A('s_waitcnt lgkmcnt(0)')
    A(f's_add_u32 {sE}, {sE}, 1')
    A(f's_and_b32 {sT6}, {sE}, {TM:#x}'); A(f's_and_b32 {sT16}, {sE}, 0xffff'); A(f's_xor_b32 {sT6b}, {sT6}, 0x20')
    A(f'v_mov_b32 {vTg}, {sT6}'); A(f'v_mov_b32 {vTgb}, {sT6b}')
def silu_bf(d, c, t1):
    A(f'v_mul_f32 {t1}, {sL2E}, {c}'); A(f'v_exp_f32 {t1}, -{t1}'); A(f'v_add_f32 {t1}, 1.0, {t1}'); A(f'v_rcp_f32 {t1}, {t1}'); A(f'v_mul_f32 {d}, {c}, {t1}')
def end_wave():
    if CFG['stamps']: A('s_branch L_stamps')
    else: A('s_endpgm')
def flag(off): A(f'ds_write_b32 {vZ}, {vOne} offset:{off - FLG}')
NT = ' nt' if CFG['nt'] else ''
vL = 'v0'
MKA = dict(M=1, K0=2, V0=10, GU=18, DN=19)
MKW = dict(WQ=1, MR=2, WO=3)

LAB('L_start')
stamp(0)
if CFG['amp']: A('s_memrealtime s[92:93]')
A('s_cmp_ge_u32 s2, 256'); A('s_cbranch_scc1 L_exit')
A('s_load_dwordx16 s[16:31], s[0:1], 0'); A('s_load_dwordx8 s[32:39], s[0:1], 64'); A('s_load_dwordx4 s[40:43], s[0:1], 96')
A('v_lshrrev_b32 v1, 6, v0'); A('v_and_b32 v0, 63, v0'); A(f'v_readfirstlane_b32 {sWAVE}, v1')
A(f's_and_b32 {sG}, s2, 7'); A(f's_lshr_b32 {sT}, s2, 3'); A(f's_and_b32 {sU}, {sT}, 15')
V = Alloc('v', 1, 168)
vN, vQ, vR, vC, vT0, vT1, vT2, vT3, vCH, vZ, vTg, vTgb, vPU, vOne, vC8, vQ16, vDUM, vZero = [V() for _ in range(18)]
vX = V(4); vXd = V()
mP = V.mark()
A(f's_cmp_lt_u32 {sWAVE}, 8'); A('s_cbranch_scc1 L_i_c')
A(f's_cmp_eq_u32 {sWAVE}, 9'); A('s_cbranch_scc0 L_i_8')
if CFG['pf']:
    A('s_getpc_b64 s[56:57]')
    LAB('L_pc')
    A('s_sub_u32 s56, s56, L_pc - L_start'); A('s_subb_u32 s57, s57, 0')
    A(f's_and_b32 s58, {sT}, 3'); A('s_lshl_b32 s58, s58, 13'); A(f'v_lshl_add_u32 {vT0}, {vL}, 7, s58'); A(f'v_min_u32 {vT0}, L_codeend - L_start - 4, {vT0}')
    A(f'global_load_dword {vDUM}, {vT0}, s[56:57]')
A('s_branch L_i_9')
LAB('L_i_8')
if CFG['lprio']: A(f's_setprio {CFG["lprio"]}')
A(f'v_lshrrev_b32 v2, 3, {vL}'); A(f'v_and_b32 v3, 7, {vL}'); A(f's_lshl_b32 s58, {sG}, 7')
A(f's_cmp_ge_u32 {sT}, 16'); A('s_cbranch_scc1 L_i_8W')
A('v_mul_u32_u24 v1, 6144, v2'); A(f's_lshr_b32 s56, {sU}, 1'); A(f's_mul_i32 s56, s56, {64*6144}'); A(f's_and_b32 s57, {sU}, 1'); A('s_lshl_b32 s57, s57, 10')
A('s_add_u32 s56, s56, s57'); A('s_add_u32 s56, s56, s58'); A(f's_mov_b32 m0, {MM}'); A(f's_mov_b32 s59, {8*6144}'); A('s_mov_b32 s60, 1')
A('s_waitcnt lgkmcnt(0)'); A(f's_mov_b64 s[62:63], {pWM}')
A('s_branch L_i_8go')
LAB('L_i_8W')
A('v_lshlrev_b32 v1, 13, v2'); A(f's_lshr_b32 s56, {sU}, 3'); A('s_lshl_b32 s56, s56, 21'); A(f's_and_b32 s57, {sU}, 7'); A('s_lshl_b32 s57, s57, 7')
A('s_add_u32 s56, s56, s57'); A('s_lshl_b32 s58, s58, 3'); A('s_add_u32 s56, s56, s58'); A(f's_mov_b32 m0, {WQ}'); A('s_mov_b32 s59, 65536'); A('s_mov_b32 s60, 4')
A('s_waitcnt lgkmcnt(0)'); A(f's_mov_b64 s[62:63], {pWQ}')
LAB('L_i_8go')
A('v_lshl_add_u32 v1, v3, 4, v1'); A('v_add_u32 v1, s56, v1')
LAB('L_i_8loop')
for _ in range(8): A(f'global_load_lds_dwordx4 v1, s[62:63]{NT}'); A('s_add_u32 m0, m0, 1024'); A('v_add_u32 v1, s59, v1')
A('s_sub_u32 s60, s60, 1'); A('s_cmp_lg_u32 s60, 0'); A('s_cbranch_scc1 L_i_8loop')
A('s_branch L_loader')
LAB('L_i_c')
if CFG['only'].startswith('loader'):
    A('s_waitcnt lgkmcnt(0)'); A('s_barrier'); A('s_branch L_stamps')
A(f's_cmp_ge_u32 {sWAVE}, 4'); A('s_cbranch_scc0 L_i_03')
A(f's_lshr_b32 s56, {sU}, 2'); A('s_lshl_b32 s56, s56, 8'); A(f'v_lshl_add_u32 {vT2}, {vL}, 2, s56')
A('s_waitcnt lgkmcnt(0)')
A(f'global_load_dword {vXd}, {vT2}, {pC}')
A('s_branch L_i_done')
LAB('L_i_03')
A(f'v_lshlrev_b32 {vT0}, 4, {vL}')
A(f's_add_u32 s57, {sWAVE}, 1'); A('s_and_b32 s57, s57, 1'); A(f's_lshl_b32 s56, {sU}, 1'); A('s_add_u32 s56, s56, s57'); A('s_lshl_b32 s56, s56, 5')
A(f'v_and_b32 {vT1}, 15, {vL}'); A(f'v_lshl_add_u32 {vT1}, {vT1}, 1, s56')
A(f's_sub_u32 s57, {sWAVE}, 1'); A(f's_lshr_b32 s56, {sT}, 4'); A('s_xor_b32 s56, s56, 1'); A('s_lshl_b32 s56, s56, 1'); A('s_or_b32 s57, s57, s56')
A('s_waitcnt lgkmcnt(0)')
A('s_cmp_lt_u32 s57, 2'); A('s_cbranch_scc0 L_i_done')
A(f'global_load_dwordx4 {vX}, {vT0}, {pX}'); A(f'global_load_ushort {vXd}, {vT1}, {pX}')
A('s_branch L_i_done')
LAB('L_i_9')
if CFG['only'].startswith('loader'):
    A('s_waitcnt lgkmcnt(0)'); A('s_barrier'); A('s_branch L_stamps')
if CFG['cprio']: A(f's_setprio {CFG["cprio"]}')
A(f'v_lshlrev_b32 {vT1}, 2, {vL}'); A(f'v_add_u32 {vT1}, {FLG}, {vT1}'); A(f'v_mov_b32 {vT2}, 0')
set_exec(0xffffffff); A(f'ds_write_b32 {vT1}, {vT2}'); set_exec(-1)
A('s_getreg_b32 s52, hwreg(HW_REG_XCC_ID)'); A('s_and_b32 s52, s52, 15'); A('s_or_b32 s52, s52, 0x80')
A(f's_lshl_b32 s56, {sG}, 5'); A(f's_add_u32 s57, s56, {sT}'); A(f'v_mov_b32 {vT0}, s57'); A(f'v_mov_b32 {vT1}, s52')
A('s_waitcnt lgkmcnt(0)')
set_exec(1); A(f'global_store_byte {vT0}, {vT1}, {pDBG}'); set_exec(-1)
LAB('L_i_done')
A(f's_load_dword {sE}, {pWS}, {EP}')
A(f's_getreg_b32 {sCP}, hwreg(HW_REG_XCC_ID)'); A(f's_and_b32 {sCP}, {sCP}, {4 if CFG["rep"] else 0}'); A(f's_lshl_b32 {sCP}, {sCP}, 11')
A(f's_mov_b32 {sMASK}, {0xffffffff ^ TM:#x}'); A(f's_mov_b32 {sSEL}, 0x07060302'); A(f's_mov_b32 {sHI}, 0xffff0000'); A(f's_mov_b32 {sL2E}, 0x3fb8aa3b'); A(f's_mov_b32 {sPURE}, 0')
A(f's_mul_i32 s53, {sG}, {LBS}'); A(f's_add_u32 s53, s53, {LB0}'); A(f's_add_u32 {lo(pLB)}, {lo(pWS)}, s53'); A(f's_addc_u32 {hi(pLB)}, {hi(pWS)}, 0')
A(f'v_mov_b32 {vZ}, {FLG}'); A(f'v_mov_b32 {vOne}, 1'); A(f'v_mov_b32 {vZero}, 0')
A(f'v_and_b32 {vN}, 15, {vL}'); A(f'v_lshrrev_b32 {vQ}, 4, {vL}'); A(f'v_bfe_u32 {vR}, {vL}, 2, 2'); A(f'v_and_b32 {vC}, 3, {vL}')
A(f'v_lshlrev_b32 {vC8}, 3, {vC}'); A(f'v_lshlrev_b32 {vQ16}, 4, {vQ}')
w2, w5, w6, w7, w8 = 's59', 's60', 's61', 's62', 's63'
A(f's_lshl_b32 {w2}, {sWAVE}, 2'); A(f's_lshl_b32 {w5}, {sWAVE}, 5'); A(f's_lshl_b32 {w6}, {sWAVE}, 6'); A(f's_lshl_b32 {w7}, {sWAVE}, 7'); A(f's_lshl_b32 {w8}, {sWAVE}, 8')

def pure_phase():
    lp, dn = nl('PP'), nl('PD')
    A('s_mul_i32 s52, s52, 0x01010101'); A(f'v_and_b32 {vT1}, 7, {vL}'); A(f's_lshl_b32 s56, {sG}, 5'); A(f'v_lshl_add_u32 {vT1}, {vT1}, 2, s56')
    A(f's_mov_b32 {sCNT}, {CFG["ptries"]}')
    LAB(lp)
    A(f'global_load_dword {vT0}, {vT1}, {pDBG} sc1'); A('s_waitcnt vmcnt(0)')
    A(f'v_cmp_ne_u32 vcc, s52, {vT0}'); A(f's_cbranch_vccz {lp}_ok')
    A(f's_sub_u32 {sCNT}, {sCNT}, 1'); A(f's_cbranch_scc0 {lp}'); A(f's_branch {dn}')
    LAB(lp + '_ok')
    flag(F_PURE)
    LAB(dn)
    stamp(2)

A(f's_cmp_ge_u32 {sT}, 16'); A('s_cbranch_scc1 L_W')
A(f's_cmp_eq_u32 {sWAVE}, 9'); A('s_cbranch_scc1 L_A9')
aK = V(4, 1); aQB, aMw, aMr, aVx, aPw, aPr, aAst = [V() for _ in range(7)]; vMg = V(4, 1)
A(f's_lshl_b32 s58, {sWAVE}, 13')
A(f'v_xor_b32 {vT0}, {vQ}, {vN}'); A(f'v_lshlrev_b32 {vT0}, 4, {vT0}'); A(f'v_lshl_add_u32 {vT0}, {vN}, 8, {vT0}'); A(f'v_add_u32 {aK[0]}, s58, {vT0}')
for ks in range(1, 4): A(f'v_xor_b32 {aK[ks]}, {64*ks}, {aK[0]}')
A(f'v_mul_u32_u24 {aQB}, {QS}, {vC}'); A(f'v_add3_u32 {aQB}, {aQB}, {vQ16}, {vZ}'); A(f'v_add_u32 {aQB}, {QL - FLG}, {aQB}')
A(f's_add_u32 s56, {w5}, {MLL}'); A(f'v_add_u32 {aMw}, s56, {vC8}')
A(f'v_lshl_add_u32 {aMr}, {vR}, 6, {vC8}'); A(f'v_add_u32 {aMr}, {MLL}, {aMr}')
A(f'v_lshl_add_u32 {vT0}, {vQ}, 2, {vR}'); A(f'v_and_b32 {vT1}, 7, {vT0}'); A(f'v_lshl_add_u32 {aVx}, {vT0}, 8, {vC8}'); A(f'v_lshl_add_u32 {aVx}, {vT1}, 5, {aVx}')
A(f'v_xor_b32 {aVx}, {w5}, {aVx}'); A(f'v_add_u32 {aVx}, {VV}, {aVx}')
A(f'v_lshl_add_u32 {vT2}, {vC}, 6, {vQ16}'); A(f's_add_u32 s56, {w8}, {PB}'); A(f'v_lshl_add_u32 {aPw}, {vR}, 2, {vT2}'); A(f'v_add_u32 {aPw}, s56, {aPw}')
A(f'v_lshl_add_u32 {aPr}, {vR}, 9, {vT2}'); A(f'v_add_u32 {aPr}, {PB}, {aPr}')
for k in range(4):
    A(f'v_cmp_eq_u32 vcc, {k}, {vR}'); A(f'v_cndmask_b32 {vMg[k]}, 0, -1, vcc')
A(f's_lshl_b32 s57, {sU}, 11'); A(f's_add_u32 s56, s57, {w6}'); A(f's_add_u32 s56, s56, {A_}')
A(f'v_lshl_add_u32 {aAst}, {vC}, 9, {vQ16}'); A(f'v_lshrrev_b32 {vT1}, 1, {vR}'); A(f'v_and_b32 {vT2}, 1, {vR}'); A(f'v_lshl_add_u32 {vT1}, {vT2}, 1, {vT1}'); A(f'v_lshl_add_u32 {aAst}, {vT1}, 2, {aAst}'); A(f'v_add_u32 {aAst}, s56, {aAst}')
A('s_barrier')
epoch_wait()
stamp(1)
A(f's_cmp_ge_u32 {sWAVE}, 4'); A('s_cbranch_scc0 L_A_main')
def mod_tile(base, nks, koff_expr, vSt, mark, mask, code, sleep, before_wait=None):
    vCc = V(4 * nks); vMa = V(4 * nks); vD = V(4); aM, aC = V(), V()
    A(f's_sub_u32 s56, {w8}, {1024 - CL}'); A(f'v_lshl_add_u32 {vT2}, {vL}, 2, s56'); koff_expr(); A(f'v_add_u32 {aC}, s56, {vQ16}')
    A(f's_sub_u32 s56, {w5}, {128 - base}'); A(f'v_lshl_add_u32 {aM}, {vQ}, 3, {vR}'); A(f'v_lshl_add_u32 {aM}, {aM}, 7, {vC8}'); A(f'v_add_u32 {aM}, s56, {aM}')
    A('s_waitcnt vmcnt(0)')
    A(f'v_lshlrev_b32 {vX[0]}, 16, {vXd}'); A(f'v_and_b32 {vX[1]}, {sHI}, {vXd}')
    silu_bf(vX[0], vX[0], vT0); silu_bf(vX[1], vX[1], vT1)
    A(f'v_cvt_pk_bf16_f32 {vXd}, {vX[0]}, {vX[1]}')
    A(f'ds_write_b32 {vT2}, {vXd}')
    for ks in range(nks): A(f'ds_read_b128 {vCc[4*ks:4*ks+4]}, {aC} offset:{64*ks}')
    if before_wait: before_wait()
    reads = [x for ks in range(nks) for x in (f'ds_read_b64_tr_b16 {vMa[4*ks:4*ks+2]}, {aM} offset:{4096*ks}', f'ds_read_b64_tr_b16 {vMa[4*ks+2:4*ks+4]}, {aM} offset:{4096*ks + 512}')]
    lds_wait(code, F_LP, mark, vT0, spec=reads, sleep=sleep)
    for ks in range(nks):
        A(f's_waitcnt lgkmcnt({2*(nks-1-ks)})')
        A(f'v_mfma_f32_16x16x32_bf16 {vD}, {vMa[4*ks:4*ks+4]}, {vCc[4*ks:4*ks+4]}, {0 if ks == 0 else vD}')
    for r in range(4): tagf(vD[r], vD[r], vTg)
    set_exec(mask); A(f'global_store_dwordx4 {vSt}, {vD}, {pWS} sc1')
m = V.mark()
vSt = V()
A(f's_lshl_b32 s56, {sU}, 3'); A(f's_add_u32 s56, s56, {sG}'); A('s_lshl_b32 s56, s56, 8'); A(f's_add_u32 s56, s56, {w6}'); A(f's_sub_u32 s56, s56, 256')
A('s_and_b32 s57, s56, 0xffffe000'); A('s_add_u32 s56, s56, s57'); A(f's_add_u32 s56, s56, {S_M}'); A(f'v_lshl_add_u32 {vSt}, {vN}, 13, {vQ16}'); A(f'v_add_u32 {vSt}, s56, {vSt}')
mod_tile(MM, 2, lambda: (A(f's_and_b32 s57, {sU}, 2'), A('s_lshl_b32 s57, s57, 6'), A('s_add_u32 s56, s56, s57')), vSt, MKA['M'], M_N2, 20, 0)
set_exec(1); A(f'ds_add_u32 {vZ}, {vOne} offset:{F_MP - FLG}'); set_exec(-1)
stamp(3)
V.release(m)
LAB('L_A_main')
mA = V.mark()
vK = V(32); vV = V(32); vQB = V(16); vS = V(8); vP = V(); vM, vLs = V(), V()
A(f's_add_u32 s57, {sWAVE}, {MKA["K0"]}')
lds_wait(5, F_LP, 's57', vT0, sleep=1)
for T in range(2):
    for ks in range(4): A(f'ds_read_b128 {vK[16*T+4*ks:16*T+4*ks+4]}, {aK[ks]} offset:{4096*T}')
stamp(7)
xreads = lambda cs: [x for c in cs for x in (f'ds_read_b64_tr_b16 {vV[4*c:4*c+2]}, {aVx} offset:{8192*c}', f'ds_read_b64_tr_b16 {vV[4*c+2:4*c+4]}, {aVx} offset:{8192*c + 4096}')]
sNV = 's13'
A(f's_mov_b32 {sNV}, 0'); A(f's_mov_b32 s58, {MKA["V0"] + NO - 1}')
lp, ok, nv, n2 = nl('W'), nl('OK'), nl('NV'), nl('N2')
A(f's_mov_b32 {sCNT}, {CFG["limit"]}')
LAB(lp)
A(f'ds_read_b32 {vT1}, {vZ} offset:{F_Q - FLG}'); A(f'ds_read_b32 {vT2}, {vZ} offset:{F_LP - FLG}')
A('s_waitcnt lgkmcnt(0)')
A(f'v_readfirstlane_b32 {sTMP}, {vT1}'); A(f'v_readfirstlane_b32 s56, {vT2}')
A(f's_cmp_eq_u32 {sTMP}, 1'); A(f's_cbranch_scc1 {ok}')
A('s_cmp_ge_u32 s56, s58'); A(f's_cbranch_scc0 {nv}')
A(f's_cmp_eq_u32 {sNV}, 0'); A(f's_cbranch_scc0 {n2}')
for x in xreads(range(NO)): A(x)
A(f's_mov_b32 {sNV}, 1'); A(f's_mov_b32 s58, {MKA["V0"] + 7}'); A(f's_branch {nv}')
LAB(n2)
for x in xreads(range(NO, 8)): A(x)
A(f's_mov_b32 {sNV}, 2'); A('s_mov_b32 s58, 99')
LAB(nv)
fail_branch(7, lp)
LAB(ok)
for ks in range(4): A(f'ds_read_b128 {vQB[4*ks:4*ks+4]}, {aQB} offset:{64*ks}')
A(pure_read())
stamp(8)
for ks in range(4):
    A(f's_waitcnt lgkmcnt({4-ks})')
    for T in range(2): A(f'v_mfma_f32_16x16x32_bf16 {vS[4*T:4*T+4]}, {vK[16*T+4*ks:16*T+4*ks+4]}, {vQB[4*ks:4*ks+4]}, {0 if ks == 0 else vS[4*T:4*T+4]}')
A('s_waitcnt lgkmcnt(0)'); pure_update()
A('s_mov_b32 s56, 0x3db504f3')
for k in (1, 2, 3):
    dpp('v_mov_b32', vS[0], vS[2*k], None, 'quad_perm:[0,1,2,3]', 1 << k); dpp('v_mov_b32', vS[1], vS[2*k+1], None, 'quad_perm:[0,1,2,3]', 1 << k)
A(f'v_cvt_pk_bf16_f32 {vP}, {vS[0]}, {vS[1]}'); A(f'v_lshlrev_b32 {vS[0]}, 16, {vP}'); A(f'v_and_b32 {vS[1]}, {sHI}, {vP}')
A(f'v_mul_f32 {vS[0]}, s56, {vS[0]}'); A(f'v_mul_f32 {vS[1]}, s56, {vS[1]}')
A(f'v_cvt_pk_bf16_f32 {vP}, {vS[0]}, {vS[1]}'); A(f'v_lshlrev_b32 {vS[0]}, 16, {vP}'); A(f'v_and_b32 {vS[1]}, {sHI}, {vP}')
A(f'v_max_f32 {vM}, {vS[0]}, {vS[1]}'); row_allred('v_max_f32', [vM], (4, 8)); xrow_allred('v_max_f32', vM, vT0)
A(f'v_mul_f32 {vT1}, {sL2E}, {vM}')
for i in range(2): A(f'v_fma_f32 {vS[i]}, {vS[i]}, {sL2E}, -{vT1}')
for i in range(2): A(f'v_exp_f32 {vS[i]}, {vS[i]}')
set_exec(0xf); A(f'ds_write_b32 {aMw}, {vM}'); set_exec(-1)
A(f'v_cvt_pk_bf16_f32 {vP}, {vS[0]}, {vS[1]}'); A(f'v_add_f32 {vLs}, {vS[0]}, {vS[1]}')
A(f'ds_write_b32 {aPw}, {vP}')
set_exec(1); A(f'ds_add_u32 {vZ}, {vOne} offset:{F_PF - FLG}'); set_exec(-1)
stamp(9)
row_allred('v_add_f32', [vLs], (4, 8)); xrow_allred('v_add_f32', vLs, vT3)
set_exec(0xf); A(f'ds_write_b32 {aMw}, {vLs} offset:4'); set_exec(1); A(f'ds_add_u32 {vZ}, {vOne} offset:{F_SF - FLG}'); set_exec(-1)
vMc = vQB[0:4]; vF1, vF2 = vQB[4], vQB[5]; vFg = vQB[6:8]; vPp = vQB[8:16]; vOa = vK[0:8]; vBm = vK[8:16]; vO = vK[16:20]
lp, ok = nl('W'), nl('OK')
A(f's_mov_b32 {sCNT}, {CFG["limit"]}')
LAB(lp)
A(f'ds_read_b64 {vFg}, {vZ}')
A(f'ds_read_b128 {vPp[0:4]}, {aPr}'); A(f'ds_read_b128 {vPp[4:8]}, {aPr} offset:256'); A(f'ds_read2_b64 {vMc}, {aMr} offset0:0 offset1:4')
A('s_waitcnt lgkmcnt(3)')
A(f'v_readfirstlane_b32 {sTMP}, {vFg[1]}'); A(f'v_readfirstlane_b32 s57, {vFg[0]}')
A(f's_cmp_eq_u32 {sTMP}, 8'); A(f's_cbranch_scc1 {ok}')
fail_branch(8, lp)
LAB(ok)
stamp(10)
def pvx(cs, waits=None):
    for i, c in enumerate(cs):
        b = vBm[4*(c & 1):4*(c & 1)+4]
        for p in range(4): A(f'v_and_b32 {b[p]}, {vMg[c >> 1]}, {vPp[4*(c & 1)+p]}')
        if waits: A(f's_waitcnt lgkmcnt({waits[i]})')
        acc = vOa[4*(c & 1):4*(c & 1)+4]
        A(f'v_mfma_f32_16x16x32_bf16 {acc}, {vV[4*c:4*c+4]}, {b}, {0 if c < 2 else acc}')
def factors():
    A(f'v_max_f32 {vT0}, {vMc[0]}, {vMc[2]}'); row_allred('v_max_f32', [vT0], (4, 8))
    A(f'v_sub_f32 {vF1}, {vMc[0]}, {vT0}'); A(f'v_sub_f32 {vF2}, {vMc[2]}, {vT0}'); A(f'v_mul_f32 {vF1}, {sL2E}, {vF1}'); A(f'v_mul_f32 {vF2}, {sL2E}, {vF2}')
    A(f'v_exp_f32 {vF1}, {vF1}'); A(f'v_exp_f32 {vF2}, {vF2}')
A(f's_cmp_eq_u32 {sNV}, 2'); A('s_cbranch_scc0 L_A_vlate')
A('s_waitcnt lgkmcnt(1)')
pvx(range(8))
A('s_waitcnt lgkmcnt(0)'); factors()
LAB('L_A_pvdone')
for i in range(4): A(f'v_mul_f32 {vO[i]}, {vF1}, {vOa[i]}')
for i in range(4): A(f'v_fmac_f32 {vO[i]}, {vF2}, {vOa[4+i]}')
dpp('v_add_f32', vT1, vO[0], vO[0], 'row_ror:8', 0x3); dpp('v_add_f32', vT2, vO[2], vO[2], 'row_ror:8', 0x3)
dpp('v_add_f32', vT1, vO[1], vO[1], 'row_ror:8', 0xc); dpp('v_add_f32', vT2, vO[3], vO[3], 'row_ror:8', 0xc)
dpp('v_add_f32', vT0, vT1, vT1, 'row_ror:12', 0x5); dpp('v_add_f32', vT0, vT2, vT2, 'row_ror:4', 0xa)
tagf(vT0, vT0, vTg)
lstore([f'global_store_dword {aAst}, {vT0}, {pLB}'])
set_exec(1); A(f'ds_add_u32 {vZ}, {vOne} offset:{F_AP - FLG}'); set_exec(-1)
stamp(11)
A(f's_cmp_ge_u32 {sWAVE}, 4'); A('s_cbranch_scc1 L_A_end')
V.release(mP)
aDst, aMV, aX2, aX2b, aGu, aDn, aCst, aCld, v8qr = [V() for _ in range(9)]
vMk = V(4, 1); vMd = V(4, 1)
A(f'v_lshl_add_u32 {v8qr}, {vQ}, 3, {vR}')
A(f's_and_b32 s54, {sU}, 7'); A(f's_lshl_b32 s58, {sWAVE}, 9')
A(f'v_lshl_add_u32 {vT0}, {vN}, 6, {vQ16}')
A(f's_lshl_b32 s57, {sU}, 11'); A(f's_add_u32 s57, s57, {B1}'); A('s_add_u32 s56, s57, s58'); A(f'v_add_u32 {aDst}, s56, {vT0}')
A(f's_lshl_b32 s56, {sU}, 10'); A(f's_add_u32 s56, s56, {w8}'); A(f's_add_u32 s56, s56, {A_}'); A(f'v_add_u32 {aCst}, s56, {vT0}')
A(f'v_lshlrev_b32 {vT0}, 4, {vR}'); A(f'v_and_b32 {vT1}, 2, {vL}'); A(f'v_lshl_add_u32 {vT0}, {vT1}, 2, {vT0}'); A(f'v_lshl_add_u32 {vT0}, {vQ}, 1, {vT0}'); A(f'v_and_b32 {vT1}, 1, {vL}'); A(f'v_add_u32 {vT0}, {vT0}, {vT1}')
A('s_lshl_b32 s56, s54, 8'); A(f'v_lshl_add_u32 {vT0}, {vT0}, 4, s56'); A(f'v_and_b32 {vT0}, 2047, {vT0}')
A(f'v_add_u32 {aX2}, {X2}, {vT0}'); A(f'v_add_u32 {aMV}, {MV}, {vT0}'); A(f'v_xor_b32 {vT0}, 1024, {vT0}'); A(f'v_add_u32 {aX2b}, {X2}, {vT0}')
A(f'v_and_b32 {vT0}, 1, {vQ}'); A(f'v_lshl_add_u32 {vT0}, {vT0}, 2, {vR}'); A(f'v_lshlrev_b32 {vT0}, 5, {vT0}'); A(f'v_add_u32 {vT1}, {w7}, {vC8}')
if CFG['gsw']: A(f'v_xor_b32 {vT1}, {vT1}, {vT0}')
A(f'v_lshl_add_u32 {aGu}, {v8qr}, 9, {vT1}'); A(f'v_add_u32 {aGu}, {GU}, {aGu}')
A(f'v_and_b32 {vT0}, 1, {vQ}'); A(f'v_lshl_add_u32 {vT0}, {vT0}, 3, {vR}'); A(f'v_lshl_add_u32 {aDn}, {vT0}, 10, {vC8}'); A(f'v_lshrrev_b32 {vT1}, 1, {vQ}'); A(f'v_lshl_add_u32 {aDn}, {vT1}, 5, {aDn}')
A(f's_add_u32 s56, {w8}, {DN}'); A(f'v_add_u32 {aDn}, s56, {aDn}')
if CFG['gsw']:
    A(f'v_and_b32 {vT0}, 1, {vQ}'); A(f'v_lshl_add_u32 {vT0}, {vR}, 1, {vT0}'); A(f'v_lshlrev_b32 {vT0}, 5, {vT0}'); A(f'v_xor_b32 {aDn}, {aDn}, {vT0}')
A(f'v_bfe_u32 {vT0}, {vL}, 2, 1'); A(f'v_lshrrev_b32 {aCld}, 3, {vL}'); A(f'v_lshl_add_u32 {aCld}, {vT0}, 3, {aCld}'); A(f'v_lshlrev_b32 {aCld}, 10, {aCld}')
A(f'v_lshl_add_u32 {aCld}, {vC}, 4, {aCld}'); A(f's_lshl_b32 s56, {sU}, 6'); A(f's_add_u32 s56, s56, {A_}'); A(f'v_add_u32 {aCld}, s56, {aCld}')
for j in range(4):
    A(f'v_cmp_eq_u32 vcc, {j}, {vN}'); A(f'v_cndmask_b32 {vMk[j]}, 0, -1, vcc')
for jj in range(4):
    if jj: A(f'v_add_u32 {vT1}, 2, {vT1}')
    A(f'v_cmp_eq_u32 vcc, {vT1}, {vN}'); A(f'v_cndmask_b32 {vMd[jj]}, 0, -1, vcc')
A(f's_mov_b32 {sCM}, {M_N4 & 0xffffffff:#x}'); A(f's_cmp_eq_u32 {sWAVE}, 3'); A(f's_cselect_b32 {sCM}, {M_N2 & 0xffffffff:#x}, {sCM}')
vGu = V(32); vDn = V(16); vSB = V(4); vT1v = V(4); vXs = [V(8) for _ in range(CFG['LK'])]; vXr = vXs[0]; vXx = V(8); vHp = V(2); vBm = V(8); vD = V(4); vSum, vSq = V(), V()
A(f'global_load_dword {vDUM}, {aX2}, {pLB} sc1'); A(f'global_load_dword {vDUM}, {aX2b}, {pLB} sc1')
mv_loads = [f'global_load_dwordx4 {vXr[0:4]}, {aMV}, {pLB} sc1', f'global_load_dwordx4 {vXr[4:8]}, {aMV}, {pLB} offset:2048 sc1']
lds_wait(15, F_LP, MKA['GU'], vT0, sleep=1)
for x in mv_loads: A(x)
for j in range(4):
    A(f'v_xor_b32 {vT1}, {32*j}, {aGu}')
    for ks in range(2):
        r = vGu[8*j+4*ks:8*j+4*ks+4]
        A(f'ds_read_b64_tr_b16 {r[0:2]}, {vT1} offset:{16384*ks}'); A(f'ds_read_b64_tr_b16 {r[2:4]}, {vT1} offset:{16384*ks + 2048}')
    if j == 1: A('s_waitcnt lgkmcnt(4)')
lds_wait(16, F_LP, MKA['DN'], vT0)
for jj in range(4):
    A(f'v_xor_b32 {vT1}, {64*jj}, {aDn}'); A(f'ds_read_b64_tr_b16 {vDn[4*jj:4*jj+2]}, {vT1}'); A(f'ds_read_b64_tr_b16 {vDn[4*jj+2:4*jj+4]}, {vT1} offset:4096')
poll(13, mv_loads, [vXr[i] for i in range(8)], [vSB[i] for i in range(4)] + [vT1v[i] for i in range(4)], sT16, 0xffff, vCH, issued=True)
A('s_waitcnt lgkmcnt(0)')
stamp(6)
ppoll(17, CFG['LK'], CFG['lgap'], lambda r: [f'global_load_dwordx4 {r[0:4]}, {aX2}, {pLB} sc1', f'global_load_dwordx4 {r[4:8]}, {aX2b}, {pLB} sc1'], 2, vXs, [vXx[i] for i in range(8)], sT16, 0xffff)
stamp(12)
A(f'v_add_f32 {vSum}, {vXx[0]}, {vXx[1]}'); A(f'v_mul_f32 {vSq}, {vXx[0]}, {vXx[0]}')
A(f'v_add_f32 {vT0}, {vXx[2]}, {vXx[3]}'); A(f'v_mul_f32 {vT1}, {vXx[1]}, {vXx[1]}')
for i in range(2, 8): A(f'v_fmac_f32 {vSq if i % 2 == 0 else vT1}, {vXx[i]}, {vXx[i]}')
A(f'v_add_f32 {vT2}, {vXx[4]}, {vXx[5]}'); A(f'v_add_f32 {vT3}, {vXx[6]}, {vXx[7]}'); A(f'v_add_f32 {vSum}, {vSum}, {vT0}'); A(f'v_add_f32 {vT2}, {vT2}, {vT3}')
A(f'v_add_f32 {vSq}, {vSq}, {vT1}'); A(f'v_add_f32 {vSum}, {vSum}, {vT2}')
A(f'v_permlane32_swap_b32 {vSum}, {vSq}'); A(f'v_add_f32 {vSum}, {vSum}, {vSq}')
A(f'v_mov_b32 {vSq}, {vSum}'); A(f'v_permlane16_swap_b32 {vSum}, {vSq}'); A(f'v_add_f32 {vSum}, {vSum}, {vSq}')
row_allred('v_add_f32', [vSum])
A(f'v_mul_f32 {vSum}, 0x3b000000, {vSum}')
A(f'v_mov_b32 {vSq}, {vSum}'); A(f'v_permlane32_swap_b32 {vSum}, {vSq}')
A(f'v_fma_f32 {vSq}, -{vSum}, {vSum}, {vSq}'); A(f'v_max_f32 {vSq}, 0, {vSq}'); A(f'v_add_f32 {vSq}, 0x3727c5ac, {vSq}'); A(f'v_rsq_f32 {vSq}, {vSq}')
for i in range(4): A(f'v_sub_f32 {vXx[i]}, {vXx[i]}, {vSum}')
for i in range(4): A(f'v_mul_f32 {vT1v[i]}, {vSq}, {vT1v[i]}')
for i in range(4): A(f'v_fma_f32 {vXx[i]}, {vXx[i]}, {vT1v[i]}, {vSB[i]}')
for i in range(2): A(f'v_cvt_pk_bf16_f32 {vHp[i]}, {vXx[2*i]}, {vXx[2*i+1]}')
k = 0
sk = nl('S')
for j in range(4):
    if j == 2: A(f's_cmp_eq_u32 {sWAVE}, 3'); A(f's_cbranch_scc1 {sk}')
    for ks in range(2):
        b = vBm[4*(k & 1):4*(k & 1)+4]
        for p in range(4): dpp('v_and_b32', b[p], vHp[p & 1], vMk[j], f'row_newbcast:{2*ks + (p >> 1)}')
        A(f'v_mfma_f32_16x16x32_bf16 {vD}, {vGu[8*j+4*ks:8*j+4*ks+4]}, {b}, {0 if k == 0 else vD}'); k += 1
LAB(sk)
for r in range(4): tagf(vD[r], vD[r], vTgb)
A(f's_mov_b32 exec_lo, {sCM}'); A(f's_mov_b32 exec_hi, {sCM}')
lstore([f'global_store_dwordx4 {aCst}, {vD}, {pLB}'])
set_exec(-1)
stamp(13)
vG = vXx
A(f's_cmp_ge_u32 {sU}, 14'); A('s_cbranch_scc1 L_A_zero')
if CFG['LK'] > 1: A('s_waitcnt vmcnt(1)')
ppoll(18, CFG['LK'], CFG['lgap'], lambda r: [f'global_load_dwordx4 {r}, {aCld}, {pLB} sc1'], 1, [r[0:4] for r in vXs], [vG[i] for i in range(4)], sT6b, TM)
tred4(vG)
dpp('v_add_f32', vG[0], vG[0], vG[0], 'row_ror:8')
rnd(vG[0], vG[0])
A(f'v_mul_f32 {vT0}, {sL2E}, {vG[0]}'); A(f'v_exp_f32 {vT0}, -{vT0}'); A(f'v_add_f32 {vT0}, 1.0, {vT0}'); A(f'v_rcp_f32 {vT0}, {vT0}'); rnd(vT0, vT0)
dpp('v_mul_f32', vT0, vG[0], vT0, 'row_ror:12')
A(f'v_mov_b32 {vT1}, {vT0}'); A(f'v_permlane32_swap_b32 {vT0}, {vT1}'); A(f'v_cvt_pk_bf16_f32 {vT0}, {vT0}, {vT1}')
A(f'v_mov_b32 {vT1}, {vT0}'); A(f'v_permlane16_swap_b32 {vT0}, {vT1}')
vHh = vSB
for rowm, q0 in ((0x5, 0), (0xa, 2)):
    dpp('v_mov_b32', vHh[0], vT0, None, f'row_newbcast:{q0}', row=rowm); dpp('v_mov_b32', vHh[1], vT1, None, f'row_newbcast:{q0}', row=rowm)
    dpp('v_mov_b32', vHh[2], vT0, None, f'row_newbcast:{q0+1}', row=rowm); dpp('v_mov_b32', vHh[3], vT1, None, f'row_newbcast:{q0+1}', row=rowm)
for jj in range(4):
    b = vBm[4*(jj & 1):4*(jj & 1)+4]
    for p in range(4): A(f'v_and_b32 {b[p]}, {vMd[jj]}, {vHh[p]}')
    A(f'v_mfma_f32_16x16x32_bf16 {vD}, {vDn[4*jj:4*jj+4]}, {b}, {0 if jj == 0 else vD}')
for r in range(4): tagf(vD[r], vD[r], vTgb)
LAB('L_A_pub')
set_exec(M_N8)
lstore([f'global_store_dwordx4 {aDst}, {vD}, {pLB}'])
set_exec(-1)
stamp(14)
LAB('L_A_end')
end_wave()
LAB('L_A_zero')
for r in range(4): A(f'v_mov_b32 {vD[r]}, {vTgb}')
A('s_branch L_A_pub')
LAB('L_A_vlate')
sk = nl('S')
A(f's_cmp_eq_u32 {sNV}, 1'); A(f's_cbranch_scc1 {sk}')
lds_wait(9, F_LP, MKA['V0'] + NO - 1, vT0)
for x in xreads(range(NO)): A(x)
LAB(sk)
A('s_waitcnt lgkmcnt(0)')
A(f'ds_read_b32 {vT2}, {vZ}')
for x in xreads(range(NO, 7)): A(x)
pvx(range(NO)); factors()
A(f's_waitcnt lgkmcnt({2*(7 - NO)})')
sk = nl('S')
A(f'v_readfirstlane_b32 {sTMP}, {vT2}'); A(f's_cmp_ge_u32 {sTMP}, {MKA["V0"] + 6}'); A(f's_cbranch_scc1 {sk}')
lds_wait(50, F_LP, MKA['V0'] + 6, vT0)
for x in xreads(range(NO, 7)): A(x)
LAB(sk)
A(f'ds_read_b32 {vT2}, {vZ}')
for x in xreads([7]): A(x)
pvx(range(NO, 7), [3 + 2*(6 - c) for c in range(NO, 7)])
lp, ok = nl('W'), nl('OK')
A(f's_mov_b32 {sCNT}, {CFG["limit"]}')
LAB(lp)
A('s_waitcnt lgkmcnt(2)')
A(f'v_readfirstlane_b32 {sTMP}, {vT2}'); A(f's_cmp_ge_u32 {sTMP}, {MKA["V0"] + 7}'); A(f's_cbranch_scc1 {ok}')
A(f'ds_read_b32 {vT2}, {vZ}')
for x in xreads([7]): A(x)
fail_branch(51, lp)
LAB(ok)
pvx([7], [0])
A('s_branch L_A_pvdone')
vg_A = V.hi
LAB('L_A9')
V.release(mP)
aQld, aQw = V(), V(); vQs = [V(16) for _ in range(CFG['QK'])]; vQx = V(16); vQp = V(4)
A(f'v_lshlrev_b32 {aQld}, 4, {vL}'); A(f'v_add_u32 {aQld}, {Q_}, {aQld}')
A(f'v_lshrrev_b32 {vT0}, 5, {vL}'); A(f'v_mul_u32_u24 {vT0}, {QS}, {vT0}'); A(f'v_and_b32 {vT1}, 31, {vL}'); A(f'v_lshl_add_u32 {aQw}, {vT1}, 3, {vT0}'); A(f'v_add_u32 {aQw}, {QL}, {aQw}')
A('s_barrier')
epoch_wait()
pure_phase()
lds_wait(37, F_LP, MKA['K0'] + CFG['qstart'], vT0, sleep=1)
stamp(7)
ppoll(6, CFG['QK'], CFG['qgap'], lambda r: [f'global_load_dwordx4 {r[4*k:4*k+4]}, {aQld}, {pLB} offset:{1024*k} sc1' for k in range(4)], 4, vQs, [vQx[i] for i in range(16)], sT6, TM)
for i in range(8): A(f'v_add_f32 {vQx[i]}, {vQx[i]}, {vQx[8+i]}')
for i in range(4): A(f'v_cvt_pk_bf16_f32 {vQp[i]}, {vQx[2*i]}, {vQx[2*i+1]}')
A(f'ds_write_b64 {aQw}, {vQp[0:2]}'); A(f'ds_write_b64 {aQw}, {vQp[2:4]} offset:{2*QS}'); flag(F_Q)
stamp(8)
vFl = vQx[0:8]; vMc = vQx[8:12]; vML4 = vQx[12:16]; vF1, vF2 = vQp[0], vQp[1]
A(f'v_lshl_add_u32 {vT3}, {vR}, 6, {vC8}'); A(f'v_add_u32 {vT3}, {MLL}, {vT3}')
A(f's_lshl_b32 s56, {sU}, 6'); A(f's_add_u32 s56, s56, {MLG}'); A(f'v_lshl_add_u32 {vT2}, {vL}, 4, s56')
A(f'v_mov_b32 {vML4[2]}, {sE}'); A(f'v_mov_b32 {vML4[3]}, {sE}')
lds_wait(39, F_SF, 8, vT0)
A(f'ds_read2_b64 {vMc}, {vT3} offset0:0 offset1:4'); A(pure_read())
A('s_waitcnt lgkmcnt(0)'); pure_update()
A(f'v_max_f32 {vML4[0]}, {vMc[0]}, {vMc[2]}'); row_allred('v_max_f32', [vML4[0]], (4, 8))
A(f'v_sub_f32 {vF1}, {vMc[0]}, {vML4[0]}'); A(f'v_sub_f32 {vF2}, {vMc[2]}, {vML4[0]}'); A(f'v_mul_f32 {vF1}, {sL2E}, {vF1}'); A(f'v_mul_f32 {vF2}, {sL2E}, {vF2}')
A(f'v_exp_f32 {vF1}, {vF1}'); A(f'v_exp_f32 {vF2}, {vF2}')
A(f'v_mul_f32 {vML4[1]}, {vF1}, {vMc[1]}'); A(f'v_fmac_f32 {vML4[1]}, {vF2}, {vMc[3]}'); row_allred('v_add_f32', [vML4[1]], (4, 8))
tagf(vML4[0], vML4[0], vTg); tagf(vML4[1], vML4[1], vTg)
set_exec(0xf)
lstore([f'global_store_dwordx4 {vT2}, {vML4}, {pLB}'])
set_exec(-1)
stamp(9)
aGa = vQs[1][0]; vG8 = vQs[0][0:8]; vGx8 = vQs[0][8:16]; vMod = vQs[1][2:4]; aMs = vQs[1][1]
A('s_waitcnt vmcnt(0)')
A(f's_lshr_b32 s56, {sU}, 1'); A('s_lshl_b32 s56, s56, 8'); A(f's_and_b32 s57, {sU}, 1'); A('s_lshl_b32 s57, s57, 7'); A('s_add_u32 s56, s56, s57'); A(f's_add_u32 s56, s56, {S_MR}')
A(f'v_lshlrev_b32 {aGa}, 11, {vQ}'); A(f'v_lshl_add_u32 {aGa}, {vN}, 2, {aGa}'); A(f'v_add_u32 {aGa}, s56, {aGa}')
A(f's_lshl_b32 s56, {sU}, 7'); A(f'v_lshl_add_u32 {aMs}, {vN}, 2, s56'); A(f'v_lshrrev_b32 {vT0}, 1, {vQ}'); A(f'v_lshl_add_u32 {aMs}, {vT0}, 11, {aMs}')
A(f'v_xor_b32 {vT0}, {vT0}, {vQ}'); A(f'v_and_b32 {vT0}, 1, {vT0}'); A(f'v_mov_b32 {vT1}, {GAB}'); A(f'v_mov_b32 {vT2}, {MV}'); A(f'v_cmp_eq_u32 vcc, 1, {vT0}'); A(f'v_cndmask_b32 {vT1}, {vT1}, {vT2}, vcc'); A(f'v_add_u32 {aMs}, {aMs}, {vT1}')
lp, ok = nl('P'), nl('OK')
A(f's_mov_b32 {sCNT}, {CFG["limit"]}')
LAB(lp)
for i in range(4):
    if i: A(f'v_add_u32 {vT0}, {8192*i}, {aGa}')
    A(f'global_load_dword {vG8[i]}, {vT0 if i else aGa}, {pWS} sc1'); A(f'global_load_dword {vG8[4+i]}, {vT0 if i else aGa}, {pWS} offset:64 sc1')
A('s_waitcnt vmcnt(0)')
check([vG8[i] for i in range(8)], [vGx8[i] for i in range(8)], sT6, TM, vCH)
A(f's_cbranch_vccz {ok}'); fail_branch(22, lp); LAB(ok)
A(f'v_cmp_eq_u32 vcc, 2, {vQ}')
for h in range(2):
    for a, b in ((0, 1), (2, 3), (0, 2)): A(f'v_add_f32 {vGx8[4*h+a]}, {vGx8[4*h+a]}, {vGx8[4*h+b]}')
    rnd(vMod[h], vGx8[4*h])
    A(f'v_add_f32 {vT0}, 1.0, {vMod[h]}'); rnd(vT0, vT0)
    A(f'v_cndmask_b32 {vMod[h]}, {vMod[h]}, {vT0}, vcc'); A(f'v_or_b32 {vMod[h]}, {sT16}, {vMod[h]}')
lstore([f'global_store_dword {aMs}, {vMod[0]}, {pLB}', f'global_store_dword {aMs}, {vMod[1]}, {pLB} offset:64'])
stamp(11)
end_wave()
vg_A = max(vg_A, V.hi)

LAB('L_W')
V.release(mP)
sRED = 's13'
A(f's_mov_b32 {sRED}, 0')
A(f's_cmp_eq_u32 {sWAVE}, 9'); A('s_cbranch_scc1 L_W9')
aWq, aH, aHw, aHr, aQst, aWo, aBst, aOb, v8qr, vXc = [V() for _ in range(10)]
vMk = V(4, 1)
A(f'v_lshl_add_u32 {v8qr}, {vQ}, 3, {vR}')
A(f's_and_b32 s54, {sU}, 7'); A(f's_lshr_b32 s55, {sU}, 3')
A(f'v_lshl_add_u32 {aWq}, {v8qr}, 7, {vC8}'); A(f'v_add_u32 {aWq}, {w5}, {aWq}')
A('s_lshl_b32 s56, s55, 10'); A(f'v_lshl_add_u32 {aH}, {vL}, 4, s56')
A(f's_lshl_b32 s58, {sWAVE}, 9'); A(f's_add_u32 s56, s58, {HL}'); A(f'v_lshl_add_u32 {aHw}, {vL}, 3, s56'); A(f'v_add_u32 {aHr}, s56, {vQ16}')
A('s_lshl_b32 s56, s55, 11'); A('s_lshl_b32 s57, s54, 8'); A('s_add_u32 s56, s56, s57'); A(f's_add_u32 s56, s56, {w6}'); A(f's_add_u32 s56, s56, {Q_}'); A(f'v_add_u32 {aQst}, s56, {vQ16}')
A(f'v_and_b32 {vT0}, 1, {vQ}'); A(f'v_lshl_add_u32 {vT0}, {vT0}, 2, {vR}'); A(f'v_lshlrev_b32 {vT0}, 5, {vT0}')
A(f'v_add_u32 {vT1}, {w7}, {vC8}'); A(f'v_xor_b32 {vT1}, {vT1}, {vT0}'); A(f'v_lshl_add_u32 {aWo}, {v8qr}, 10, {vT1}'); A(f'v_add_u32 {aWo}, {WO}, {aWo}')
A(f'v_add_u32 {aOb}, {OB}, {vQ16}')
A(f'v_lshl_add_u32 {vT0}, {vN}, 6, {vQ16}')
A(f's_lshl_b32 s57, {sU}, 11'); A(f's_add_u32 s57, s57, {B1}'); A(f's_add_u32 s56, s57, {w8}'); A(f'v_add_u32 {aBst}, s56, {vT0}')
for j in range(4):
    A(f'v_cmp_eq_u32 vcc, {j}, {vN}'); A(f'v_cndmask_b32 {vMk[j]}, 0, -1, vcc')
A('s_barrier')
epoch_wait()
stamp(1)
def probe():
    if CFG['near']:
        sk = nl('S')
        A(f's_cmp_eq_u32 {sWAVE}, 7'); A(f's_cbranch_scc0 {sk}')
        A(f's_lshl_b32 s56, {sU}, 3'); A(f's_add_u32 s56, s56, {sG}'); A('s_lshl_b32 s56, s56, 7'); A('s_and_b32 s57, s56, 0x2000'); A('s_add_u32 s56, s56, s57'); A(f's_add_u32 s56, s56, {PROBE}')
        A(f's_add_u32 s56, {lo(pWS)}, s56'); A(f's_addc_u32 s57, {hi(pWS)}, 0')
        A('s_mov_b32 s52, -1'); A('s_mov_b32 s53, -1')
        for rep in range(CFG['near']):
            for c in range(2):
                A('s_memtime s[84:85]'); A('s_waitcnt lgkmcnt(0)')
                A(f's_load_dword s54, s[56:57], {8192*c} glc'); A('s_waitcnt lgkmcnt(0)')
                A('s_memtime s[86:87]'); A('s_waitcnt lgkmcnt(0)')
                A('s_sub_u32 s54, s86, s84'); A(f's_min_u32 s{52+c}, s{52+c}, s54')
            A('s_cmp_lt_u32 s52, s53'); A('s_cselect_b32 s54, 1, 2'); A(f'v_mov_b32 {vT0}, s54'); A(f'ds_write_b32 {vZ}, {vT0} offset:{F_CP - FLG}')
        if CFG['stamps']: A('s_mov_b32 s88, s52'); A('s_mov_b32 s90, s53')
        stamp(2)
        LAB(sk)
A(f's_cmp_ge_u32 {sWAVE}, 4'); A('s_cbranch_scc0 L_W_03')
m = V.mark()
vSt = V()
A(f's_lshl_b32 s56, {sU}, 3'); A(f's_add_u32 s56, s56, {sG}'); A('s_lshl_b32 s56, s56, 8'); A(f's_add_u32 s56, s56, {w6}'); A(f's_add_u32 s56, s56, {S_MR - 256}'); A(f'v_add_u32 {vSt}, s56, {vQ16}')
mod_tile(MR, 4, lambda: None, vSt, MKW['MR'], M_N0, 21, 2, before_wait=probe)
set_exec(-1)
stamp(4)
A('s_branch L_W_att')
V.release(m)
LAB('L_W_03')
A(f's_sub_u32 s57, {sWAVE}, 1'); A('s_cmp_lt_u32 s57, 2'); A('s_cbranch_scc0 L_W_main')
A(f's_mov_b32 {sRED}, 1')
m = V.mark()
vWq = V(32); mH = V.mark()
vMean, vVar, vAd, vAd2, vHs = V(), V(), V(), V(), V(); vU = V(8); vRs = [V(4) for _ in range(CFG['G1K'])]; vSa, vCa = vU[0], vU[1]
A(f's_lshl_b32 {sSL}, {sU}, 1'); A(f's_add_u32 {sSL}, {sSL}, s57')
A(f's_lshl_b32 s56, {sSL}, 6'); A(f'v_lshl_add_u32 {vHs}, {vN}, 2, s56')
A(f's_and_b32 s56, {sSL}, 3'); A('s_lshl_b32 s56, s56, 6'); A(f's_lshr_b32 s57, {sSL}, 2'); A('s_lshl_b32 s57, s57, 8'); A('s_add_u32 s56, s56, s57'); A(f's_add_u32 s56, s56, {S_M}')
A(f'v_lshlrev_b32 {vT0}, 12, {vQ}'); A(f'v_and_b32 {vT1}, 0x2000, {vT0}'); A(f'v_add_u32 {vT0}, {vT0}, {vT1}'); A(f'v_lshlrev_b32 {vT1}, 2, {vN}'); A(f'v_add3_u32 {vAd}, {vT0}, {vT1}, s56'); A(f'v_add_u32 {vAd2}, 32768, {vAd}')
A('s_waitcnt vmcnt(0)')
for j in range(4):
    A(f'v_lshlrev_b32 {vU[2*j]}, 16, {vX[j]}'); A(f'v_and_b32 {vU[2*j+1]}, {sHI}, {vX[j]}')
A(f'v_add_f32 {vMean}, {vU[0]}, {vU[1]}')
for j in range(2, 8): A(f'v_add_f32 {vMean}, {vMean}, {vU[j]}')
row_allred('v_add_f32', [vMean]); xrow_allred('v_add_f32', vMean, vT0)
A(f'v_mul_f32 {vMean}, 0x3b000000, {vMean}')
for j in range(8): A(f'v_sub_f32 {vU[j]}, {vU[j]}, {vMean}')
A(f'v_mul_f32 {vVar}, {vU[0]}, {vU[0]}')
for j in range(1, 8): A(f'v_fmac_f32 {vVar}, {vU[j]}, {vU[j]}')
row_allred('v_add_f32', [vVar]); xrow_allred('v_add_f32', vVar, vT0)
A(f'v_mul_f32 {vVar}, 0x3b000000, {vVar}')
rnd(vMean, vMean); rnd(vVar, vVar)
A(f'v_add_f32 {vVar}, 0x3727c5ac, {vVar}'); rnd(vVar, vVar)
A(f'v_sqrt_f32 {vVar}, {vVar}'); rnd(vVar, vVar)
A(f'v_lshlrev_b32 {vXc}, 16, {vXd}'); A(f'v_sub_f32 {vXd}, {vXc}, {vMean}'); rnd(vXd, vXd)
A(f'v_rcp_f32 {vT0}, {vVar}'); A(f'v_mul_f32 {vT1}, {vXd}, {vT0}'); A(f'v_fma_f32 {vT2}, -{vT1}, {vVar}, {vXd}'); A(f'v_fma_f32 {vXd}, {vT2}, {vT0}, {vT1}')
rnd(vXd, vXd)
stamp(2)
mQ = V.mark()
def wq_read(vWq):
    lds_wait(3, F_LP, MKW['WQ'], vT0)
    for ks in range(8):
        A(f'ds_read_b64_tr_b16 {vWq[4*ks:4*ks+2]}, {aWq} offset:{WQ + ks*4096}'); A(f'ds_read_b64_tr_b16 {vWq[4*ks+2:4*ks+4]}, {aWq} offset:{WQ + ks*4096 + 512}')
        if ks == 3: A('s_waitcnt lgkmcnt(4)')
wq_read(vWq)
near_update(); A(f'v_add_u32 {vAd}, {sCP}, {vAd}'); A(f'v_add_u32 {vAd2}, {sCP}, {vAd2}')
ppoll(1, CFG['G1K'], CFG['ggap'], lambda r: [gld(r[0], vAd, 0, 'gat1'), gld(r[1], vAd, 2048, 'gat1'), gld(r[2], vAd2, 0, 'gat1'), gld(r[3], vAd2, 2048, 'gat1')], 4, vRs, [vU[i] for i in range(4)], sT6, TM, extra=[pure_read()])
stamp(3)
A(f'v_add_f32 {vSa}, {vSa}, {vU[2]}'); A(f'v_add_f32 {vCa}, {vCa}, {vU[3]}')
A(f'v_permlane32_swap_b32 {vSa}, {vCa}'); A(f'v_add_f32 {vSa}, {vSa}, {vCa}')
A(f'v_mov_b32 {vCa}, {vSa}'); A(f'v_permlane16_swap_b32 {vSa}, {vCa}'); A(f'v_add_f32 {vSa}, {vSa}, {vCa}')
rnd(vSa, vSa)
A(f'v_mov_b32 {vCa}, {vSa}'); A(f'v_permlane32_swap_b32 {vSa}, {vCa}')
A(f'v_add_f32 {vCa}, 1.0, {vCa}'); rnd(vCa, vCa)
A(f'v_mul_f32 {vCa}, {vXd}, {vCa}'); rnd(vCa, vCa)
A(f'v_add_f32 {vCa}, {vCa}, {vSa}'); rnd(vCa, vCa)
A(f'v_or_b32 {vCa}, {sT16}, {vCa}')
A('s_waitcnt lgkmcnt(0)'); pure_update()
set_exec(0xffff)
lstore([f'global_store_dword {vHs}, {vCa}, {pLB} offset:{H_}'])
set_exec(-1)
flag(F_G1)
A('s_branch L_W_q')
LAB('L_W_main')
A(f'global_load_dword {vDUM}, {aH}, {pLB} sc1')
wq_read(vWq)
stamp(4)
lds_wait(30, F_G1, 1, vT0, sleep=1)
LAB('L_W_q')
V.release(mH)
vHB = V(32); vAq = V(4); vHs2 = [V(4) for _ in range(CFG['LK'])]; vHx = V(4); vHp = V(2)
ppoll(4, CFG['LK'], CFG['lgap'], lambda r: [f'global_load_dwordx4 {r}, {aH}, {pLB} offset:{H_} sc1'], 1, vHs2, [vHx[i] for i in range(4)], sT16, 0xffff, extra=[pure_read()])
stamp(5)
A(f'v_perm_b32 {vHp[0]}, {vHx[1]}, {vHx[0]}, {sSEL}'); A(f'v_perm_b32 {vHp[1]}, {vHx[3]}, {vHx[2]}, {sSEL}')
A(f'ds_write_b64 {aHw}, {vHp}')
for ks in range(8): A(f'ds_read_b128 {vHB[4*ks:4*ks+4]}, {aHr} offset:{64*ks}')
for ks in range(8):
    A(f's_waitcnt lgkmcnt({7-ks})')
    if ks == 0: pure_update()
    A(f'v_mfma_f32_16x16x32_bf16 {vAq}, {vWq[4*ks:4*ks+4]}, {vHB[4*ks:4*ks+4]}, {0 if ks == 0 else vAq}')
for r in range(4): tagf(vAq[r], vAq[r], vTg)
set_exec(M_N0)
lstore([f'global_store_dwordx4 {aQst}, {vAq}, {pLB}'])
set_exec(-1)
flag(F_QP)
stamp(6)
A('s_waitcnt vmcnt(0)')
V.release(m)
A(f's_cmp_eq_u32 {sRED}, 1'); A('s_cbranch_scc0 L_W_att')
vRs = [V(4) for _ in range(4)]; vRx = V(4); vG2s, vG2l, vX2s, vOut, aR1, aGa, vMod, vGb, vMVs = [V() for _ in range(9)]; vG4 = V(4)
A(f's_lshl_b32 s57, {sSL}, 5'); A(f'v_lshl_add_u32 {vOut}, {vN}, 1, s57')
A(f'v_lshrrev_b32 {vT2}, 5, {vL}'); A(f'v_lshl_add_u32 {vG2s}, {vC}, 2, {vT2}'); A(f'v_and_b32 {vT2}, 1, {vQ}'); A(f'v_lshl_add_u32 {vG2s}, {vT2}, 1, {vG2s}')
vG3s, vG3l = V(), V()
A(f's_lshl_b32 s56, {sSL}, 10'); A('s_and_b32 s57, s56, 0xffffe000'); A('s_add_u32 s56, s56, s57')
A(f's_lshl_b32 s57, {sG}, 7'); A('s_add_u32 s57, s57, s56'); A(f'v_lshl_add_u32 {vG2s}, {vG2s}, 2, s57')
A(f'v_lshlrev_b32 {vG2l}, 7, {vQ}'); A(f'v_lshl_add_u32 {vG2l}, {vN}, 2, {vG2l}'); A(f'v_add_u32 {vG2l}, s56, {vG2l}')
A(f'v_and_b32 {vT2}, 1, {vR}'); A(f'v_lshl_add_u32 {vG2s}, {vT2}, 13, {vG2s}'); A(f'v_add_u32 {vG2s}, {G2}, {vG2s}')
A(f'v_add_u32 {vG3s}, {G3 - G2}, {vG2s}')
A(f's_lshl_b32 s56, {sSL}, 6'); A(f's_add_u32 s57, s56, {X2}'); A(f'v_lshl_add_u32 {vX2s}, {vN}, 2, s57')
if CFG['gpt'] == 1:
    set_exec(M_N8); A(f'global_load_dword {vDUM}, {vG2s}, {pWS}'); A(f'global_load_dword {vDUM}, {vG3s}, {pWS}'); set_exec(-1)
if CFG['gpt'] == 2:
    A(f'v_not_b32 {vT0}, {vTg}'); set_exec(M_N8); A(f'global_store_dword {vG2s}, {vT0}, {pWS} sc1'); A(f'global_store_dword {vG3s}, {vT0}, {pWS} sc1'); set_exec(-1)
A(f'v_lshrrev_b32 {vT2}, 2, {vL}'); A(f'v_lshlrev_b32 {aR1}, 11, {vT2}'); A(f'v_lshl_add_u32 {aR1}, {vC}, 4, {aR1}')
A(f's_lshl_b32 s56, {sSL}, 6'); A(f's_add_u32 s57, s56, {B1}'); A(f'v_add_u32 {aR1}, s57, {aR1}')
A(f's_add_u32 s57, s56, {GAB}'); A(f'v_lshl_add_u32 {aGa}, {vN}, 2, s57')
A(f'global_load_dword {vDUM}, {aR1}, {pLB} sc1'); A(f'global_load_dword {vDUM}, {aGa}, {pLB} sc1'); A(f'global_load_dword {vDUM}, {aGa}, {pLB} offset:2048 sc1')
lds_wait(46, F_WI, 1, vT0, sleep=1)
near_update()
A(f's_add_u32 s57, {sCP}, {G2}'); A(f'v_add_u32 {vG2l}, s57, {vG2l}'); A(f'v_add_u32 {vG3l}, {G3 - G2}, {vG2l}')
stamp(11)
LAB('L_W_att')
vWo = V(16); vOb = V(4); vBm = V(8); vD = V(4)
lds_wait(11, F_LP, MKW['WO'], vT0, sleep=1)
for j in range(4):
    A(f'v_xor_b32 {vT0}, {32*j}, {aWo}'); A(f'ds_read_b64_tr_b16 {vWo[4*j:4*j+2]}, {vT0}'); A(f'ds_read_b64_tr_b16 {vWo[4*j+2:4*j+4]}, {vT0} offset:4096')
A(pure_read())
A('s_waitcnt lgkmcnt(0)'); pure_update()
stamp(7)
A('s_barrier')
A(f'ds_read_b128 {vOb}, {aOb}')
A('s_waitcnt lgkmcnt(0)')
for j in range(4):
    b = vBm[4*(j & 1):4*(j & 1)+4]
    for p in range(4): A(f'v_and_b32 {b[p]}, {vMk[j]}, {vOb[p]}')
    A(f'v_mfma_f32_16x16x32_bf16 {vD}, {vWo[4*j:4*j+4]}, {b}, {0 if j == 0 else vD}')
for r in range(4): tagf(vD[r], vD[r], vTg)
set_exec(M_N4)
lstore([f'global_store_dwordx4 {aBst}, {vD}, {pLB}'])
set_exec(-1)
stamp(10)
A(f's_cmp_eq_u32 {sRED}, 1'); A('s_cbranch_scc0 L_W_end')
gab_loads = [f'global_load_dword {vG4[0]}, {aGa}, {pLB} sc1', f'global_load_dword {vG4[1]}, {aGa}, {pLB} offset:2048 sc1']
def reduce16(code, tag, vS_, mask, extra=()):
    ppoll(code, CFG['LK'], CFG['lgap'], lambda r: [f'global_load_dwordx4 {r}, {aR1}, {pLB} sc1'], 1, vRs, [vRx[i] for i in range(4)], tag, TM)
    for x in extra: A(x)
    tred4(vRx)
    row_allred('v_add_f32', [vRx[0]], (4, 8))
    tagf(vRx[0], vRx[0], vTg)
    set_exec(mask)
    A(f'global_store_dword {vS_}, {vRx[0]}, {pWS} sc1'); set_exec(-1)
def gather8(code, vG2l, n):
    if CFG['gd' + n]: A(f's_sleep {CFG["gd" + n]}')
    ppoll(code, CFG['GK' + n], CFG['ggap'], lambda r: [gld(r[0], vG2l, 0, 'gat' + n), gld(r[1], vG2l, 512, 'gat' + n)], 2, [r[0:2] for r in vRs], [vRx[0], vRx[1]], sT6, TM)
    A(f'v_add_f32 {vRx[0]}, {vRx[0]}, {vRx[1]}'); xrow_allred('v_add_f32', vRx[0], vT0)
    rnd(vRx[0], vRx[0])
reduce16(23, sT6, vG2s, M_N8 if CFG['rep'] else M_N4, gab_loads)
stamp(12)
gather8(24, vG2l, '2')
lp, ok = nl('P'), nl('OK')
check([vG4[0], vG4[1]], [vMod, vGb], sT16, 0xffff, vCH); A(f's_cbranch_vccz {ok}')
poll(52, gab_loads, [vG4[0], vG4[1]], [vMod, vGb], sT16, 0xffff, vCH)
LAB(ok)
stamp(13)
A(f'v_mul_f32 {vRx[0]}, {vMod}, {vRx[0]}'); rnd(vRx[0], vRx[0])
A(f'v_add_f32 {vXc}, {vXc}, {vRx[0]}'); rnd(vXc, vXc)
A(f'v_or_b32 {vT0}, {sT16}, {vXc}')
set_exec(0xffff)
lstore([f'global_store_dword {vX2s}, {vT0}, {pLB}'])
set_exec(-1)
reduce16(25, sT6b, vG3s, M_N8 if CFG['rep'] else M_N4)
stamp(14)
A(f's_and_b32 s56, {sSL}, 7'); A(f's_cmp_eq_u32 s56, {sG}'); A('s_cbranch_scc0 L_W_end')
gather8(26, vG3l, '3')
A(f'v_mul_f32 {vRx[0]}, {vGb}, {vRx[0]}'); rnd(vRx[0], vRx[0])
A(f'v_add_f32 {vXc}, {vXc}, {vRx[0]}'); A(f'v_cvt_pk_bf16_f32 {vXc}, {vXc}, {vXc}')
set_exec(0xffff); A(f'global_store_short {vOut}, {vXc}, {pOUT}')
A(f's_cmp_eq_u32 {sSL}, 0'); A('s_cbranch_scc0 L_W_end2')
set_exec(1); A(f'v_mov_b32 {vT0}, {EP}'); A(f'v_mov_b32 {vT1}, {sE}'); A(f'global_store_dword {vT0}, {vT1}, {pWS} sc1')
if CFG['amp']:
    A('s_memrealtime s[94:95]'); A('s_waitcnt lgkmcnt(0)'); A('s_sub_u32 s56, s94, s92'); A(f's_mul_i32 s56, s56, {1 + CFG["amp"]}'); A('s_min_u32 s56, s56, 100000')
    LAB('L_amp'); A('s_memrealtime s[94:95]'); A('s_waitcnt lgkmcnt(0)'); A('s_sub_u32 s57, s94, s92'); A('s_cmp_lt_u32 s57, s56'); A('s_cbranch_scc1 L_amp')
LAB('L_W_end2')
set_exec(-1)
stamp(15)
LAB('L_W_end')
end_wave()

vg_W = V.hi
LAB('L_W9')
V.release(mP)
aML, aA1, aA2, aOw = V(), V(), V(), V(); vMr = V(8); vMx = V(4); vAs = [V(8) for _ in range(CFG['LK'])]; vAx = V(8); vW1, vW2 = V(), V()
A(f'v_lshrrev_b32 {vT0}, 3, {vL}'); A(f'v_and_b32 {vT1}, 7, {vL}')
A(f's_lshr_b32 s57, {sU}, 2'); A('s_lshl_b32 s56, s57, 4'); A(f's_add_u32 s56, s56, {MLG}'); A(f'v_lshl_add_u32 {aML}, {vT0}, 6, s56')
A('s_lshl_b32 s56, s57, 9'); A(f's_and_b32 s57, {sU}, 3'); A('s_lshl_b32 s57, s57, 7'); A('s_add_u32 s56, s56, s57'); A(f's_add_u32 s56, s56, {A_}')
A(f'v_lshlrev_b32 {aA1}, 11, {vT0}'); A(f'v_lshl_add_u32 {aA1}, {vT1}, 4, {aA1}'); A(f'v_add_u32 {aA1}, s56, {aA1}'); A(f'v_add_u32 {aA2}, 16384, {aA1}')
A(f'v_lshrrev_b32 {vT0}, 5, {vL}'); A(f'v_lshl_add_u32 {aOw}, {vT1}, 2, {vT0}'); A(f'v_and_b32 {vT0}, 1, {vQ}'); A(f'v_lshl_add_u32 {aOw}, {vT0}, 1, {aOw}'); A(f'v_lshlrev_b32 {aOw}, 1, {aOw}'); A(f'v_add_u32 {aOw}, {OB}, {aOw}')
A('s_barrier')
epoch_wait()
pure_phase()
lds_wait(35, F_QP, 1, vT0, sleep=2)
if CFG['hall']:
    A(f'v_lshlrev_b32 {vT3}, 3, {vN}'); A(f'v_add_u32 {vT3}, {HINT}, {vT3}')
else:
    A(f's_lshl_b32 s56, {sU}, 3'); A(f's_add_u32 s56, s56, {HINT}'); A(f'v_mov_b32 {vT3}, s56')
lp, ok = nl('P'), nl('OK')
A(f's_mov_b32 {sCNT}, {CFG["limit"]}')
LAB(lp)
A(f'global_load_dword {vT0}, {vT3}, {pLB} sc1'); A('s_waitcnt vmcnt(0)')
A(f'v_cmp_ne_u32 vcc, {sE}, {vT0}'); A(f's_cbranch_vccz {ok}')
fail_branch(44, lp)
LAB(ok)
flag(F_GO)
stamp(6)
A(f'global_load_dword {vDUM}, {aA1}, {pLB} sc1'); A(f'global_load_dword {vDUM}, {aA2}, {pLB} sc1'); A(f'global_load_dword {vDUM}, {aML}, {pLB} sc1'); A(f'global_load_dword {vDUM}, {aML}, {pLB} offset:512 sc1')
lds_wait(36, F_WI, 1, vT0, sleep=1)
stamp(7)
a_loads = lambda r: [f'global_load_dwordx4 {r[0:4]}, {aA1}, {pLB} sc1', f'global_load_dwordx4 {r[4:8]}, {aA2}, {pLB} sc1']
ml_loads = [f'global_load_dwordx4 {vMr[0:4]}, {aML}, {pLB} sc1', f'global_load_dwordx4 {vMr[4:8]}, {aML}, {pLB} offset:512 sc1']
def weights():
    A(f'v_max_f32 {vT0}, {vMx[0]}, {vMx[2]}'); row_allred('v_max_f32', [vT0], (8,)); xrow_allred('v_max_f32', vT0, vT1)
    A(f'v_sub_f32 {vW1}, {vMx[0]}, {vT0}'); A(f'v_sub_f32 {vW2}, {vMx[2]}, {vT0}'); A(f'v_mul_f32 {vW1}, {sL2E}, {vW1}'); A(f'v_mul_f32 {vW2}, {sL2E}, {vW2}')
    A(f'v_exp_f32 {vW1}, {vW1}'); A(f'v_exp_f32 {vW2}, {vW2}')
    A(f'v_mul_f32 {vT0}, {vW1}, {vMx[1]}'); A(f'v_fmac_f32 {vT0}, {vW2}, {vMx[3]}'); row_allred('v_add_f32', [vT0], (8,)); xrow_allred('v_add_f32', vT0, vT1)
    A(f'v_rcp_f32 {vT0}, {vT0}'); A(f'v_mul_f32 {vW1}, {vW1}, {vT0}'); A(f'v_mul_f32 {vW2}, {vW2}, {vT0}')
    stamp(8)
if CFG['mlb']:
    poll(12, ml_loads + a_loads(vAs[0]), [vMr[i] for i in (0, 1, 4, 5)] + [vAs[0][i] for i in range(8)], [vMx[i] for i in range(4)] + [vAx[i] for i in range(8)], sT6, TM, vCH, full=[vMr[i] for i in (2, 3, 6, 7)])
    weights()
else:
    poll(10, ml_loads, [vMr[i] for i in (0, 1, 4, 5)], [vMx[i] for i in range(4)], sT6, TM, vCH, full=[vMr[i] for i in (2, 3, 6, 7)])
    poll(12, a_loads(vAs[0]), [vAs[0][i] for i in range(8)], [vAx[i] for i in range(8)], sT6, TM, vCH, shadow=weights)
stamp(9)
for i in range(4): A(f'v_mul_f32 {vAx[i]}, {vW1}, {vAx[i]}')
for i in range(4): A(f'v_fmac_f32 {vAx[i]}, {vW2}, {vAx[4+i]}')
tred4(vAx)
dpp('v_add_f32', vAx[0], vAx[0], vAx[0], 'row_ror:8')
A(f'v_cvt_pk_bf16_f32 {vT0}, {vAx[0]}, {vAx[0]}')
A(f'ds_write_b16 {aOw}, {vT0}'); A('s_waitcnt lgkmcnt(0)'); A('s_barrier')
end_wave()
vg_W = max(vg_W, V.hi)

LAB('L_loader')
V = Alloc('v', 1, 64)
vO1, vT0, vT1, vLin, vZ, vMark, vX, vOne = [V() for _ in range(8)]; vKo = V(4, 1); vVo = V(2, 1)
adv = lambda p: [f's_add_u32 s{p}, s{p}, 4096', f's_addc_u32 s{p+1}, s{p+1}, 0', 's_add_u32 m0, m0, 4096']
pend = []
def post(mark, st):
    A(f'v_mov_b32 {vMark}, {mark}')
    if CFG['vgate'] < 8: set_exec(1); A(f'ds_max_u32 {vZ}, {vMark}'); set_exec(-1)
    else: A(f'ds_write_b32 {vZ}, {vMark}')
    if st.get(mark): stamp(st[mark])
def retire_to(n, st):
    while len(pend) > n:
        mk = pend.pop(0)
        if mk is not None or len(pend) == n:
            A(f's_waitcnt vmcnt({len(pend)})')
            if mk is not None: post(mk, st)
def run(items, st, bar):
    for win, pre, ins, mk in items:
        if len(pend) >= win:
            if not bar: stamp(1); A('s_barrier'); bar = True
            retire_to(win - 1, st)
        for x in pre: A(x)
        if isinstance(ins, tuple):
            A(f's_mov_b64 exec, {ins[0]}'); A(ins[1]); A('s_mov_b64 exec, -1')
        else: A(ins)
        pend.append(mk)
    return bar
A(f'v_mov_b32 {vZ}, {FLG}'); A(f'v_mov_b32 {vOne}, 1'); A(f'v_lshlrev_b32 {vLin}, 4, {vL}')
A(f's_cmp_ge_u32 {sT}, 16'); A('s_cbranch_scc1 L_loaderW')
setup = [f'v_lshrrev_b32 {vT0}, 4, {vL}', f'v_and_b32 {vT1}, 15, {vL}']
for m in range(4):
    setup += [f'v_add_u32 {vX}, {4*m}, {vT0}', f'v_xor_b32 {vX}, {vX}, {vT1}' if CFG['ksw'] else f'v_mov_b32 {vX}, {vT1}', f'v_lshlrev_b32 {vX}, 4, {vX}', f'v_lshl_add_u32 {vKo[m]}, {vT0}, 8, {vX}']
for m in range(2):
    setup += [f'v_add_u32 {vX}, {4*m}, {vT0}', f'v_lshlrev_b32 {vX}, 1, {vX}', f'v_xor_b32 {vX}, {vX}, {vT1}', f'v_lshlrev_b32 {vX}, 4, {vX}', f'v_lshl_add_u32 {vVo[m]}, {vT0}, 8, {vX}']
setup += [f's_lshl_b32 s56, {sG}, 22', f's_lshl_b32 s57, {sU}, {12 if CFG["kvi"] else 16}', 's_add_u32 s56, s56, s57', 's_add_u32 s56, s56, 0x300000',
          f's_add_u32 s62, {lo(pK)}, s56', f's_addc_u32 s63, {hi(pK)}, 0', f's_add_u32 s60, {lo(pV)}, s56', f's_addc_u32 s61, {hi(pV)}, 0']
if CFG['kvi']:
    def advk(p, c):
        d = 17 if CFG['kvi'] == 1 else 16
        if CFG['kvi'] == 2: return [f's_add_u32 s{p}, s{p}, 65536', f's_addc_u32 s{p+1}, s{p+1}, 0', 's_add_u32 m0, m0, 4096']
        return [f's_cmp_eq_u32 {sU}, {16 - c}', f's_cselect_b32 s56, 4096, s55', f's_add_u32 s{p}, s{p}, s56', f's_addc_u32 s{p+1}, s{p+1}, 0', 's_add_u32 m0, m0, 4096']
    setup += [f's_mov_b32 s55, {17*4096}']
else:
    advk = lambda p, c: adv(p)
sec = {}
sec['K'] = [[0, [f's_mov_b32 m0, {KK}'] if i == 0 else advk(62, i // 4) if i % 4 == 0 else [], f'global_load_lds_dwordx4 {vKo[i % 4]}, s[62:63] offset:{1024*(i % 4)}{NT}', MKA['K0'] + i // 8 if i % 8 == 7 else None] for i in range(64)]
sec['V'] = [[0, [f's_mov_b32 m0, {VV}'] if i == 0 else advk(60, i // 4) if i % 4 == 0 else [], f'global_load_lds_dwordx4 {vVo[i & 1]}, s[60:61] offset:{1024*(i % 4)}{NT}', MKA['V0'] + i // 8 if i % 8 == 7 else None] for i in range(64)]
items = [None] * 8 + sec['K'] + sec['V']
items[8][1] = setup + items[8][1]
for i, it in list(enumerate(items))[8:]: it[0] = CFG['WA0'] if i < CFG['WA0'] + CFG['NA0'] else CFG['WA']
stA = {MKA['K0'] + 7: 3, MKA['V0'] + 7: 4, MKA['M']: 2}
if CFG['trace']:
    stA = {MKA['M']: 2, MKA['K0'] + 1: 3, MKA['K0'] + 3: 4, MKA['K0'] + 5: 5, MKA['K0'] + 7: 6}
    stA.update({MKA['V0'] + i: 7 + i for i in range(8)})
hint_at = len(items) - 64 + 8 * CFG['hint']
def hint():
    A('s_waitcnt lgkmcnt(0)'); A(f's_add_u32 {sE}, {sE}, 1'); A(f'v_mov_b32 {vMark}, {sE}')
    A(f's_mul_i32 s53, {sG}, {LBS}'); A(f's_lshl_b32 s56, {sU}, 3'); A('s_add_u32 s53, s53, s56'); A(f's_add_u32 s53, s53, {LB0 + HINT}'); A(f'v_mov_b32 {vX}, s53')
items[8][1] = [f's_load_dword {sE}, {pWS}, {EP}'] + items[8][1]
n0 = 8 + CFG['X0']
pend += [None] * 7 + [MKA['M']]
run([(63, *x[1:]) for x in items[8:n0]], stA, True)
stamp(1); A('s_barrier')
retire_to(CFG['X0'], stA)
n1 = n0 + (CFG['mpw'] - 1 if CFG['mpw'] else 0)
run(items[n0:n1], stA, True)
if not CFG['only'] and CFG['mpw']: lds_wait(45, F_MP, 4, vT0)
gate_at = len(items) - 64 + 8 * CFG['vgate']
def do_hint():
    retire_to(min(len(pend), CFG['hret']), stA)
    hint()
    A(f'ds_read_b32 {vT0}, {vZ} offset:{F_PURE - FLG}'); A('s_waitcnt lgkmcnt(0)'); A(f'v_readfirstlane_b32 {sPURE}, {vT0}')
    set_exec(1)
    lstore([f'global_store_dword {vX}, {vMark}, {pWS}'])
    set_exec(-1)
    pend.append(None)
def do_gate():
    if CFG['only'] or CFG['vgate'] >= 8: return
    dn = nl('GD')
    marks = [(len(pend) - 1 - i, mk) for i, mk in enumerate(pend) if mk is not None]
    for left, mk in marks:
        A(f'ds_read_b32 {vT0}, {vZ} offset:{F_Q - FLG}'); A('s_waitcnt lgkmcnt(0)'); A(f'v_readfirstlane_b32 {sTMP}, {vT0}'); A(f's_cmp_eq_u32 {sTMP}, 1'); A(f's_cbranch_scc1 {dn}')
        A(f's_waitcnt vmcnt({left})'); post(mk, {})
    lds_wait(47, F_Q, 1, vT0)
    LAB(dn)
pos = n1
for at, fn in sorted([(gate_at, do_gate), (hint_at + 0.5, do_hint)], key=lambda x: x[0]):
    run(items[pos:int(at)], stA, True); pos = max(pos, int(at)); fn()
run(items[pos:], stA, True)
retire_to(0, stA)
A(f's_and_b32 s54, {sU}, 7'); A(f's_lshr_b32 s55, {sU}, 3')
items = []
vGx = V(4, 1)
for i in range(32):
    if i == 0:
        pre = [f'v_lshrrev_b32 {vT0}, 5, {vL}', f'v_and_b32 {vT1}, 31, {vL}', f'v_mul_u32_u24 {vO1}, 3584, {vT0}',
               f's_mul_i32 s56, s54, {64*3584}', f's_mul_i32 s57, {sG}, 448', 's_add_u32 s56, s56, s57', f'v_add_u32 {vO1}, s56, {vO1}']
        for v in range(4):
            f0 = 2 * (v & 1) + 4 * (v >> 1)
            pre += [f'v_add_u32 {vX}, {f0}, {vT0}', f'v_lshlrev_b32 {vX}, 1, {vX}', f'v_xor_b32 {vX}, {vX}, {vT1}' if CFG['gsw'] else f'v_mov_b32 {vX}, {vT1}',
                    f'v_cmp_gt_u32 s[{84+2*v}:{85+2*v}], 28, {vX}', f'v_lshl_add_u32 {vGx[v]}, {vX}, 4, {vO1}']
        pre += ['s_cmp_ge_u32 s55, 1', f's_cselect_b32 s58, {lo(pWU)}, {lo(pWG)}', f's_cselect_b32 s59, {hi(pWU)}, {hi(pWG)}', f's_mov_b32 m0, {GU}']
    else: pre = [f's_add_u32 s58, s58, {2*3584}', 's_addc_u32 s59, s59, 0', 's_add_u32 m0, m0, 1024']
    v = (i & 1) | (((i >> 2) & 1) << 1)
    items.append((CFG['WG'], pre, (f's[{84+2*v}:{85+2*v}]', f'global_load_lds_dwordx4 {vGx[v]}, s[58:59]{NT}'), MKA['GU'] if i == 31 else None))
for i in range(16):
    pre = []
    if i == 0: pre = [f's_min_u32 s57, {sU}, 13', f's_mul_i32 s56, {sG}, {224*1024}', 's_lshl_b32 s57, s57, 14', 's_add_u32 s56, s56, s57', f's_add_u32 s58, {lo(pWD)}, s56', f's_addc_u32 s59, {hi(pWD)}, 0', f's_mov_b32 m0, {DN}']
    elif i % 4 == 0: pre = adv(58)
    fd = ((i & 3) << 1) | ((i >> 3) & 1)
    pre = pre + [f'v_xor_b32 {vX}, {32*fd if CFG["gsw"] else 0}, {vLin}']
    items.append((CFG['WG'], pre, f'global_load_lds_dwordx4 {vX}, s[58:59] offset:{1024*(i % 4)}{NT}', MKA['DN'] if i == 15 else None))
for x in items[0][1]: A(x)
items[0] = (items[0][0], [], *items[0][2:])
if not CFG['only']:
    lds_wait(42, F_AP, 8, vT0, sleep=1)
if not CFG['trace']: stA.update({MKA['GU']: 7, MKA['DN']: 8})
run(items, stA, True)
retire_to(0, stA)
A('s_waitcnt lgkmcnt(0)')
end_wave()
LAB('L_loaderW')
A(f's_and_b32 s54, {sU}, 7'); A(f's_lshr_b32 s55, {sU}, 3')
stW = {MKW['WQ']: 2, MKW['MR']: 6, MKW['WO']: 5}
pend += [None] * 31 + [MKW['WQ']]
if CFG['pv']:
    assert CFG['kvi'] == 2
    A(f's_lshl_b32 s56, {sG}, 22'); A(f's_lshl_b32 s57, {sU}, 12'); A('s_add_u32 s56, s56, s57'); A(f's_add_u32 s56, s56, {0x300000 + (16 - CFG["pv"]) * 65536}')
    A(f's_add_u32 s60, {lo(pV)}, s56'); A(f's_addc_u32 s61, {hi(pV)}, 0'); A(f's_mov_b32 m0, {WO}')
    fl = '' if CFG['pvf'] == '-' else ' ' + CFG['pvf']
    for b in range(CFG['pv']):
        if b: A('s_add_u32 s60, s60, 65536'); A('s_addc_u32 s61, s61, 0')
        for i in range(4): A(f'global_load_lds_dwordx4 {vLin}, s[60:61] offset:{1024*i}{fl}'); pend.append(None)
    assert len(pend) <= 63
for x in [f'v_lshrrev_b32 {vT0}, 3, {vL}', f'v_and_b32 {vT1}, 7, {vL}', f'v_mul_u32_u24 {vO1}, 6144, {vT0}', f'v_lshl_add_u32 {vO1}, {vT1}, 4, {vO1}',
          f's_lshr_b32 s56, {sU}, 2', f's_mul_i32 s56, s56, {128*6144}', f's_and_b32 s57, {sU}, 3', 's_lshl_b32 s57, s57, 10', 's_add_u32 s56, s56, s57',
          f's_lshl_b32 s57, {sG}, 7', 's_add_u32 s56, s56, s57', 's_add_u32 s56, s56, 2048', f'v_add_u32 {vO1}, s56, {vO1}']: A(x)
stamp(1); A('s_barrier')
retire_to(0, stW)
if CFG['only'] == 'loaderA': end_wave()
if not CFG['only']: lds_wait(48, F_QP, 1, vT0, sleep=1)
run([(63, [f's_mov_b32 m0, {MR}'] if i == 0 else [f'v_add_u32 {vO1}, {8*6144}, {vO1}', 's_add_u32 m0, m0, 1024'], f'global_load_lds_dwordx4 {vO1}, {pWM}{NT}', MKW['MR'] if i == 15 else None) for i in range(16)], stW, True)
retire_to(0, stW)
if CFG['only'] != 'loader': lds_wait(41, F_GO, 1, vT0, sleep=1)
items = []
for i in range(32):
    pre = []
    if i == 0: pre = [f's_lshl_b32 s56, {sG}, 19', f's_lshl_b32 s57, {sU}, 15', 's_add_u32 s56, s56, s57', f's_add_u32 s58, {lo(pWO)}, s56', f's_addc_u32 s59, {hi(pWO)}, 0', f's_mov_b32 m0, {WO}']
    elif i % 4 == 0: pre = adv(58)
    f = (i & 3) | ((i >> 1) & 4)
    pre = pre + [f'v_xor_b32 {vX}, {32*f}, {vLin}']
    items.append((CFG['WO0'] if i < CFG['WO0'] + CFG['NO0'] else CFG['WO1'], pre, f'global_load_lds_dwordx4 {vX}, s[58:59] offset:{1024*(i % 4)}{NT}', MKW['WO'] if i == 31 else None))
run(items, stW, True)
flag(F_WI)
retire_to(0, stW)
if not CFG['only']: A('s_waitcnt lgkmcnt(0)'); A('s_barrier')
A('s_waitcnt lgkmcnt(0)')
end_wave()

for sl, ins, bk in slow_paths:
    LAB(sl)
    for x in ins: A(x)
    A(f's_branch {bk}')
LAB('L_fail')
if CFG['dbgfail']:
    set_exec(1)
    A(f'v_mov_b32 v1, 0x1ffff0'); A(f's_lshl_b32 s56, s2, 16'); A(f's_lshl_b32 s57, {sWAVE}, 8'); A('s_or_b32 s56, s56, s57'); A(f's_or_b32 s56, s56, {sTMP}'); A('v_mov_b32 v2, s56')
    A(f'global_store_dword v1, v2, {pWS} sc1')
    set_exec(-1)
if CFG['stamps']:
    LAB('L_stamps')
    A('s_waitcnt lgkmcnt(0)')
    A('v_mov_b32 v2, 0')
    for i in range(16): A(f'v_writelane_b32 v2, s{64+2*i}, {i}')
    A(f's_lshl_b32 s56, {sT}, 3'); A(f's_add_u32 s56, s56, {sG}'); A(f's_mul_i32 s56, s56, {NW}'); A(f's_add_u32 s56, s56, {sWAVE}'); A('s_lshl_b32 s56, s56, 6'); A(f's_add_u32 s56, s56, {STAMPS}')
    A('v_lshl_add_u32 v1, v0, 2, s56')
    set_exec(0xffff); A(f'global_store_dword v1, v2, {pWS}')
LAB('L_exit')
A('s_endpgm')
LAB('L_codeend')

body = pad_hazards(L)
vg = (max(vg_A, vg_W) + 7) // 8 * 8
hdr = open('cdna_kernels/' + KN + '.s.ref').read().split('; Override launch')[0]
name = KN + '_kernel'
txt = hdr + f"""; @launch grid=(256,1,1) block=({64*NW},1,1) lds={LDS_BYTES}
.amdgcn_target "amdgcn-amd-amdhsa--gfx950"
.text
.globl {name}
.p2align 8
.type {name},@function
{name}:
""" + '\n'.join(body) + f"""
.section .rodata,"a"
.p2align 6
.amdhsa_kernel {name}
  .amdhsa_next_free_vgpr {vg}
  .amdhsa_next_free_sgpr 100
  .amdhsa_accum_offset {vg}
  .amdhsa_group_segment_fixed_size 0
  .amdhsa_kernarg_size 112
  .amdhsa_user_sgpr_count 2
  .amdhsa_user_sgpr_kernarg_segment_ptr 1
  .amdhsa_system_sgpr_workgroup_id_x 1
  .amdhsa_float_denorm_mode_32 3
.end_amdhsa_kernel
"""
open(OUT, 'w').write(txt)
print('vgprs', vg_A, vg_W, 'lines', len(body), file=sys.stderr)
```

```python
import sys
from kasm import pad_hazards, Alloc, Reg

KN = 'adaLN_cond__sliding_block_cached__glu_gated_glu__decode'
CFG = dict(stamps=0, limit=200000, pf=1, dbgfail=1, amp=0, ptries=40,
           WA0=28, NA0=0, WA=28, WO0=24, NO0=0, WO1=24, WG=32, nt=1, only='', early=0, QK=3, qgap=4, GK=1, ggap=2, LK=1, lgap=1,
           qstart=4, prio=0, mrpos=0, rep=1, hint=4, qh=1, qsl=0, HK=3, hgap=3, ksw=1, wqd=0, ampm=0, pv=0, pvf='nt', mlb=0, fpre=1, vgate=8, trace=0, near=4, gat2=1, GK2=3, gd2=0, gat3=1, GK3=3, gd3=0, mrg=0, tlb=0, gat=1, gat1=0, G1K=1, gpt=0, mpt=0, gdly=0, gsw=1, mpw=1, hall=0, hret=63, kvi=1, ilv=0, X0=8, lprio=3, cprio=3)
CFG.update(WA0=48, WA=48, QK=4, qgap=8, qh=0, qstart=2, qsl=0, X0=4, hint=3, GK2=1, gd2=6, hall=1, WO0=32, WO1=32, WG=32, kvi=2, GK=3, ggap=4, gpt=2)
for a in sys.argv[2:]:
    k, v = a.split('=')
    assert k in CFG, k
    CFG[k] = int(v) if v.lstrip('-').isdigit() else v
OUT = sys.argv[1]

EP = 0; S_MR = 0x8000; S_M = 0x10000; G2 = 0x20000; G3 = 0x30000
LB0 = 0x40000; LBS = 0x18000
H_ = 0; MV = 0x800; X2 = 0x1800; MLG = 0x2000; GAB = 0x2400 + 0x4000; HINT = 0x2800; Q_ = 0x3000; A_ = 0x8000; B1 = 0x10000
PROBE = 0x110000
STAMPS = 0x200000
KK = 0; VV = 0x10000; MM = 0x20000; OL = 0x22000
GU = 0; DN = 0x8000
WQ = 0; WO = 0x8000; MR = 0x10000
SC = 0x26800
QL = SC; QS = 320; MLL = SC + 0x600; HL = SC; OB = SC + 0x800; FLG = SC + 0x900; CL = SC + 0xA00
OS = 576
F_LP = FLG; F_PF = FLG + 4; F_PURE = FLG + 52; F_G1 = FLG + 8; F_QP = FLG + 12; F_Q = FLG + 56; F_MD = FLG + 60; F_AP = FLG + 16; F_WI = FLG + 20; F_B1 = FLG + 24; F_O = FLG + 28; F_GA = FLG + 32; F_GO = FLG + 40; F_MP = FLG + 44; F_CP = FLG + 36; F_SF = FLG + 48
PB = OL; PBS = 256
LDS_BYTES = SC + 0xE00
NO = 5
NW = 10
sWAVE, sG, sT, sE, sT6, sT16, sT6b = 's3', 's4', 's5', 's6', 's7', 's8', 's9'
sU, sSL, sCNT, sTMP = 's10', 's11', 's14', 's15'
pX, pK, pV, pWQ, pWO, pBX, pWG, pWU, pWD, pC, pWM, pOUT, pDBG, pWS = [f's[{16+2*i}:{17+2*i}]' for i in range(14)]
pLB = 's[44:45]'; sPURE = 's46'; sMASK = 's47'; sSEL = 's48'; sHI = 's49'; sL2E = 's50'; sCM = 's12'; sCP = 's51'
def lo(p): return 's' + p[2:-1].split(':')[0]
def hi(p): return 's' + p[2:-1].split(':')[1]
TM = 0x3f

L = []
def A(x): L.append('    ' + x)
def LAB(x): L.append(x + ':')
uid = [0]
def nl(p='L'):
    uid[0] += 1; return f'{p}_{uid[0]}'
slow_paths = []
def stamp(i):
    if CFG['stamps'] and (CFG['stamps'] >> i) & 1: A(f's_memrealtime s[{64+2*i}:{65+2*i}]')
def set_exec(mask):
    if mask == -1: A('s_mov_b64 exec, -1'); return
    l, h = mask & 0xffffffff, mask >> 32
    if h == 0 and l <= 64: A(f's_mov_b64 exec, {l}'); return
    A(f's_mov_b32 exec_lo, {l:#x}'); A(f's_mov_b32 exec_hi, {h:#x}')
M_N0 = 0x0001000100010001; M_N4 = 0x000F000F000F000F; M_N8 = 0x00FF00FF00FF00FF; M_N2 = 0x0003000300030003; M_Q0 = 0x1111111111111111
def rnd(d, s):
    A(f'v_cvt_pk_bf16_f32 {d}, {s}, {s}'); A(f'v_and_b32 {d}, {sHI}, {d}')
def dpp(op, d, a, b, ctl, bank=0xf, row=0xf):
    if b is None: A(f'{op}_dpp {d}, {a} {ctl} row_mask:{row:#x} bank_mask:{bank:#x}')
    else: A(f'{op}_dpp {d}, {a}, {b} {ctl} row_mask:{row:#x} bank_mask:{bank:#x}')
def row_allred(op, regs, shifts=(8, 4, 2, 1)):
    for sh in shifts:
        for r in regs: dpp(op, r, r, r, f'row_ror:{sh}')
def xrow_allred(op, v, t):
    A(f'v_mov_b32 {t}, {v}'); A(f'v_permlane16_swap_b32 {v}, {t}'); A(f'{op} {v}, {v}, {t}')
    A(f'v_mov_b32 {t}, {v}'); A(f'v_permlane32_swap_b32 {v}, {t}'); A(f'{op} {v}, {v}, {t}')
def tred4(v):
    A(f'v_permlane32_swap_b32 {v[0]}, {v[1]}'); A(f'v_permlane32_swap_b32 {v[2]}, {v[3]}')
    A(f'v_add_f32 {v[0]}, {v[0]}, {v[1]}'); A(f'v_add_f32 {v[2]}, {v[2]}, {v[3]}')
    A(f'v_permlane16_swap_b32 {v[0]}, {v[2]}'); A(f'v_add_f32 {v[0]}, {v[0]}, {v[2]}')
def fail_branch(code, loop):
    A(f's_sub_u32 {sCNT}, {sCNT}, 1'); A(f's_cbranch_scc0 {loop}')
    if CFG['dbgfail']: A(f's_mov_b32 {sTMP}, {code}')
    A('s_branch L_fail')
def check(raw, out, tag, maskbits, chk, full=()):
    for r, o in zip(raw, out): A(f'v_xor_b32 {o}, {tag}, {r}')
    o = list(out)
    if len(o) == 1: A(f'v_and_b32 {chk}, {maskbits:#x}, {o[0]}'); o = None
    elif len(o) == 2: A(f'v_or_b32 {chk}, {o[0]}, {o[1]}'); o = []
    else: A(f'v_or3_b32 {chk}, {o[0]}, {o[1]}, {o[2]}'); o = o[3:]
    if o is not None:
        while len(o) >= 2: A(f'v_or3_b32 {chk}, {chk}, {o[0]}, {o[1]}'); o = o[2:]
        if o: A(f'v_or_b32 {chk}, {chk}, {o[0]}')
        A(f'v_and_b32 {chk}, {maskbits:#x}, {chk}')
    for r in full: A(f'v_xor_b32 {r}, {sE}, {r}'); A(f'v_or_b32 {chk}, {chk}, {r}')
    A(f'v_cmp_ne_u32 vcc, 0, {chk}')
def poll(code, loads, raw, out, tag, maskbits, chk, full=(), shadow=None, sleep=0, issued=False):
    lp, ok, lw = nl('P'), nl('OK'), nl('PW')
    A(f's_mov_b32 {sCNT}, {CFG["limit"]}')
    if shadow or issued:
        if not issued:
            for x in loads: A(x)
        if shadow: shadow()
        A(f's_branch {lw}')
    LAB(lp)
    if sleep: A(f's_sleep {sleep}')
    for x in loads: A(x)
    LAB(lw)
    A('s_waitcnt vmcnt(0)')
    check(raw, out, tag, maskbits, chk, full)
    A(f's_cbranch_vccz {ok}')
    fail_branch(code, lp)
    LAB(ok)
def ppoll(code, K, gap, mk, nld, sets, out, tag, maskbits, extra=()):
    if K == 1:
        poll(code, mk(sets[0]) + list(extra), [sets[0][i] for i in range(sets[0].n)], out, tag, maskbits, vCH); return
    lp, ok = nl('PP'), nl('OK')
    A(f's_mov_b32 {sCNT}, {CFG["limit"]}')
    for k in range(K - 1):
        for x in mk(sets[k]): A(x)
        if gap: A(f's_sleep {gap}')
    LAB(lp)
    for k in range(K):
        for x in mk(sets[(k + K - 1) % K]): A(x)
        for x in extra: A(x)
        A(f's_waitcnt vmcnt({(K-1)*nld})')
        check([sets[k][i] for i in range(sets[k].n)], out, tag, maskbits, vCH)
        A(f's_cbranch_vccz {ok}')
    fail_branch(code, lp)
    LAB(ok)
def lds_wait(code, off, val, tmp, sleep=0, vaddr=None, spec=()):
    lp, ok, ag = nl('W'), nl('OK'), nl('AG')
    va = vaddr or vZ
    if spec:
        A(f'ds_read_b32 {tmp}, {va} offset:{off - FLG}')
        for x in spec: A(x)
        A(f's_waitcnt lgkmcnt({min(15, len(spec))})')
        A(f'v_readfirstlane_b32 {sTMP}, {tmp}'); A(f's_cmp_ge_u32 {sTMP}, {val}'); A(f's_cbranch_scc1 {ok}')
    A(f's_mov_b32 {sCNT}, {CFG["limit"]}')
    LAB(lp)
    A(f'ds_read_b32 {tmp}, {va} offset:{off - FLG}')
    A('s_waitcnt lgkmcnt(0)')
    A(f'v_readfirstlane_b32 {sTMP}, {tmp}')
    A(f's_cmp_ge_u32 {sTMP}, {val}')
    A(f's_cbranch_scc1 {ag}')
    if sleep: A(f's_sleep {sleep}')
    fail_branch(code, lp)
    LAB(ag)
    for x in spec: A(x)
    LAB(ok)
def lds_wait8(code, off, fl, reads):
    lp, ok, again = nl('W'), nl('OK'), nl('AG')
    def flags():
        A(f'ds_read_b128 {fl[0:4]}, {vZ} offset:{off - FLG}'); A(f'ds_read_b128 {fl[4:8]}, {vZ} offset:{off - FLG + 16}')
    def test():
        A(f'v_and_b32 {fl[0]}, {fl[0]}, {fl[1]}')
        for i in (2, 4, 6): A(f'v_bitop3_b32 {fl[0]}, {fl[0]}, {fl[i]}, {fl[i+1]} bitop3:0x80')
        A(f'v_cmp_eq_u32 vcc, 0, {fl[0]}')
    A(f's_mov_b32 {sCNT}, {CFG["limit"]}')
    LAB(lp)
    flags()
    for x in reads: A(x)
    A(f's_waitcnt lgkmcnt({min(15, len(reads))})')
    test()
    A(f's_cbranch_vccz {ok}')
    fail_branch(code, lp)
    LAB(ok)
def gld(d, a, off=0, key='gat'):
    o = f' offset:{off}' if off else ''
    if CFG[key]: return f'global_atomic_add {d}, {a}, {vZero}, {pWS}{o} sc0 sc1'
    return f'global_load_dword {d}, {a}, {pWS}{o} sc1'
def near_update():
    if not CFG['near']: return
    A(f'ds_read_b32 {vT0}, {vZ} offset:{F_CP - FLG}'); A('s_waitcnt lgkmcnt(0)'); A(f'v_readfirstlane_b32 s56, {vT0}')
    A('s_cmp_eq_u32 s56, 1'); A(f's_cselect_b32 {sCP}, 0, {sCP}'); A('s_cmp_eq_u32 s56, 2'); A(f's_cselect_b32 {sCP}, 0x2000, {sCP}')
def pure_read(): return f'ds_read_b32 {vPU}, {vZ} offset:{F_PURE - FLG}'
def pure_update(): A(f'v_readfirstlane_b32 {sPURE}, {vPU}')
def lstore(instrs):
    sl, bk = nl('SL'), nl('BK')
    A(f's_cmp_eq_u32 {sPURE}, 1'); A(f's_cbranch_scc0 {sl}')
    for x in instrs: A(x)
    LAB(bk)
    slow_paths.append((sl, [x + ' sc1' for x in instrs], bk))
def tagf(d, s, vtag): A(f'v_and_or_b32 {d}, {s}, {sMASK}, {vtag}')
def epoch_wait():
    A('s_waitcnt lgkmcnt(0)')
    A(f's_add_u32 {sE}, {sE}, 1')
    A(f's_and_b32 {sT6}, {sE}, {TM:#x}'); A(f's_and_b32 {sT16}, {sE}, 0xffff'); A(f's_xor_b32 {sT6b}, {sT6}, 0x20')
    A(f'v_mov_b32 {vTg}, {sT6}'); A(f'v_mov_b32 {vTgb}, {sT6b}')
def silu_bf(d, c, t1):
    A(f'v_mul_f32 {t1}, {sL2E}, {c}'); A(f'v_exp_f32 {t1}, -{t1}'); A(f'v_add_f32 {t1}, 1.0, {t1}'); A(f'v_rcp_f32 {t1}, {t1}'); A(f'v_mul_f32 {d}, {c}, {t1}')
def end_wave():
    if CFG['stamps']: A('s_branch L_stamps')
    else: A('s_endpgm')
def flag(off): A(f'ds_write_b32 {vZ}, {vOne} offset:{off - FLG}')
NT = ' nt' if CFG['nt'] else ''
vL = 'v0'
MKA = dict(M=1, K0=2, V0=10, GU=18, DN=19)
MKW = dict(WQ=1, MR=2, WO=3)

LAB('L_start')
stamp(0)
if CFG['amp']: A('s_memrealtime s[92:93]')
A('s_cmp_ge_u32 s2, 256'); A('s_cbranch_scc1 L_exit')
A('s_load_dwordx16 s[16:31], s[0:1], 0'); A('s_load_dwordx8 s[32:39], s[0:1], 64'); A('s_load_dwordx4 s[40:43], s[0:1], 96')
A('v_lshrrev_b32 v1, 6, v0'); A('v_and_b32 v0, 63, v0'); A(f'v_readfirstlane_b32 {sWAVE}, v1')
A(f's_and_b32 {sG}, s2, 7'); A(f's_lshr_b32 {sT}, s2, 3'); A(f's_and_b32 {sU}, {sT}, 15')
V = Alloc('v', 1, 168)
vN, vQ, vR, vC, vT0, vT1, vT2, vT3, vCH, vZ, vTg, vTgb, vPU, vOne, vC8, vQ16, vDUM, vZero = [V() for _ in range(18)]
vX = V(4); vXd = V()
mP = V.mark()
A(f's_cmp_lt_u32 {sWAVE}, 8'); A('s_cbranch_scc1 L_i_c')
A(f's_cmp_eq_u32 {sWAVE}, 9'); A('s_cbranch_scc0 L_i_8')
if CFG['pf']:
    A('s_getpc_b64 s[56:57]')
    LAB('L_pc')
    A('s_sub_u32 s56, s56, L_pc - L_start'); A('s_subb_u32 s57, s57, 0')
    A(f's_and_b32 s58, {sT}, 3'); A('s_lshl_b32 s58, s58, 13'); A(f'v_lshl_add_u32 {vT0}, {vL}, 7, s58'); A(f'v_min_u32 {vT0}, L_codeend - L_start - 4, {vT0}')
    A(f'global_load_dword {vDUM}, {vT0}, s[56:57]')
A('s_branch L_i_9')
LAB('L_i_8')
if CFG['lprio']: A(f's_setprio {CFG["lprio"]}')
A(f'v_lshrrev_b32 v2, 3, {vL}'); A(f'v_and_b32 v3, 7, {vL}'); A(f's_lshl_b32 s58, {sG}, 7')
A(f's_cmp_ge_u32 {sT}, 16'); A('s_cbranch_scc1 L_i_8W')
A('v_mul_u32_u24 v1, 6144, v2'); A(f's_lshr_b32 s56, {sU}, 1'); A(f's_mul_i32 s56, s56, {64*6144}'); A(f's_and_b32 s57, {sU}, 1'); A('s_lshl_b32 s57, s57, 10')
A('s_add_u32 s56, s56, s57'); A('s_add_u32 s56, s56, s58'); A(f's_mov_b32 m0, {MM}'); A(f's_mov_b32 s59, {8*6144}'); A('s_mov_b32 s60, 1')
A('s_waitcnt lgkmcnt(0)'); A(f's_mov_b64 s[62:63], {pWM}')
A('s_branch L_i_8go')
LAB('L_i_8W')
A('v_lshlrev_b32 v1, 13, v2'); A(f's_lshr_b32 s56, {sU}, 3'); A('s_lshl_b32 s56, s56, 21'); A(f's_and_b32 s57, {sU}, 7'); A('s_lshl_b32 s57, s57, 7')
A('s_add_u32 s56, s56, s57'); A('s_lshl_b32 s58, s58, 3'); A('s_add_u32 s56, s56, s58'); A(f's_mov_b32 m0, {WQ}'); A('s_mov_b32 s59, 65536'); A('s_mov_b32 s60, 4')
A('s_waitcnt lgkmcnt(0)'); A(f's_mov_b64 s[62:63], {pWQ}')
for k in range(CFG['wqd']): A(f's_load_dword {sE}, {pWS}, {EP + 4096*k}'); A('s_waitcnt lgkmcnt(0)')
LAB('L_i_8go')
A('v_lshl_add_u32 v1, v3, 4, v1'); A('v_add_u32 v1, s56, v1')
LAB('L_i_8loop')
for _ in range(8): A(f'global_load_lds_dwordx4 v1, s[62:63]{NT}'); A('s_add_u32 m0, m0, 1024'); A('v_add_u32 v1, s59, v1')
A('s_sub_u32 s60, s60, 1'); A('s_cmp_lg_u32 s60, 0'); A('s_cbranch_scc1 L_i_8loop')
A('s_branch L_loader')
LAB('L_i_c')
if CFG['only'].startswith('loader'):
    A('s_waitcnt lgkmcnt(0)'); A('s_barrier'); A('s_branch L_stamps')
A(f's_cmp_ge_u32 {sWAVE}, 4'); A('s_cbranch_scc0 L_i_03')
A(f's_lshr_b32 s56, {sU}, 2'); A('s_lshl_b32 s56, s56, 8'); A(f'v_lshl_add_u32 {vT2}, {vL}, 2, s56')
A('s_waitcnt lgkmcnt(0)')
A(f'global_load_dword {vXd}, {vT2}, {pC}')
A('s_branch L_i_done')
LAB('L_i_03')
A(f'v_lshlrev_b32 {vT0}, 4, {vL}')
A(f's_add_u32 s57, {sWAVE}, 1'); A('s_and_b32 s57, s57, 1'); A(f's_lshl_b32 s56, {sU}, 1'); A('s_add_u32 s56, s56, s57'); A('s_lshl_b32 s56, s56, 5')
A(f'v_and_b32 {vT1}, 15, {vL}'); A(f'v_lshl_add_u32 {vT1}, {vT1}, 1, s56')
A(f's_sub_u32 s57, {sWAVE}, 1'); A(f's_lshr_b32 s56, {sT}, 4'); A('s_xor_b32 s56, s56, 1'); A('s_lshl_b32 s56, s56, 1'); A('s_or_b32 s57, s57, s56')
A('s_waitcnt lgkmcnt(0)')
A('s_cmp_lt_u32 s57, 2'); A('s_cbranch_scc0 L_i_done')
A(f'global_load_dwordx4 {vX}, {vT0}, {pX}'); A(f'global_load_ushort {vXd}, {vT1}, {pX}')
A('s_branch L_i_done')
LAB('L_i_9')
if CFG['only'].startswith('loader'):
    A('s_waitcnt lgkmcnt(0)'); A('s_barrier'); A('s_branch L_stamps')
if CFG['cprio']: A(f's_setprio {CFG["cprio"]}')
A(f'v_lshlrev_b32 {vT1}, 2, {vL}'); A(f'v_add_u32 {vT1}, {FLG}, {vT1}'); A(f'v_mov_b32 {vT2}, 0')
set_exec(0xffffffff); A(f'ds_write_b32 {vT1}, {vT2}'); set_exec(-1)
A('s_getreg_b32 s52, hwreg(HW_REG_XCC_ID)'); A('s_and_b32 s52, s52, 15'); A('s_or_b32 s52, s52, 0x80')
A(f's_lshl_b32 s56, {sG}, 5'); A(f's_add_u32 s57, s56, {sT}'); A(f'v_mov_b32 {vT0}, s57'); A(f'v_mov_b32 {vT1}, s52')
A('s_waitcnt lgkmcnt(0)')
set_exec(1); A(f'global_store_byte {vT0}, {vT1}, {pDBG}')
if CFG['ampm']:
    A(f's_lshl_b32 s57, s57, 2'); A('s_add_u32 s57, s57, 0x180000'); A(f'v_mov_b32 {vT0}, s57'); A(f'v_mov_b32 {vT1}, s92'); A(f'global_store_dword {vT0}, {vT1}, {pWS} sc1')
set_exec(-1)
LAB('L_i_done')
A(f's_load_dword {sE}, {pWS}, {EP}')
A(f's_getreg_b32 {sCP}, hwreg(HW_REG_XCC_ID)'); A(f's_and_b32 {sCP}, {sCP}, {4 if CFG["rep"] else 0}'); A(f's_lshl_b32 {sCP}, {sCP}, 11')
A(f's_mov_b32 {sMASK}, {0xffffffff ^ TM:#x}'); A(f's_mov_b32 {sSEL}, 0x07060302'); A(f's_mov_b32 {sHI}, 0xffff0000'); A(f's_mov_b32 {sL2E}, 0x3fb8aa3b'); A(f's_mov_b32 {sPURE}, 0')
A(f's_mul_i32 s53, {sG}, {LBS}'); A(f's_add_u32 s53, s53, {LB0}'); A(f's_add_u32 {lo(pLB)}, {lo(pWS)}, s53'); A(f's_addc_u32 {hi(pLB)}, {hi(pWS)}, 0')
A(f'v_mov_b32 {vZ}, {FLG}'); A(f'v_mov_b32 {vOne}, 1'); A(f'v_mov_b32 {vZero}, 0')
A(f'v_and_b32 {vN}, 15, {vL}'); A(f'v_lshrrev_b32 {vQ}, 4, {vL}'); A(f'v_bfe_u32 {vR}, {vL}, 2, 2'); A(f'v_and_b32 {vC}, 3, {vL}')
A(f'v_lshlrev_b32 {vC8}, 3, {vC}'); A(f'v_lshlrev_b32 {vQ16}, 4, {vQ}')
w2, w5, w6, w7, w8 = 's59', 's60', 's61', 's62', 's63'
A(f's_lshl_b32 {w2}, {sWAVE}, 2'); A(f's_lshl_b32 {w5}, {sWAVE}, 5'); A(f's_lshl_b32 {w6}, {sWAVE}, 6'); A(f's_lshl_b32 {w7}, {sWAVE}, 7'); A(f's_lshl_b32 {w8}, {sWAVE}, 8')

def pure_phase():
    lp, dn = nl('PP'), nl('PD')
    A('s_mul_i32 s52, s52, 0x01010101'); A(f'v_and_b32 {vT1}, 7, {vL}'); A(f's_lshl_b32 s56, {sG}, 5'); A(f'v_lshl_add_u32 {vT1}, {vT1}, 2, s56')
    A(f's_mov_b32 {sCNT}, {CFG["ptries"]}')
    LAB(lp)
    A(f'global_load_dword {vT0}, {vT1}, {pDBG} sc1'); A('s_waitcnt vmcnt(0)')
    A(f'v_cmp_ne_u32 vcc, s52, {vT0}'); A(f's_cbranch_vccz {lp}_ok')
    A(f's_sub_u32 {sCNT}, {sCNT}, 1'); A(f's_cbranch_scc0 {lp}'); A(f's_branch {dn}')
    LAB(lp + '_ok')
    flag(F_PURE)
    LAB(dn)
    stamp(2)

A(f's_cmp_ge_u32 {sT}, 16'); A('s_cbranch_scc1 L_W')
A(f's_cmp_eq_u32 {sWAVE}, 9'); A('s_cbranch_scc1 L_A9')
aK = V(4, 1); aQB, aMw, aMr, aVx, aPw, aPr, aAst = [V() for _ in range(7)]; vMg = V(4, 1)
A(f's_lshl_b32 s58, {sWAVE}, 13')
A(f'v_xor_b32 {vT0}, {vQ}, {vN}'); A(f'v_lshlrev_b32 {vT0}, 4, {vT0}'); A(f'v_lshl_add_u32 {vT0}, {vN}, 8, {vT0}'); A(f'v_add_u32 {aK[0]}, s58, {vT0}')
for ks in range(1, 4): A(f'v_xor_b32 {aK[ks]}, {64*ks}, {aK[0]}')
A(f'v_mul_u32_u24 {aQB}, {QS}, {vC}'); A(f'v_add3_u32 {aQB}, {aQB}, {vQ16}, {vZ}'); A(f'v_add_u32 {aQB}, {QL - FLG}, {aQB}')
A(f's_add_u32 s56, {w5}, {MLL}'); A(f'v_add_u32 {aMw}, s56, {vC8}')
A(f'v_lshl_add_u32 {aMr}, {vR}, 6, {vC8}'); A(f'v_add_u32 {aMr}, {MLL}, {aMr}')
A(f'v_lshl_add_u32 {vT0}, {vQ}, 2, {vR}'); A(f'v_and_b32 {vT1}, 7, {vT0}'); A(f'v_lshl_add_u32 {aVx}, {vT0}, 8, {vC8}'); A(f'v_lshl_add_u32 {aVx}, {vT1}, 5, {aVx}')
A(f'v_xor_b32 {aVx}, {w5}, {aVx}'); A(f'v_add_u32 {aVx}, {VV}, {aVx}')
A(f'v_lshl_add_u32 {vT2}, {vC}, 6, {vQ16}'); A(f's_add_u32 s56, {w8}, {PB}'); A(f'v_lshl_add_u32 {aPw}, {vR}, 2, {vT2}'); A(f'v_add_u32 {aPw}, s56, {aPw}')
A(f'v_lshl_add_u32 {aPr}, {vR}, 9, {vT2}'); A(f'v_add_u32 {aPr}, {PB}, {aPr}')
for k in range(4):
    A(f'v_cmp_eq_u32 vcc, {k}, {vR}'); A(f'v_cndmask_b32 {vMg[k]}, 0, -1, vcc')
A(f's_lshl_b32 s57, {sU}, 11'); A(f's_add_u32 s56, s57, {w6}'); A(f's_add_u32 s56, s56, {A_}')
A(f'v_lshl_add_u32 {aAst}, {vC}, 9, {vQ16}'); A(f'v_lshrrev_b32 {vT1}, 1, {vR}'); A(f'v_and_b32 {vT2}, 1, {vR}'); A(f'v_lshl_add_u32 {vT1}, {vT2}, 1, {vT1}'); A(f'v_lshl_add_u32 {aAst}, {vT1}, 2, {aAst}'); A(f'v_add_u32 {aAst}, s56, {aAst}')
A('s_barrier')
epoch_wait()
stamp(1)
A(f's_cmp_ge_u32 {sWAVE}, 4'); A('s_cbranch_scc0 L_A_main')
def mod_tile(base, nks, koff_expr, vSt, mark, mask, code, sleep, before_wait=None):
    vCc = V(4 * nks); vMa = V(4 * nks); vD = V(4); aM, aC = V(), V()
    A(f's_sub_u32 s56, {w8}, {1024 - CL}'); A(f'v_lshl_add_u32 {vT2}, {vL}, 2, s56'); koff_expr(); A(f'v_add_u32 {aC}, s56, {vQ16}')
    A(f's_sub_u32 s56, {w5}, {128 - base}'); A(f'v_lshl_add_u32 {aM}, {vQ}, 3, {vR}'); A(f'v_lshl_add_u32 {aM}, {aM}, 7, {vC8}'); A(f'v_add_u32 {aM}, s56, {aM}')
    A('s_waitcnt vmcnt(0)')
    A(f'v_lshlrev_b32 {vX[0]}, 16, {vXd}'); A(f'v_and_b32 {vX[1]}, {sHI}, {vXd}')
    silu_bf(vX[0], vX[0], vT0); silu_bf(vX[1], vX[1], vT1)
    A(f'v_cvt_pk_bf16_f32 {vXd}, {vX[0]}, {vX[1]}')
    A(f'ds_write_b32 {vT2}, {vXd}')
    for ks in range(nks): A(f'ds_read_b128 {vCc[4*ks:4*ks+4]}, {aC} offset:{64*ks}')
    if before_wait: before_wait()
    reads = [x for ks in range(nks) for x in (f'ds_read_b64_tr_b16 {vMa[4*ks:4*ks+2]}, {aM} offset:{4096*ks}', f'ds_read_b64_tr_b16 {vMa[4*ks+2:4*ks+4]}, {aM} offset:{4096*ks + 512}')]
    lds_wait(code, F_LP, mark, vT0, spec=reads, sleep=sleep)
    for ks in range(nks):
        A(f's_waitcnt lgkmcnt({2*(nks-1-ks)})')
        A(f'v_mfma_f32_16x16x32_bf16 {vD}, {vMa[4*ks:4*ks+4]}, {vCc[4*ks:4*ks+4]}, {0 if ks == 0 else vD}')
    for r in range(4): tagf(vD[r], vD[r], vTg)
    set_exec(mask); A(f'global_store_dwordx4 {vSt}, {vD}, {pWS} sc1')
m = V.mark()
vSt = V()
A(f's_lshl_b32 s56, {sU}, 3'); A(f's_add_u32 s56, s56, {sG}'); A('s_lshl_b32 s56, s56, 8'); A(f's_add_u32 s56, s56, {w6}'); A(f's_sub_u32 s56, s56, 256')
A('s_and_b32 s57, s56, 0xffffe000'); A('s_add_u32 s56, s56, s57'); A(f's_add_u32 s56, s56, {S_M}'); A(f'v_lshl_add_u32 {vSt}, {vN}, 13, {vQ16}'); A(f'v_add_u32 {vSt}, s56, {vSt}')
mod_tile(MM, 2, lambda: (A(f's_and_b32 s57, {sU}, 2'), A('s_lshl_b32 s57, s57, 6'), A('s_add_u32 s56, s56, s57')), vSt, MKA['M'], M_N2, 20, 0)
set_exec(1); A(f'ds_add_u32 {vZ}, {vOne} offset:{F_MP - FLG}'); set_exec(-1)
stamp(3)
V.release(m)
LAB('L_A_main')
mA = V.mark()
vK = V(32); vV = V(32); vQB = V(16); vS = V(8); vP = V(); vM, vLs = V(), V()
A(f's_add_u32 s57, {sWAVE}, {MKA["K0"]}')
lds_wait(5, F_LP, 's57', vT0, sleep=1)
for T in range(2):
    for ks in range(4): A(f'ds_read_b128 {vK[16*T+4*ks:16*T+4*ks+4]}, {aK[ks]} offset:{4096*T}')
stamp(7)
xreads = lambda cs: [x for c in cs for x in (f'ds_read_b64_tr_b16 {vV[4*c:4*c+2]}, {aVx} offset:{8192*c}', f'ds_read_b64_tr_b16 {vV[4*c+2:4*c+4]}, {aVx} offset:{8192*c + 4096}')]
sNV = 's13'
A(f's_mov_b32 {sNV}, 0'); A(f's_mov_b32 s58, {MKA["V0"] + NO - 1}')
lp, ok, nv, n2 = nl('W'), nl('OK'), nl('NV'), nl('N2')
A(f's_mov_b32 {sCNT}, {CFG["limit"]}')
LAB(lp)
A(f'ds_read_b32 {vT1}, {vZ} offset:{F_Q - FLG}'); A(f'ds_read_b32 {vT2}, {vZ} offset:{F_LP - FLG}')
A('s_waitcnt lgkmcnt(0)')
A(f'v_readfirstlane_b32 {sTMP}, {vT1}'); A(f'v_readfirstlane_b32 s56, {vT2}')
A(f's_cmp_eq_u32 {sTMP}, 1'); A(f's_cbranch_scc1 {ok}')
A('s_cmp_ge_u32 s56, s58'); A(f's_cbranch_scc0 {nv}')
A(f's_cmp_eq_u32 {sNV}, 0'); A(f's_cbranch_scc0 {n2}')
for x in xreads(range(NO)): A(x)
A(f's_mov_b32 {sNV}, 1'); A(f's_mov_b32 s58, {MKA["V0"] + 7}'); A(f's_branch {nv}')
LAB(n2)
for x in xreads(range(NO, 8)): A(x)
A(f's_mov_b32 {sNV}, 2'); A('s_mov_b32 s58, 99')
LAB(nv)
fail_branch(7, lp)
LAB(ok)
for ks in range(4): A(f'ds_read_b128 {vQB[4*ks:4*ks+4]}, {aQB} offset:{64*ks}')
A(pure_read())
stamp(8)
for ks in range(4):
    A(f's_waitcnt lgkmcnt({4-ks})')
    for T in range(2): A(f'v_mfma_f32_16x16x32_bf16 {vS[4*T:4*T+4]}, {vK[16*T+4*ks:16*T+4*ks+4]}, {vQB[4*ks:4*ks+4]}, {0 if ks == 0 else vS[4*T:4*T+4]}')
A('s_waitcnt lgkmcnt(0)'); pure_update()
A('s_mov_b32 s56, 0x3db504f3')
for k in (1, 2, 3):
    dpp('v_mov_b32', vS[0], vS[2*k], None, 'quad_perm:[0,1,2,3]', 1 << k); dpp('v_mov_b32', vS[1], vS[2*k+1], None, 'quad_perm:[0,1,2,3]', 1 << k)
A(f'v_cvt_pk_bf16_f32 {vP}, {vS[0]}, {vS[1]}'); A(f'v_lshlrev_b32 {vS[0]}, 16, {vP}'); A(f'v_and_b32 {vS[1]}, {sHI}, {vP}')
A(f'v_mul_f32 {vS[0]}, s56, {vS[0]}'); A(f'v_mul_f32 {vS[1]}, s56, {vS[1]}')
A(f'v_cvt_pk_bf16_f32 {vP}, {vS[0]}, {vS[1]}'); A(f'v_lshlrev_b32 {vS[0]}, 16, {vP}'); A(f'v_and_b32 {vS[1]}, {sHI}, {vP}')
A(f'v_max_f32 {vM}, {vS[0]}, {vS[1]}'); row_allred('v_max_f32', [vM], (4, 8)); xrow_allred('v_max_f32', vM, vT0)
A(f'v_mul_f32 {vT1}, {sL2E}, {vM}')
for i in range(2): A(f'v_fma_f32 {vS[i]}, {vS[i]}, {sL2E}, -{vT1}')
for i in range(2): A(f'v_exp_f32 {vS[i]}, {vS[i]}')
set_exec(0xf); A(f'ds_write_b32 {aMw}, {vM}'); set_exec(-1)
A(f'v_cvt_pk_bf16_f32 {vP}, {vS[0]}, {vS[1]}'); A(f'v_add_f32 {vLs}, {vS[0]}, {vS[1]}')
A(f'ds_write_b32 {aPw}, {vP}')
set_exec(1); A(f'ds_add_u32 {vZ}, {vOne} offset:{F_PF - FLG}'); set_exec(-1)
stamp(9)
row_allred('v_add_f32', [vLs], (4, 8)); xrow_allred('v_add_f32', vLs, vT3)
set_exec(0xf); A(f'ds_write_b32 {aMw}, {vLs} offset:4'); set_exec(1); A(f'ds_add_u32 {vZ}, {vOne} offset:{F_SF - FLG}'); set_exec(-1)
vMc = vQB[0:4]; vF1, vF2 = vQB[4], vQB[5]; vFg = vQB[6:8]; vPp = vQB[8:16]; vOa = vK[0:8]; vBm = vK[8:16]; vO = vK[16:20]
lp, ok = nl('W'), nl('OK')
A(f's_mov_b32 {sCNT}, {CFG["limit"]}')
LAB(lp)
A(f'ds_read_b64 {vFg}, {vZ}')
A(f'ds_read_b128 {vPp[0:4]}, {aPr}'); A(f'ds_read_b128 {vPp[4:8]}, {aPr} offset:256'); A(f'ds_read2_b64 {vMc}, {aMr} offset0:0 offset1:4')
A('s_waitcnt lgkmcnt(3)')
A(f'v_readfirstlane_b32 {sTMP}, {vFg[1]}'); A(f'v_readfirstlane_b32 s57, {vFg[0]}')
A(f's_cmp_eq_u32 {sTMP}, 8'); A(f's_cbranch_scc1 {ok}')
fail_branch(8, lp)
LAB(ok)
stamp(10)
def pvx(cs, waits=None):
    for i, c in enumerate(cs):
        b = vBm[4*(c & 1):4*(c & 1)+4]
        for p in range(4): A(f'v_and_b32 {b[p]}, {vMg[c >> 1]}, {vPp[4*(c & 1)+p]}')
        if waits: A(f's_waitcnt lgkmcnt({waits[i]})')
        acc = vOa[4*(c & 1):4*(c & 1)+4]
        A(f'v_mfma_f32_16x16x32_bf16 {acc}, {vV[4*c:4*c+4]}, {b}, {0 if c < 2 else acc}')
def factors():
    A(f'v_max_f32 {vT0}, {vMc[0]}, {vMc[2]}'); row_allred('v_max_f32', [vT0], (4, 8))
    A(f'v_sub_f32 {vF1}, {vMc[0]}, {vT0}'); A(f'v_sub_f32 {vF2}, {vMc[2]}, {vT0}'); A(f'v_mul_f32 {vF1}, {sL2E}, {vF1}'); A(f'v_mul_f32 {vF2}, {sL2E}, {vF2}')
    A(f'v_exp_f32 {vF1}, {vF1}'); A(f'v_exp_f32 {vF2}, {vF2}')
A(f's_cmp_eq_u32 {sNV}, 2'); A('s_cbranch_scc0 L_A_vlate')
A('s_waitcnt lgkmcnt(1)')
pvx(range(8))
A('s_waitcnt lgkmcnt(0)'); factors()
LAB('L_A_pvdone')
for i in range(4): A(f'v_mul_f32 {vO[i]}, {vF1}, {vOa[i]}')
for i in range(4): A(f'v_fmac_f32 {vO[i]}, {vF2}, {vOa[4+i]}')
dpp('v_add_f32', vT1, vO[0], vO[0], 'row_ror:8', 0x3); dpp('v_add_f32', vT2, vO[2], vO[2], 'row_ror:8', 0x3)
dpp('v_add_f32', vT1, vO[1], vO[1], 'row_ror:8', 0xc); dpp('v_add_f32', vT2, vO[3], vO[3], 'row_ror:8', 0xc)
dpp('v_add_f32', vT0, vT1, vT1, 'row_ror:12', 0x5); dpp('v_add_f32', vT0, vT2, vT2, 'row_ror:4', 0xa)
tagf(vT0, vT0, vTg)
lstore([f'global_store_dword {aAst}, {vT0}, {pLB}'])
set_exec(1); A(f'ds_add_u32 {vZ}, {vOne} offset:{F_AP - FLG}'); set_exec(-1)
stamp(11)
A(f's_cmp_ge_u32 {sWAVE}, 4'); A('s_cbranch_scc1 L_A_end')
V.release(mP)
aDst, aMV, aX2, aX2b, aGu, aDn, aCst, aCld, v8qr = [V() for _ in range(9)]
vMk = V(4, 1); vMd = V(4, 1)
A(f'v_lshl_add_u32 {v8qr}, {vQ}, 3, {vR}')
A(f's_and_b32 s54, {sU}, 7'); A(f's_lshl_b32 s58, {sWAVE}, 9')
A(f'v_lshl_add_u32 {vT0}, {vN}, 6, {vQ16}')
A(f's_lshl_b32 s57, {sU}, 11'); A(f's_add_u32 s57, s57, {B1}'); A('s_add_u32 s56, s57, s58'); A(f'v_add_u32 {aDst}, s56, {vT0}')
A(f's_lshl_b32 s56, {sU}, 10'); A(f's_add_u32 s56, s56, {w8}'); A(f's_add_u32 s56, s56, {A_}'); A(f'v_add_u32 {aCst}, s56, {vT0}')
A(f'v_lshlrev_b32 {vT0}, 4, {vR}'); A(f'v_and_b32 {vT1}, 2, {vL}'); A(f'v_lshl_add_u32 {vT0}, {vT1}, 2, {vT0}'); A(f'v_lshl_add_u32 {vT0}, {vQ}, 1, {vT0}'); A(f'v_and_b32 {vT1}, 1, {vL}'); A(f'v_add_u32 {vT0}, {vT0}, {vT1}')
A('s_lshl_b32 s56, s54, 8'); A(f'v_lshl_add_u32 {vT0}, {vT0}, 4, s56'); A(f'v_and_b32 {vT0}, 2047, {vT0}')
A(f'v_add_u32 {aX2}, {X2}, {vT0}'); A(f'v_add_u32 {aMV}, {MV}, {vT0}'); A(f'v_xor_b32 {vT0}, 1024, {vT0}'); A(f'v_add_u32 {aX2b}, {X2}, {vT0}')
A(f'v_and_b32 {vT0}, 1, {vQ}'); A(f'v_lshl_add_u32 {vT0}, {vT0}, 2, {vR}'); A(f'v_lshlrev_b32 {vT0}, 5, {vT0}'); A(f'v_add_u32 {vT1}, {w7}, {vC8}')
if CFG['gsw']: A(f'v_xor_b32 {vT1}, {vT1}, {vT0}')
A(f'v_lshl_add_u32 {aGu}, {v8qr}, 9, {vT1}'); A(f'v_add_u32 {aGu}, {GU}, {aGu}')
A(f'v_and_b32 {vT0}, 1, {vQ}'); A(f'v_lshl_add_u32 {vT0}, {vT0}, 3, {vR}'); A(f'v_lshl_add_u32 {aDn}, {vT0}, 10, {vC8}'); A(f'v_lshrrev_b32 {vT1}, 1, {vQ}'); A(f'v_lshl_add_u32 {aDn}, {vT1}, 5, {aDn}')
A(f's_add_u32 s56, {w8}, {DN}'); A(f'v_add_u32 {aDn}, s56, {aDn}')
if CFG['gsw']:
    A(f'v_and_b32 {vT0}, 1, {vQ}'); A(f'v_lshl_add_u32 {vT0}, {vR}, 1, {vT0}'); A(f'v_lshlrev_b32 {vT0}, 5, {vT0}'); A(f'v_xor_b32 {aDn}, {aDn}, {vT0}')
A(f'v_bfe_u32 {vT0}, {vL}, 2, 1'); A(f'v_lshrrev_b32 {aCld}, 3, {vL}'); A(f'v_lshl_add_u32 {aCld}, {vT0}, 3, {aCld}'); A(f'v_lshlrev_b32 {aCld}, 10, {aCld}')
A(f'v_lshl_add_u32 {aCld}, {vC}, 4, {aCld}'); A(f's_lshl_b32 s56, {sU}, 6'); A(f's_add_u32 s56, s56, {A_}'); A(f'v_add_u32 {aCld}, s56, {aCld}')
for j in range(4):
    A(f'v_cmp_eq_u32 vcc, {j}, {vN}'); A(f'v_cndmask_b32 {vMk[j]}, 0, -1, vcc')
for jj in range(4):
    if jj: A(f'v_add_u32 {vT1}, 2, {vT1}')
    A(f'v_cmp_eq_u32 vcc, {vT1}, {vN}'); A(f'v_cndmask_b32 {vMd[jj]}, 0, -1, vcc')
A(f's_mov_b32 {sCM}, {M_N4 & 0xffffffff:#x}'); A(f's_cmp_eq_u32 {sWAVE}, 3'); A(f's_cselect_b32 {sCM}, {M_N2 & 0xffffffff:#x}, {sCM}')
vGu = V(32); vDn = V(16); vSB = V(4); vT1v = V(4); vXs = [V(8) for _ in range(CFG['LK'])]; vXr = vXs[0]; vXx = V(8); vHp = V(2); vBm = V(8); vD = V(4); vSum, vSq = V(), V()
A(f'global_load_dword {vDUM}, {aX2}, {pLB} sc1'); A(f'global_load_dword {vDUM}, {aX2b}, {pLB} sc1')
mv_loads = [f'global_load_dwordx4 {vXr[0:4]}, {aMV}, {pLB} sc1', f'global_load_dwordx4 {vXr[4:8]}, {aMV}, {pLB} offset:2048 sc1']
lds_wait(15, F_LP, MKA['GU'], vT0, sleep=1)
for x in mv_loads: A(x)
for j in range(4):
    A(f'v_xor_b32 {vT1}, {32*j}, {aGu}')
    for ks in range(2):
        r = vGu[8*j+4*ks:8*j+4*ks+4]
        A(f'ds_read_b64_tr_b16 {r[0:2]}, {vT1} offset:{16384*ks}'); A(f'ds_read_b64_tr_b16 {r[2:4]}, {vT1} offset:{16384*ks + 2048}')
    if j == 1: A('s_waitcnt lgkmcnt(4)')
lds_wait(16, F_LP, MKA['DN'], vT0)
for jj in range(4):
    A(f'v_xor_b32 {vT1}, {64*jj}, {aDn}'); A(f'ds_read_b64_tr_b16 {vDn[4*jj:4*jj+2]}, {vT1}'); A(f'ds_read_b64_tr_b16 {vDn[4*jj+2:4*jj+4]}, {vT1} offset:4096')
poll(13, mv_loads, [vXr[i] for i in range(8)], [vSB[i] for i in range(4)] + [vT1v[i] for i in range(4)], sT16, 0xffff, vCH, issued=True)
A('s_waitcnt lgkmcnt(0)')
stamp(6)
ppoll(17, CFG['LK'], CFG['lgap'], lambda r: [f'global_load_dwordx4 {r[0:4]}, {aX2}, {pLB} sc1', f'global_load_dwordx4 {r[4:8]}, {aX2b}, {pLB} sc1'], 2, vXs, [vXx[i] for i in range(8)], sT16, 0xffff)
stamp(12)
A(f'v_add_f32 {vSum}, {vXx[0]}, {vXx[1]}'); A(f'v_mul_f32 {vSq}, {vXx[0]}, {vXx[0]}')
A(f'v_add_f32 {vT0}, {vXx[2]}, {vXx[3]}'); A(f'v_mul_f32 {vT1}, {vXx[1]}, {vXx[1]}')
for i in range(2, 8): A(f'v_fmac_f32 {vSq if i % 2 == 0 else vT1}, {vXx[i]}, {vXx[i]}')
A(f'v_add_f32 {vT2}, {vXx[4]}, {vXx[5]}'); A(f'v_add_f32 {vT3}, {vXx[6]}, {vXx[7]}'); A(f'v_add_f32 {vSum}, {vSum}, {vT0}'); A(f'v_add_f32 {vT2}, {vT2}, {vT3}')
A(f'v_add_f32 {vSq}, {vSq}, {vT1}'); A(f'v_add_f32 {vSum}, {vSum}, {vT2}')
A(f'v_permlane32_swap_b32 {vSum}, {vSq}'); A(f'v_add_f32 {vSum}, {vSum}, {vSq}')
A(f'v_mov_b32 {vSq}, {vSum}'); A(f'v_permlane16_swap_b32 {vSum}, {vSq}'); A(f'v_add_f32 {vSum}, {vSum}, {vSq}')
row_allred('v_add_f32', [vSum])
A(f'v_mul_f32 {vSum}, 0x3b000000, {vSum}')
A(f'v_mov_b32 {vSq}, {vSum}'); A(f'v_permlane32_swap_b32 {vSum}, {vSq}')
A(f'v_fma_f32 {vSq}, -{vSum}, {vSum}, {vSq}'); A(f'v_max_f32 {vSq}, 0, {vSq}'); A(f'v_add_f32 {vSq}, 0x3727c5ac, {vSq}'); A(f'v_rsq_f32 {vSq}, {vSq}')
for i in range(4): A(f'v_sub_f32 {vXx[i]}, {vXx[i]}, {vSum}')
for i in range(4): A(f'v_mul_f32 {vT1v[i]}, {vSq}, {vT1v[i]}')
for i in range(4): A(f'v_fma_f32 {vXx[i]}, {vXx[i]}, {vT1v[i]}, {vSB[i]}')
for i in range(2): A(f'v_cvt_pk_bf16_f32 {vHp[i]}, {vXx[2*i]}, {vXx[2*i+1]}')
k = 0
sk = nl('S')
for j in range(4):
    if j == 2: A(f's_cmp_eq_u32 {sWAVE}, 3'); A(f's_cbranch_scc1 {sk}')
    for ks in range(2):
        b = vBm[4*(k & 1):4*(k & 1)+4]
        for p in range(4): dpp('v_and_b32', b[p], vHp[p & 1], vMk[j], f'row_newbcast:{2*ks + (p >> 1)}')
        A(f'v_mfma_f32_16x16x32_bf16 {vD}, {vGu[8*j+4*ks:8*j+4*ks+4]}, {b}, {0 if k == 0 else vD}'); k += 1
LAB(sk)
for r in range(4): tagf(vD[r], vD[r], vTgb)
A(f's_mov_b32 exec_lo, {sCM}'); A(f's_mov_b32 exec_hi, {sCM}')
lstore([f'global_store_dwordx4 {aCst}, {vD}, {pLB}'])
set_exec(-1)
stamp(13)
vG = vXx
A(f's_cmp_ge_u32 {sU}, 14'); A('s_cbranch_scc1 L_A_zero')
if CFG['LK'] > 1: A('s_waitcnt vmcnt(1)')
ppoll(18, CFG['LK'], CFG['lgap'], lambda r: [f'global_load_dwordx4 {r}, {aCld}, {pLB} sc1'], 1, [r[0:4] for r in vXs], [vG[i] for i in range(4)], sT6b, TM)
tred4(vG)
dpp('v_add_f32', vG[0], vG[0], vG[0], 'row_ror:8')
rnd(vG[0], vG[0])
A(f'v_mul_f32 {vT0}, {sL2E}, {vG[0]}'); A(f'v_exp_f32 {vT0}, -{vT0}'); A(f'v_add_f32 {vT0}, 1.0, {vT0}'); A(f'v_rcp_f32 {vT0}, {vT0}'); rnd(vT0, vT0)
dpp('v_mul_f32', vT0, vG[0], vT0, 'row_ror:12')
A(f'v_mov_b32 {vT1}, {vT0}'); A(f'v_permlane32_swap_b32 {vT0}, {vT1}'); A(f'v_cvt_pk_bf16_f32 {vT0}, {vT0}, {vT1}')
A(f'v_mov_b32 {vT1}, {vT0}'); A(f'v_permlane16_swap_b32 {vT0}, {vT1}')
vHh = vSB
for rowm, q0 in ((0x5, 0), (0xa, 2)):
    dpp('v_mov_b32', vHh[0], vT0, None, f'row_newbcast:{q0}', row=rowm); dpp('v_mov_b32', vHh[1], vT1, None, f'row_newbcast:{q0}', row=rowm)
    dpp('v_mov_b32', vHh[2], vT0, None, f'row_newbcast:{q0+1}', row=rowm); dpp('v_mov_b32', vHh[3], vT1, None, f'row_newbcast:{q0+1}', row=rowm)
for jj in range(4):
    b = vBm[4*(jj & 1):4*(jj & 1)+4]
    for p in range(4): A(f'v_and_b32 {b[p]}, {vMd[jj]}, {vHh[p]}')
    A(f'v_mfma_f32_16x16x32_bf16 {vD}, {vDn[4*jj:4*jj+4]}, {b}, {0 if jj == 0 else vD}')
for r in range(4): tagf(vD[r], vD[r], vTgb)
LAB('L_A_pub')
set_exec(M_N8)
lstore([f'global_store_dwordx4 {aDst}, {vD}, {pLB}'])
set_exec(-1)
stamp(14)
LAB('L_A_end')
end_wave()
LAB('L_A_zero')
for r in range(4): A(f'v_mov_b32 {vD[r]}, {vTgb}')
A('s_branch L_A_pub')
LAB('L_A_vlate')
sk = nl('S')
A(f's_cmp_eq_u32 {sNV}, 1'); A(f's_cbranch_scc1 {sk}')
lds_wait(9, F_LP, MKA['V0'] + NO - 1, vT0)
for x in xreads(range(NO)): A(x)
LAB(sk)
A('s_waitcnt lgkmcnt(0)')
A(f'ds_read_b32 {vT2}, {vZ}')
for x in xreads(range(NO, 7)): A(x)
pvx(range(NO)); factors()
A(f's_waitcnt lgkmcnt({2*(7 - NO)})')
sk = nl('S')
A(f'v_readfirstlane_b32 {sTMP}, {vT2}'); A(f's_cmp_ge_u32 {sTMP}, {MKA["V0"] + 6}'); A(f's_cbranch_scc1 {sk}')
lds_wait(50, F_LP, MKA['V0'] + 6, vT0)
for x in xreads(range(NO, 7)): A(x)
LAB(sk)
A(f'ds_read_b32 {vT2}, {vZ}')
for x in xreads([7]): A(x)
pvx(range(NO, 7), [3 + 2*(6 - c) for c in range(NO, 7)])
lp, ok = nl('W'), nl('OK')
A(f's_mov_b32 {sCNT}, {CFG["limit"]}')
LAB(lp)
A('s_waitcnt lgkmcnt(2)')
A(f'v_readfirstlane_b32 {sTMP}, {vT2}'); A(f's_cmp_ge_u32 {sTMP}, {MKA["V0"] + 7}'); A(f's_cbranch_scc1 {ok}')
A(f'ds_read_b32 {vT2}, {vZ}')
for x in xreads([7]): A(x)
fail_branch(51, lp)
LAB(ok)
pvx([7], [0])
A('s_branch L_A_pvdone')
vg_A = V.hi
LAB('L_A9')
V.release(mP)
aQld, aQw = V(), V(); vQs = [V(16) for _ in range(CFG['QK'])]; vQx = V(16); vQp = V(4)
A(f'v_lshlrev_b32 {aQld}, 4, {vL}'); A(f'v_add_u32 {aQld}, {Q_}, {aQld}')
A(f'v_lshrrev_b32 {vT0}, 5, {vL}'); A(f'v_mul_u32_u24 {vT0}, {QS}, {vT0}'); A(f'v_and_b32 {vT1}, 31, {vL}'); A(f'v_lshl_add_u32 {aQw}, {vT1}, 3, {vT0}'); A(f'v_add_u32 {aQw}, {QL}, {aQw}')
A('s_barrier')
epoch_wait()
pure_phase()
lds_wait(37, F_LP, MKA['K0'] + CFG['qstart'], vT0, sleep=1)
stamp(7)
ppoll(6, CFG['QK'], CFG['qgap'], lambda r: [f'global_load_dwordx4 {r[4*k:4*k+4]}, {aQld}, {pLB} offset:{1024*k} sc1' for k in range(4)], 4, vQs, [vQx[i] for i in range(16)], sT6, TM)
for i in range(8): A(f'v_add_f32 {vQx[i]}, {vQx[i]}, {vQx[8+i]}')
for i in range(4): A(f'v_cvt_pk_bf16_f32 {vQp[i]}, {vQx[2*i]}, {vQx[2*i+1]}')
A(f'ds_write_b64 {aQw}, {vQp[0:2]}'); A(f'ds_write_b64 {aQw}, {vQp[2:4]} offset:{2*QS}'); flag(F_Q)
stamp(8)
vFl = vQx[0:8]; vMc = vQx[8:12]; vML4 = vQx[12:16]; vF1, vF2 = vQp[0], vQp[1]
A(f'v_lshl_add_u32 {vT3}, {vR}, 6, {vC8}'); A(f'v_add_u32 {vT3}, {MLL}, {vT3}')
A(f's_lshl_b32 s56, {sU}, 6'); A(f's_add_u32 s56, s56, {MLG}'); A(f'v_lshl_add_u32 {vT2}, {vL}, 4, s56')
A(f'v_mov_b32 {vML4[2]}, {sE}'); A(f'v_mov_b32 {vML4[3]}, {sE}')
lds_wait(39, F_SF, 8, vT0)
A(f'ds_read2_b64 {vMc}, {vT3} offset0:0 offset1:4'); A(pure_read())
A('s_waitcnt lgkmcnt(0)'); pure_update()
A(f'v_max_f32 {vML4[0]}, {vMc[0]}, {vMc[2]}'); row_allred('v_max_f32', [vML4[0]], (4, 8))
A(f'v_sub_f32 {vF1}, {vMc[0]}, {vML4[0]}'); A(f'v_sub_f32 {vF2}, {vMc[2]}, {vML4[0]}'); A(f'v_mul_f32 {vF1}, {sL2E}, {vF1}'); A(f'v_mul_f32 {vF2}, {sL2E}, {vF2}')
A(f'v_exp_f32 {vF1}, {vF1}'); A(f'v_exp_f32 {vF2}, {vF2}')
A(f'v_mul_f32 {vML4[1]}, {vF1}, {vMc[1]}'); A(f'v_fmac_f32 {vML4[1]}, {vF2}, {vMc[3]}'); row_allred('v_add_f32', [vML4[1]], (4, 8))
tagf(vML4[0], vML4[0], vTg); tagf(vML4[1], vML4[1], vTg)
set_exec(0xf)
lstore([f'global_store_dwordx4 {vT2}, {vML4}, {pLB}'])
set_exec(-1)
stamp(9)
aGa = vQs[1][0]; vG8 = vQs[0][0:8]; vGx8 = vQs[0][8:16]; vMod = vQs[1][2:4]; aMs = vQs[1][1]
A('s_waitcnt vmcnt(0)')
A(f's_lshr_b32 s56, {sU}, 1'); A('s_lshl_b32 s56, s56, 8'); A(f's_and_b32 s57, {sU}, 1'); A('s_lshl_b32 s57, s57, 7'); A('s_add_u32 s56, s56, s57'); A(f's_add_u32 s56, s56, {S_MR}')
A(f'v_lshlrev_b32 {aGa}, 11, {vQ}'); A(f'v_lshl_add_u32 {aGa}, {vN}, 2, {aGa}'); A(f'v_add_u32 {aGa}, s56, {aGa}')
A(f's_lshl_b32 s56, {sU}, 7'); A(f'v_lshl_add_u32 {aMs}, {vN}, 2, s56'); A(f'v_lshrrev_b32 {vT0}, 1, {vQ}'); A(f'v_lshl_add_u32 {aMs}, {vT0}, 11, {aMs}')
A(f'v_xor_b32 {vT0}, {vT0}, {vQ}'); A(f'v_and_b32 {vT0}, 1, {vT0}'); A(f'v_mov_b32 {vT1}, {GAB}'); A(f'v_mov_b32 {vT2}, {MV}'); A(f'v_cmp_eq_u32 vcc, 1, {vT0}'); A(f'v_cndmask_b32 {vT1}, {vT1}, {vT2}, vcc'); A(f'v_add_u32 {aMs}, {aMs}, {vT1}')
lp, ok = nl('P'), nl('OK')
A(f's_mov_b32 {sCNT}, {CFG["limit"]}')
LAB(lp)
for i in range(4):
    if i: A(f'v_add_u32 {vT0}, {8192*i}, {aGa}')
    A(f'global_load_dword {vG8[i]}, {vT0 if i else aGa}, {pWS} sc1'); A(f'global_load_dword {vG8[4+i]}, {vT0 if i else aGa}, {pWS} offset:64 sc1')
A('s_waitcnt vmcnt(0)')
check([vG8[i] for i in range(8)], [vGx8[i] for i in range(8)], sT6, TM, vCH)
A(f's_cbranch_vccz {ok}'); fail_branch(22, lp); LAB(ok)
A(f'v_cmp_eq_u32 vcc, 2, {vQ}')
for h in range(2):
    for a, b in ((0, 1), (2, 3), (0, 2)): A(f'v_add_f32 {vGx8[4*h+a]}, {vGx8[4*h+a]}, {vGx8[4*h+b]}')
    rnd(vMod[h], vGx8[4*h])
    A(f'v_add_f32 {vT0}, 1.0, {vMod[h]}'); rnd(vT0, vT0)
    A(f'v_cndmask_b32 {vMod[h]}, {vMod[h]}, {vT0}, vcc'); A(f'v_or_b32 {vMod[h]}, {sT16}, {vMod[h]}')
lstore([f'global_store_dword {aMs}, {vMod[0]}, {pLB}', f'global_store_dword {aMs}, {vMod[1]}, {pLB} offset:64'])
stamp(11)
end_wave()
vg_A = max(vg_A, V.hi)

LAB('L_W')
V.release(mP)
sRED = 's13'
A(f's_mov_b32 {sRED}, 0')
A(f's_cmp_eq_u32 {sWAVE}, 9'); A('s_cbranch_scc1 L_W9')
aWq, aH, aHw, aHr, aQst, aWo, aBst, aOb, v8qr, vXc = [V() for _ in range(10)]
vMk = V(4, 1)
A(f'v_lshl_add_u32 {v8qr}, {vQ}, 3, {vR}')
A(f's_and_b32 s54, {sU}, 7'); A(f's_lshr_b32 s55, {sU}, 3')
A(f'v_lshl_add_u32 {aWq}, {v8qr}, 7, {vC8}'); A(f'v_add_u32 {aWq}, {w5}, {aWq}')
A('s_lshl_b32 s56, s55, 10'); A(f'v_lshl_add_u32 {aH}, {vL}, 4, s56')
A(f's_lshl_b32 s58, {sWAVE}, 9'); A(f's_add_u32 s56, s58, {HL}'); A(f'v_lshl_add_u32 {aHw}, {vL}, 3, s56'); A(f'v_add_u32 {aHr}, s56, {vQ16}')
A('s_lshl_b32 s56, s55, 11'); A('s_lshl_b32 s57, s54, 8'); A('s_add_u32 s56, s56, s57'); A(f's_add_u32 s56, s56, {w6}'); A(f's_add_u32 s56, s56, {Q_}'); A(f'v_add_u32 {aQst}, s56, {vQ16}')
A(f'v_and_b32 {vT0}, 1, {vQ}'); A(f'v_lshl_add_u32 {vT0}, {vT0}, 2, {vR}'); A(f'v_lshlrev_b32 {vT0}, 5, {vT0}')
A(f'v_add_u32 {vT1}, {w7}, {vC8}'); A(f'v_xor_b32 {vT1}, {vT1}, {vT0}'); A(f'v_lshl_add_u32 {aWo}, {v8qr}, 10, {vT1}'); A(f'v_add_u32 {aWo}, {WO}, {aWo}')
A(f'v_add_u32 {aOb}, {OB}, {vQ16}')
A(f'v_lshl_add_u32 {vT0}, {vN}, 6, {vQ16}')
A(f's_lshl_b32 s57, {sU}, 11'); A(f's_add_u32 s57, s57, {B1}'); A(f's_add_u32 s56, s57, {w8}'); A(f'v_add_u32 {aBst}, s56, {vT0}')
for j in range(4):
    A(f'v_cmp_eq_u32 vcc, {j}, {vN}'); A(f'v_cndmask_b32 {vMk[j]}, 0, -1, vcc')
A('s_barrier')
epoch_wait()
stamp(1)
def probe():
    if CFG['near']:
        sk = nl('S')
        A(f's_cmp_eq_u32 {sWAVE}, 7'); A(f's_cbranch_scc0 {sk}')
        A(f's_lshl_b32 s56, {sU}, 3'); A(f's_add_u32 s56, s56, {sG}'); A('s_lshl_b32 s56, s56, 7'); A('s_and_b32 s57, s56, 0x2000'); A('s_add_u32 s56, s56, s57'); A(f's_add_u32 s56, s56, {PROBE}')
        A(f's_add_u32 s56, {lo(pWS)}, s56'); A(f's_addc_u32 s57, {hi(pWS)}, 0')
        A('s_mov_b32 s52, -1'); A('s_mov_b32 s53, -1')
        for rep in range(CFG['near']):
            for c in range(2):
                A('s_memtime s[84:85]'); A('s_waitcnt lgkmcnt(0)')
                A(f's_load_dword s54, s[56:57], {8192*c} glc'); A('s_waitcnt lgkmcnt(0)')
                A('s_memtime s[86:87]'); A('s_waitcnt lgkmcnt(0)')
                A('s_sub_u32 s54, s86, s84'); A(f's_min_u32 s{52+c}, s{52+c}, s54')
            A('s_cmp_lt_u32 s52, s53'); A('s_cselect_b32 s54, 1, 2'); A(f'v_mov_b32 {vT0}, s54'); A(f'ds_write_b32 {vZ}, {vT0} offset:{F_CP - FLG}')
        if CFG['stamps']: A('s_mov_b32 s88, s52'); A('s_mov_b32 s90, s53')
        stamp(2)
        LAB(sk)
A(f's_cmp_ge_u32 {sWAVE}, 4'); A('s_cbranch_scc0 L_W_03')
m = V.mark()
vSt = V()
A(f's_lshl_b32 s56, {sU}, 3'); A(f's_add_u32 s56, s56, {sG}'); A('s_lshl_b32 s56, s56, 8'); A(f's_add_u32 s56, s56, {w6}'); A(f's_add_u32 s56, s56, {S_MR - 256}'); A(f'v_add_u32 {vSt}, s56, {vQ16}')
mod_tile(MR, 4, lambda: None, vSt, MKW['MR'], M_N0, 21, 2, before_wait=probe)
set_exec(-1)
stamp(4)
A('s_branch L_W_att')
V.release(m)
LAB('L_W_03')
A(f's_sub_u32 s57, {sWAVE}, 1'); A('s_cmp_lt_u32 s57, 2'); A('s_cbranch_scc0 L_W_main')
A(f's_mov_b32 {sRED}, 1')
m = V.mark()
vWq = V(32); mH = V.mark()
vMean, vVar, vAd, vAd2, vHs = V(), V(), V(), V(), V(); vU = V(8); vRs = [V(4) for _ in range(CFG['G1K'])]; vSa, vCa = vU[0], vU[1]
A(f's_lshl_b32 {sSL}, {sU}, 1'); A(f's_add_u32 {sSL}, {sSL}, s57')
A(f's_lshl_b32 s56, {sSL}, 6'); A(f'v_lshl_add_u32 {vHs}, {vN}, 2, s56')
A(f's_and_b32 s56, {sSL}, 3'); A('s_lshl_b32 s56, s56, 6'); A(f's_lshr_b32 s57, {sSL}, 2'); A('s_lshl_b32 s57, s57, 8'); A('s_add_u32 s56, s56, s57'); A(f's_add_u32 s56, s56, {S_M}')
A(f'v_lshlrev_b32 {vT0}, 12, {vQ}'); A(f'v_and_b32 {vT1}, 0x2000, {vT0}'); A(f'v_add_u32 {vT0}, {vT0}, {vT1}'); A(f'v_lshlrev_b32 {vT1}, 2, {vN}'); A(f'v_add3_u32 {vAd}, {vT0}, {vT1}, s56'); A(f'v_add_u32 {vAd2}, 32768, {vAd}')
A('s_waitcnt vmcnt(0)')
for j in range(4):
    A(f'v_lshlrev_b32 {vU[2*j]}, 16, {vX[j]}'); A(f'v_and_b32 {vU[2*j+1]}, {sHI}, {vX[j]}')
A(f'v_add_f32 {vMean}, {vU[0]}, {vU[1]}')
for j in range(2, 8): A(f'v_add_f32 {vMean}, {vMean}, {vU[j]}')
row_allred('v_add_f32', [vMean]); xrow_allred('v_add_f32', vMean, vT0)
A(f'v_mul_f32 {vMean}, 0x3b000000, {vMean}')
for j in range(8): A(f'v_sub_f32 {vU[j]}, {vU[j]}, {vMean}')
A(f'v_mul_f32 {vVar}, {vU[0]}, {vU[0]}')
for j in range(1, 8): A(f'v_fmac_f32 {vVar}, {vU[j]}, {vU[j]}')
row_allred('v_add_f32', [vVar]); xrow_allred('v_add_f32', vVar, vT0)
A(f'v_mul_f32 {vVar}, 0x3b000000, {vVar}')
rnd(vMean, vMean); rnd(vVar, vVar)
A(f'v_add_f32 {vVar}, 0x3727c5ac, {vVar}'); rnd(vVar, vVar)
A(f'v_sqrt_f32 {vVar}, {vVar}'); rnd(vVar, vVar)
A(f'v_lshlrev_b32 {vXc}, 16, {vXd}'); A(f'v_sub_f32 {vXd}, {vXc}, {vMean}'); rnd(vXd, vXd)
A(f'v_rcp_f32 {vT0}, {vVar}'); A(f'v_mul_f32 {vT1}, {vXd}, {vT0}'); A(f'v_fma_f32 {vT2}, -{vT1}, {vVar}, {vXd}'); A(f'v_fma_f32 {vXd}, {vT2}, {vT0}, {vT1}')
rnd(vXd, vXd)
stamp(2)
mQ = V.mark()
def wq_read(vWq):
    lds_wait(3, F_LP, MKW['WQ'], vT0)
    for ks in range(8):
        A(f'ds_read_b64_tr_b16 {vWq[4*ks:4*ks+2]}, {aWq} offset:{WQ + ks*4096}'); A(f'ds_read_b64_tr_b16 {vWq[4*ks+2:4*ks+4]}, {aWq} offset:{WQ + ks*4096 + 512}')
        if ks == 3: A('s_waitcnt lgkmcnt(4)')
wq_read(vWq)
near_update(); A(f'v_add_u32 {vAd}, {sCP}, {vAd}'); A(f'v_add_u32 {vAd2}, {sCP}, {vAd2}')
ppoll(1, CFG['G1K'], CFG['ggap'], lambda r: [gld(r[0], vAd, 0, 'gat1'), gld(r[1], vAd, 2048, 'gat1'), gld(r[2], vAd2, 0, 'gat1'), gld(r[3], vAd2, 2048, 'gat1')], 4, vRs, [vU[i] for i in range(4)], sT6, TM, extra=[pure_read()])
stamp(3)
A(f'v_add_f32 {vSa}, {vSa}, {vU[2]}'); A(f'v_add_f32 {vCa}, {vCa}, {vU[3]}')
A(f'v_permlane32_swap_b32 {vSa}, {vCa}'); A(f'v_add_f32 {vSa}, {vSa}, {vCa}')
A(f'v_mov_b32 {vCa}, {vSa}'); A(f'v_permlane16_swap_b32 {vSa}, {vCa}'); A(f'v_add_f32 {vSa}, {vSa}, {vCa}')
rnd(vSa, vSa)
A(f'v_mov_b32 {vCa}, {vSa}'); A(f'v_permlane32_swap_b32 {vSa}, {vCa}')
A(f'v_add_f32 {vCa}, 1.0, {vCa}'); rnd(vCa, vCa)
A(f'v_mul_f32 {vCa}, {vXd}, {vCa}'); rnd(vCa, vCa)
A(f'v_add_f32 {vCa}, {vCa}, {vSa}'); rnd(vCa, vCa)
A(f'v_or_b32 {vCa}, {sT16}, {vCa}')
A('s_waitcnt lgkmcnt(0)'); pure_update()
set_exec(0xffff)
lstore([f'global_store_dword {vHs}, {vCa}, {pLB} offset:{H_}'])
set_exec(-1)
flag(F_G1)
A('s_branch L_W_q')
LAB('L_W_main')
A(f'global_load_dword {vDUM}, {aH}, {pLB} sc1')
wq_read(vWq)
stamp(4)
lds_wait(30, F_G1, 1, vT0, sleep=1)
LAB('L_W_q')
V.release(mH)
vHB = V(32); vAq = V(4); vHs2 = [V(4) for _ in range(CFG['LK'])]; vHx = V(4); vHp = V(2)
ppoll(4, CFG['LK'], CFG['lgap'], lambda r: [f'global_load_dwordx4 {r}, {aH}, {pLB} offset:{H_} sc1'], 1, vHs2, [vHx[i] for i in range(4)], sT16, 0xffff, extra=[pure_read()])
stamp(5)
A(f'v_perm_b32 {vHp[0]}, {vHx[1]}, {vHx[0]}, {sSEL}'); A(f'v_perm_b32 {vHp[1]}, {vHx[3]}, {vHx[2]}, {sSEL}')
A(f'ds_write_b64 {aHw}, {vHp}')
for ks in range(8): A(f'ds_read_b128 {vHB[4*ks:4*ks+4]}, {aHr} offset:{64*ks}')
for ks in range(8):
    A(f's_waitcnt lgkmcnt({7-ks})')
    if ks == 0: pure_update()
    A(f'v_mfma_f32_16x16x32_bf16 {vAq}, {vWq[4*ks:4*ks+4]}, {vHB[4*ks:4*ks+4]}, {0 if ks == 0 else vAq}')
for r in range(4): tagf(vAq[r], vAq[r], vTg)
set_exec(M_N0)
lstore([f'global_store_dwordx4 {aQst}, {vAq}, {pLB}'])
set_exec(-1)
flag(F_QP)
stamp(6)
A('s_waitcnt vmcnt(0)')
V.release(m)
A(f's_cmp_eq_u32 {sRED}, 1'); A('s_cbranch_scc0 L_W_att')
vRs = [V(4) for _ in range(4)]; vRx = V(4); vG2s, vG2l, vX2s, vOut, aR1, aGa, vMod, vGb, vMVs = [V() for _ in range(9)]; vG4 = V(4)
A(f's_lshl_b32 s57, {sSL}, 5'); A(f'v_lshl_add_u32 {vOut}, {vN}, 1, s57')
A(f'v_lshrrev_b32 {vT2}, 5, {vL}'); A(f'v_lshl_add_u32 {vG2s}, {vC}, 2, {vT2}'); A(f'v_and_b32 {vT2}, 1, {vQ}'); A(f'v_lshl_add_u32 {vG2s}, {vT2}, 1, {vG2s}')
vG3s, vG3l = V(), V()
A(f's_lshl_b32 s56, {sSL}, 10'); A('s_and_b32 s57, s56, 0xffffe000'); A('s_add_u32 s56, s56, s57')
A(f's_lshl_b32 s57, {sG}, 7'); A('s_add_u32 s57, s57, s56'); A(f'v_lshl_add_u32 {vG2s}, {vG2s}, 2, s57')
A(f'v_lshlrev_b32 {vG2l}, 7, {vQ}'); A(f'v_lshl_add_u32 {vG2l}, {vN}, 2, {vG2l}'); A(f'v_add_u32 {vG2l}, s56, {vG2l}')
A(f'v_and_b32 {vT2}, 1, {vR}'); A(f'v_lshl_add_u32 {vG2s}, {vT2}, 13, {vG2s}'); A(f'v_add_u32 {vG2s}, {G2}, {vG2s}')
A(f'v_add_u32 {vG3s}, {G3 - G2}, {vG2s}')
A(f's_lshl_b32 s56, {sSL}, 6'); A(f's_add_u32 s57, s56, {X2}'); A(f'v_lshl_add_u32 {vX2s}, {vN}, 2, s57')
if CFG['gpt'] == 1:
    set_exec(M_N8); A(f'global_load_dword {vDUM}, {vG2s}, {pWS}'); A(f'global_load_dword {vDUM}, {vG3s}, {pWS}'); set_exec(-1)
if CFG['gpt'] == 2:
    A(f'v_not_b32 {vT0}, {vTg}'); set_exec(M_N8); A(f'global_store_dword {vG2s}, {vT0}, {pWS} sc1'); A(f'global_store_dword {vG3s}, {vT0}, {pWS} sc1'); set_exec(-1)
A(f'v_lshrrev_b32 {vT2}, 2, {vL}'); A(f'v_lshlrev_b32 {aR1}, 11, {vT2}'); A(f'v_lshl_add_u32 {aR1}, {vC}, 4, {aR1}')
A(f's_lshl_b32 s56, {sSL}, 6'); A(f's_add_u32 s57, s56, {B1}'); A(f'v_add_u32 {aR1}, s57, {aR1}')
A(f's_add_u32 s57, s56, {GAB}'); A(f'v_lshl_add_u32 {aGa}, {vN}, 2, s57')
A(f'global_load_dword {vDUM}, {aR1}, {pLB} sc1'); A(f'global_load_dword {vDUM}, {aGa}, {pLB} sc1'); A(f'global_load_dword {vDUM}, {aGa}, {pLB} offset:2048 sc1')
lds_wait(46, F_WI, 1, vT0, sleep=1)
near_update()
A(f's_add_u32 s57, {sCP}, {G2}'); A(f'v_add_u32 {vG2l}, s57, {vG2l}'); A(f'v_add_u32 {vG3l}, {G3 - G2}, {vG2l}')
stamp(11)
LAB('L_W_att')
vWo = V(16); vOb = V(4); vBm = V(8); vD = V(4)
lds_wait(11, F_LP, MKW['WO'], vT0, sleep=1)
for j in range(4):
    A(f'v_xor_b32 {vT0}, {32*j}, {aWo}'); A(f'ds_read_b64_tr_b16 {vWo[4*j:4*j+2]}, {vT0}'); A(f'ds_read_b64_tr_b16 {vWo[4*j+2:4*j+4]}, {vT0} offset:4096')
A(pure_read())
A('s_waitcnt lgkmcnt(0)'); pure_update()
stamp(7)
A('s_barrier')
A(f'ds_read_b128 {vOb}, {aOb}')
A('s_waitcnt lgkmcnt(0)')
for j in range(4):
    b = vBm[4*(j & 1):4*(j & 1)+4]
    for p in range(4): A(f'v_and_b32 {b[p]}, {vMk[j]}, {vOb[p]}')
    A(f'v_mfma_f32_16x16x32_bf16 {vD}, {vWo[4*j:4*j+4]}, {b}, {0 if j == 0 else vD}')
for r in range(4): tagf(vD[r], vD[r], vTg)
set_exec(M_N4)
lstore([f'global_store_dwordx4 {aBst}, {vD}, {pLB}'])
set_exec(-1)
stamp(10)
A(f's_cmp_eq_u32 {sRED}, 1'); A('s_cbranch_scc0 L_W_end')
gab_loads = [f'global_load_dword {vG4[0]}, {aGa}, {pLB} sc1', f'global_load_dword {vG4[1]}, {aGa}, {pLB} offset:2048 sc1']
def reduce16(code, tag, vS_, mask, extra=()):
    ppoll(code, CFG['LK'], CFG['lgap'], lambda r: [f'global_load_dwordx4 {r}, {aR1}, {pLB} sc1'], 1, vRs, [vRx[i] for i in range(4)], tag, TM)
    for x in extra: A(x)
    tred4(vRx)
    row_allred('v_add_f32', [vRx[0]], (4, 8))
    tagf(vRx[0], vRx[0], vTg)
    set_exec(mask)
    A(f'global_store_dword {vS_}, {vRx[0]}, {pWS} sc1'); set_exec(-1)
def gather8(code, vG2l, n):
    if CFG['gd' + n]: A(f's_sleep {CFG["gd" + n]}')
    ppoll(code, CFG['GK' + n], CFG['ggap'], lambda r: [gld(r[0], vG2l, 0, 'gat' + n), gld(r[1], vG2l, 512, 'gat' + n)], 2, [r[0:2] for r in vRs], [vRx[0], vRx[1]], sT6, TM)
    A(f'v_add_f32 {vRx[0]}, {vRx[0]}, {vRx[1]}'); xrow_allred('v_add_f32', vRx[0], vT0)
    rnd(vRx[0], vRx[0])
reduce16(23, sT6, vG2s, M_N8 if CFG['rep'] else M_N4, gab_loads)
stamp(12)
gather8(24, vG2l, '2')
lp, ok = nl('P'), nl('OK')
check([vG4[0], vG4[1]], [vMod, vGb], sT16, 0xffff, vCH); A(f's_cbranch_vccz {ok}')
poll(52, gab_loads, [vG4[0], vG4[1]], [vMod, vGb], sT16, 0xffff, vCH)
LAB(ok)
stamp(13)
A(f'v_mul_f32 {vRx[0]}, {vMod}, {vRx[0]}'); rnd(vRx[0], vRx[0])
A(f'v_add_f32 {vXc}, {vXc}, {vRx[0]}'); rnd(vXc, vXc)
A(f'v_or_b32 {vT0}, {sT16}, {vXc}')
set_exec(0xffff)
lstore([f'global_store_dword {vX2s}, {vT0}, {pLB}'])
set_exec(-1)
reduce16(25, sT6b, vG3s, M_N8 if CFG['rep'] else M_N4)
stamp(14)
A(f's_and_b32 s56, {sSL}, 7'); A(f's_cmp_eq_u32 s56, {sG}'); A('s_cbranch_scc0 L_W_end')
gather8(26, vG3l, '3')
A(f'v_mul_f32 {vRx[0]}, {vGb}, {vRx[0]}'); rnd(vRx[0], vRx[0])
A(f'v_add_f32 {vXc}, {vXc}, {vRx[0]}'); A(f'v_cvt_pk_bf16_f32 {vXc}, {vXc}, {vXc}')
set_exec(0xffff); A(f'global_store_short {vOut}, {vXc}, {pOUT}')
A(f's_cmp_eq_u32 {sSL}, 0'); A('s_cbranch_scc0 L_W_end2')
set_exec(1); A(f'v_mov_b32 {vT0}, {EP}'); A(f'v_mov_b32 {vT1}, {sE}'); A(f'global_store_dword {vT0}, {vT1}, {pWS} sc1')
if CFG['ampm']:
    set_exec(-1)
    A(f'v_lshlrev_b32 {vT0}, 4, {vL}'); A(f'v_add_u32 {vT0}, 0x180000, {vT0}'); A(f'global_load_dwordx4 {vRs[0]}, {vT0}, {pWS} sc1'); A('s_waitcnt vmcnt(0)')
    op = 'v_min_u32' if CFG['ampm'] == 1 else 'v_max_u32'
    for i in range(1, 4): A(f'{op} {vRs[0][0]}, {vRs[0][0]}, {vRs[0][i]}')
    row_allred(op, [vRs[0][0]]); xrow_allred(op, vRs[0][0], vT0)
    A(f'v_readfirstlane_b32 s92, {vRs[0][0]}')
if CFG['amp']:
    A('s_memrealtime s[94:95]'); A('s_waitcnt lgkmcnt(0)'); A('s_sub_u32 s56, s94, s92'); A(f's_mul_i32 s56, s56, {1 + CFG["amp"]}'); A('s_min_u32 s56, s56, 100000')
    LAB('L_amp'); A('s_memrealtime s[94:95]'); A('s_waitcnt lgkmcnt(0)'); A('s_sub_u32 s57, s94, s92'); A('s_cmp_lt_u32 s57, s56'); A('s_cbranch_scc1 L_amp')
LAB('L_W_end2')
set_exec(-1)
stamp(15)
LAB('L_W_end')
end_wave()

vg_W = V.hi
LAB('L_W9')
V.release(mP)
aML, aA1, aA2, aOw = V(), V(), V(), V(); vMr = V(8); vMx = V(4); vAs = [V(8) for _ in range(CFG['LK'])]; vAx = V(8); vW1, vW2 = V(), V()
A(f'v_lshrrev_b32 {vT0}, 3, {vL}'); A(f'v_and_b32 {vT1}, 7, {vL}')
A(f's_lshr_b32 s57, {sU}, 2'); A('s_lshl_b32 s56, s57, 4'); A(f's_add_u32 s56, s56, {MLG}'); A(f'v_lshl_add_u32 {aML}, {vT0}, 6, s56')
A('s_lshl_b32 s56, s57, 9'); A(f's_and_b32 s57, {sU}, 3'); A('s_lshl_b32 s57, s57, 7'); A('s_add_u32 s56, s56, s57'); A(f's_add_u32 s56, s56, {A_}')
A(f'v_lshlrev_b32 {aA1}, 11, {vT0}'); A(f'v_lshl_add_u32 {aA1}, {vT1}, 4, {aA1}'); A(f'v_add_u32 {aA1}, s56, {aA1}'); A(f'v_add_u32 {aA2}, 16384, {aA1}')
A(f'v_lshrrev_b32 {vT0}, 5, {vL}'); A(f'v_lshl_add_u32 {aOw}, {vT1}, 2, {vT0}'); A(f'v_and_b32 {vT0}, 1, {vQ}'); A(f'v_lshl_add_u32 {aOw}, {vT0}, 1, {aOw}'); A(f'v_lshlrev_b32 {aOw}, 1, {aOw}'); A(f'v_add_u32 {aOw}, {OB}, {aOw}')
A('s_barrier')
epoch_wait()
pure_phase()
lds_wait(35, F_QP, 1, vT0, sleep=2)
if CFG['hall']:
    A(f'v_lshlrev_b32 {vT3}, 3, {vN}'); A(f'v_add_u32 {vT3}, {HINT}, {vT3}')
else:
    A(f's_lshl_b32 s56, {sU}, 3'); A(f's_add_u32 s56, s56, {HINT}'); A(f'v_mov_b32 {vT3}, s56')
lp, ok = nl('P'), nl('OK')
A(f's_mov_b32 {sCNT}, {CFG["limit"]}')
LAB(lp)
A(f'global_load_dword {vT0}, {vT3}, {pLB} sc1'); A('s_waitcnt vmcnt(0)')
A(f'v_cmp_ne_u32 vcc, {sE}, {vT0}'); A(f's_cbranch_vccz {ok}')
fail_branch(44, lp)
LAB(ok)
flag(F_GO)
stamp(6)
A(f'global_load_dword {vDUM}, {aA1}, {pLB} sc1'); A(f'global_load_dword {vDUM}, {aA2}, {pLB} sc1'); A(f'global_load_dword {vDUM}, {aML}, {pLB} sc1'); A(f'global_load_dword {vDUM}, {aML}, {pLB} offset:512 sc1')
lds_wait(36, F_WI, 1, vT0, sleep=1)
stamp(7)
a_loads = lambda r: [f'global_load_dwordx4 {r[0:4]}, {aA1}, {pLB} sc1', f'global_load_dwordx4 {r[4:8]}, {aA2}, {pLB} sc1']
ml_loads = [f'global_load_dwordx4 {vMr[0:4]}, {aML}, {pLB} sc1', f'global_load_dwordx4 {vMr[4:8]}, {aML}, {pLB} offset:512 sc1']
def weights():
    A(f'v_max_f32 {vT0}, {vMx[0]}, {vMx[2]}'); row_allred('v_max_f32', [vT0], (8,)); xrow_allred('v_max_f32', vT0, vT1)
    A(f'v_sub_f32 {vW1}, {vMx[0]}, {vT0}'); A(f'v_sub_f32 {vW2}, {vMx[2]}, {vT0}'); A(f'v_mul_f32 {vW1}, {sL2E}, {vW1}'); A(f'v_mul_f32 {vW2}, {sL2E}, {vW2}')
    A(f'v_exp_f32 {vW1}, {vW1}'); A(f'v_exp_f32 {vW2}, {vW2}')
    A(f'v_mul_f32 {vT0}, {vW1}, {vMx[1]}'); A(f'v_fmac_f32 {vT0}, {vW2}, {vMx[3]}'); row_allred('v_add_f32', [vT0], (8,)); xrow_allred('v_add_f32', vT0, vT1)
    A(f'v_rcp_f32 {vT0}, {vT0}'); A(f'v_mul_f32 {vW1}, {vW1}, {vT0}'); A(f'v_mul_f32 {vW2}, {vW2}, {vT0}')
    stamp(8)
if CFG['mlb']:
    poll(12, ml_loads + a_loads(vAs[0]), [vMr[i] for i in (0, 1, 4, 5)] + [vAs[0][i] for i in range(8)], [vMx[i] for i in range(4)] + [vAx[i] for i in range(8)], sT6, TM, vCH, full=[vMr[i] for i in (2, 3, 6, 7)])
    weights()
else:
    poll(10, ml_loads, [vMr[i] for i in (0, 1, 4, 5)], [vMx[i] for i in range(4)], sT6, TM, vCH, full=[vMr[i] for i in (2, 3, 6, 7)])
    poll(12, a_loads(vAs[0]), [vAs[0][i] for i in range(8)], [vAx[i] for i in range(8)], sT6, TM, vCH, shadow=weights)
stamp(9)
for i in range(4): A(f'v_mul_f32 {vAx[i]}, {vW1}, {vAx[i]}')
for i in range(4): A(f'v_fmac_f32 {vAx[i]}, {vW2}, {vAx[4+i]}')
tred4(vAx)
dpp('v_add_f32', vAx[0], vAx[0], vAx[0], 'row_ror:8')
A(f'v_cvt_pk_bf16_f32 {vT0}, {vAx[0]}, {vAx[0]}')
A(f'ds_write_b16 {aOw}, {vT0}'); A('s_waitcnt lgkmcnt(0)'); A('s_barrier')
end_wave()
vg_W = max(vg_W, V.hi)

LAB('L_loader')
V = Alloc('v', 1, 64)
vO1, vT0, vT1, vLin, vZ, vMark, vX, vOne = [V() for _ in range(8)]; vKo = V(4, 1); vVo = V(2, 1)
adv = lambda p: [f's_add_u32 s{p}, s{p}, 4096', f's_addc_u32 s{p+1}, s{p+1}, 0', 's_add_u32 m0, m0, 4096']
pend = []
def post(mark, st):
    A(f'v_mov_b32 {vMark}, {mark}')
    if CFG['vgate'] < 8: set_exec(1); A(f'ds_max_u32 {vZ}, {vMark}'); set_exec(-1)
    else: A(f'ds_write_b32 {vZ}, {vMark}')
    if st.get(mark): stamp(st[mark])
def retire_to(n, st):
    while len(pend) > n:
        mk = pend.pop(0)
        if mk is not None or len(pend) == n:
            A(f's_waitcnt vmcnt({len(pend)})')
            if mk is not None: post(mk, st)
def run(items, st, bar):
    for win, pre, ins, mk in items:
        if len(pend) >= win:
            if not bar: stamp(1); A('s_barrier'); bar = True
            retire_to(win - 1, st)
        for x in pre: A(x)
        if isinstance(ins, tuple):
            A(f's_mov_b64 exec, {ins[0]}'); A(ins[1]); A('s_mov_b64 exec, -1')
        else: A(ins)
        pend.append(mk)
    return bar
A(f'v_mov_b32 {vZ}, {FLG}'); A(f'v_mov_b32 {vOne}, 1'); A(f'v_lshlrev_b32 {vLin}, 4, {vL}')
A(f's_cmp_ge_u32 {sT}, 16'); A('s_cbranch_scc1 L_loaderW')
setup = [f'v_lshrrev_b32 {vT0}, 4, {vL}', f'v_and_b32 {vT1}, 15, {vL}']
for m in range(4):
    setup += [f'v_add_u32 {vX}, {4*m}, {vT0}', f'v_xor_b32 {vX}, {vX}, {vT1}' if CFG['ksw'] else f'v_mov_b32 {vX}, {vT1}', f'v_lshlrev_b32 {vX}, 4, {vX}', f'v_lshl_add_u32 {vKo[m]}, {vT0}, 8, {vX}']
for m in range(2):
    setup += [f'v_add_u32 {vX}, {4*m}, {vT0}', f'v_lshlrev_b32 {vX}, 1, {vX}', f'v_xor_b32 {vX}, {vX}, {vT1}', f'v_lshlrev_b32 {vX}, 4, {vX}', f'v_lshl_add_u32 {vVo[m]}, {vT0}, 8, {vX}']
setup += [f's_lshl_b32 s56, {sG}, 22', f's_lshl_b32 s57, {sU}, {12 if CFG["kvi"] else 16}', 's_add_u32 s56, s56, s57', 's_add_u32 s56, s56, 0x300000',
          f's_add_u32 s62, {lo(pK)}, s56', f's_addc_u32 s63, {hi(pK)}, 0', f's_add_u32 s60, {lo(pV)}, s56', f's_addc_u32 s61, {hi(pV)}, 0']
if CFG['kvi']:
    def advk(p, c):
        d = 17 if CFG['kvi'] == 1 else 16
        if CFG['kvi'] == 2: return [f's_add_u32 s{p}, s{p}, 65536', f's_addc_u32 s{p+1}, s{p+1}, 0', 's_add_u32 m0, m0, 4096']
        return [f's_cmp_eq_u32 {sU}, {16 - c}', f's_cselect_b32 s56, 4096, s55', f's_add_u32 s{p}, s{p}, s56', f's_addc_u32 s{p+1}, s{p+1}, 0', 's_add_u32 m0, m0, 4096']
    setup += [f's_mov_b32 s55, {17*4096}']
else:
    advk = lambda p, c: adv(p)
sec = {}
sec['K'] = [[0, [f's_mov_b32 m0, {KK}'] if i == 0 else advk(62, i // 4) if i % 4 == 0 else [], f'global_load_lds_dwordx4 {vKo[i % 4]}, s[62:63] offset:{1024*(i % 4)}{NT}', MKA['K0'] + i // 8 if i % 8 == 7 else None] for i in range(64)]
sec['V'] = [[0, [f's_mov_b32 m0, {VV}'] if i == 0 else advk(60, i // 4) if i % 4 == 0 else [], f'global_load_lds_dwordx4 {vVo[i & 1]}, s[60:61] offset:{1024*(i % 4)}{NT}', MKA['V0'] + i // 8 if i % 8 == 7 else None] for i in range(64)]
items = [None] * 8 + sec['K'] + sec['V']
items[8][1] = setup + items[8][1]
for i, it in list(enumerate(items))[8:]: it[0] = CFG['WA0'] if i < CFG['WA0'] + CFG['NA0'] else CFG['WA']
stA = {MKA['K0'] + 7: 3, MKA['V0'] + 7: 4, MKA['M']: 2}
if CFG['trace']:
    stA = {MKA['M']: 2, MKA['K0'] + 1: 3, MKA['K0'] + 3: 4, MKA['K0'] + 5: 5, MKA['K0'] + 7: 6}
    stA.update({MKA['V0'] + i: 7 + i for i in range(8)})
hint_at = len(items) - 64 + 8 * CFG['hint']
def hint():
    A('s_waitcnt lgkmcnt(0)'); A(f's_add_u32 {sE}, {sE}, 1'); A(f'v_mov_b32 {vMark}, {sE}')
    A(f's_mul_i32 s53, {sG}, {LBS}'); A(f's_lshl_b32 s56, {sU}, 3'); A('s_add_u32 s53, s53, s56'); A(f's_add_u32 s53, s53, {LB0 + HINT}'); A(f'v_mov_b32 {vX}, s53')
items[8][1] = [f's_load_dword {sE}, {pWS}, {EP}'] + items[8][1]
n0 = 8 + CFG['X0']
pend += [None] * 7 + [MKA['M']]
run([(63, *x[1:]) for x in items[8:n0]], stA, True)
stamp(1); A('s_barrier')
retire_to(CFG['X0'], stA)
n1 = n0 + (CFG['mpw'] - 1 if CFG['mpw'] else 0)
run(items[n0:n1], stA, True)
if not CFG['only'] and CFG['mpw']: lds_wait(45, F_MP, 4, vT0)
gate_at = len(items) - 64 + 8 * CFG['vgate']
def do_hint():
    retire_to(min(len(pend), CFG['hret']), stA)
    hint()
    A(f'ds_read_b32 {vT0}, {vZ} offset:{F_PURE - FLG}'); A('s_waitcnt lgkmcnt(0)'); A(f'v_readfirstlane_b32 {sPURE}, {vT0}')
    set_exec(1)
    lstore([f'global_store_dword {vX}, {vMark}, {pWS}'])
    set_exec(-1)
    pend.append(None)
def do_gate():
    if CFG['only'] or CFG['vgate'] >= 8: return
    dn = nl('GD')
    marks = [(len(pend) - 1 - i, mk) for i, mk in enumerate(pend) if mk is not None]
    for left, mk in marks:
        A(f'ds_read_b32 {vT0}, {vZ} offset:{F_Q - FLG}'); A('s_waitcnt lgkmcnt(0)'); A(f'v_readfirstlane_b32 {sTMP}, {vT0}'); A(f's_cmp_eq_u32 {sTMP}, 1'); A(f's_cbranch_scc1 {dn}')
        A(f's_waitcnt vmcnt({left})'); post(mk, {})
    lds_wait(47, F_Q, 1, vT0)
    LAB(dn)
pos = n1
for at, fn in sorted([(gate_at, do_gate), (hint_at + 0.5, do_hint)], key=lambda x: x[0]):
    run(items[pos:int(at)], stA, True); pos = max(pos, int(at)); fn()
run(items[pos:], stA, True)
retire_to(0, stA)
A(f's_and_b32 s54, {sU}, 7'); A(f's_lshr_b32 s55, {sU}, 3')
items = []
vGx = V(4, 1)
for i in range(32):
    if i == 0:
        pre = [f'v_lshrrev_b32 {vT0}, 5, {vL}', f'v_and_b32 {vT1}, 31, {vL}', f'v_mul_u32_u24 {vO1}, 3584, {vT0}',
               f's_mul_i32 s56, s54, {64*3584}', f's_mul_i32 s57, {sG}, 448', 's_add_u32 s56, s56, s57', f'v_add_u32 {vO1}, s56, {vO1}']
        for v in range(4):
            f0 = 2 * (v & 1) + 4 * (v >> 1)
            pre += [f'v_add_u32 {vX}, {f0}, {vT0}', f'v_lshlrev_b32 {vX}, 1, {vX}', f'v_xor_b32 {vX}, {vX}, {vT1}' if CFG['gsw'] else f'v_mov_b32 {vX}, {vT1}',
                    f'v_cmp_gt_u32 s[{84+2*v}:{85+2*v}], 28, {vX}', f'v_lshl_add_u32 {vGx[v]}, {vX}, 4, {vO1}']
        pre += ['s_cmp_ge_u32 s55, 1', f's_cselect_b32 s58, {lo(pWU)}, {lo(pWG)}', f's_cselect_b32 s59, {hi(pWU)}, {hi(pWG)}', f's_mov_b32 m0, {GU}']
    else: pre = [f's_add_u32 s58, s58, {2*3584}', 's_addc_u32 s59, s59, 0', 's_add_u32 m0, m0, 1024']
    v = (i & 1) | (((i >> 2) & 1) << 1)
    items.append((CFG['WG'], pre, (f's[{84+2*v}:{85+2*v}]', f'global_load_lds_dwordx4 {vGx[v]}, s[58:59]{NT}'), MKA['GU'] if i == 31 else None))
for i in range(16):
    pre = []
    if i == 0: pre = [f's_min_u32 s57, {sU}, 13', f's_mul_i32 s56, {sG}, {224*1024}', 's_lshl_b32 s57, s57, 14', 's_add_u32 s56, s56, s57', f's_add_u32 s58, {lo(pWD)}, s56', f's_addc_u32 s59, {hi(pWD)}, 0', f's_mov_b32 m0, {DN}']
    elif i % 4 == 0: pre = adv(58)
    fd = ((i & 3) << 1) | ((i >> 3) & 1)
    pre = pre + [f'v_xor_b32 {vX}, {32*fd if CFG["gsw"] else 0}, {vLin}']
    items.append((CFG['WG'], pre, f'global_load_lds_dwordx4 {vX}, s[58:59] offset:{1024*(i % 4)}{NT}', MKA['DN'] if i == 15 else None))
for x in items[0][1]: A(x)
items[0] = (items[0][0], [], *items[0][2:])
if not CFG['only']:
    lds_wait(42, F_AP, 8, vT0, sleep=1)
if not CFG['trace']: stA.update({MKA['GU']: 7, MKA['DN']: 8})
run(items, stA, True)
retire_to(0, stA)
A('s_waitcnt lgkmcnt(0)')
end_wave()
LAB('L_loaderW')
A(f's_and_b32 s54, {sU}, 7'); A(f's_lshr_b32 s55, {sU}, 3')
stW = {MKW['WQ']: 2, MKW['MR']: 6, MKW['WO']: 5}
pend += [None] * 31 + [MKW['WQ']]
if CFG['pv']:
    assert CFG['kvi'] == 2
    A(f's_lshl_b32 s56, {sG}, 22'); A(f's_lshl_b32 s57, {sU}, 12'); A('s_add_u32 s56, s56, s57'); A(f's_add_u32 s56, s56, {0x300000 + (16 - CFG["pv"]) * 65536}')
    A(f's_add_u32 s60, {lo(pV)}, s56'); A(f's_addc_u32 s61, {hi(pV)}, 0'); A(f's_mov_b32 m0, {WO}')
    fl = '' if CFG['pvf'] == '-' else ' ' + CFG['pvf']
    for b in range(CFG['pv']):
        if b: A('s_add_u32 s60, s60, 65536'); A('s_addc_u32 s61, s61, 0')
        for i in range(4): A(f'global_load_lds_dwordx4 {vLin}, s[60:61] offset:{1024*i}{fl}'); pend.append(None)
    assert len(pend) <= 63
for x in [f'v_lshrrev_b32 {vT0}, 3, {vL}', f'v_and_b32 {vT1}, 7, {vL}', f'v_mul_u32_u24 {vO1}, 6144, {vT0}', f'v_lshl_add_u32 {vO1}, {vT1}, 4, {vO1}',
          f's_lshr_b32 s56, {sU}, 2', f's_mul_i32 s56, s56, {128*6144}', f's_and_b32 s57, {sU}, 3', 's_lshl_b32 s57, s57, 10', 's_add_u32 s56, s56, s57',
          f's_lshl_b32 s57, {sG}, 7', 's_add_u32 s56, s56, s57', 's_add_u32 s56, s56, 2048', f'v_add_u32 {vO1}, s56, {vO1}']: A(x)
stamp(1); A('s_barrier')
retire_to(0, stW)
if CFG['only'] == 'loaderA': end_wave()
if not CFG['only']: lds_wait(48, F_QP, 1, vT0, sleep=1)
run([(63, [f's_mov_b32 m0, {MR}'] if i == 0 else [f'v_add_u32 {vO1}, {8*6144}, {vO1}', 's_add_u32 m0, m0, 1024'], f'global_load_lds_dwordx4 {vO1}, {pWM}{NT}', MKW['MR'] if i == 15 else None) for i in range(16)], stW, True)
retire_to(0, stW)
if CFG['only'] != 'loader': lds_wait(41, F_GO, 1, vT0, sleep=1)
items = []
for i in range(32):
    pre = []
    if i == 0: pre = [f's_lshl_b32 s56, {sG}, 19', f's_lshl_b32 s57, {sU}, 15', 's_add_u32 s56, s56, s57', f's_add_u32 s58, {lo(pWO)}, s56', f's_addc_u32 s59, {hi(pWO)}, 0', f's_mov_b32 m0, {WO}']
    elif i % 4 == 0: pre = adv(58)
    f = (i & 3) | ((i >> 1) & 4)
    pre = pre + [f'v_xor_b32 {vX}, {32*f}, {vLin}']
    items.append((CFG['WO0'] if i < CFG['WO0'] + CFG['NO0'] else CFG['WO1'], pre, f'global_load_lds_dwordx4 {vX}, s[58:59] offset:{1024*(i % 4)}{NT}', MKW['WO'] if i == 31 else None))
run(items, stW, True)
flag(F_WI)
retire_to(0, stW)
if not CFG['only']: A('s_waitcnt lgkmcnt(0)'); A('s_barrier')
A('s_waitcnt lgkmcnt(0)')
end_wave()

for sl, ins, bk in slow_paths:
    LAB(sl)
    for x in ins: A(x)
    A(f's_branch {bk}')
LAB('L_fail')
if CFG['dbgfail']:
    set_exec(1)
    A(f'v_mov_b32 v1, 0x1ffff0'); A(f's_lshl_b32 s56, s2, 16'); A(f's_lshl_b32 s57, {sWAVE}, 8'); A('s_or_b32 s56, s56, s57'); A(f's_or_b32 s56, s56, {sTMP}'); A('v_mov_b32 v2, s56')
    A(f'global_store_dword v1, v2, {pWS} sc1')
    set_exec(-1)
if CFG['stamps']:
    LAB('L_stamps')
    A('s_waitcnt lgkmcnt(0)')
    A('v_mov_b32 v2, 0')
    for i in range(16): A(f'v_writelane_b32 v2, s{64+2*i}, {i}')
    A(f's_lshl_b32 s56, {sT}, 3'); A(f's_add_u32 s56, s56, {sG}'); A(f's_mul_i32 s56, s56, {NW}'); A(f's_add_u32 s56, s56, {sWAVE}'); A('s_lshl_b32 s56, s56, 6'); A(f's_add_u32 s56, s56, {STAMPS}')
    A('v_lshl_add_u32 v1, v0, 2, s56')
    set_exec(0xffff); A(f'global_store_dword v1, v2, {pWS}')
LAB('L_exit')
A('s_endpgm')
LAB('L_codeend')

body = pad_hazards(L)
vg = (max(vg_A, vg_W) + 7) // 8 * 8
hdr = open('cdna_kernels/' + KN + '.s.ref').read().split('; Override launch')[0]
name = KN + '_kernel'
txt = hdr + f"""; @launch grid=(256,1,1) block=({64*NW},1,1) lds={LDS_BYTES}
.amdgcn_target "amdgcn-amd-amdhsa--gfx950"
.text
.globl {name}
.p2align 8
.type {name},@function
{name}:
""" + '\n'.join(body) + f"""
.section .rodata,"a"
.p2align 6
.amdhsa_kernel {name}
  .amdhsa_next_free_vgpr {vg}
  .amdhsa_next_free_sgpr 100
  .amdhsa_accum_offset {vg}
  .amdhsa_group_segment_fixed_size 0
  .amdhsa_kernarg_size 112
  .amdhsa_user_sgpr_count 2
  .amdhsa_user_sgpr_kernarg_segment_ptr 1
  .amdhsa_system_sgpr_workgroup_id_x 1
  .amdhsa_float_denorm_mode_32 3
.end_amdhsa_kernel
"""
open(OUT, 'w').write(txt)
print('vgprs', vg_A, vg_W, 'lines', len(body), file=sys.stderr)
```

```python
import sys
from kasm import pad_hazards, Alloc, Reg

KN = 'adaLN_cond__sliding_block_cached__glu_gated_glu__decode'
CFG = dict(stamps=0, limit=200000, pf=1, dbgfail=1, amp=0, ptries=40,
           WA0=28, NA0=0, WA=28, WO0=24, NO0=0, WO1=24, WG=32, nt=1, only='', early=0, QK=3, qgap=4, GK=1, ggap=2, LK=1, lgap=1,
           qstart=4, prio=0, mrpos=0, rep=1, hint=4, qh=1, qsl=0, HK=3, hgap=3, ksw=1, ampe=0, wqd=0, ampm=0, pv=0, pvf='nt', mlb=0, fpre=1, vgate=8, trace=0, near=4, gat2=1, GK2=3, gd2=0, gat3=1, GK3=3, gd3=0, mrg=0, tlb=0, gat=1, gat1=0, G1K=1, gpt=0, mpt=0, gdly=0, gsw=1, mpw=1, hall=0, hret=63, kvi=1, ilv=0, X0=8, lprio=3, cprio=3)
CFG.update(WA0=48, WA=48, QK=4, qgap=8, qh=0, qstart=2, qsl=0, X0=4, hint=3, GK2=1, gd2=6, hall=1, WO0=32, WO1=32, WG=32, kvi=2, GK=3, ggap=4, gpt=2)
for a in sys.argv[2:]:
    k, v = a.split('=')
    assert k in CFG, k
    CFG[k] = int(v) if v.lstrip('-').isdigit() else v
OUT = sys.argv[1]

EP = 0; S_MR = 0x8000; S_M = 0x10000; G2 = 0x20000; G3 = 0x30000
LB0 = 0x40000; LBS = 0x18000
H_ = 0; MV = 0x800; X2 = 0x1800; MLG = 0x2000; GAB = 0x2400 + 0x4000; HINT = 0x2800; Q_ = 0x3000; A_ = 0x8000; B1 = 0x10000
PROBE = 0x110000
STAMPS = 0x200000
KK = 0; VV = 0x10000; MM = 0x20000; OL = 0x22000
GU = 0; DN = 0x8000
WQ = 0; WO = 0x8000; MR = 0x10000
SC = 0x26800
QL = SC; QS = 320; MLL = SC + 0x600; HL = SC; OB = SC + 0x800; FLG = SC + 0x900; CL = SC + 0xA00
OS = 576
F_LP = FLG; F_PF = FLG + 4; F_PURE = FLG + 52; F_G1 = FLG + 8; F_QP = FLG + 12; F_Q = FLG + 56; F_MD = FLG + 60; F_AP = FLG + 16; F_WI = FLG + 20; F_B1 = FLG + 24; F_O = FLG + 28; F_GA = FLG + 32; F_GO = FLG + 40; F_MP = FLG + 44; F_CP = FLG + 36; F_SF = FLG + 48
PB = OL; PBS = 256
LDS_BYTES = SC + 0xE00
NO = 5
NW = 10
sWAVE, sG, sT, sE, sT6, sT16, sT6b = 's3', 's4', 's5', 's6', 's7', 's8', 's9'
sU, sSL, sCNT, sTMP = 's10', 's11', 's14', 's15'
pX, pK, pV, pWQ, pWO, pBX, pWG, pWU, pWD, pC, pWM, pOUT, pDBG, pWS = [f's[{16+2*i}:{17+2*i}]' for i in range(14)]
pLB = 's[44:45]'; sPURE = 's46'; sMASK = 's47'; sSEL = 's48'; sHI = 's49'; sL2E = 's50'; sCM = 's12'; sCP = 's51'
def lo(p): return 's' + p[2:-1].split(':')[0]
def hi(p): return 's' + p[2:-1].split(':')[1]
TM = 0x3f

L = []
def A(x): L.append('    ' + x)
def LAB(x): L.append(x + ':')
uid = [0]
def nl(p='L'):
    uid[0] += 1; return f'{p}_{uid[0]}'
slow_paths = []
def stamp(i):
    if CFG['ampe'] == i and i: A('s_memrealtime s[90:91]')
    if CFG['stamps'] and (CFG['stamps'] >> i) & 1: A(f's_memrealtime s[{64+2*i}:{65+2*i}]')
def set_exec(mask):
    if mask == -1: A('s_mov_b64 exec, -1'); return
    l, h = mask & 0xffffffff, mask >> 32
    if h == 0 and l <= 64: A(f's_mov_b64 exec, {l}'); return
    A(f's_mov_b32 exec_lo, {l:#x}'); A(f's_mov_b32 exec_hi, {h:#x}')
M_N0 = 0x0001000100010001; M_N4 = 0x000F000F000F000F; M_N8 = 0x00FF00FF00FF00FF; M_N2 = 0x0003000300030003; M_Q0 = 0x1111111111111111
def rnd(d, s):
    A(f'v_cvt_pk_bf16_f32 {d}, {s}, {s}'); A(f'v_and_b32 {d}, {sHI}, {d}')
def dpp(op, d, a, b, ctl, bank=0xf, row=0xf):
    if b is None: A(f'{op}_dpp {d}, {a} {ctl} row_mask:{row:#x} bank_mask:{bank:#x}')
    else: A(f'{op}_dpp {d}, {a}, {b} {ctl} row_mask:{row:#x} bank_mask:{bank:#x}')
def row_allred(op, regs, shifts=(8, 4, 2, 1)):
    for sh in shifts:
        for r in regs: dpp(op, r, r, r, f'row_ror:{sh}')
def xrow_allred(op, v, t):
    A(f'v_mov_b32 {t}, {v}'); A(f'v_permlane16_swap_b32 {v}, {t}'); A(f'{op} {v}, {v}, {t}')
    A(f'v_mov_b32 {t}, {v}'); A(f'v_permlane32_swap_b32 {v}, {t}'); A(f'{op} {v}, {v}, {t}')
def tred4(v):
    A(f'v_permlane32_swap_b32 {v[0]}, {v[1]}'); A(f'v_permlane32_swap_b32 {v[2]}, {v[3]}')
    A(f'v_add_f32 {v[0]}, {v[0]}, {v[1]}'); A(f'v_add_f32 {v[2]}, {v[2]}, {v[3]}')
    A(f'v_permlane16_swap_b32 {v[0]}, {v[2]}'); A(f'v_add_f32 {v[0]}, {v[0]}, {v[2]}')
def fail_branch(code, loop):
    A(f's_sub_u32 {sCNT}, {sCNT}, 1'); A(f's_cbranch_scc0 {loop}')
    if CFG['dbgfail']: A(f's_mov_b32 {sTMP}, {code}')
    A('s_branch L_fail')
def check(raw, out, tag, maskbits, chk, full=()):
    for r, o in zip(raw, out): A(f'v_xor_b32 {o}, {tag}, {r}')
    o = list(out)
    if len(o) == 1: A(f'v_and_b32 {chk}, {maskbits:#x}, {o[0]}'); o = None
    elif len(o) == 2: A(f'v_or_b32 {chk}, {o[0]}, {o[1]}'); o = []
    else: A(f'v_or3_b32 {chk}, {o[0]}, {o[1]}, {o[2]}'); o = o[3:]
    if o is not None:
        while len(o) >= 2: A(f'v_or3_b32 {chk}, {chk}, {o[0]}, {o[1]}'); o = o[2:]
        if o: A(f'v_or_b32 {chk}, {chk}, {o[0]}')
        A(f'v_and_b32 {chk}, {maskbits:#x}, {chk}')
    for r in full: A(f'v_xor_b32 {r}, {sE}, {r}'); A(f'v_or_b32 {chk}, {chk}, {r}')
    A(f'v_cmp_ne_u32 vcc, 0, {chk}')
def poll(code, loads, raw, out, tag, maskbits, chk, full=(), shadow=None, sleep=0, issued=False):
    lp, ok, lw = nl('P'), nl('OK'), nl('PW')
    A(f's_mov_b32 {sCNT}, {CFG["limit"]}')
    if shadow or issued:
        if not issued:
            for x in loads: A(x)
        if shadow: shadow()
        A(f's_branch {lw}')
    LAB(lp)
    if sleep: A(f's_sleep {sleep}')
    for x in loads: A(x)
    LAB(lw)
    A('s_waitcnt vmcnt(0)')
    check(raw, out, tag, maskbits, chk, full)
    A(f's_cbranch_vccz {ok}')
    fail_branch(code, lp)
    LAB(ok)
def ppoll(code, K, gap, mk, nld, sets, out, tag, maskbits, extra=()):
    if K == 1:
        poll(code, mk(sets[0]) + list(extra), [sets[0][i] for i in range(sets[0].n)], out, tag, maskbits, vCH); return
    lp, ok = nl('PP'), nl('OK')
    A(f's_mov_b32 {sCNT}, {CFG["limit"]}')
    for k in range(K - 1):
        for x in mk(sets[k]): A(x)
        if gap: A(f's_sleep {gap}')
    LAB(lp)
    for k in range(K):
        for x in mk(sets[(k + K - 1) % K]): A(x)
        for x in extra: A(x)
        A(f's_waitcnt vmcnt({(K-1)*nld})')
        check([sets[k][i] for i in range(sets[k].n)], out, tag, maskbits, vCH)
        A(f's_cbranch_vccz {ok}')
    fail_branch(code, lp)
    LAB(ok)
def lds_wait(code, off, val, tmp, sleep=0, vaddr=None, spec=()):
    lp, ok, ag = nl('W'), nl('OK'), nl('AG')
    va = vaddr or vZ
    if spec:
        A(f'ds_read_b32 {tmp}, {va} offset:{off - FLG}')
        for x in spec: A(x)
        A(f's_waitcnt lgkmcnt({min(15, len(spec))})')
        A(f'v_readfirstlane_b32 {sTMP}, {tmp}'); A(f's_cmp_ge_u32 {sTMP}, {val}'); A(f's_cbranch_scc1 {ok}')
    A(f's_mov_b32 {sCNT}, {CFG["limit"]}')
    LAB(lp)
    A(f'ds_read_b32 {tmp}, {va} offset:{off - FLG}')
    A('s_waitcnt lgkmcnt(0)')
    A(f'v_readfirstlane_b32 {sTMP}, {tmp}')
    A(f's_cmp_ge_u32 {sTMP}, {val}')
    A(f's_cbranch_scc1 {ag}')
    if sleep: A(f's_sleep {sleep}')
    fail_branch(code, lp)
    LAB(ag)
    for x in spec: A(x)
    LAB(ok)
def lds_wait8(code, off, fl, reads):
    lp, ok, again = nl('W'), nl('OK'), nl('AG')
    def flags():
        A(f'ds_read_b128 {fl[0:4]}, {vZ} offset:{off - FLG}'); A(f'ds_read_b128 {fl[4:8]}, {vZ} offset:{off - FLG + 16}')
    def test():
        A(f'v_and_b32 {fl[0]}, {fl[0]}, {fl[1]}')
        for i in (2, 4, 6): A(f'v_bitop3_b32 {fl[0]}, {fl[0]}, {fl[i]}, {fl[i+1]} bitop3:0x80')
        A(f'v_cmp_eq_u32 vcc, 0, {fl[0]}')
    A(f's_mov_b32 {sCNT}, {CFG["limit"]}')
    LAB(lp)
    flags()
    for x in reads: A(x)
    A(f's_waitcnt lgkmcnt({min(15, len(reads))})')
    test()
    A(f's_cbranch_vccz {ok}')
    fail_branch(code, lp)
    LAB(ok)
def gld(d, a, off=0, key='gat'):
    o = f' offset:{off}' if off else ''
    if CFG[key]: return f'global_atomic_add {d}, {a}, {vZero}, {pWS}{o} sc0 sc1'
    return f'global_load_dword {d}, {a}, {pWS}{o} sc1'
def near_update():
    if not CFG['near']: return
    A(f'ds_read_b32 {vT0}, {vZ} offset:{F_CP - FLG}'); A('s_waitcnt lgkmcnt(0)'); A(f'v_readfirstlane_b32 s56, {vT0}')
    A('s_cmp_eq_u32 s56, 1'); A(f's_cselect_b32 {sCP}, 0, {sCP}'); A('s_cmp_eq_u32 s56, 2'); A(f's_cselect_b32 {sCP}, 0x2000, {sCP}')
def pure_read(): return f'ds_read_b32 {vPU}, {vZ} offset:{F_PURE - FLG}'
def pure_update(): A(f'v_readfirstlane_b32 {sPURE}, {vPU}')
def lstore(instrs):
    sl, bk = nl('SL'), nl('BK')
    A(f's_cmp_eq_u32 {sPURE}, 1'); A(f's_cbranch_scc0 {sl}')
    for x in instrs: A(x)
    LAB(bk)
    slow_paths.append((sl, [x + ' sc1' for x in instrs], bk))
def tagf(d, s, vtag): A(f'v_and_or_b32 {d}, {s}, {sMASK}, {vtag}')
def epoch_wait():
    A('s_waitcnt lgkmcnt(0)')
    A(f's_add_u32 {sE}, {sE}, 1')
    A(f's_and_b32 {sT6}, {sE}, {TM:#x}'); A(f's_and_b32 {sT16}, {sE}, 0xffff'); A(f's_xor_b32 {sT6b}, {sT6}, 0x20')
    A(f'v_mov_b32 {vTg}, {sT6}'); A(f'v_mov_b32 {vTgb}, {sT6b}')
def silu_bf(d, c, t1):
    A(f'v_mul_f32 {t1}, {sL2E}, {c}'); A(f'v_exp_f32 {t1}, -{t1}'); A(f'v_add_f32 {t1}, 1.0, {t1}'); A(f'v_rcp_f32 {t1}, {t1}'); A(f'v_mul_f32 {d}, {c}, {t1}')
def end_wave():
    if CFG['stamps']: A('s_branch L_stamps')
    else: A('s_endpgm')
def flag(off): A(f'ds_write_b32 {vZ}, {vOne} offset:{off - FLG}')
NT = ' nt' if CFG['nt'] else ''
vL = 'v0'
MKA = dict(M=1, K0=2, V0=10, GU=18, DN=19)
MKW = dict(WQ=1, MR=2, WO=3)

LAB('L_start')
stamp(0)
if CFG['amp']: A('s_memrealtime s[92:93]')
A('s_cmp_ge_u32 s2, 256'); A('s_cbranch_scc1 L_exit')
A('s_load_dwordx16 s[16:31], s[0:1], 0'); A('s_load_dwordx8 s[32:39], s[0:1], 64'); A('s_load_dwordx4 s[40:43], s[0:1], 96')
A('v_lshrrev_b32 v1, 6, v0'); A('v_and_b32 v0, 63, v0'); A(f'v_readfirstlane_b32 {sWAVE}, v1')
A(f's_and_b32 {sG}, s2, 7'); A(f's_lshr_b32 {sT}, s2, 3'); A(f's_and_b32 {sU}, {sT}, 15')
V = Alloc('v', 1, 168)
vN, vQ, vR, vC, vT0, vT1, vT2, vT3, vCH, vZ, vTg, vTgb, vPU, vOne, vC8, vQ16, vDUM, vZero = [V() for _ in range(18)]
vX = V(4); vXd = V()
mP = V.mark()
A(f's_cmp_lt_u32 {sWAVE}, 8'); A('s_cbranch_scc1 L_i_c')
A(f's_cmp_eq_u32 {sWAVE}, 9'); A('s_cbranch_scc0 L_i_8')
if CFG['pf']:
    A('s_getpc_b64 s[56:57]')
    LAB('L_pc')
    A('s_sub_u32 s56, s56, L_pc - L_start'); A('s_subb_u32 s57, s57, 0')
    A(f's_and_b32 s58, {sT}, 3'); A('s_lshl_b32 s58, s58, 13'); A(f'v_lshl_add_u32 {vT0}, {vL}, 7, s58'); A(f'v_min_u32 {vT0}, L_codeend - L_start - 4, {vT0}')
    A(f'global_load_dword {vDUM}, {vT0}, s[56:57]')
A('s_branch L_i_9')
LAB('L_i_8')
if CFG['lprio']: A(f's_setprio {CFG["lprio"]}')
A(f'v_lshrrev_b32 v2, 3, {vL}'); A(f'v_and_b32 v3, 7, {vL}'); A(f's_lshl_b32 s58, {sG}, 7')
A(f's_cmp_ge_u32 {sT}, 16'); A('s_cbranch_scc1 L_i_8W')
A('v_mul_u32_u24 v1, 6144, v2'); A(f's_lshr_b32 s56, {sU}, 1'); A(f's_mul_i32 s56, s56, {64*6144}'); A(f's_and_b32 s57, {sU}, 1'); A('s_lshl_b32 s57, s57, 10')
A('s_add_u32 s56, s56, s57'); A('s_add_u32 s56, s56, s58'); A(f's_mov_b32 m0, {MM}'); A(f's_mov_b32 s59, {8*6144}'); A('s_mov_b32 s60, 1')
A('s_waitcnt lgkmcnt(0)'); A(f's_mov_b64 s[62:63], {pWM}')
A('s_branch L_i_8go')
LAB('L_i_8W')
A('v_lshlrev_b32 v1, 13, v2'); A(f's_lshr_b32 s56, {sU}, 3'); A('s_lshl_b32 s56, s56, 21'); A(f's_and_b32 s57, {sU}, 7'); A('s_lshl_b32 s57, s57, 7')
A('s_add_u32 s56, s56, s57'); A('s_lshl_b32 s58, s58, 3'); A('s_add_u32 s56, s56, s58'); A(f's_mov_b32 m0, {WQ}'); A('s_mov_b32 s59, 65536'); A('s_mov_b32 s60, 4')
A('s_waitcnt lgkmcnt(0)'); A(f's_mov_b64 s[62:63], {pWQ}')
for k in range(CFG['wqd']): A(f's_load_dword {sE}, {pWS}, {EP + 4096*k}'); A('s_waitcnt lgkmcnt(0)')
LAB('L_i_8go')
A('v_lshl_add_u32 v1, v3, 4, v1'); A('v_add_u32 v1, s56, v1')
LAB('L_i_8loop')
for _ in range(8): A(f'global_load_lds_dwordx4 v1, s[62:63]{NT}'); A('s_add_u32 m0, m0, 1024'); A('v_add_u32 v1, s59, v1')
A('s_sub_u32 s60, s60, 1'); A('s_cmp_lg_u32 s60, 0'); A('s_cbranch_scc1 L_i_8loop')
A('s_branch L_loader')
LAB('L_i_c')
if CFG['only'].startswith('loader'):
    A('s_waitcnt lgkmcnt(0)'); A('s_barrier'); A('s_branch L_stamps')
A(f's_cmp_ge_u32 {sWAVE}, 4'); A('s_cbranch_scc0 L_i_03')
A(f's_lshr_b32 s56, {sU}, 2'); A('s_lshl_b32 s56, s56, 8'); A(f'v_lshl_add_u32 {vT2}, {vL}, 2, s56')
A('s_waitcnt lgkmcnt(0)')
A(f'global_load_dword {vXd}, {vT2}, {pC}')
A('s_branch L_i_done')
LAB('L_i_03')
A(f'v_lshlrev_b32 {vT0}, 4, {vL}')
A(f's_add_u32 s57, {sWAVE}, 1'); A('s_and_b32 s57, s57, 1'); A(f's_lshl_b32 s56, {sU}, 1'); A('s_add_u32 s56, s56, s57'); A('s_lshl_b32 s56, s56, 5')
A(f'v_and_b32 {vT1}, 15, {vL}'); A(f'v_lshl_add_u32 {vT1}, {vT1}, 1, s56')
A(f's_sub_u32 s57, {sWAVE}, 1'); A(f's_lshr_b32 s56, {sT}, 4'); A('s_xor_b32 s56, s56, 1'); A('s_lshl_b32 s56, s56, 1'); A('s_or_b32 s57, s57, s56')
A('s_waitcnt lgkmcnt(0)')
A('s_cmp_lt_u32 s57, 2'); A('s_cbranch_scc0 L_i_done')
A(f'global_load_dwordx4 {vX}, {vT0}, {pX}'); A(f'global_load_ushort {vXd}, {vT1}, {pX}')
A('s_branch L_i_done')
LAB('L_i_9')
if CFG['only'].startswith('loader'):
    A('s_waitcnt lgkmcnt(0)'); A('s_barrier'); A('s_branch L_stamps')
if CFG['cprio']: A(f's_setprio {CFG["cprio"]}')
A(f'v_lshlrev_b32 {vT1}, 2, {vL}'); A(f'v_add_u32 {vT1}, {FLG}, {vT1}'); A(f'v_mov_b32 {vT2}, 0')
set_exec(0xffffffff); A(f'ds_write_b32 {vT1}, {vT2}'); set_exec(-1)
A('s_getreg_b32 s52, hwreg(HW_REG_XCC_ID)'); A('s_and_b32 s52, s52, 15'); A('s_or_b32 s52, s52, 0x80')
A(f's_lshl_b32 s56, {sG}, 5'); A(f's_add_u32 s57, s56, {sT}'); A(f'v_mov_b32 {vT0}, s57'); A(f'v_mov_b32 {vT1}, s52')
A('s_waitcnt lgkmcnt(0)')
set_exec(1); A(f'global_store_byte {vT0}, {vT1}, {pDBG}')
if CFG['ampm']:
    A(f's_lshl_b32 s57, s57, 2'); A('s_add_u32 s57, s57, 0x180000'); A(f'v_mov_b32 {vT0}, s57'); A(f'v_mov_b32 {vT1}, s92'); A(f'global_store_dword {vT0}, {vT1}, {pWS} sc1')
set_exec(-1)
LAB('L_i_done')
A(f's_load_dword {sE}, {pWS}, {EP}')
A(f's_getreg_b32 {sCP}, hwreg(HW_REG_XCC_ID)'); A(f's_and_b32 {sCP}, {sCP}, {4 if CFG["rep"] else 0}'); A(f's_lshl_b32 {sCP}, {sCP}, 11')
A(f's_mov_b32 {sMASK}, {0xffffffff ^ TM:#x}'); A(f's_mov_b32 {sSEL}, 0x07060302'); A(f's_mov_b32 {sHI}, 0xffff0000'); A(f's_mov_b32 {sL2E}, 0x3fb8aa3b'); A(f's_mov_b32 {sPURE}, 0')
A(f's_mul_i32 s53, {sG}, {LBS}'); A(f's_add_u32 s53, s53, {LB0}'); A(f's_add_u32 {lo(pLB)}, {lo(pWS)}, s53'); A(f's_addc_u32 {hi(pLB)}, {hi(pWS)}, 0')
A(f'v_mov_b32 {vZ}, {FLG}'); A(f'v_mov_b32 {vOne}, 1'); A(f'v_mov_b32 {vZero}, 0')
A(f'v_and_b32 {vN}, 15, {vL}'); A(f'v_lshrrev_b32 {vQ}, 4, {vL}'); A(f'v_bfe_u32 {vR}, {vL}, 2, 2'); A(f'v_and_b32 {vC}, 3, {vL}')
A(f'v_lshlrev_b32 {vC8}, 3, {vC}'); A(f'v_lshlrev_b32 {vQ16}, 4, {vQ}')
w2, w5, w6, w7, w8 = 's59', 's60', 's61', 's62', 's63'
A(f's_lshl_b32 {w2}, {sWAVE}, 2'); A(f's_lshl_b32 {w5}, {sWAVE}, 5'); A(f's_lshl_b32 {w6}, {sWAVE}, 6'); A(f's_lshl_b32 {w7}, {sWAVE}, 7'); A(f's_lshl_b32 {w8}, {sWAVE}, 8')

def pure_phase():
    lp, dn = nl('PP'), nl('PD')
    A('s_mul_i32 s52, s52, 0x01010101'); A(f'v_and_b32 {vT1}, 7, {vL}'); A(f's_lshl_b32 s56, {sG}, 5'); A(f'v_lshl_add_u32 {vT1}, {vT1}, 2, s56')
    A(f's_mov_b32 {sCNT}, {CFG["ptries"]}')
    LAB(lp)
    A(f'global_load_dword {vT0}, {vT1}, {pDBG} sc1'); A('s_waitcnt vmcnt(0)')
    A(f'v_cmp_ne_u32 vcc, s52, {vT0}'); A(f's_cbranch_vccz {lp}_ok')
    A(f's_sub_u32 {sCNT}, {sCNT}, 1'); A(f's_cbranch_scc0 {lp}'); A(f's_branch {dn}')
    LAB(lp + '_ok')
    flag(F_PURE)
    LAB(dn)
    stamp(2)

A(f's_cmp_ge_u32 {sT}, 16'); A('s_cbranch_scc1 L_W')
A(f's_cmp_eq_u32 {sWAVE}, 9'); A('s_cbranch_scc1 L_A9')
aK = V(4, 1); aQB, aMw, aMr, aVx, aPw, aPr, aAst = [V() for _ in range(7)]; vMg = V(4, 1)
A(f's_lshl_b32 s58, {sWAVE}, 13')
A(f'v_xor_b32 {vT0}, {vQ}, {vN}'); A(f'v_lshlrev_b32 {vT0}, 4, {vT0}'); A(f'v_lshl_add_u32 {vT0}, {vN}, 8, {vT0}'); A(f'v_add_u32 {aK[0]}, s58, {vT0}')
for ks in range(1, 4): A(f'v_xor_b32 {aK[ks]}, {64*ks}, {aK[0]}')
A(f'v_mul_u32_u24 {aQB}, {QS}, {vC}'); A(f'v_add3_u32 {aQB}, {aQB}, {vQ16}, {vZ}'); A(f'v_add_u32 {aQB}, {QL - FLG}, {aQB}')
A(f's_add_u32 s56, {w5}, {MLL}'); A(f'v_add_u32 {aMw}, s56, {vC8}')
A(f'v_lshl_add_u32 {aMr}, {vR}, 6, {vC8}'); A(f'v_add_u32 {aMr}, {MLL}, {aMr}')
A(f'v_lshl_add_u32 {vT0}, {vQ}, 2, {vR}'); A(f'v_and_b32 {vT1}, 7, {vT0}'); A(f'v_lshl_add_u32 {aVx}, {vT0}, 8, {vC8}'); A(f'v_lshl_add_u32 {aVx}, {vT1}, 5, {aVx}')
A(f'v_xor_b32 {aVx}, {w5}, {aVx}'); A(f'v_add_u32 {aVx}, {VV}, {aVx}')
A(f'v_lshl_add_u32 {vT2}, {vC}, 6, {vQ16}'); A(f's_add_u32 s56, {w8}, {PB}'); A(f'v_lshl_add_u32 {aPw}, {vR}, 2, {vT2}'); A(f'v_add_u32 {aPw}, s56, {aPw}')
A(f'v_lshl_add_u32 {aPr}, {vR}, 9, {vT2}'); A(f'v_add_u32 {aPr}, {PB}, {aPr}')
for k in range(4):
    A(f'v_cmp_eq_u32 vcc, {k}, {vR}'); A(f'v_cndmask_b32 {vMg[k]}, 0, -1, vcc')
A(f's_lshl_b32 s57, {sU}, 11'); A(f's_add_u32 s56, s57, {w6}'); A(f's_add_u32 s56, s56, {A_}')
A(f'v_lshl_add_u32 {aAst}, {vC}, 9, {vQ16}'); A(f'v_lshrrev_b32 {vT1}, 1, {vR}'); A(f'v_and_b32 {vT2}, 1, {vR}'); A(f'v_lshl_add_u32 {vT1}, {vT2}, 1, {vT1}'); A(f'v_lshl_add_u32 {aAst}, {vT1}, 2, {aAst}'); A(f'v_add_u32 {aAst}, s56, {aAst}')
A('s_barrier')
epoch_wait()
stamp(1)
A(f's_cmp_ge_u32 {sWAVE}, 4'); A('s_cbranch_scc0 L_A_main')
def mod_tile(base, nks, koff_expr, vSt, mark, mask, code, sleep, before_wait=None):
    vCc = V(4 * nks); vMa = V(4 * nks); vD = V(4); aM, aC = V(), V()
    A(f's_sub_u32 s56, {w8}, {1024 - CL}'); A(f'v_lshl_add_u32 {vT2}, {vL}, 2, s56'); koff_expr(); A(f'v_add_u32 {aC}, s56, {vQ16}')
    A(f's_sub_u32 s56, {w5}, {128 - base}'); A(f'v_lshl_add_u32 {aM}, {vQ}, 3, {vR}'); A(f'v_lshl_add_u32 {aM}, {aM}, 7, {vC8}'); A(f'v_add_u32 {aM}, s56, {aM}')
    A('s_waitcnt vmcnt(0)')
    A(f'v_lshlrev_b32 {vX[0]}, 16, {vXd}'); A(f'v_and_b32 {vX[1]}, {sHI}, {vXd}')
    silu_bf(vX[0], vX[0], vT0); silu_bf(vX[1], vX[1], vT1)
    A(f'v_cvt_pk_bf16_f32 {vXd}, {vX[0]}, {vX[1]}')
    A(f'ds_write_b32 {vT2}, {vXd}')
    for ks in range(nks): A(f'ds_read_b128 {vCc[4*ks:4*ks+4]}, {aC} offset:{64*ks}')
    if before_wait: before_wait()
    reads = [x for ks in range(nks) for x in (f'ds_read_b64_tr_b16 {vMa[4*ks:4*ks+2]}, {aM} offset:{4096*ks}', f'ds_read_b64_tr_b16 {vMa[4*ks+2:4*ks+4]}, {aM} offset:{4096*ks + 512}')]
    lds_wait(code, F_LP, mark, vT0, spec=reads, sleep=sleep)
    for ks in range(nks):
        A(f's_waitcnt lgkmcnt({2*(nks-1-ks)})')
        A(f'v_mfma_f32_16x16x32_bf16 {vD}, {vMa[4*ks:4*ks+4]}, {vCc[4*ks:4*ks+4]}, {0 if ks == 0 else vD}')
    for r in range(4): tagf(vD[r], vD[r], vTg)
    set_exec(mask); A(f'global_store_dwordx4 {vSt}, {vD}, {pWS} sc1')
m = V.mark()
vSt = V()
A(f's_lshl_b32 s56, {sU}, 3'); A(f's_add_u32 s56, s56, {sG}'); A('s_lshl_b32 s56, s56, 8'); A(f's_add_u32 s56, s56, {w6}'); A(f's_sub_u32 s56, s56, 256')
A('s_and_b32 s57, s56, 0xffffe000'); A('s_add_u32 s56, s56, s57'); A(f's_add_u32 s56, s56, {S_M}'); A(f'v_lshl_add_u32 {vSt}, {vN}, 13, {vQ16}'); A(f'v_add_u32 {vSt}, s56, {vSt}')
mod_tile(MM, 2, lambda: (A(f's_and_b32 s57, {sU}, 2'), A('s_lshl_b32 s57, s57, 6'), A('s_add_u32 s56, s56, s57')), vSt, MKA['M'], M_N2, 20, 0)
set_exec(1); A(f'ds_add_u32 {vZ}, {vOne} offset:{F_MP - FLG}'); set_exec(-1)
stamp(3)
V.release(m)
LAB('L_A_main')
mA = V.mark()
vK = V(32); vV = V(32); vQB = V(16); vS = V(8); vP = V(); vM, vLs = V(), V()
A(f's_add_u32 s57, {sWAVE}, {MKA["K0"]}')
lds_wait(5, F_LP, 's57', vT0, sleep=1)
for T in range(2):
    for ks in range(4): A(f'ds_read_b128 {vK[16*T+4*ks:16*T+4*ks+4]}, {aK[ks]} offset:{4096*T}')
stamp(7)
xreads = lambda cs: [x for c in cs for x in (f'ds_read_b64_tr_b16 {vV[4*c:4*c+2]}, {aVx} offset:{8192*c}', f'ds_read_b64_tr_b16 {vV[4*c+2:4*c+4]}, {aVx} offset:{8192*c + 4096}')]
sNV = 's13'
A(f's_mov_b32 {sNV}, 0'); A(f's_mov_b32 s58, {MKA["V0"] + NO - 1}')
lp, ok, nv, n2 = nl('W'), nl('OK'), nl('NV'), nl('N2')
A(f's_mov_b32 {sCNT}, {CFG["limit"]}')
LAB(lp)
A(f'ds_read_b32 {vT1}, {vZ} offset:{F_Q - FLG}'); A(f'ds_read_b32 {vT2}, {vZ} offset:{F_LP - FLG}')
A('s_waitcnt lgkmcnt(0)')
A(f'v_readfirstlane_b32 {sTMP}, {vT1}'); A(f'v_readfirstlane_b32 s56, {vT2}')
A(f's_cmp_eq_u32 {sTMP}, 1'); A(f's_cbranch_scc1 {ok}')
A('s_cmp_ge_u32 s56, s58'); A(f's_cbranch_scc0 {nv}')
A(f's_cmp_eq_u32 {sNV}, 0'); A(f's_cbranch_scc0 {n2}')
for x in xreads(range(NO)): A(x)
A(f's_mov_b32 {sNV}, 1'); A(f's_mov_b32 s58, {MKA["V0"] + 7}'); A(f's_branch {nv}')
LAB(n2)
for x in xreads(range(NO, 8)): A(x)
A(f's_mov_b32 {sNV}, 2'); A('s_mov_b32 s58, 99')
LAB(nv)
fail_branch(7, lp)
LAB(ok)
for ks in range(4): A(f'ds_read_b128 {vQB[4*ks:4*ks+4]}, {aQB} offset:{64*ks}')
A(pure_read())
stamp(8)
for ks in range(4):
    A(f's_waitcnt lgkmcnt({4-ks})')
    for T in range(2): A(f'v_mfma_f32_16x16x32_bf16 {vS[4*T:4*T+4]}, {vK[16*T+4*ks:16*T+4*ks+4]}, {vQB[4*ks:4*ks+4]}, {0 if ks == 0 else vS[4*T:4*T+4]}')
A('s_waitcnt lgkmcnt(0)'); pure_update()
A('s_mov_b32 s56, 0x3db504f3')
for k in (1, 2, 3):
    dpp('v_mov_b32', vS[0], vS[2*k], None, 'quad_perm:[0,1,2,3]', 1 << k); dpp('v_mov_b32', vS[1], vS[2*k+1], None, 'quad_perm:[0,1,2,3]', 1 << k)
A(f'v_cvt_pk_bf16_f32 {vP}, {vS[0]}, {vS[1]}'); A(f'v_lshlrev_b32 {vS[0]}, 16, {vP}'); A(f'v_and_b32 {vS[1]}, {sHI}, {vP}')
A(f'v_mul_f32 {vS[0]}, s56, {vS[0]}'); A(f'v_mul_f32 {vS[1]}, s56, {vS[1]}')
A(f'v_cvt_pk_bf16_f32 {vP}, {vS[0]}, {vS[1]}'); A(f'v_lshlrev_b32 {vS[0]}, 16, {vP}'); A(f'v_and_b32 {vS[1]}, {sHI}, {vP}')
A(f'v_max_f32 {vM}, {vS[0]}, {vS[1]}'); row_allred('v_max_f32', [vM], (4, 8)); xrow_allred('v_max_f32', vM, vT0)
A(f'v_mul_f32 {vT1}, {sL2E}, {vM}')
for i in range(2): A(f'v_fma_f32 {vS[i]}, {vS[i]}, {sL2E}, -{vT1}')
for i in range(2): A(f'v_exp_f32 {vS[i]}, {vS[i]}')
set_exec(0xf); A(f'ds_write_b32 {aMw}, {vM}'); set_exec(-1)
A(f'v_cvt_pk_bf16_f32 {vP}, {vS[0]}, {vS[1]}'); A(f'v_add_f32 {vLs}, {vS[0]}, {vS[1]}')
A(f'ds_write_b32 {aPw}, {vP}')
set_exec(1); A(f'ds_add_u32 {vZ}, {vOne} offset:{F_PF - FLG}'); set_exec(-1)
stamp(9)
row_allred('v_add_f32', [vLs], (4, 8)); xrow_allred('v_add_f32', vLs, vT3)
set_exec(0xf); A(f'ds_write_b32 {aMw}, {vLs} offset:4'); set_exec(1); A(f'ds_add_u32 {vZ}, {vOne} offset:{F_SF - FLG}'); set_exec(-1)
vMc = vQB[0:4]; vF1, vF2 = vQB[4], vQB[5]; vFg = vQB[6:8]; vPp = vQB[8:16]; vOa = vK[0:8]; vBm = vK[8:16]; vO = vK[16:20]
lp, ok = nl('W'), nl('OK')
A(f's_mov_b32 {sCNT}, {CFG["limit"]}')
LAB(lp)
A(f'ds_read_b64 {vFg}, {vZ}')
A(f'ds_read_b128 {vPp[0:4]}, {aPr}'); A(f'ds_read_b128 {vPp[4:8]}, {aPr} offset:256'); A(f'ds_read2_b64 {vMc}, {aMr} offset0:0 offset1:4')
A('s_waitcnt lgkmcnt(3)')
A(f'v_readfirstlane_b32 {sTMP}, {vFg[1]}'); A(f'v_readfirstlane_b32 s57, {vFg[0]}')
A(f's_cmp_eq_u32 {sTMP}, 8'); A(f's_cbranch_scc1 {ok}')
fail_branch(8, lp)
LAB(ok)
stamp(10)
def pvx(cs, waits=None):
    for i, c in enumerate(cs):
        b = vBm[4*(c & 1):4*(c & 1)+4]
        for p in range(4): A(f'v_and_b32 {b[p]}, {vMg[c >> 1]}, {vPp[4*(c & 1)+p]}')
        if waits: A(f's_waitcnt lgkmcnt({waits[i]})')
        acc = vOa[4*(c & 1):4*(c & 1)+4]
        A(f'v_mfma_f32_16x16x32_bf16 {acc}, {vV[4*c:4*c+4]}, {b}, {0 if c < 2 else acc}')
def factors():
    A(f'v_max_f32 {vT0}, {vMc[0]}, {vMc[2]}'); row_allred('v_max_f32', [vT0], (4, 8))
    A(f'v_sub_f32 {vF1}, {vMc[0]}, {vT0}'); A(f'v_sub_f32 {vF2}, {vMc[2]}, {vT0}'); A(f'v_mul_f32 {vF1}, {sL2E}, {vF1}'); A(f'v_mul_f32 {vF2}, {sL2E}, {vF2}')
    A(f'v_exp_f32 {vF1}, {vF1}'); A(f'v_exp_f32 {vF2}, {vF2}')
A(f's_cmp_eq_u32 {sNV}, 2'); A('s_cbranch_scc0 L_A_vlate')
A('s_waitcnt lgkmcnt(1)')
pvx(range(8))
A('s_waitcnt lgkmcnt(0)'); factors()
LAB('L_A_pvdone')
for i in range(4): A(f'v_mul_f32 {vO[i]}, {vF1}, {vOa[i]}')
for i in range(4): A(f'v_fmac_f32 {vO[i]}, {vF2}, {vOa[4+i]}')
dpp('v_add_f32', vT1, vO[0], vO[0], 'row_ror:8', 0x3); dpp('v_add_f32', vT2, vO[2], vO[2], 'row_ror:8', 0x3)
dpp('v_add_f32', vT1, vO[1], vO[1], 'row_ror:8', 0xc); dpp('v_add_f32', vT2, vO[3], vO[3], 'row_ror:8', 0xc)
dpp('v_add_f32', vT0, vT1, vT1, 'row_ror:12', 0x5); dpp('v_add_f32', vT0, vT2, vT2, 'row_ror:4', 0xa)
tagf(vT0, vT0, vTg)
lstore([f'global_store_dword {aAst}, {vT0}, {pLB}'])
set_exec(1); A(f'ds_add_u32 {vZ}, {vOne} offset:{F_AP - FLG}'); set_exec(-1)
stamp(11)
A(f's_cmp_ge_u32 {sWAVE}, 4'); A('s_cbranch_scc1 L_A_end')
V.release(mP)
aDst, aMV, aX2, aX2b, aGu, aDn, aCst, aCld, v8qr = [V() for _ in range(9)]
vMk = V(4, 1); vMd = V(4, 1)
A(f'v_lshl_add_u32 {v8qr}, {vQ}, 3, {vR}')
A(f's_and_b32 s54, {sU}, 7'); A(f's_lshl_b32 s58, {sWAVE}, 9')
A(f'v_lshl_add_u32 {vT0}, {vN}, 6, {vQ16}')
A(f's_lshl_b32 s57, {sU}, 11'); A(f's_add_u32 s57, s57, {B1}'); A('s_add_u32 s56, s57, s58'); A(f'v_add_u32 {aDst}, s56, {vT0}')
A(f's_lshl_b32 s56, {sU}, 10'); A(f's_add_u32 s56, s56, {w8}'); A(f's_add_u32 s56, s56, {A_}'); A(f'v_add_u32 {aCst}, s56, {vT0}')
A(f'v_lshlrev_b32 {vT0}, 4, {vR}'); A(f'v_and_b32 {vT1}, 2, {vL}'); A(f'v_lshl_add_u32 {vT0}, {vT1}, 2, {vT0}'); A(f'v_lshl_add_u32 {vT0}, {vQ}, 1, {vT0}'); A(f'v_and_b32 {vT1}, 1, {vL}'); A(f'v_add_u32 {vT0}, {vT0}, {vT1}')
A('s_lshl_b32 s56, s54, 8'); A(f'v_lshl_add_u32 {vT0}, {vT0}, 4, s56'); A(f'v_and_b32 {vT0}, 2047, {vT0}')
A(f'v_add_u32 {aX2}, {X2}, {vT0}'); A(f'v_add_u32 {aMV}, {MV}, {vT0}'); A(f'v_xor_b32 {vT0}, 1024, {vT0}'); A(f'v_add_u32 {aX2b}, {X2}, {vT0}')
A(f'v_and_b32 {vT0}, 1, {vQ}'); A(f'v_lshl_add_u32 {vT0}, {vT0}, 2, {vR}'); A(f'v_lshlrev_b32 {vT0}, 5, {vT0}'); A(f'v_add_u32 {vT1}, {w7}, {vC8}')
if CFG['gsw']: A(f'v_xor_b32 {vT1}, {vT1}, {vT0}')
A(f'v_lshl_add_u32 {aGu}, {v8qr}, 9, {vT1}'); A(f'v_add_u32 {aGu}, {GU}, {aGu}')
A(f'v_and_b32 {vT0}, 1, {vQ}'); A(f'v_lshl_add_u32 {vT0}, {vT0}, 3, {vR}'); A(f'v_lshl_add_u32 {aDn}, {vT0}, 10, {vC8}'); A(f'v_lshrrev_b32 {vT1}, 1, {vQ}'); A(f'v_lshl_add_u32 {aDn}, {vT1}, 5, {aDn}')
A(f's_add_u32 s56, {w8}, {DN}'); A(f'v_add_u32 {aDn}, s56, {aDn}')
if CFG['gsw']:
    A(f'v_and_b32 {vT0}, 1, {vQ}'); A(f'v_lshl_add_u32 {vT0}, {vR}, 1, {vT0}'); A(f'v_lshlrev_b32 {vT0}, 5, {vT0}'); A(f'v_xor_b32 {aDn}, {aDn}, {vT0}')
A(f'v_bfe_u32 {vT0}, {vL}, 2, 1'); A(f'v_lshrrev_b32 {aCld}, 3, {vL}'); A(f'v_lshl_add_u32 {aCld}, {vT0}, 3, {aCld}'); A(f'v_lshlrev_b32 {aCld}, 10, {aCld}')
A(f'v_lshl_add_u32 {aCld}, {vC}, 4, {aCld}'); A(f's_lshl_b32 s56, {sU}, 6'); A(f's_add_u32 s56, s56, {A_}'); A(f'v_add_u32 {aCld}, s56, {aCld}')
for j in range(4):
    A(f'v_cmp_eq_u32 vcc, {j}, {vN}'); A(f'v_cndmask_b32 {vMk[j]}, 0, -1, vcc')
for jj in range(4):
    if jj: A(f'v_add_u32 {vT1}, 2, {vT1}')
    A(f'v_cmp_eq_u32 vcc, {vT1}, {vN}'); A(f'v_cndmask_b32 {vMd[jj]}, 0, -1, vcc')
A(f's_mov_b32 {sCM}, {M_N4 & 0xffffffff:#x}'); A(f's_cmp_eq_u32 {sWAVE}, 3'); A(f's_cselect_b32 {sCM}, {M_N2 & 0xffffffff:#x}, {sCM}')
vGu = V(32); vDn = V(16); vSB = V(4); vT1v = V(4); vXs = [V(8) for _ in range(CFG['LK'])]; vXr = vXs[0]; vXx = V(8); vHp = V(2); vBm = V(8); vD = V(4); vSum, vSq = V(), V()
A(f'global_load_dword {vDUM}, {aX2}, {pLB} sc1'); A(f'global_load_dword {vDUM}, {aX2b}, {pLB} sc1')
mv_loads = [f'global_load_dwordx4 {vXr[0:4]}, {aMV}, {pLB} sc1', f'global_load_dwordx4 {vXr[4:8]}, {aMV}, {pLB} offset:2048 sc1']
lds_wait(15, F_LP, MKA['GU'], vT0, sleep=1)
for x in mv_loads: A(x)
for j in range(4):
    A(f'v_xor_b32 {vT1}, {32*j}, {aGu}')
    for ks in range(2):
        r = vGu[8*j+4*ks:8*j+4*ks+4]
        A(f'ds_read_b64_tr_b16 {r[0:2]}, {vT1} offset:{16384*ks}'); A(f'ds_read_b64_tr_b16 {r[2:4]}, {vT1} offset:{16384*ks + 2048}')
    if j == 1: A('s_waitcnt lgkmcnt(4)')
lds_wait(16, F_LP, MKA['DN'], vT0)
for jj in range(4):
    A(f'v_xor_b32 {vT1}, {64*jj}, {aDn}'); A(f'ds_read_b64_tr_b16 {vDn[4*jj:4*jj+2]}, {vT1}'); A(f'ds_read_b64_tr_b16 {vDn[4*jj+2:4*jj+4]}, {vT1} offset:4096')
poll(13, mv_loads, [vXr[i] for i in range(8)], [vSB[i] for i in range(4)] + [vT1v[i] for i in range(4)], sT16, 0xffff, vCH, issued=True)
A('s_waitcnt lgkmcnt(0)')
stamp(6)
ppoll(17, CFG['LK'], CFG['lgap'], lambda r: [f'global_load_dwordx4 {r[0:4]}, {aX2}, {pLB} sc1', f'global_load_dwordx4 {r[4:8]}, {aX2b}, {pLB} sc1'], 2, vXs, [vXx[i] for i in range(8)], sT16, 0xffff)
stamp(12)
A(f'v_add_f32 {vSum}, {vXx[0]}, {vXx[1]}'); A(f'v_mul_f32 {vSq}, {vXx[0]}, {vXx[0]}')
A(f'v_add_f32 {vT0}, {vXx[2]}, {vXx[3]}'); A(f'v_mul_f32 {vT1}, {vXx[1]}, {vXx[1]}')
for i in range(2, 8): A(f'v_fmac_f32 {vSq if i % 2 == 0 else vT1}, {vXx[i]}, {vXx[i]}')
A(f'v_add_f32 {vT2}, {vXx[4]}, {vXx[5]}'); A(f'v_add_f32 {vT3}, {vXx[6]}, {vXx[7]}'); A(f'v_add_f32 {vSum}, {vSum}, {vT0}'); A(f'v_add_f32 {vT2}, {vT2}, {vT3}')
A(f'v_add_f32 {vSq}, {vSq}, {vT1}'); A(f'v_add_f32 {vSum}, {vSum}, {vT2}')
A(f'v_permlane32_swap_b32 {vSum}, {vSq}'); A(f'v_add_f32 {vSum}, {vSum}, {vSq}')
A(f'v_mov_b32 {vSq}, {vSum}'); A(f'v_permlane16_swap_b32 {vSum}, {vSq}'); A(f'v_add_f32 {vSum}, {vSum}, {vSq}')
row_allred('v_add_f32', [vSum])
A(f'v_mul_f32 {vSum}, 0x3b000000, {vSum}')
A(f'v_mov_b32 {vSq}, {vSum}'); A(f'v_permlane32_swap_b32 {vSum}, {vSq}')
A(f'v_fma_f32 {vSq}, -{vSum}, {vSum}, {vSq}'); A(f'v_max_f32 {vSq}, 0, {vSq}'); A(f'v_add_f32 {vSq}, 0x3727c5ac, {vSq}'); A(f'v_rsq_f32 {vSq}, {vSq}')
for i in range(4): A(f'v_sub_f32 {vXx[i]}, {vXx[i]}, {vSum}')
for i in range(4): A(f'v_mul_f32 {vT1v[i]}, {vSq}, {vT1v[i]}')
for i in range(4): A(f'v_fma_f32 {vXx[i]}, {vXx[i]}, {vT1v[i]}, {vSB[i]}')
for i in range(2): A(f'v_cvt_pk_bf16_f32 {vHp[i]}, {vXx[2*i]}, {vXx[2*i+1]}')
k = 0
sk = nl('S')
for j in range(4):
    if j == 2: A(f's_cmp_eq_u32 {sWAVE}, 3'); A(f's_cbranch_scc1 {sk}')
    for ks in range(2):
        b = vBm[4*(k & 1):4*(k & 1)+4]
        for p in range(4): dpp('v_and_b32', b[p], vHp[p & 1], vMk[j], f'row_newbcast:{2*ks + (p >> 1)}')
        A(f'v_mfma_f32_16x16x32_bf16 {vD}, {vGu[8*j+4*ks:8*j+4*ks+4]}, {b}, {0 if k == 0 else vD}'); k += 1
LAB(sk)
for r in range(4): tagf(vD[r], vD[r], vTgb)
A(f's_mov_b32 exec_lo, {sCM}'); A(f's_mov_b32 exec_hi, {sCM}')
lstore([f'global_store_dwordx4 {aCst}, {vD}, {pLB}'])
set_exec(-1)
stamp(13)
vG = vXx
A(f's_cmp_ge_u32 {sU}, 14'); A('s_cbranch_scc1 L_A_zero')
if CFG['LK'] > 1: A('s_waitcnt vmcnt(1)')
ppoll(18, CFG['LK'], CFG['lgap'], lambda r: [f'global_load_dwordx4 {r}, {aCld}, {pLB} sc1'], 1, [r[0:4] for r in vXs], [vG[i] for i in range(4)], sT6b, TM)
tred4(vG)
dpp('v_add_f32', vG[0], vG[0], vG[0], 'row_ror:8')
rnd(vG[0], vG[0])
A(f'v_mul_f32 {vT0}, {sL2E}, {vG[0]}'); A(f'v_exp_f32 {vT0}, -{vT0}'); A(f'v_add_f32 {vT0}, 1.0, {vT0}'); A(f'v_rcp_f32 {vT0}, {vT0}'); rnd(vT0, vT0)
dpp('v_mul_f32', vT0, vG[0], vT0, 'row_ror:12')
A(f'v_mov_b32 {vT1}, {vT0}'); A(f'v_permlane32_swap_b32 {vT0}, {vT1}'); A(f'v_cvt_pk_bf16_f32 {vT0}, {vT0}, {vT1}')
A(f'v_mov_b32 {vT1}, {vT0}'); A(f'v_permlane16_swap_b32 {vT0}, {vT1}')
vHh = vSB
for rowm, q0 in ((0x5, 0), (0xa, 2)):
    dpp('v_mov_b32', vHh[0], vT0, None, f'row_newbcast:{q0}', row=rowm); dpp('v_mov_b32', vHh[1], vT1, None, f'row_newbcast:{q0}', row=rowm)
    dpp('v_mov_b32', vHh[2], vT0, None, f'row_newbcast:{q0+1}', row=rowm); dpp('v_mov_b32', vHh[3], vT1, None, f'row_newbcast:{q0+1}', row=rowm)
for jj in range(4):
    b = vBm[4*(jj & 1):4*(jj & 1)+4]
    for p in range(4): A(f'v_and_b32 {b[p]}, {vMd[jj]}, {vHh[p]}')
    A(f'v_mfma_f32_16x16x32_bf16 {vD}, {vDn[4*jj:4*jj+4]}, {b}, {0 if jj == 0 else vD}')
for r in range(4): tagf(vD[r], vD[r], vTgb)
LAB('L_A_pub')
set_exec(M_N8)
lstore([f'global_store_dwordx4 {aDst}, {vD}, {pLB}'])
set_exec(-1)
stamp(14)
LAB('L_A_end')
end_wave()
LAB('L_A_zero')
for r in range(4): A(f'v_mov_b32 {vD[r]}, {vTgb}')
A('s_branch L_A_pub')
LAB('L_A_vlate')
sk = nl('S')
A(f's_cmp_eq_u32 {sNV}, 1'); A(f's_cbranch_scc1 {sk}')
lds_wait(9, F_LP, MKA['V0'] + NO - 1, vT0)
for x in xreads(range(NO)): A(x)
LAB(sk)
A('s_waitcnt lgkmcnt(0)')
A(f'ds_read_b32 {vT2}, {vZ}')
for x in xreads(range(NO, 7)): A(x)
pvx(range(NO)); factors()
A(f's_waitcnt lgkmcnt({2*(7 - NO)})')
sk = nl('S')
A(f'v_readfirstlane_b32 {sTMP}, {vT2}'); A(f's_cmp_ge_u32 {sTMP}, {MKA["V0"] + 6}'); A(f's_cbranch_scc1 {sk}')
lds_wait(50, F_LP, MKA['V0'] + 6, vT0)
for x in xreads(range(NO, 7)): A(x)
LAB(sk)
A(f'ds_read_b32 {vT2}, {vZ}')
for x in xreads([7]): A(x)
pvx(range(NO, 7), [3 + 2*(6 - c) for c in range(NO, 7)])
lp, ok = nl('W'), nl('OK')
A(f's_mov_b32 {sCNT}, {CFG["limit"]}')
LAB(lp)
A('s_waitcnt lgkmcnt(2)')
A(f'v_readfirstlane_b32 {sTMP}, {vT2}'); A(f's_cmp_ge_u32 {sTMP}, {MKA["V0"] + 7}'); A(f's_cbranch_scc1 {ok}')
A(f'ds_read_b32 {vT2}, {vZ}')
for x in xreads([7]): A(x)
fail_branch(51, lp)
LAB(ok)
pvx([7], [0])
A('s_branch L_A_pvdone')
vg_A = V.hi
LAB('L_A9')
V.release(mP)
aQld, aQw = V(), V(); vQs = [V(16) for _ in range(CFG['QK'])]; vQx = V(16); vQp = V(4)
A(f'v_lshlrev_b32 {aQld}, 4, {vL}'); A(f'v_add_u32 {aQld}, {Q_}, {aQld}')
A(f'v_lshrrev_b32 {vT0}, 5, {vL}'); A(f'v_mul_u32_u24 {vT0}, {QS}, {vT0}'); A(f'v_and_b32 {vT1}, 31, {vL}'); A(f'v_lshl_add_u32 {aQw}, {vT1}, 3, {vT0}'); A(f'v_add_u32 {aQw}, {QL}, {aQw}')
A('s_barrier')
epoch_wait()
pure_phase()
lds_wait(37, F_LP, MKA['K0'] + CFG['qstart'], vT0, sleep=1)
stamp(7)
ppoll(6, CFG['QK'], CFG['qgap'], lambda r: [f'global_load_dwordx4 {r[4*k:4*k+4]}, {aQld}, {pLB} offset:{1024*k} sc1' for k in range(4)], 4, vQs, [vQx[i] for i in range(16)], sT6, TM)
for i in range(8): A(f'v_add_f32 {vQx[i]}, {vQx[i]}, {vQx[8+i]}')
for i in range(4): A(f'v_cvt_pk_bf16_f32 {vQp[i]}, {vQx[2*i]}, {vQx[2*i+1]}')
A(f'ds_write_b64 {aQw}, {vQp[0:2]}'); A(f'ds_write_b64 {aQw}, {vQp[2:4]} offset:{2*QS}'); flag(F_Q)
stamp(8)
vFl = vQx[0:8]; vMc = vQx[8:12]; vML4 = vQx[12:16]; vF1, vF2 = vQp[0], vQp[1]
A(f'v_lshl_add_u32 {vT3}, {vR}, 6, {vC8}'); A(f'v_add_u32 {vT3}, {MLL}, {vT3}')
A(f's_lshl_b32 s56, {sU}, 6'); A(f's_add_u32 s56, s56, {MLG}'); A(f'v_lshl_add_u32 {vT2}, {vL}, 4, s56')
A(f'v_mov_b32 {vML4[2]}, {sE}'); A(f'v_mov_b32 {vML4[3]}, {sE}')
lds_wait(39, F_SF, 8, vT0)
A(f'ds_read2_b64 {vMc}, {vT3} offset0:0 offset1:4'); A(pure_read())
A('s_waitcnt lgkmcnt(0)'); pure_update()
A(f'v_max_f32 {vML4[0]}, {vMc[0]}, {vMc[2]}'); row_allred('v_max_f32', [vML4[0]], (4, 8))
A(f'v_sub_f32 {vF1}, {vMc[0]}, {vML4[0]}'); A(f'v_sub_f32 {vF2}, {vMc[2]}, {vML4[0]}'); A(f'v_mul_f32 {vF1}, {sL2E}, {vF1}'); A(f'v_mul_f32 {vF2}, {sL2E}, {vF2}')
A(f'v_exp_f32 {vF1}, {vF1}'); A(f'v_exp_f32 {vF2}, {vF2}')
A(f'v_mul_f32 {vML4[1]}, {vF1}, {vMc[1]}'); A(f'v_fmac_f32 {vML4[1]}, {vF2}, {vMc[3]}'); row_allred('v_add_f32', [vML4[1]], (4, 8))
tagf(vML4[0], vML4[0], vTg); tagf(vML4[1], vML4[1], vTg)
set_exec(0xf)
lstore([f'global_store_dwordx4 {vT2}, {vML4}, {pLB}'])
set_exec(-1)
stamp(9)
aGa = vQs[1][0]; vG8 = vQs[0][0:8]; vGx8 = vQs[0][8:16]; vMod = vQs[1][2:4]; aMs = vQs[1][1]
A('s_waitcnt vmcnt(0)')
A(f's_lshr_b32 s56, {sU}, 1'); A('s_lshl_b32 s56, s56, 8'); A(f's_and_b32 s57, {sU}, 1'); A('s_lshl_b32 s57, s57, 7'); A('s_add_u32 s56, s56, s57'); A(f's_add_u32 s56, s56, {S_MR}')
A(f'v_lshlrev_b32 {aGa}, 11, {vQ}'); A(f'v_lshl_add_u32 {aGa}, {vN}, 2, {aGa}'); A(f'v_add_u32 {aGa}, s56, {aGa}')
A(f's_lshl_b32 s56, {sU}, 7'); A(f'v_lshl_add_u32 {aMs}, {vN}, 2, s56'); A(f'v_lshrrev_b32 {vT0}, 1, {vQ}'); A(f'v_lshl_add_u32 {aMs}, {vT0}, 11, {aMs}')
A(f'v_xor_b32 {vT0}, {vT0}, {vQ}'); A(f'v_and_b32 {vT0}, 1, {vT0}'); A(f'v_mov_b32 {vT1}, {GAB}'); A(f'v_mov_b32 {vT2}, {MV}'); A(f'v_cmp_eq_u32 vcc, 1, {vT0}'); A(f'v_cndmask_b32 {vT1}, {vT1}, {vT2}, vcc'); A(f'v_add_u32 {aMs}, {aMs}, {vT1}')
lp, ok = nl('P'), nl('OK')
A(f's_mov_b32 {sCNT}, {CFG["limit"]}')
LAB(lp)
for i in range(4):
    if i: A(f'v_add_u32 {vT0}, {8192*i}, {aGa}')
    A(f'global_load_dword {vG8[i]}, {vT0 if i else aGa}, {pWS} sc1'); A(f'global_load_dword {vG8[4+i]}, {vT0 if i else aGa}, {pWS} offset:64 sc1')
A('s_waitcnt vmcnt(0)')
check([vG8[i] for i in range(8)], [vGx8[i] for i in range(8)], sT6, TM, vCH)
A(f's_cbranch_vccz {ok}'); fail_branch(22, lp); LAB(ok)
A(f'v_cmp_eq_u32 vcc, 2, {vQ}')
for h in range(2):
    for a, b in ((0, 1), (2, 3), (0, 2)): A(f'v_add_f32 {vGx8[4*h+a]}, {vGx8[4*h+a]}, {vGx8[4*h+b]}')
    rnd(vMod[h], vGx8[4*h])
    A(f'v_add_f32 {vT0}, 1.0, {vMod[h]}'); rnd(vT0, vT0)
    A(f'v_cndmask_b32 {vMod[h]}, {vMod[h]}, {vT0}, vcc'); A(f'v_or_b32 {vMod[h]}, {sT16}, {vMod[h]}')
lstore([f'global_store_dword {aMs}, {vMod[0]}, {pLB}', f'global_store_dword {aMs}, {vMod[1]}, {pLB} offset:64'])
stamp(11)
end_wave()
vg_A = max(vg_A, V.hi)

LAB('L_W')
V.release(mP)
sRED = 's13'
A(f's_mov_b32 {sRED}, 0')
A(f's_cmp_eq_u32 {sWAVE}, 9'); A('s_cbranch_scc1 L_W9')
aWq, aH, aHw, aHr, aQst, aWo, aBst, aOb, v8qr, vXc = [V() for _ in range(10)]
vMk = V(4, 1)
A(f'v_lshl_add_u32 {v8qr}, {vQ}, 3, {vR}')
A(f's_and_b32 s54, {sU}, 7'); A(f's_lshr_b32 s55, {sU}, 3')
A(f'v_lshl_add_u32 {aWq}, {v8qr}, 7, {vC8}'); A(f'v_add_u32 {aWq}, {w5}, {aWq}')
A('s_lshl_b32 s56, s55, 10'); A(f'v_lshl_add_u32 {aH}, {vL}, 4, s56')
A(f's_lshl_b32 s58, {sWAVE}, 9'); A(f's_add_u32 s56, s58, {HL}'); A(f'v_lshl_add_u32 {aHw}, {vL}, 3, s56'); A(f'v_add_u32 {aHr}, s56, {vQ16}')
A('s_lshl_b32 s56, s55, 11'); A('s_lshl_b32 s57, s54, 8'); A('s_add_u32 s56, s56, s57'); A(f's_add_u32 s56, s56, {w6}'); A(f's_add_u32 s56, s56, {Q_}'); A(f'v_add_u32 {aQst}, s56, {vQ16}')
A(f'v_and_b32 {vT0}, 1, {vQ}'); A(f'v_lshl_add_u32 {vT0}, {vT0}, 2, {vR}'); A(f'v_lshlrev_b32 {vT0}, 5, {vT0}')
A(f'v_add_u32 {vT1}, {w7}, {vC8}'); A(f'v_xor_b32 {vT1}, {vT1}, {vT0}'); A(f'v_lshl_add_u32 {aWo}, {v8qr}, 10, {vT1}'); A(f'v_add_u32 {aWo}, {WO}, {aWo}')
A(f'v_add_u32 {aOb}, {OB}, {vQ16}')
A(f'v_lshl_add_u32 {vT0}, {vN}, 6, {vQ16}')
A(f's_lshl_b32 s57, {sU}, 11'); A(f's_add_u32 s57, s57, {B1}'); A(f's_add_u32 s56, s57, {w8}'); A(f'v_add_u32 {aBst}, s56, {vT0}')
for j in range(4):
    A(f'v_cmp_eq_u32 vcc, {j}, {vN}'); A(f'v_cndmask_b32 {vMk[j]}, 0, -1, vcc')
A('s_barrier')
epoch_wait()
stamp(1)
def probe():
    if CFG['near']:
        sk = nl('S')
        A(f's_cmp_eq_u32 {sWAVE}, 7'); A(f's_cbranch_scc0 {sk}')
        A(f's_lshl_b32 s56, {sU}, 3'); A(f's_add_u32 s56, s56, {sG}'); A('s_lshl_b32 s56, s56, 7'); A('s_and_b32 s57, s56, 0x2000'); A('s_add_u32 s56, s56, s57'); A(f's_add_u32 s56, s56, {PROBE}')
        A(f's_add_u32 s56, {lo(pWS)}, s56'); A(f's_addc_u32 s57, {hi(pWS)}, 0')
        A('s_mov_b32 s52, -1'); A('s_mov_b32 s53, -1')
        for rep in range(CFG['near']):
            for c in range(2):
                A('s_memtime s[84:85]'); A('s_waitcnt lgkmcnt(0)')
                A(f's_load_dword s54, s[56:57], {8192*c} glc'); A('s_waitcnt lgkmcnt(0)')
                A('s_memtime s[86:87]'); A('s_waitcnt lgkmcnt(0)')
                A('s_sub_u32 s54, s86, s84'); A(f's_min_u32 s{52+c}, s{52+c}, s54')
            A('s_cmp_lt_u32 s52, s53'); A('s_cselect_b32 s54, 1, 2'); A(f'v_mov_b32 {vT0}, s54'); A(f'ds_write_b32 {vZ}, {vT0} offset:{F_CP - FLG}')
        if CFG['stamps']: A('s_mov_b32 s88, s52'); A('s_mov_b32 s90, s53')
        stamp(2)
        LAB(sk)
A(f's_cmp_ge_u32 {sWAVE}, 4'); A('s_cbranch_scc0 L_W_03')
m = V.mark()
vSt = V()
A(f's_lshl_b32 s56, {sU}, 3'); A(f's_add_u32 s56, s56, {sG}'); A('s_lshl_b32 s56, s56, 8'); A(f's_add_u32 s56, s56, {w6}'); A(f's_add_u32 s56, s56, {S_MR - 256}'); A(f'v_add_u32 {vSt}, s56, {vQ16}')
mod_tile(MR, 4, lambda: None, vSt, MKW['MR'], M_N0, 21, 2, before_wait=probe)
set_exec(-1)
stamp(4)
A('s_branch L_W_att')
V.release(m)
LAB('L_W_03')
A(f's_sub_u32 s57, {sWAVE}, 1'); A('s_cmp_lt_u32 s57, 2'); A('s_cbranch_scc0 L_W_main')
A(f's_mov_b32 {sRED}, 1')
m = V.mark()
vWq = V(32); mH = V.mark()
vMean, vVar, vAd, vAd2, vHs = V(), V(), V(), V(), V(); vU = V(8); vRs = [V(4) for _ in range(CFG['G1K'])]; vSa, vCa = vU[0], vU[1]
A(f's_lshl_b32 {sSL}, {sU}, 1'); A(f's_add_u32 {sSL}, {sSL}, s57')
A(f's_lshl_b32 s56, {sSL}, 6'); A(f'v_lshl_add_u32 {vHs}, {vN}, 2, s56')
A(f's_and_b32 s56, {sSL}, 3'); A('s_lshl_b32 s56, s56, 6'); A(f's_lshr_b32 s57, {sSL}, 2'); A('s_lshl_b32 s57, s57, 8'); A('s_add_u32 s56, s56, s57'); A(f's_add_u32 s56, s56, {S_M}')
A(f'v_lshlrev_b32 {vT0}, 12, {vQ}'); A(f'v_and_b32 {vT1}, 0x2000, {vT0}'); A(f'v_add_u32 {vT0}, {vT0}, {vT1}'); A(f'v_lshlrev_b32 {vT1}, 2, {vN}'); A(f'v_add3_u32 {vAd}, {vT0}, {vT1}, s56'); A(f'v_add_u32 {vAd2}, 32768, {vAd}')
A('s_waitcnt vmcnt(0)')
for j in range(4):
    A(f'v_lshlrev_b32 {vU[2*j]}, 16, {vX[j]}'); A(f'v_and_b32 {vU[2*j+1]}, {sHI}, {vX[j]}')
A(f'v_add_f32 {vMean}, {vU[0]}, {vU[1]}')
for j in range(2, 8): A(f'v_add_f32 {vMean}, {vMean}, {vU[j]}')
row_allred('v_add_f32', [vMean]); xrow_allred('v_add_f32', vMean, vT0)
A(f'v_mul_f32 {vMean}, 0x3b000000, {vMean}')
for j in range(8): A(f'v_sub_f32 {vU[j]}, {vU[j]}, {vMean}')
A(f'v_mul_f32 {vVar}, {vU[0]}, {vU[0]}')
for j in range(1, 8): A(f'v_fmac_f32 {vVar}, {vU[j]}, {vU[j]}')
row_allred('v_add_f32', [vVar]); xrow_allred('v_add_f32', vVar, vT0)
A(f'v_mul_f32 {vVar}, 0x3b000000, {vVar}')
rnd(vMean, vMean); rnd(vVar, vVar)
A(f'v_add_f32 {vVar}, 0x3727c5ac, {vVar}'); rnd(vVar, vVar)
A(f'v_sqrt_f32 {vVar}, {vVar}'); rnd(vVar, vVar)
A(f'v_lshlrev_b32 {vXc}, 16, {vXd}'); A(f'v_sub_f32 {vXd}, {vXc}, {vMean}'); rnd(vXd, vXd)
A(f'v_rcp_f32 {vT0}, {vVar}'); A(f'v_mul_f32 {vT1}, {vXd}, {vT0}'); A(f'v_fma_f32 {vT2}, -{vT1}, {vVar}, {vXd}'); A(f'v_fma_f32 {vXd}, {vT2}, {vT0}, {vT1}')
rnd(vXd, vXd)
stamp(2)
mQ = V.mark()
def wq_read(vWq):
    lds_wait(3, F_LP, MKW['WQ'], vT0)
    for ks in range(8):
        A(f'ds_read_b64_tr_b16 {vWq[4*ks:4*ks+2]}, {aWq} offset:{WQ + ks*4096}'); A(f'ds_read_b64_tr_b16 {vWq[4*ks+2:4*ks+4]}, {aWq} offset:{WQ + ks*4096 + 512}')
        if ks == 3: A('s_waitcnt lgkmcnt(4)')
wq_read(vWq)
near_update(); A(f'v_add_u32 {vAd}, {sCP}, {vAd}'); A(f'v_add_u32 {vAd2}, {sCP}, {vAd2}')
ppoll(1, CFG['G1K'], CFG['ggap'], lambda r: [gld(r[0], vAd, 0, 'gat1'), gld(r[1], vAd, 2048, 'gat1'), gld(r[2], vAd2, 0, 'gat1'), gld(r[3], vAd2, 2048, 'gat1')], 4, vRs, [vU[i] for i in range(4)], sT6, TM, extra=[pure_read()])
stamp(3)
A(f'v_add_f32 {vSa}, {vSa}, {vU[2]}'); A(f'v_add_f32 {vCa}, {vCa}, {vU[3]}')
A(f'v_permlane32_swap_b32 {vSa}, {vCa}'); A(f'v_add_f32 {vSa}, {vSa}, {vCa}')
A(f'v_mov_b32 {vCa}, {vSa}'); A(f'v_permlane16_swap_b32 {vSa}, {vCa}'); A(f'v_add_f32 {vSa}, {vSa}, {vCa}')
rnd(vSa, vSa)
A(f'v_mov_b32 {vCa}, {vSa}'); A(f'v_permlane32_swap_b32 {vSa}, {vCa}')
A(f'v_add_f32 {vCa}, 1.0, {vCa}'); rnd(vCa, vCa)
A(f'v_mul_f32 {vCa}, {vXd}, {vCa}'); rnd(vCa, vCa)
A(f'v_add_f32 {vCa}, {vCa}, {vSa}'); rnd(vCa, vCa)
A(f'v_or_b32 {vCa}, {sT16}, {vCa}')
A('s_waitcnt lgkmcnt(0)'); pure_update()
set_exec(0xffff)
lstore([f'global_store_dword {vHs}, {vCa}, {pLB} offset:{H_}'])
set_exec(-1)
flag(F_G1)
A('s_branch L_W_q')
LAB('L_W_main')
A(f'global_load_dword {vDUM}, {aH}, {pLB} sc1')
wq_read(vWq)
stamp(4)
lds_wait(30, F_G1, 1, vT0, sleep=1)
LAB('L_W_q')
V.release(mH)
vHB = V(32); vAq = V(4); vHs2 = [V(4) for _ in range(CFG['LK'])]; vHx = V(4); vHp = V(2)
ppoll(4, CFG['LK'], CFG['lgap'], lambda r: [f'global_load_dwordx4 {r}, {aH}, {pLB} offset:{H_} sc1'], 1, vHs2, [vHx[i] for i in range(4)], sT16, 0xffff, extra=[pure_read()])
stamp(5)
A(f'v_perm_b32 {vHp[0]}, {vHx[1]}, {vHx[0]}, {sSEL}'); A(f'v_perm_b32 {vHp[1]}, {vHx[3]}, {vHx[2]}, {sSEL}')
A(f'ds_write_b64 {aHw}, {vHp}')
for ks in range(8): A(f'ds_read_b128 {vHB[4*ks:4*ks+4]}, {aHr} offset:{64*ks}')
for ks in range(8):
    A(f's_waitcnt lgkmcnt({7-ks})')
    if ks == 0: pure_update()
    A(f'v_mfma_f32_16x16x32_bf16 {vAq}, {vWq[4*ks:4*ks+4]}, {vHB[4*ks:4*ks+4]}, {0 if ks == 0 else vAq}')
for r in range(4): tagf(vAq[r], vAq[r], vTg)
set_exec(M_N0)
lstore([f'global_store_dwordx4 {aQst}, {vAq}, {pLB}'])
set_exec(-1)
flag(F_QP)
stamp(6)
A('s_waitcnt vmcnt(0)')
V.release(m)
A(f's_cmp_eq_u32 {sRED}, 1'); A('s_cbranch_scc0 L_W_att')
vRs = [V(4) for _ in range(4)]; vRx = V(4); vG2s, vG2l, vX2s, vOut, aR1, aGa, vMod, vGb, vMVs = [V() for _ in range(9)]; vG4 = V(4)
A(f's_lshl_b32 s57, {sSL}, 5'); A(f'v_lshl_add_u32 {vOut}, {vN}, 1, s57')
A(f'v_lshrrev_b32 {vT2}, 5, {vL}'); A(f'v_lshl_add_u32 {vG2s}, {vC}, 2, {vT2}'); A(f'v_and_b32 {vT2}, 1, {vQ}'); A(f'v_lshl_add_u32 {vG2s}, {vT2}, 1, {vG2s}')
vG3s, vG3l = V(), V()
A(f's_lshl_b32 s56, {sSL}, 10'); A('s_and_b32 s57, s56, 0xffffe000'); A('s_add_u32 s56, s56, s57')
A(f's_lshl_b32 s57, {sG}, 7'); A('s_add_u32 s57, s57, s56'); A(f'v_lshl_add_u32 {vG2s}, {vG2s}, 2, s57')
A(f'v_lshlrev_b32 {vG2l}, 7, {vQ}'); A(f'v_lshl_add_u32 {vG2l}, {vN}, 2, {vG2l}'); A(f'v_add_u32 {vG2l}, s56, {vG2l}')
A(f'v_and_b32 {vT2}, 1, {vR}'); A(f'v_lshl_add_u32 {vG2s}, {vT2}, 13, {vG2s}'); A(f'v_add_u32 {vG2s}, {G2}, {vG2s}')
A(f'v_add_u32 {vG3s}, {G3 - G2}, {vG2s}')
A(f's_lshl_b32 s56, {sSL}, 6'); A(f's_add_u32 s57, s56, {X2}'); A(f'v_lshl_add_u32 {vX2s}, {vN}, 2, s57')
if CFG['gpt'] == 1:
    set_exec(M_N8); A(f'global_load_dword {vDUM}, {vG2s}, {pWS}'); A(f'global_load_dword {vDUM}, {vG3s}, {pWS}'); set_exec(-1)
if CFG['gpt'] == 2:
    A(f'v_not_b32 {vT0}, {vTg}'); set_exec(M_N8); A(f'global_store_dword {vG2s}, {vT0}, {pWS} sc1'); A(f'global_store_dword {vG3s}, {vT0}, {pWS} sc1'); set_exec(-1)
A(f'v_lshrrev_b32 {vT2}, 2, {vL}'); A(f'v_lshlrev_b32 {aR1}, 11, {vT2}'); A(f'v_lshl_add_u32 {aR1}, {vC}, 4, {aR1}')
A(f's_lshl_b32 s56, {sSL}, 6'); A(f's_add_u32 s57, s56, {B1}'); A(f'v_add_u32 {aR1}, s57, {aR1}')
A(f's_add_u32 s57, s56, {GAB}'); A(f'v_lshl_add_u32 {aGa}, {vN}, 2, s57')
A(f'global_load_dword {vDUM}, {aR1}, {pLB} sc1'); A(f'global_load_dword {vDUM}, {aGa}, {pLB} sc1'); A(f'global_load_dword {vDUM}, {aGa}, {pLB} offset:2048 sc1')
lds_wait(46, F_WI, 1, vT0, sleep=1)
near_update()
A(f's_add_u32 s57, {sCP}, {G2}'); A(f'v_add_u32 {vG2l}, s57, {vG2l}'); A(f'v_add_u32 {vG3l}, {G3 - G2}, {vG2l}')
stamp(11)
LAB('L_W_att')
vWo = V(16); vOb = V(4); vBm = V(8); vD = V(4)
lds_wait(11, F_LP, MKW['WO'], vT0, sleep=1)
for j in range(4):
    A(f'v_xor_b32 {vT0}, {32*j}, {aWo}'); A(f'ds_read_b64_tr_b16 {vWo[4*j:4*j+2]}, {vT0}'); A(f'ds_read_b64_tr_b16 {vWo[4*j+2:4*j+4]}, {vT0} offset:4096')
A(pure_read())
A('s_waitcnt lgkmcnt(0)'); pure_update()
stamp(7)
A('s_barrier')
A(f'ds_read_b128 {vOb}, {aOb}')
A('s_waitcnt lgkmcnt(0)')
for j in range(4):
    b = vBm[4*(j & 1):4*(j & 1)+4]
    for p in range(4): A(f'v_and_b32 {b[p]}, {vMk[j]}, {vOb[p]}')
    A(f'v_mfma_f32_16x16x32_bf16 {vD}, {vWo[4*j:4*j+4]}, {b}, {0 if j == 0 else vD}')
for r in range(4): tagf(vD[r], vD[r], vTg)
set_exec(M_N4)
lstore([f'global_store_dwordx4 {aBst}, {vD}, {pLB}'])
set_exec(-1)
stamp(10)
A(f's_cmp_eq_u32 {sRED}, 1'); A('s_cbranch_scc0 L_W_end')
gab_loads = [f'global_load_dword {vG4[0]}, {aGa}, {pLB} sc1', f'global_load_dword {vG4[1]}, {aGa}, {pLB} offset:2048 sc1']
def reduce16(code, tag, vS_, mask, extra=()):
    ppoll(code, CFG['LK'], CFG['lgap'], lambda r: [f'global_load_dwordx4 {r}, {aR1}, {pLB} sc1'], 1, vRs, [vRx[i] for i in range(4)], tag, TM)
    for x in extra: A(x)
    tred4(vRx)
    row_allred('v_add_f32', [vRx[0]], (4, 8))
    tagf(vRx[0], vRx[0], vTg)
    set_exec(mask)
    A(f'global_store_dword {vS_}, {vRx[0]}, {pWS} sc1'); set_exec(-1)
def gather8(code, vG2l, n):
    if CFG['gd' + n]: A(f's_sleep {CFG["gd" + n]}')
    ppoll(code, CFG['GK' + n], CFG['ggap'], lambda r: [gld(r[0], vG2l, 0, 'gat' + n), gld(r[1], vG2l, 512, 'gat' + n)], 2, [r[0:2] for r in vRs], [vRx[0], vRx[1]], sT6, TM)
    A(f'v_add_f32 {vRx[0]}, {vRx[0]}, {vRx[1]}'); xrow_allred('v_add_f32', vRx[0], vT0)
    rnd(vRx[0], vRx[0])
reduce16(23, sT6, vG2s, M_N8 if CFG['rep'] else M_N4, gab_loads)
stamp(12)
gather8(24, vG2l, '2')
lp, ok = nl('P'), nl('OK')
check([vG4[0], vG4[1]], [vMod, vGb], sT16, 0xffff, vCH); A(f's_cbranch_vccz {ok}')
poll(52, gab_loads, [vG4[0], vG4[1]], [vMod, vGb], sT16, 0xffff, vCH)
LAB(ok)
stamp(13)
A(f'v_mul_f32 {vRx[0]}, {vMod}, {vRx[0]}'); rnd(vRx[0], vRx[0])
A(f'v_add_f32 {vXc}, {vXc}, {vRx[0]}'); rnd(vXc, vXc)
A(f'v_or_b32 {vT0}, {sT16}, {vXc}')
set_exec(0xffff)
lstore([f'global_store_dword {vX2s}, {vT0}, {pLB}'])
set_exec(-1)
reduce16(25, sT6b, vG3s, M_N8 if CFG['rep'] else M_N4)
stamp(14)
A(f's_and_b32 s56, {sSL}, 7'); A(f's_cmp_eq_u32 s56, {sG}'); A('s_cbranch_scc0 L_W_end')
gather8(26, vG3l, '3')
A(f'v_mul_f32 {vRx[0]}, {vGb}, {vRx[0]}'); rnd(vRx[0], vRx[0])
A(f'v_add_f32 {vXc}, {vXc}, {vRx[0]}'); A(f'v_cvt_pk_bf16_f32 {vXc}, {vXc}, {vXc}')
set_exec(0xffff); A(f'global_store_short {vOut}, {vXc}, {pOUT}')
A(f's_cmp_eq_u32 {sSL}, 0'); A('s_cbranch_scc0 L_W_end2')
set_exec(1); A(f'v_mov_b32 {vT0}, {EP}'); A(f'v_mov_b32 {vT1}, {sE}'); A(f'global_store_dword {vT0}, {vT1}, {pWS} sc1')
if CFG['ampm']:
    set_exec(-1)
    A(f'v_lshlrev_b32 {vT0}, 4, {vL}'); A(f'v_add_u32 {vT0}, 0x180000, {vT0}'); A(f'global_load_dwordx4 {vRs[0]}, {vT0}, {pWS} sc1'); A('s_waitcnt vmcnt(0)')
    op = 'v_min_u32' if CFG['ampm'] == 1 else 'v_max_u32'
    for i in range(1, 4): A(f'{op} {vRs[0][0]}, {vRs[0][0]}, {vRs[0][i]}')
    row_allred(op, [vRs[0][0]]); xrow_allred(op, vRs[0][0], vT0)
    A(f'v_readfirstlane_b32 s92, {vRs[0][0]}')
if CFG['amp']:
    A('s_memrealtime s[94:95]'); A('s_waitcnt lgkmcnt(0)'); A('s_sub_u32 s56, s94, s92')
    if CFG['ampe']: A('s_sub_u32 s57, s90, s92'); A(f's_mul_i32 s57, s57, {CFG["amp"]}'); A('s_add_u32 s56, s56, s57')
    else: A(f's_mul_i32 s56, s56, {1 + CFG["amp"]}')
    A('s_min_u32 s56, s56, 100000')
    LAB('L_amp'); A('s_memrealtime s[94:95]'); A('s_waitcnt lgkmcnt(0)'); A('s_sub_u32 s57, s94, s92'); A('s_cmp_lt_u32 s57, s56'); A('s_cbranch_scc1 L_amp')
LAB('L_W_end2')
set_exec(-1)
stamp(15)
LAB('L_W_end')
end_wave()

vg_W = V.hi
LAB('L_W9')
V.release(mP)
aML, aA1, aA2, aOw = V(), V(), V(), V(); vMr = V(8); vMx = V(4); vAs = [V(8) for _ in range(CFG['LK'])]; vAx = V(8); vW1, vW2 = V(), V()
A(f'v_lshrrev_b32 {vT0}, 3, {vL}'); A(f'v_and_b32 {vT1}, 7, {vL}')
A(f's_lshr_b32 s57, {sU}, 2'); A('s_lshl_b32 s56, s57, 4'); A(f's_add_u32 s56, s56, {MLG}'); A(f'v_lshl_add_u32 {aML}, {vT0}, 6, s56')
A('s_lshl_b32 s56, s57, 9'); A(f's_and_b32 s57, {sU}, 3'); A('s_lshl_b32 s57, s57, 7'); A('s_add_u32 s56, s56, s57'); A(f's_add_u32 s56, s56, {A_}')
A(f'v_lshlrev_b32 {aA1}, 11, {vT0}'); A(f'v_lshl_add_u32 {aA1}, {vT1}, 4, {aA1}'); A(f'v_add_u32 {aA1}, s56, {aA1}'); A(f'v_add_u32 {aA2}, 16384, {aA1}')
A(f'v_lshrrev_b32 {vT0}, 5, {vL}'); A(f'v_lshl_add_u32 {aOw}, {vT1}, 2, {vT0}'); A(f'v_and_b32 {vT0}, 1, {vQ}'); A(f'v_lshl_add_u32 {aOw}, {vT0}, 1, {aOw}'); A(f'v_lshlrev_b32 {aOw}, 1, {aOw}'); A(f'v_add_u32 {aOw}, {OB}, {aOw}')
A('s_barrier')
epoch_wait()
pure_phase()
lds_wait(35, F_QP, 1, vT0, sleep=2)
if CFG['hall']:
    A(f'v_lshlrev_b32 {vT3}, 3, {vN}'); A(f'v_add_u32 {vT3}, {HINT}, {vT3}')
else:
    A(f's_lshl_b32 s56, {sU}, 3'); A(f's_add_u32 s56, s56, {HINT}'); A(f'v_mov_b32 {vT3}, s56')
lp, ok = nl('P'), nl('OK')
A(f's_mov_b32 {sCNT}, {CFG["limit"]}')
LAB(lp)
A(f'global_load_dword {vT0}, {vT3}, {pLB} sc1'); A('s_waitcnt vmcnt(0)')
A(f'v_cmp_ne_u32 vcc, {sE}, {vT0}'); A(f's_cbranch_vccz {ok}')
fail_branch(44, lp)
LAB(ok)
flag(F_GO)
stamp(6)
A(f'global_load_dword {vDUM}, {aA1}, {pLB} sc1'); A(f'global_load_dword {vDUM}, {aA2}, {pLB} sc1'); A(f'global_load_dword {vDUM}, {aML}, {pLB} sc1'); A(f'global_load_dword {vDUM}, {aML}, {pLB} offset:512 sc1')
lds_wait(36, F_WI, 1, vT0, sleep=1)
stamp(7)
a_loads = lambda r: [f'global_load_dwordx4 {r[0:4]}, {aA1}, {pLB} sc1', f'global_load_dwordx4 {r[4:8]}, {aA2}, {pLB} sc1']
ml_loads = [f'global_load_dwordx4 {vMr[0:4]}, {aML}, {pLB} sc1', f'global_load_dwordx4 {vMr[4:8]}, {aML}, {pLB} offset:512 sc1']
def weights():
    A(f'v_max_f32 {vT0}, {vMx[0]}, {vMx[2]}'); row_allred('v_max_f32', [vT0], (8,)); xrow_allred('v_max_f32', vT0, vT1)
    A(f'v_sub_f32 {vW1}, {vMx[0]}, {vT0}'); A(f'v_sub_f32 {vW2}, {vMx[2]}, {vT0}'); A(f'v_mul_f32 {vW1}, {sL2E}, {vW1}'); A(f'v_mul_f32 {vW2}, {sL2E}, {vW2}')
    A(f'v_exp_f32 {vW1}, {vW1}'); A(f'v_exp_f32 {vW2}, {vW2}')
    A(f'v_mul_f32 {vT0}, {vW1}, {vMx[1]}'); A(f'v_fmac_f32 {vT0}, {vW2}, {vMx[3]}'); row_allred('v_add_f32', [vT0], (8,)); xrow_allred('v_add_f32', vT0, vT1)
    A(f'v_rcp_f32 {vT0}, {vT0}'); A(f'v_mul_f32 {vW1}, {vW1}, {vT0}'); A(f'v_mul_f32 {vW2}, {vW2}, {vT0}')
    stamp(8)
if CFG['mlb']:
    poll(12, ml_loads + a_loads(vAs[0]), [vMr[i] for i in (0, 1, 4, 5)] + [vAs[0][i] for i in range(8)], [vMx[i] for i in range(4)] + [vAx[i] for i in range(8)], sT6, TM, vCH, full=[vMr[i] for i in (2, 3, 6, 7)])
    weights()
else:
    poll(10, ml_loads, [vMr[i] for i in (0, 1, 4, 5)], [vMx[i] for i in range(4)], sT6, TM, vCH, full=[vMr[i] for i in (2, 3, 6, 7)])
    poll(12, a_loads(vAs[0]), [vAs[0][i] for i in range(8)], [vAx[i] for i in range(8)], sT6, TM, vCH, shadow=weights)
stamp(9)
for i in range(4): A(f'v_mul_f32 {vAx[i]}, {vW1}, {vAx[i]}')
for i in range(4): A(f'v_fmac_f32 {vAx[i]}, {vW2}, {vAx[4+i]}')
tred4(vAx)
dpp('v_add_f32', vAx[0], vAx[0], vAx[0], 'row_ror:8')
A(f'v_cvt_pk_bf16_f32 {vT0}, {vAx[0]}, {vAx[0]}')
A(f'ds_write_b16 {aOw}, {vT0}'); A('s_waitcnt lgkmcnt(0)'); A('s_barrier')
end_wave()
vg_W = max(vg_W, V.hi)

LAB('L_loader')
V = Alloc('v', 1, 64)
vO1, vT0, vT1, vLin, vZ, vMark, vX, vOne = [V() for _ in range(8)]; vKo = V(4, 1); vVo = V(2, 1)
adv = lambda p: [f's_add_u32 s{p}, s{p}, 4096', f's_addc_u32 s{p+1}, s{p+1}, 0', 's_add_u32 m0, m0, 4096']
pend = []
def post(mark, st):
    A(f'v_mov_b32 {vMark}, {mark}')
    if CFG['vgate'] < 8: set_exec(1); A(f'ds_max_u32 {vZ}, {vMark}'); set_exec(-1)
    else: A(f'ds_write_b32 {vZ}, {vMark}')
    if st.get(mark): stamp(st[mark])
def retire_to(n, st):
    while len(pend) > n:
        mk = pend.pop(0)
        if mk is not None or len(pend) == n:
            A(f's_waitcnt vmcnt({len(pend)})')
            if mk is not None: post(mk, st)
def run(items, st, bar):
    for win, pre, ins, mk in items:
        if len(pend) >= win:
            if not bar: stamp(1); A('s_barrier'); bar = True
            retire_to(win - 1, st)
        for x in pre: A(x)
        if isinstance(ins, tuple):
            A(f's_mov_b64 exec, {ins[0]}'); A(ins[1]); A('s_mov_b64 exec, -1')
        else: A(ins)
        pend.append(mk)
    return bar
A(f'v_mov_b32 {vZ}, {FLG}'); A(f'v_mov_b32 {vOne}, 1'); A(f'v_lshlrev_b32 {vLin}, 4, {vL}')
A(f's_cmp_ge_u32 {sT}, 16'); A('s_cbranch_scc1 L_loaderW')
setup = [f'v_lshrrev_b32 {vT0}, 4, {vL}', f'v_and_b32 {vT1}, 15, {vL}']
for m in range(4):
    setup += [f'v_add_u32 {vX}, {4*m}, {vT0}', f'v_xor_b32 {vX}, {vX}, {vT1}' if CFG['ksw'] else f'v_mov_b32 {vX}, {vT1}', f'v_lshlrev_b32 {vX}, 4, {vX}', f'v_lshl_add_u32 {vKo[m]}, {vT0}, 8, {vX}']
for m in range(2):
    setup += [f'v_add_u32 {vX}, {4*m}, {vT0}', f'v_lshlrev_b32 {vX}, 1, {vX}', f'v_xor_b32 {vX}, {vX}, {vT1}', f'v_lshlrev_b32 {vX}, 4, {vX}', f'v_lshl_add_u32 {vVo[m]}, {vT0}, 8, {vX}']
setup += [f's_lshl_b32 s56, {sG}, 22', f's_lshl_b32 s57, {sU}, {12 if CFG["kvi"] else 16}', 's_add_u32 s56, s56, s57', 's_add_u32 s56, s56, 0x300000',
          f's_add_u32 s62, {lo(pK)}, s56', f's_addc_u32 s63, {hi(pK)}, 0', f's_add_u32 s60, {lo(pV)}, s56', f's_addc_u32 s61, {hi(pV)}, 0']
if CFG['kvi']:
    def advk(p, c):
        d = 17 if CFG['kvi'] == 1 else 16
        if CFG['kvi'] == 2: return [f's_add_u32 s{p}, s{p}, 65536', f's_addc_u32 s{p+1}, s{p+1}, 0', 's_add_u32 m0, m0, 4096']
        return [f's_cmp_eq_u32 {sU}, {16 - c}', f's_cselect_b32 s56, 4096, s55', f's_add_u32 s{p}, s{p}, s56', f's_addc_u32 s{p+1}, s{p+1}, 0', 's_add_u32 m0, m0, 4096']
    setup += [f's_mov_b32 s55, {17*4096}']
else:
    advk = lambda p, c: adv(p)
sec = {}
sec['K'] = [[0, [f's_mov_b32 m0, {KK}'] if i == 0 else advk(62, i // 4) if i % 4 == 0 else [], f'global_load_lds_dwordx4 {vKo[i % 4]}, s[62:63] offset:{1024*(i % 4)}{NT}', MKA['K0'] + i // 8 if i % 8 == 7 else None] for i in range(64)]
sec['V'] = [[0, [f's_mov_b32 m0, {VV}'] if i == 0 else advk(60, i // 4) if i % 4 == 0 else [], f'global_load_lds_dwordx4 {vVo[i & 1]}, s[60:61] offset:{1024*(i % 4)}{NT}', MKA['V0'] + i // 8 if i % 8 == 7 else None] for i in range(64)]
items = [None] * 8 + sec['K'] + sec['V']
items[8][1] = setup + items[8][1]
for i, it in list(enumerate(items))[8:]: it[0] = CFG['WA0'] if i < CFG['WA0'] + CFG['NA0'] else CFG['WA']
stA = {MKA['K0'] + 7: 3, MKA['V0'] + 7: 4, MKA['M']: 2}
if CFG['trace']:
    stA = {MKA['M']: 2, MKA['K0'] + 1: 3, MKA['K0'] + 3: 4, MKA['K0'] + 5: 5, MKA['K0'] + 7: 6}
    stA.update({MKA['V0'] + i: 7 + i for i in range(8)})
hint_at = len(items) - 64 + 8 * CFG['hint']
def hint():
    A('s_waitcnt lgkmcnt(0)'); A(f's_add_u32 {sE}, {sE}, 1'); A(f'v_mov_b32 {vMark}, {sE}')
    A(f's_mul_i32 s53, {sG}, {LBS}'); A(f's_lshl_b32 s56, {sU}, 3'); A('s_add_u32 s53, s53, s56'); A(f's_add_u32 s53, s53, {LB0 + HINT}'); A(f'v_mov_b32 {vX}, s53')
items[8][1] = [f's_load_dword {sE}, {pWS}, {EP}'] + items[8][1]
n0 = 8 + CFG['X0']
pend += [None] * 7 + [MKA['M']]
run([(63, *x[1:]) for x in items[8:n0]], stA, True)
stamp(1); A('s_barrier')
retire_to(CFG['X0'], stA)
n1 = n0 + (CFG['mpw'] - 1 if CFG['mpw'] else 0)
run(items[n0:n1], stA, True)
if not CFG['only'] and CFG['mpw']: lds_wait(45, F_MP, 4, vT0)
gate_at = len(items) - 64 + 8 * CFG['vgate']
def do_hint():
    retire_to(min(len(pend), CFG['hret']), stA)
    hint()
    A(f'ds_read_b32 {vT0}, {vZ} offset:{F_PURE - FLG}'); A('s_waitcnt lgkmcnt(0)'); A(f'v_readfirstlane_b32 {sPURE}, {vT0}')
    set_exec(1)
    lstore([f'global_store_dword {vX}, {vMark}, {pWS}'])
    set_exec(-1)
    pend.append(None)
def do_gate():
    if CFG['only'] or CFG['vgate'] >= 8: return
    dn = nl('GD')
    marks = [(len(pend) - 1 - i, mk) for i, mk in enumerate(pend) if mk is not None]
    for left, mk in marks:
        A(f'ds_read_b32 {vT0}, {vZ} offset:{F_Q - FLG}'); A('s_waitcnt lgkmcnt(0)'); A(f'v_readfirstlane_b32 {sTMP}, {vT0}'); A(f's_cmp_eq_u32 {sTMP}, 1'); A(f's_cbranch_scc1 {dn}')
        A(f's_waitcnt vmcnt({left})'); post(mk, {})
    lds_wait(47, F_Q, 1, vT0)
    LAB(dn)
pos = n1
for at, fn in sorted([(gate_at, do_gate), (hint_at + 0.5, do_hint)], key=lambda x: x[0]):
    run(items[pos:int(at)], stA, True); pos = max(pos, int(at)); fn()
run(items[pos:], stA, True)
retire_to(0, stA)
A(f's_and_b32 s54, {sU}, 7'); A(f's_lshr_b32 s55, {sU}, 3')
items = []
vGx = V(4, 1)
for i in range(32):
    if i == 0:
        pre = [f'v_lshrrev_b32 {vT0}, 5, {vL}', f'v_and_b32 {vT1}, 31, {vL}', f'v_mul_u32_u24 {vO1}, 3584, {vT0}',
               f's_mul_i32 s56, s54, {64*3584}', f's_mul_i32 s57, {sG}, 448', 's_add_u32 s56, s56, s57', f'v_add_u32 {vO1}, s56, {vO1}']
        for v in range(4):
            f0 = 2 * (v & 1) + 4 * (v >> 1)
            pre += [f'v_add_u32 {vX}, {f0}, {vT0}', f'v_lshlrev_b32 {vX}, 1, {vX}', f'v_xor_b32 {vX}, {vX}, {vT1}' if CFG['gsw'] else f'v_mov_b32 {vX}, {vT1}',
                    f'v_cmp_gt_u32 s[{84+2*v}:{85+2*v}], 28, {vX}', f'v_lshl_add_u32 {vGx[v]}, {vX}, 4, {vO1}']
        pre += ['s_cmp_ge_u32 s55, 1', f's_cselect_b32 s58, {lo(pWU)}, {lo(pWG)}', f's_cselect_b32 s59, {hi(pWU)}, {hi(pWG)}', f's_mov_b32 m0, {GU}']
    else: pre = [f's_add_u32 s58, s58, {2*3584}', 's_addc_u32 s59, s59, 0', 's_add_u32 m0, m0, 1024']
    v = (i & 1) | (((i >> 2) & 1) << 1)
    items.append((CFG['WG'], pre, (f's[{84+2*v}:{85+2*v}]', f'global_load_lds_dwordx4 {vGx[v]}, s[58:59]{NT}'), MKA['GU'] if i == 31 else None))
for i in range(16):
    pre = []
    if i == 0: pre = [f's_min_u32 s57, {sU}, 13', f's_mul_i32 s56, {sG}, {224*1024}', 's_lshl_b32 s57, s57, 14', 's_add_u32 s56, s56, s57', f's_add_u32 s58, {lo(pWD)}, s56', f's_addc_u32 s59, {hi(pWD)}, 0', f's_mov_b32 m0, {DN}']
    elif i % 4 == 0: pre = adv(58)
    fd = ((i & 3) << 1) | ((i >> 3) & 1)
    pre = pre + [f'v_xor_b32 {vX}, {32*fd if CFG["gsw"] else 0}, {vLin}']
    items.append((CFG['WG'], pre, f'global_load_lds_dwordx4 {vX}, s[58:59] offset:{1024*(i % 4)}{NT}', MKA['DN'] if i == 15 else None))
for x in items[0][1]: A(x)
items[0] = (items[0][0], [], *items[0][2:])
if not CFG['only']:
    lds_wait(42, F_AP, 8, vT0, sleep=1)
if not CFG['trace']: stA.update({MKA['GU']: 7, MKA['DN']: 8})
run(items, stA, True)
retire_to(0, stA)
A('s_waitcnt lgkmcnt(0)')
end_wave()
LAB('L_loaderW')
A(f's_and_b32 s54, {sU}, 7'); A(f's_lshr_b32 s55, {sU}, 3')
stW = {MKW['WQ']: 2, MKW['MR']: 6, MKW['WO']: 5}
pend += [None] * 31 + [MKW['WQ']]
if CFG['pv']:
    assert CFG['kvi'] == 2
    A(f's_lshl_b32 s56, {sG}, 22'); A(f's_lshl_b32 s57, {sU}, 12'); A('s_add_u32 s56, s56, s57'); A(f's_add_u32 s56, s56, {0x300000 + (16 - CFG["pv"]) * 65536}')
    A(f's_add_u32 s60, {lo(pV)}, s56'); A(f's_addc_u32 s61, {hi(pV)}, 0'); A(f's_mov_b32 m0, {WO}')
    fl = '' if CFG['pvf'] == '-' else ' ' + CFG['pvf']
    for b in range(CFG['pv']):
        if b: A('s_add_u32 s60, s60, 65536'); A('s_addc_u32 s61, s61, 0')
        for i in range(4): A(f'global_load_lds_dwordx4 {vLin}, s[60:61] offset:{1024*i}{fl}'); pend.append(None)
    assert len(pend) <= 63
for x in [f'v_lshrrev_b32 {vT0}, 3, {vL}', f'v_and_b32 {vT1}, 7, {vL}', f'v_mul_u32_u24 {vO1}, 6144, {vT0}', f'v_lshl_add_u32 {vO1}, {vT1}, 4, {vO1}',
          f's_lshr_b32 s56, {sU}, 2', f's_mul_i32 s56, s56, {128*6144}', f's_and_b32 s57, {sU}, 3', 's_lshl_b32 s57, s57, 10', 's_add_u32 s56, s56, s57',
          f's_lshl_b32 s57, {sG}, 7', 's_add_u32 s56, s56, s57', 's_add_u32 s56, s56, 2048', f'v_add_u32 {vO1}, s56, {vO1}']: A(x)
stamp(1); A('s_barrier')
retire_to(0, stW)
if CFG['only'] == 'loaderA': end_wave()
if not CFG['only']: lds_wait(48, F_QP, 1, vT0, sleep=1)
run([(63, [f's_mov_b32 m0, {MR}'] if i == 0 else [f'v_add_u32 {vO1}, {8*6144}, {vO1}', 's_add_u32 m0, m0, 1024'], f'global_load_lds_dwordx4 {vO1}, {pWM}{NT}', MKW['MR'] if i == 15 else None) for i in range(16)], stW, True)
retire_to(0, stW)
if CFG['only'] != 'loader': lds_wait(41, F_GO, 1, vT0, sleep=1)
items = []
for i in range(32):
    pre = []
    if i == 0: pre = [f's_lshl_b32 s56, {sG}, 19', f's_lshl_b32 s57, {sU}, 15', 's_add_u32 s56, s56, s57', f's_add_u32 s58, {lo(pWO)}, s56', f's_addc_u32 s59, {hi(pWO)}, 0', f's_mov_b32 m0, {WO}']
    elif i % 4 == 0: pre = adv(58)
    f = (i & 3) | ((i >> 1) & 4)
    pre = pre + [f'v_xor_b32 {vX}, {32*f}, {vLin}']
    items.append((CFG['WO0'] if i < CFG['WO0'] + CFG['NO0'] else CFG['WO1'], pre, f'global_load_lds_dwordx4 {vX}, s[58:59] offset:{1024*(i % 4)}{NT}', MKW['WO'] if i == 31 else None))
run(items, stW, True)
flag(F_WI)
retire_to(0, stW)
if not CFG['only']: A('s_waitcnt lgkmcnt(0)'); A('s_barrier')
A('s_waitcnt lgkmcnt(0)')
end_wave()

for sl, ins, bk in slow_paths:
    LAB(sl)
    for x in ins: A(x)
    A(f's_branch {bk}')
LAB('L_fail')
if CFG['dbgfail']:
    set_exec(1)
    A(f'v_mov_b32 v1, 0x1ffff0'); A(f's_lshl_b32 s56, s2, 16'); A(f's_lshl_b32 s57, {sWAVE}, 8'); A('s_or_b32 s56, s56, s57'); A(f's_or_b32 s56, s56, {sTMP}'); A('v_mov_b32 v2, s56')
    A(f'global_store_dword v1, v2, {pWS} sc1')
    set_exec(-1)
if CFG['stamps']:
    LAB('L_stamps')
    A('s_waitcnt lgkmcnt(0)')
    A('v_mov_b32 v2, 0')
    for i in range(16): A(f'v_writelane_b32 v2, s{64+2*i}, {i}')
    A(f's_lshl_b32 s56, {sT}, 3'); A(f's_add_u32 s56, s56, {sG}'); A(f's_mul_i32 s56, s56, {NW}'); A(f's_add_u32 s56, s56, {sWAVE}'); A('s_lshl_b32 s56, s56, 6'); A(f's_add_u32 s56, s56, {STAMPS}')
    A('v_lshl_add_u32 v1, v0, 2, s56')
    set_exec(0xffff); A(f'global_store_dword v1, v2, {pWS}')
LAB('L_exit')
A('s_endpgm')
LAB('L_codeend')

body = pad_hazards(L)
vg = (max(vg_A, vg_W) + 7) // 8 * 8
hdr = open('cdna_kernels/' + KN + '.s.ref').read().split('; Override launch')[0]
name = KN + '_kernel'
txt = hdr + f"""; @launch grid=(256,1,1) block=({64*NW},1,1) lds={LDS_BYTES}
.amdgcn_target "amdgcn-amd-amdhsa--gfx950"
.text
.globl {name}
.p2align 8
.type {name},@function
{name}:
""" + '\n'.join(body) + f"""
.section .rodata,"a"
.p2align 6
.amdhsa_kernel {name}
  .amdhsa_next_free_vgpr {vg}
  .amdhsa_next_free_sgpr 100
  .amdhsa_accum_offset {vg}
  .amdhsa_group_segment_fixed_size 0
  .amdhsa_kernarg_size 112
  .amdhsa_user_sgpr_count 2
  .amdhsa_user_sgpr_kernarg_segment_ptr 1
  .amdhsa_system_sgpr_workgroup_id_x 1
  .amdhsa_float_denorm_mode_32 3
.end_amdhsa_kernel
"""
open(OUT, 'w').write(txt)
print('vgprs', vg_A, vg_W, 'lines', len(body), file=sys.stderr)
```

```python
import sys
from kasm import pad_hazards, Alloc, Reg

KN = 'adaLN_cond__sliding_block_cached__glu_gated_glu__decode'
CFG = dict(stamps=0, limit=200000, pf=1, dbgfail=1, amp=0, ptries=40,
           WA0=28, NA0=0, WA=28, WO0=24, NO0=0, WO1=24, WG=32, nt=1, only='', early=0, QK=3, qgap=4, GK=1, ggap=2, LK=1, lgap=1,
           qstart=4, prio=0, mrpos=0, rep=1, hint=4, qh=1, qsl=0, HK=3, hgap=3, ksw=1, nogo=0, s9=1, ampe=0, wqd=0, ampm=0, pv=0, pvf='nt', mlb=0, fpre=1, vgate=8, trace=0, near=4, gat2=1, GK2=3, gd2=0, gat3=1, GK3=3, gd3=0, mrg=0, tlb=0, gat=1, gat1=0, G1K=1, gpt=0, mpt=0, gdly=0, gsw=1, mpw=1, hall=0, hret=63, kvi=1, ilv=0, X0=8, lprio=3, cprio=3)
CFG.update(WA0=48, WA=48, QK=4, qgap=8, qh=0, qstart=2, qsl=0, X0=4, hint=3, GK2=1, gd2=6, hall=1, WO0=32, WO1=32, WG=32, kvi=2, GK=3, ggap=4, gpt=2)
for a in sys.argv[2:]:
    k, v = a.split('=')
    assert k in CFG, k
    CFG[k] = int(v) if v.lstrip('-').isdigit() else v
OUT = sys.argv[1]

EP = 0; S_MR = 0x8000; S_M = 0x10000; G2 = 0x20000; G3 = 0x30000
LB0 = 0x40000; LBS = 0x18000
H_ = 0; MV = 0x800; X2 = 0x1800; MLG = 0x2000; GAB = 0x2400 + 0x4000; HINT = 0x2800; Q_ = 0x3000; A_ = 0x8000; B1 = 0x10000
PROBE = 0x110000
STAMPS = 0x200000
KK = 0; VV = 0x10000; MM = 0x20000; OL = 0x22000
GU = 0; DN = 0x8000
WQ = 0; WO = 0x8000; MR = 0x10000
SC = 0x26800
QL = SC; QS = 320; MX = SC + 0x600; LX = SC + 0x680; HL = SC; OB = SC + 0x800; FLG = SC + 0x900; CL = SC + 0xA00
OS = 576
F_LP = FLG; F_PF = FLG + 4; F_PURE = FLG + 52; F_G1 = FLG + 8; F_QP = FLG + 12; F_Q = FLG + 56; F_AP = FLG + 16; F_WI = FLG + 20; F_B1 = FLG + 24; F_O = FLG + 28; F_GA = FLG + 32; F_GO = FLG + 40; F_MP = FLG + 44; F_CP = FLG + 36; F_SF = FLG + 48; F_MX = FLG + 60
PB = OL; PBS = 256
LDS_BYTES = SC + 0xE00
NO = 5
NW = 10
sWAVE, sG, sT, sE, sT6, sT16, sT6b = 's3', 's4', 's5', 's6', 's7', 's8', 's9'
sU, sSL, sCNT, sTMP = 's10', 's11', 's14', 's15'
pX, pK, pV, pWQ, pWO, pBX, pWG, pWU, pWD, pC, pWM, pOUT, pDBG, pWS = [f's[{16+2*i}:{17+2*i}]' for i in range(14)]
pLB = 's[44:45]'; sPURE = 's46'; sMASK = 's47'; sSEL = 's48'; sHI = 's49'; sL2E = 's50'; sCM = 's12'; sCP = 's51'
def lo(p): return 's' + p[2:-1].split(':')[0]
def hi(p): return 's' + p[2:-1].split(':')[1]
TM = 0x3f

L = []
def A(x): L.append('    ' + x)
def LAB(x): L.append(x + ':')
uid = [0]
def nl(p='L'):
    uid[0] += 1; return f'{p}_{uid[0]}'
slow_paths = []
def stamp(i):
    if CFG['ampe'] == i and i: A('s_memrealtime s[90:91]')
    if CFG['stamps'] and (CFG['stamps'] >> i) & 1: A(f's_memrealtime s[{64+2*i}:{65+2*i}]')
def set_exec(mask):
    if mask == -1: A('s_mov_b64 exec, -1'); return
    l, h = mask & 0xffffffff, mask >> 32
    if h == 0 and l <= 64: A(f's_mov_b64 exec, {l}'); return
    A(f's_mov_b32 exec_lo, {l:#x}'); A(f's_mov_b32 exec_hi, {h:#x}')
M_N0 = 0x0001000100010001; M_N4 = 0x000F000F000F000F; M_N8 = 0x00FF00FF00FF00FF; M_N2 = 0x0003000300030003; M_Q0 = 0x1111111111111111
def rnd(d, s):
    A(f'v_cvt_pk_bf16_f32 {d}, {s}, {s}'); A(f'v_and_b32 {d}, {sHI}, {d}')
def dpp(op, d, a, b, ctl, bank=0xf, row=0xf):
    if b is None: A(f'{op}_dpp {d}, {a} {ctl} row_mask:{row:#x} bank_mask:{bank:#x}')
    else: A(f'{op}_dpp {d}, {a}, {b} {ctl} row_mask:{row:#x} bank_mask:{bank:#x}')
def row_allred(op, regs, shifts=(8, 4, 2, 1)):
    for sh in shifts:
        for r in regs: dpp(op, r, r, r, f'row_ror:{sh}')
def xrow_allred(op, v, t):
    A(f'v_mov_b32 {t}, {v}'); A(f'v_permlane16_swap_b32 {v}, {t}'); A(f'{op} {v}, {v}, {t}')
    A(f'v_mov_b32 {t}, {v}'); A(f'v_permlane32_swap_b32 {v}, {t}'); A(f'{op} {v}, {v}, {t}')
def tred4(v):
    A(f'v_permlane32_swap_b32 {v[0]}, {v[1]}'); A(f'v_permlane32_swap_b32 {v[2]}, {v[3]}')
    A(f'v_add_f32 {v[0]}, {v[0]}, {v[1]}'); A(f'v_add_f32 {v[2]}, {v[2]}, {v[3]}')
    A(f'v_permlane16_swap_b32 {v[0]}, {v[2]}'); A(f'v_add_f32 {v[0]}, {v[0]}, {v[2]}')
def fail_branch(code, loop):
    A(f's_sub_u32 {sCNT}, {sCNT}, 1'); A(f's_cbranch_scc0 {loop}')
    if CFG['dbgfail']: A(f's_mov_b32 {sTMP}, {code}')
    A('s_branch L_fail')
def check(raw, out, tag, maskbits, chk, full=()):
    for r, o in zip(raw, out): A(f'v_xor_b32 {o}, {tag}, {r}')
    o = list(out)
    if len(o) == 1: A(f'v_and_b32 {chk}, {maskbits:#x}, {o[0]}'); o = None
    elif len(o) == 2: A(f'v_or_b32 {chk}, {o[0]}, {o[1]}'); o = []
    else: A(f'v_or3_b32 {chk}, {o[0]}, {o[1]}, {o[2]}'); o = o[3:]
    if o is not None:
        while len(o) >= 2: A(f'v_or3_b32 {chk}, {chk}, {o[0]}, {o[1]}'); o = o[2:]
        if o: A(f'v_or_b32 {chk}, {chk}, {o[0]}')
        A(f'v_and_b32 {chk}, {maskbits:#x}, {chk}')
    for r in full: A(f'v_xor_b32 {r}, {sE}, {r}'); A(f'v_or_b32 {chk}, {chk}, {r}')
    A(f'v_cmp_ne_u32 vcc, 0, {chk}')
def poll(code, loads, raw, out, tag, maskbits, chk, full=(), shadow=None, sleep=0, issued=False):
    lp, ok, lw = nl('P'), nl('OK'), nl('PW')
    A(f's_mov_b32 {sCNT}, {CFG["limit"]}')
    if shadow or issued:
        if not issued:
            for x in loads: A(x)
        if shadow: shadow()
        A(f's_branch {lw}')
    LAB(lp)
    if sleep: A(f's_sleep {sleep}')
    for x in loads: A(x)
    LAB(lw)
    A('s_waitcnt vmcnt(0)')
    check(raw, out, tag, maskbits, chk, full)
    A(f's_cbranch_vccz {ok}')
    fail_branch(code, lp)
    LAB(ok)
def ppoll(code, K, gap, mk, nld, sets, out, tag, maskbits, extra=()):
    if K == 1:
        poll(code, mk(sets[0]) + list(extra), [sets[0][i] for i in range(sets[0].n)], out, tag, maskbits, vCH); return
    lp, ok = nl('PP'), nl('OK')
    A(f's_mov_b32 {sCNT}, {CFG["limit"]}')
    for k in range(K - 1):
        for x in mk(sets[k]): A(x)
        if gap: A(f's_sleep {gap}')
    LAB(lp)
    for k in range(K):
        for x in mk(sets[(k + K - 1) % K]): A(x)
        for x in extra: A(x)
        A(f's_waitcnt vmcnt({(K-1)*nld})')
        check([sets[k][i] for i in range(sets[k].n)], out, tag, maskbits, vCH)
        A(f's_cbranch_vccz {ok}')
    fail_branch(code, lp)
    LAB(ok)
def lds_wait(code, off, val, tmp, sleep=0, vaddr=None, spec=()):
    lp, ok, ag = nl('W'), nl('OK'), nl('AG')
    va = vaddr or vZ
    if spec:
        A(f'ds_read_b32 {tmp}, {va} offset:{off - FLG}')
        for x in spec: A(x)
        A(f's_waitcnt lgkmcnt({min(15, len(spec))})')
        A(f'v_readfirstlane_b32 {sTMP}, {tmp}'); A(f's_cmp_ge_u32 {sTMP}, {val}'); A(f's_cbranch_scc1 {ok}')
    A(f's_mov_b32 {sCNT}, {CFG["limit"]}')
    LAB(lp)
    A(f'ds_read_b32 {tmp}, {va} offset:{off - FLG}')
    A('s_waitcnt lgkmcnt(0)')
    A(f'v_readfirstlane_b32 {sTMP}, {tmp}')
    A(f's_cmp_ge_u32 {sTMP}, {val}')
    A(f's_cbranch_scc1 {ag}')
    if sleep: A(f's_sleep {sleep}')
    fail_branch(code, lp)
    LAB(ag)
    for x in spec: A(x)
    LAB(ok)
def lds_wait8(code, off, fl, reads):
    lp, ok, again = nl('W'), nl('OK'), nl('AG')
    def flags():
        A(f'ds_read_b128 {fl[0:4]}, {vZ} offset:{off - FLG}'); A(f'ds_read_b128 {fl[4:8]}, {vZ} offset:{off - FLG + 16}')
    def test():
        A(f'v_and_b32 {fl[0]}, {fl[0]}, {fl[1]}')
        for i in (2, 4, 6): A(f'v_bitop3_b32 {fl[0]}, {fl[0]}, {fl[i]}, {fl[i+1]} bitop3:0x80')
        A(f'v_cmp_eq_u32 vcc, 0, {fl[0]}')
    A(f's_mov_b32 {sCNT}, {CFG["limit"]}')
    LAB(lp)
    flags()
    for x in reads: A(x)
    A(f's_waitcnt lgkmcnt({min(15, len(reads))})')
    test()
    A(f's_cbranch_vccz {ok}')
    fail_branch(code, lp)
    LAB(ok)
def gld(d, a, off=0, key='gat'):
    o = f' offset:{off}' if off else ''
    if CFG[key]: return f'global_atomic_add {d}, {a}, {vZero}, {pWS}{o} sc0 sc1'
    return f'global_load_dword {d}, {a}, {pWS}{o} sc1'
def near_update():
    if not CFG['near']: return
    A(f'ds_read_b32 {vT0}, {vZ} offset:{F_CP - FLG}'); A('s_waitcnt lgkmcnt(0)'); A(f'v_readfirstlane_b32 s56, {vT0}')
    A('s_cmp_eq_u32 s56, 1'); A(f's_cselect_b32 {sCP}, 0, {sCP}'); A('s_cmp_eq_u32 s56, 2'); A(f's_cselect_b32 {sCP}, 0x2000, {sCP}')
def pure_read(): return f'ds_read_b32 {vPU}, {vZ} offset:{F_PURE - FLG}'
def pure_update(): A(f'v_readfirstlane_b32 {sPURE}, {vPU}')
def lstore(instrs):
    sl, bk = nl('SL'), nl('BK')
    A(f's_cmp_eq_u32 {sPURE}, 1'); A(f's_cbranch_scc0 {sl}')
    for x in instrs: A(x)
    LAB(bk)
    slow_paths.append((sl, [x + ' sc1' for x in instrs], bk))
def tagf(d, s, vtag): A(f'v_and_or_b32 {d}, {s}, {sMASK}, {vtag}')
def epoch_wait():
    A('s_waitcnt lgkmcnt(0)')
    A(f's_add_u32 {sE}, {sE}, 1')
    A(f's_and_b32 {sT6}, {sE}, {TM:#x}'); A(f's_and_b32 {sT16}, {sE}, 0xffff'); A(f's_xor_b32 {sT6b}, {sT6}, 0x20')
    A(f'v_mov_b32 {vTg}, {sT6}'); A(f'v_mov_b32 {vTgb}, {sT6b}')
def silu_bf(d, c, t1):
    A(f'v_mul_f32 {t1}, {sL2E}, {c}'); A(f'v_exp_f32 {t1}, -{t1}'); A(f'v_add_f32 {t1}, 1.0, {t1}'); A(f'v_rcp_f32 {t1}, {t1}'); A(f'v_mul_f32 {d}, {c}, {t1}')
def end_wave():
    if CFG['stamps']: A('s_branch L_stamps')
    else: A('s_endpgm')
def flag(off): A(f'ds_write_b32 {vZ}, {vOne} offset:{off - FLG}')
NT = ' nt' if CFG['nt'] else ''
vL = 'v0'
MKA = dict(M=1, K0=2, V0=10, GU=18, DN=19)
MKW = dict(WQ=1, MR=2, WO=3)

LAB('L_start')
stamp(0)
if CFG['amp']: A('s_memrealtime s[92:93]')
A('s_cmp_ge_u32 s2, 256'); A('s_cbranch_scc1 L_exit')
A('s_load_dwordx16 s[16:31], s[0:1], 0'); A('s_load_dwordx8 s[32:39], s[0:1], 64'); A('s_load_dwordx4 s[40:43], s[0:1], 96')
A('v_lshrrev_b32 v1, 6, v0'); A('v_and_b32 v0, 63, v0'); A(f'v_readfirstlane_b32 {sWAVE}, v1')
A(f's_and_b32 {sG}, s2, 7'); A(f's_lshr_b32 {sT}, s2, 3'); A(f's_and_b32 {sU}, {sT}, 15')
V = Alloc('v', 1, 168)
vN, vQ, vR, vC, vT0, vT1, vT2, vT3, vCH, vZ, vTg, vTgb, vPU, vOne, vC8, vQ16, vDUM, vZero = [V() for _ in range(18)]
vX = V(4); vXd = V()
mP = V.mark()
A(f's_cmp_lt_u32 {sWAVE}, 8'); A('s_cbranch_scc1 L_i_c')
A(f's_cmp_eq_u32 {sWAVE}, 9'); A('s_cbranch_scc0 L_i_8')
if CFG['pf']:
    A('s_getpc_b64 s[56:57]')
    LAB('L_pc')
    A('s_sub_u32 s56, s56, L_pc - L_start'); A('s_subb_u32 s57, s57, 0')
    A(f's_and_b32 s58, {sT}, 3'); A('s_lshl_b32 s58, s58, 13'); A(f'v_lshl_add_u32 {vT0}, {vL}, 7, s58'); A(f'v_min_u32 {vT0}, L_codeend - L_start - 4, {vT0}')
    A(f'global_load_dword {vDUM}, {vT0}, s[56:57]')
A('s_branch L_i_9')
LAB('L_i_8')
if CFG['lprio']: A(f's_setprio {CFG["lprio"]}')
A(f'v_lshrrev_b32 v2, 3, {vL}'); A(f'v_and_b32 v3, 7, {vL}'); A(f's_lshl_b32 s58, {sG}, 7')
A(f's_cmp_ge_u32 {sT}, 16'); A('s_cbranch_scc1 L_i_8W')
A('v_mul_u32_u24 v1, 6144, v2'); A(f's_lshr_b32 s56, {sU}, 1'); A(f's_mul_i32 s56, s56, {64*6144}'); A(f's_and_b32 s57, {sU}, 1'); A('s_lshl_b32 s57, s57, 10')
A('s_add_u32 s56, s56, s57'); A('s_add_u32 s56, s56, s58'); A(f's_mov_b32 m0, {MM}'); A(f's_mov_b32 s59, {8*6144}'); A('s_mov_b32 s60, 1')
A('s_waitcnt lgkmcnt(0)'); A(f's_mov_b64 s[62:63], {pWM}')
A('s_branch L_i_8go')
LAB('L_i_8W')
A('v_lshlrev_b32 v1, 13, v2'); A(f's_lshr_b32 s56, {sU}, 3'); A('s_lshl_b32 s56, s56, 21'); A(f's_and_b32 s57, {sU}, 7'); A('s_lshl_b32 s57, s57, 7')
A('s_add_u32 s56, s56, s57'); A('s_lshl_b32 s58, s58, 3'); A('s_add_u32 s56, s56, s58'); A(f's_mov_b32 m0, {WQ}'); A('s_mov_b32 s59, 65536'); A('s_mov_b32 s60, 4')
A('s_waitcnt lgkmcnt(0)'); A(f's_mov_b64 s[62:63], {pWQ}')
for k in range(CFG['wqd']): A(f's_load_dword {sE}, {pWS}, {EP + 4096*k}'); A('s_waitcnt lgkmcnt(0)')
LAB('L_i_8go')
A('v_lshl_add_u32 v1, v3, 4, v1'); A('v_add_u32 v1, s56, v1')
LAB('L_i_8loop')
for _ in range(8): A(f'global_load_lds_dwordx4 v1, s[62:63]{NT}'); A('s_add_u32 m0, m0, 1024'); A('v_add_u32 v1, s59, v1')
A('s_sub_u32 s60, s60, 1'); A('s_cmp_lg_u32 s60, 0'); A('s_cbranch_scc1 L_i_8loop')
A('s_branch L_loader')
LAB('L_i_c')
if CFG['only'].startswith('loader'):
    A('s_waitcnt lgkmcnt(0)'); A('s_barrier'); A('s_branch L_stamps')
A(f's_cmp_ge_u32 {sWAVE}, 4'); A('s_cbranch_scc0 L_i_03')
A(f's_lshr_b32 s56, {sU}, 2'); A('s_lshl_b32 s56, s56, 8'); A(f'v_lshl_add_u32 {vT2}, {vL}, 2, s56')
A('s_waitcnt lgkmcnt(0)')
A(f'global_load_dword {vXd}, {vT2}, {pC}')
A('s_branch L_i_done')
LAB('L_i_03')
A(f'v_lshlrev_b32 {vT0}, 4, {vL}')
A(f's_add_u32 s57, {sWAVE}, 1'); A('s_and_b32 s57, s57, 1'); A(f's_lshl_b32 s56, {sU}, 1'); A('s_add_u32 s56, s56, s57'); A('s_lshl_b32 s56, s56, 5')
A(f'v_and_b32 {vT1}, 15, {vL}'); A(f'v_lshl_add_u32 {vT1}, {vT1}, 1, s56')
A(f's_sub_u32 s57, {sWAVE}, 1'); A(f's_lshr_b32 s56, {sT}, 4'); A('s_xor_b32 s56, s56, 1'); A('s_lshl_b32 s56, s56, 1'); A('s_or_b32 s57, s57, s56')
A('s_waitcnt lgkmcnt(0)')
A('s_cmp_lt_u32 s57, 2'); A('s_cbranch_scc0 L_i_done')
A(f'global_load_dwordx4 {vX}, {vT0}, {pX}'); A(f'global_load_ushort {vXd}, {vT1}, {pX}')
A('s_branch L_i_done')
LAB('L_i_9')
if CFG['only'].startswith('loader'):
    A('s_waitcnt lgkmcnt(0)'); A('s_barrier'); A('s_branch L_stamps')
if CFG['cprio']: A(f's_setprio {CFG["cprio"]}')
A(f'v_lshlrev_b32 {vT1}, 2, {vL}'); A(f'v_add_u32 {vT1}, {FLG}, {vT1}'); A(f'v_mov_b32 {vT2}, 0')
set_exec(0xffffffff); A(f'ds_write_b32 {vT1}, {vT2}'); set_exec(-1)
A('s_getreg_b32 s52, hwreg(HW_REG_XCC_ID)'); A('s_and_b32 s52, s52, 15'); A('s_or_b32 s52, s52, 0x80')
A(f's_lshl_b32 s56, {sG}, 5'); A(f's_add_u32 s57, s56, {sT}'); A(f'v_mov_b32 {vT0}, s57'); A(f'v_mov_b32 {vT1}, s52')
A('s_waitcnt lgkmcnt(0)')
set_exec(1); A(f'global_store_byte {vT0}, {vT1}, {pDBG}')
if CFG['ampm']:
    A(f's_lshl_b32 s57, s57, 2'); A('s_add_u32 s57, s57, 0x180000'); A(f'v_mov_b32 {vT0}, s57'); A(f'v_mov_b32 {vT1}, s92'); A(f'global_store_dword {vT0}, {vT1}, {pWS} sc1')
set_exec(-1)
LAB('L_i_done')
A(f's_load_dword {sE}, {pWS}, {EP}')
A(f's_getreg_b32 {sCP}, hwreg(HW_REG_XCC_ID)'); A(f's_and_b32 {sCP}, {sCP}, {4 if CFG["rep"] else 0}'); A(f's_lshl_b32 {sCP}, {sCP}, 11')
A(f's_mov_b32 {sMASK}, {0xffffffff ^ TM:#x}'); A(f's_mov_b32 {sSEL}, 0x07060302'); A(f's_mov_b32 {sHI}, 0xffff0000'); A(f's_mov_b32 {sL2E}, 0x3fb8aa3b'); A(f's_mov_b32 {sPURE}, 0')
A(f's_mul_i32 s53, {sG}, {LBS}'); A(f's_add_u32 s53, s53, {LB0}'); A(f's_add_u32 {lo(pLB)}, {lo(pWS)}, s53'); A(f's_addc_u32 {hi(pLB)}, {hi(pWS)}, 0')
A(f'v_mov_b32 {vZ}, {FLG}'); A(f'v_mov_b32 {vOne}, 1'); A(f'v_mov_b32 {vZero}, 0')
A(f'v_and_b32 {vN}, 15, {vL}'); A(f'v_lshrrev_b32 {vQ}, 4, {vL}'); A(f'v_bfe_u32 {vR}, {vL}, 2, 2'); A(f'v_and_b32 {vC}, 3, {vL}')
A(f'v_lshlrev_b32 {vC8}, 3, {vC}'); A(f'v_lshlrev_b32 {vQ16}, 4, {vQ}')
w2, w5, w6, w7, w8 = 's59', 's60', 's61', 's62', 's63'
A(f's_lshl_b32 {w2}, {sWAVE}, 2'); A(f's_lshl_b32 {w5}, {sWAVE}, 5'); A(f's_lshl_b32 {w6}, {sWAVE}, 6'); A(f's_lshl_b32 {w7}, {sWAVE}, 7'); A(f's_lshl_b32 {w8}, {sWAVE}, 8')

def pure_phase():
    lp, dn = nl('PP'), nl('PD')
    A('s_mul_i32 s52, s52, 0x01010101'); A(f'v_and_b32 {vT1}, 7, {vL}'); A(f's_lshl_b32 s56, {sG}, 5'); A(f'v_lshl_add_u32 {vT1}, {vT1}, 2, s56')
    A(f's_mov_b32 {sCNT}, {CFG["ptries"]}')
    LAB(lp)
    A(f'global_load_dword {vT0}, {vT1}, {pDBG} sc1'); A('s_waitcnt vmcnt(0)')
    A(f'v_cmp_ne_u32 vcc, s52, {vT0}'); A(f's_cbranch_vccz {lp}_ok')
    A(f's_sub_u32 {sCNT}, {sCNT}, 1'); A(f's_cbranch_scc0 {lp}'); A(f's_branch {dn}')
    LAB(lp + '_ok')
    flag(F_PURE)
    LAB(dn)
    stamp(2)

A(f's_cmp_ge_u32 {sT}, 16'); A('s_cbranch_scc1 L_W')
A(f's_cmp_eq_u32 {sWAVE}, 9'); A('s_cbranch_scc1 L_A9')
aK = V(4, 1); aQB, aMw, aMr, aVx, aPw, aPr, aAst = [V() for _ in range(7)]
A(f's_lshl_b32 s58, {sWAVE}, 13')
A(f'v_xor_b32 {vT0}, {vQ}, {vN}'); A(f'v_lshlrev_b32 {vT0}, 4, {vT0}'); A(f'v_lshl_add_u32 {vT0}, {vN}, 8, {vT0}'); A(f'v_add_u32 {aK[0]}, s58, {vT0}')
for ks in range(1, 4): A(f'v_xor_b32 {aK[ks]}, {64*ks}, {aK[0]}')
A(f'v_mul_u32_u24 {aQB}, {QS}, {vC}'); A(f'v_add3_u32 {aQB}, {aQB}, {vQ16}, {vZ}'); A(f'v_add_u32 {aQB}, {QL - FLG}, {aQB}')
A(f'v_lshlrev_b32 {aMr}, 5, {vC}'); A(f'v_add_u32 {aMr}, {MX}, {aMr}'); A(f'v_add_u32 {aMw}, {w2}, {aMr}')
A(f'v_lshl_add_u32 {vT0}, {vQ}, 2, {vR}'); A(f'v_and_b32 {vT1}, 7, {vT0}'); A(f'v_lshl_add_u32 {aVx}, {vT0}, 8, {vC8}'); A(f'v_lshl_add_u32 {aVx}, {vT1}, 5, {aVx}')
A(f'v_xor_b32 {aVx}, {w5}, {aVx}'); A(f'v_add_u32 {aVx}, {VV}, {aVx}')
A(f'v_lshl_add_u32 {vT2}, {vC}, 6, {vQ16}'); A(f's_add_u32 s56, {w8}, {PB}'); A(f'v_lshl_add_u32 {aPw}, {vR}, 2, {vT2}'); A(f'v_add_u32 {aPw}, s56, {aPw}')
A(f'v_add_u32 {aPr}, {PB}, {vT2}')
A(f's_lshl_b32 s57, {sU}, 11'); A(f's_add_u32 s56, s57, {w6}'); A(f's_add_u32 s56, s56, {A_}')
A(f'v_lshl_add_u32 {aAst}, {vC}, 9, {vQ16}'); A(f'v_add_u32 {aAst}, s56, {aAst}')
A('s_barrier')
epoch_wait()
stamp(1)
A(f's_cmp_ge_u32 {sWAVE}, 4'); A('s_cbranch_scc0 L_A_main')
def mod_tile(base, nks, koff_expr, vSt, mark, mask, code, sleep, before_wait=None):
    vCc = V(4 * nks); vMa = V(4 * nks); vD = V(4); aM, aC = V(), V()
    A(f's_sub_u32 s56, {w8}, {1024 - CL}'); A(f'v_lshl_add_u32 {vT2}, {vL}, 2, s56'); koff_expr(); A(f'v_add_u32 {aC}, s56, {vQ16}')
    A(f's_sub_u32 s56, {w5}, {128 - base}'); A(f'v_lshl_add_u32 {aM}, {vQ}, 3, {vR}'); A(f'v_lshl_add_u32 {aM}, {aM}, 7, {vC8}'); A(f'v_add_u32 {aM}, s56, {aM}')
    A('s_waitcnt vmcnt(0)')
    A(f'v_lshlrev_b32 {vX[0]}, 16, {vXd}'); A(f'v_and_b32 {vX[1]}, {sHI}, {vXd}')
    silu_bf(vX[0], vX[0], vT0); silu_bf(vX[1], vX[1], vT1)
    A(f'v_cvt_pk_bf16_f32 {vXd}, {vX[0]}, {vX[1]}')
    A(f'ds_write_b32 {vT2}, {vXd}')
    for ks in range(nks): A(f'ds_read_b128 {vCc[4*ks:4*ks+4]}, {aC} offset:{64*ks}')
    if before_wait: before_wait()
    reads = [x for ks in range(nks) for x in (f'ds_read_b64_tr_b16 {vMa[4*ks:4*ks+2]}, {aM} offset:{4096*ks}', f'ds_read_b64_tr_b16 {vMa[4*ks+2:4*ks+4]}, {aM} offset:{4096*ks + 512}')]
    lds_wait(code, F_LP, mark, vT0, spec=reads, sleep=sleep)
    for ks in range(nks):
        A(f's_waitcnt lgkmcnt({2*(nks-1-ks)})')
        A(f'v_mfma_f32_16x16x32_bf16 {vD}, {vMa[4*ks:4*ks+4]}, {vCc[4*ks:4*ks+4]}, {0 if ks == 0 else vD}')
    for r in range(4): tagf(vD[r], vD[r], vTg)
    set_exec(mask); A(f'global_store_dwordx4 {vSt}, {vD}, {pWS} sc1')
m = V.mark()
vSt = V()
A(f's_lshl_b32 s56, {sU}, 3'); A(f's_add_u32 s56, s56, {sG}'); A('s_lshl_b32 s56, s56, 8'); A(f's_add_u32 s56, s56, {w6}'); A(f's_sub_u32 s56, s56, 256')
A('s_and_b32 s57, s56, 0xffffe000'); A('s_add_u32 s56, s56, s57'); A(f's_add_u32 s56, s56, {S_M}'); A(f'v_lshl_add_u32 {vSt}, {vN}, 13, {vQ16}'); A(f'v_add_u32 {vSt}, s56, {vSt}')
mod_tile(MM, 2, lambda: (A(f's_and_b32 s57, {sU}, 2'), A('s_lshl_b32 s57, s57, 6'), A('s_add_u32 s56, s56, s57')), vSt, MKA['M'], M_N2, 20, 0)
set_exec(1); A(f'ds_add_u32 {vZ}, {vOne} offset:{F_MP - FLG}'); set_exec(-1)
stamp(3)
V.release(m)
LAB('L_A_main')
mA = V.mark()
vK = V(32); vV = V(32); vQB = V(16); vS = V(8); vP = V(); vM, vLs = V(), V()
A(f's_add_u32 s57, {sWAVE}, {MKA["K0"]}')
lds_wait(5, F_LP, 's57', vT0, sleep=1)
for T in range(2):
    for ks in range(4): A(f'ds_read_b128 {vK[16*T+4*ks:16*T+4*ks+4]}, {aK[ks]} offset:{4096*T}')
stamp(7)
xreads = lambda cs: [x for c in cs for x in (f'ds_read_b64_tr_b16 {vV[4*c:4*c+2]}, {aVx} offset:{8192*c}', f'ds_read_b64_tr_b16 {vV[4*c+2:4*c+4]}, {aVx} offset:{8192*c + 4096}')]
sNV = 's13'
A(f's_mov_b32 {sNV}, 0'); A(f's_mov_b32 s58, {MKA["V0"] + NO - 1}')
lp, ok, nv, n2 = nl('W'), nl('OK'), nl('NV'), nl('N2')
A(f's_mov_b32 {sCNT}, {CFG["limit"]}')
LAB(lp)
A(f'ds_read_b32 {vT1}, {vZ} offset:{F_Q - FLG}'); A(f'ds_read_b32 {vT2}, {vZ} offset:{F_LP - FLG}')
A('s_waitcnt lgkmcnt(0)')
A(f'v_readfirstlane_b32 {sTMP}, {vT1}'); A(f'v_readfirstlane_b32 s56, {vT2}')
A(f's_cmp_eq_u32 {sTMP}, 1'); A(f's_cbranch_scc1 {ok}')
A('s_cmp_ge_u32 s56, s58'); A(f's_cbranch_scc0 {nv}')
A(f's_cmp_eq_u32 {sNV}, 0'); A(f's_cbranch_scc0 {n2}')
for x in xreads(range(NO)): A(x)
A(f's_mov_b32 {sNV}, 1'); A(f's_mov_b32 s58, {MKA["V0"] + 7}'); A(f's_branch {nv}')
LAB(n2)
for x in xreads(range(NO, 8)): A(x)
A(f's_mov_b32 {sNV}, 2'); A('s_mov_b32 s58, 99')
LAB(nv)
fail_branch(7, lp)
LAB(ok)
for ks in range(4): A(f'ds_read_b128 {vQB[4*ks:4*ks+4]}, {aQB} offset:{64*ks}')
A(pure_read())
stamp(8)
for ks in range(4):
    A(f's_waitcnt lgkmcnt({4-ks})')
    for T in range(2): A(f'v_mfma_f32_16x16x32_bf16 {vS[4*T:4*T+4]}, {vK[16*T+4*ks:16*T+4*ks+4]}, {vQB[4*ks:4*ks+4]}, {0 if ks == 0 else vS[4*T:4*T+4]}')
A('s_waitcnt lgkmcnt(0)'); pure_update()
A('s_mov_b32 s56, 0x3db504f3')
for k in (1, 2, 3):
    dpp('v_mov_b32', vS[0], vS[2*k], None, 'quad_perm:[0,1,2,3]', 1 << k); dpp('v_mov_b32', vS[1], vS[2*k+1], None, 'quad_perm:[0,1,2,3]', 1 << k)
A(f'v_cvt_pk_bf16_f32 {vP}, {vS[0]}, {vS[1]}'); A(f'v_lshlrev_b32 {vS[0]}, 16, {vP}'); A(f'v_and_b32 {vS[1]}, {sHI}, {vP}')
A(f'v_mul_f32 {vS[0]}, s56, {vS[0]}'); A(f'v_mul_f32 {vS[1]}, s56, {vS[1]}')
A(f'v_cvt_pk_bf16_f32 {vP}, {vS[0]}, {vS[1]}'); A(f'v_lshlrev_b32 {vS[0]}, 16, {vP}'); A(f'v_and_b32 {vS[1]}, {sHI}, {vP}')
A(f'v_max_f32 {vM}, {vS[0]}, {vS[1]}'); row_allred('v_max_f32', [vM], (4, 8)); xrow_allred('v_max_f32', vM, vT0)
set_exec(0xf); A(f'ds_write_b32 {aMw}, {vM}'); set_exec(1); A(f'ds_add_u32 {vZ}, {vOne} offset:{F_MX - FLG}'); set_exec(-1)
vMc = vQB[0:8]; vFg = vQB[8:10]; vPp = vK; vO = vQB[12:16]
lp, ok = nl('W'), nl('OK')
A(f's_mov_b32 {sCNT}, {CFG["limit"]}')
LAB(lp)
A(f'ds_read_b32 {vT1}, {vZ} offset:{F_MX - FLG}'); A(f'ds_read_b128 {vMc[0:4]}, {aMr}'); A(f'ds_read_b128 {vMc[4:8]}, {aMr} offset:16')
A('s_waitcnt lgkmcnt(2)')
A(f'v_cmp_ne_u32 vcc, 8, {vT1}'); A(f's_cbranch_vccz {ok}')
fail_branch(58, lp)
LAB(ok)
A('s_waitcnt lgkmcnt(0)')
A(f'v_max3_f32 {vM}, {vMc[0]}, {vMc[1]}, {vMc[2]}'); A(f'v_max3_f32 {vT0}, {vMc[3]}, {vMc[4]}, {vMc[5]}'); A(f'v_max3_f32 {vM}, {vM}, {vMc[6]}, {vMc[7]}'); A(f'v_max_f32 {vM}, {vM}, {vT0}')
A(f'v_mul_f32 {vT1}, {sL2E}, {vM}')
for i in range(2): A(f'v_fma_f32 {vS[i]}, {vS[i]}, {sL2E}, -{vT1}')
for i in range(2): A(f'v_exp_f32 {vS[i]}, {vS[i]}')
A(f'v_cvt_pk_bf16_f32 {vP}, {vS[0]}, {vS[1]}')
A(f'ds_write_b32 {aPw}, {vP}')
set_exec(1); A(f'ds_add_u32 {vZ}, {vOne} offset:{F_PF - FLG}'); set_exec(-1)
stamp(9)
A(f'v_add_f32 {vLs}, {vS[0]}, {vS[1]}'); row_allred('v_add_f32', [vLs], (4, 8)); xrow_allred('v_add_f32', vLs, vT3)
set_exec(0xf); A(f'ds_write_b32 {aMw}, {vLs} offset:{LX - MX}'); set_exec(1); A(f'ds_add_u32 {vZ}, {vOne} offset:{F_SF - FLG}'); set_exec(-1)
lp, ok = nl('W'), nl('OK')
A(f's_mov_b32 {sCNT}, {CFG["limit"]}')
LAB(lp)
A(f'ds_read_b64 {vFg}, {vZ}')
A('s_waitcnt lgkmcnt(0)')
A(f'v_cmp_ne_u32 vcc, 8, {vFg[1]}'); A(f's_cbranch_vccz {ok}')
fail_branch(8, lp)
LAB(ok)
for c in range(8): A(f'ds_read_b128 {vPp[4*c:4*c+4]}, {aPr} offset:{256*c}')
stamp(10)
def pvx(cs, waits):
    for i, c in enumerate(cs):
        if waits[i] is not None: A(f's_waitcnt lgkmcnt({waits[i]})')
        A(f'v_mfma_f32_16x16x32_bf16 {vO}, {vV[4*c:4*c+4]}, {vPp[4*c:4*c+4]}, {0 if c == 0 else vO}')
A(f's_cmp_eq_u32 {sNV}, 2'); A('s_cbranch_scc0 L_A_vlate')
pvx(range(8), [7 - c for c in range(8)])
LAB('L_A_pvdone')
for r in range(4): tagf(vO[r], vO[r], vTg)
set_exec(M_N4)
lstore([f'global_store_dwordx4 {aAst}, {vO}, {pLB}'])
set_exec(1); A(f'ds_add_u32 {vZ}, {vOne} offset:{F_AP - FLG}'); set_exec(-1)
stamp(11)
A(f's_cmp_ge_u32 {sWAVE}, 4'); A('s_cbranch_scc1 L_A_end')
V.release(mP)
aDst, aMV, aX2, aX2b, aGu, aDn, aCst, aCld, v8qr = [V() for _ in range(9)]
vMk = V(4, 1); vMd = V(4, 1)
A(f'v_lshl_add_u32 {v8qr}, {vQ}, 3, {vR}')
A(f's_and_b32 s54, {sU}, 7'); A(f's_lshl_b32 s58, {sWAVE}, 9')
A(f'v_lshl_add_u32 {vT0}, {vN}, 6, {vQ16}')
A(f's_lshl_b32 s57, {sU}, 11'); A(f's_add_u32 s57, s57, {B1}'); A('s_add_u32 s56, s57, s58'); A(f'v_add_u32 {aDst}, s56, {vT0}')
A(f's_lshl_b32 s56, {sU}, 10'); A(f's_add_u32 s56, s56, {w8}'); A(f's_add_u32 s56, s56, {A_}'); A(f'v_add_u32 {aCst}, s56, {vT0}')
A(f'v_lshlrev_b32 {vT0}, 4, {vR}'); A(f'v_and_b32 {vT1}, 2, {vL}'); A(f'v_lshl_add_u32 {vT0}, {vT1}, 2, {vT0}'); A(f'v_lshl_add_u32 {vT0}, {vQ}, 1, {vT0}'); A(f'v_and_b32 {vT1}, 1, {vL}'); A(f'v_add_u32 {vT0}, {vT0}, {vT1}')
A('s_lshl_b32 s56, s54, 8'); A(f'v_lshl_add_u32 {vT0}, {vT0}, 4, s56'); A(f'v_and_b32 {vT0}, 2047, {vT0}')
A(f'v_add_u32 {aX2}, {X2}, {vT0}'); A(f'v_add_u32 {aMV}, {MV}, {vT0}'); A(f'v_xor_b32 {vT0}, 1024, {vT0}'); A(f'v_add_u32 {aX2b}, {X2}, {vT0}')
A(f'v_and_b32 {vT0}, 1, {vQ}'); A(f'v_lshl_add_u32 {vT0}, {vT0}, 2, {vR}'); A(f'v_lshlrev_b32 {vT0}, 5, {vT0}'); A(f'v_add_u32 {vT1}, {w7}, {vC8}')
if CFG['gsw']: A(f'v_xor_b32 {vT1}, {vT1}, {vT0}')
A(f'v_lshl_add_u32 {aGu}, {v8qr}, 9, {vT1}'); A(f'v_add_u32 {aGu}, {GU}, {aGu}')
A(f'v_and_b32 {vT0}, 1, {vQ}'); A(f'v_lshl_add_u32 {vT0}, {vT0}, 3, {vR}'); A(f'v_lshl_add_u32 {aDn}, {vT0}, 10, {vC8}'); A(f'v_lshrrev_b32 {vT1}, 1, {vQ}'); A(f'v_lshl_add_u32 {aDn}, {vT1}, 5, {aDn}')
A(f's_add_u32 s56, {w8}, {DN}'); A(f'v_add_u32 {aDn}, s56, {aDn}')
if CFG['gsw']:
    A(f'v_and_b32 {vT0}, 1, {vQ}'); A(f'v_lshl_add_u32 {vT0}, {vR}, 1, {vT0}'); A(f'v_lshlrev_b32 {vT0}, 5, {vT0}'); A(f'v_xor_b32 {aDn}, {aDn}, {vT0}')
A(f'v_bfe_u32 {vT0}, {vL}, 2, 1'); A(f'v_lshrrev_b32 {aCld}, 3, {vL}'); A(f'v_lshl_add_u32 {aCld}, {vT0}, 3, {aCld}'); A(f'v_lshlrev_b32 {aCld}, 10, {aCld}')
A(f'v_lshl_add_u32 {aCld}, {vC}, 4, {aCld}'); A(f's_lshl_b32 s56, {sU}, 6'); A(f's_add_u32 s56, s56, {A_}'); A(f'v_add_u32 {aCld}, s56, {aCld}')
for j in range(4):
    A(f'v_cmp_eq_u32 vcc, {j}, {vN}'); A(f'v_cndmask_b32 {vMk[j]}, 0, -1, vcc')
for jj in range(4):
    if jj: A(f'v_add_u32 {vT1}, 2, {vT1}')
    A(f'v_cmp_eq_u32 vcc, {vT1}, {vN}'); A(f'v_cndmask_b32 {vMd[jj]}, 0, -1, vcc')
A(f's_mov_b32 {sCM}, {M_N4 & 0xffffffff:#x}'); A(f's_cmp_eq_u32 {sWAVE}, 3'); A(f's_cselect_b32 {sCM}, {M_N2 & 0xffffffff:#x}, {sCM}')
vGu = V(32); vDn = V(16); vSB = V(4); vT1v = V(4); vXs = [V(8) for _ in range(CFG['LK'])]; vXr = vXs[0]; vXx = V(8); vHp = V(2); vBm = V(8); vD = V(4); vSum, vSq = V(), V()
A(f'global_load_dword {vDUM}, {aX2}, {pLB} sc1'); A(f'global_load_dword {vDUM}, {aX2b}, {pLB} sc1')
mv_loads = [f'global_load_dwordx4 {vXr[0:4]}, {aMV}, {pLB} sc1', f'global_load_dwordx4 {vXr[4:8]}, {aMV}, {pLB} offset:2048 sc1']
lds_wait(15, F_LP, MKA['GU'], vT0, sleep=1)
for x in mv_loads: A(x)
for j in range(4):
    A(f'v_xor_b32 {vT1}, {32*j}, {aGu}')
    for ks in range(2):
        r = vGu[8*j+4*ks:8*j+4*ks+4]
        A(f'ds_read_b64_tr_b16 {r[0:2]}, {vT1} offset:{16384*ks}'); A(f'ds_read_b64_tr_b16 {r[2:4]}, {vT1} offset:{16384*ks + 2048}')
    if j == 1: A('s_waitcnt lgkmcnt(4)')
lds_wait(16, F_LP, MKA['DN'], vT0)
for jj in range(4):
    A(f'v_xor_b32 {vT1}, {64*jj}, {aDn}'); A(f'ds_read_b64_tr_b16 {vDn[4*jj:4*jj+2]}, {vT1}'); A(f'ds_read_b64_tr_b16 {vDn[4*jj+2:4*jj+4]}, {vT1} offset:4096')
poll(13, mv_loads, [vXr[i] for i in range(8)], [vSB[i] for i in range(4)] + [vT1v[i] for i in range(4)], sT16, 0xffff, vCH, issued=True)
A('s_waitcnt lgkmcnt(0)')
stamp(6)
ppoll(17, CFG['LK'], CFG['lgap'], lambda r: [f'global_load_dwordx4 {r[0:4]}, {aX2}, {pLB} sc1', f'global_load_dwordx4 {r[4:8]}, {aX2b}, {pLB} sc1'], 2, vXs, [vXx[i] for i in range(8)], sT16, 0xffff)
stamp(12)
A(f'v_add_f32 {vSum}, {vXx[0]}, {vXx[1]}'); A(f'v_mul_f32 {vSq}, {vXx[0]}, {vXx[0]}')
A(f'v_add_f32 {vT0}, {vXx[2]}, {vXx[3]}'); A(f'v_mul_f32 {vT1}, {vXx[1]}, {vXx[1]}')
for i in range(2, 8): A(f'v_fmac_f32 {vSq if i % 2 == 0 else vT1}, {vXx[i]}, {vXx[i]}')
A(f'v_add_f32 {vT2}, {vXx[4]}, {vXx[5]}'); A(f'v_add_f32 {vT3}, {vXx[6]}, {vXx[7]}'); A(f'v_add_f32 {vSum}, {vSum}, {vT0}'); A(f'v_add_f32 {vT2}, {vT2}, {vT3}')
A(f'v_add_f32 {vSq}, {vSq}, {vT1}'); A(f'v_add_f32 {vSum}, {vSum}, {vT2}')
A(f'v_permlane32_swap_b32 {vSum}, {vSq}'); A(f'v_add_f32 {vSum}, {vSum}, {vSq}')
A(f'v_mov_b32 {vSq}, {vSum}'); A(f'v_permlane16_swap_b32 {vSum}, {vSq}'); A(f'v_add_f32 {vSum}, {vSum}, {vSq}')
row_allred('v_add_f32', [vSum])
A(f'v_mul_f32 {vSum}, 0x3b000000, {vSum}')
A(f'v_mov_b32 {vSq}, {vSum}'); A(f'v_permlane32_swap_b32 {vSum}, {vSq}')
A(f'v_fma_f32 {vSq}, -{vSum}, {vSum}, {vSq}'); A(f'v_max_f32 {vSq}, 0, {vSq}'); A(f'v_add_f32 {vSq}, 0x3727c5ac, {vSq}'); A(f'v_rsq_f32 {vSq}, {vSq}')
for i in range(4): A(f'v_sub_f32 {vXx[i]}, {vXx[i]}, {vSum}')
for i in range(4): A(f'v_mul_f32 {vT1v[i]}, {vSq}, {vT1v[i]}')
for i in range(4): A(f'v_fma_f32 {vXx[i]}, {vXx[i]}, {vT1v[i]}, {vSB[i]}')
for i in range(2): A(f'v_cvt_pk_bf16_f32 {vHp[i]}, {vXx[2*i]}, {vXx[2*i+1]}')
k = 0
sk = nl('S')
for j in range(4):
    if j == 2: A(f's_cmp_eq_u32 {sWAVE}, 3'); A(f's_cbranch_scc1 {sk}')
    for ks in range(2):
        b = vBm[4*(k & 1):4*(k & 1)+4]
        for p in range(4): dpp('v_and_b32', b[p], vHp[p & 1], vMk[j], f'row_newbcast:{2*ks + (p >> 1)}')
        A(f'v_mfma_f32_16x16x32_bf16 {vD}, {vGu[8*j+4*ks:8*j+4*ks+4]}, {b}, {0 if k == 0 else vD}'); k += 1
LAB(sk)
for r in range(4): tagf(vD[r], vD[r], vTgb)
A(f's_mov_b32 exec_lo, {sCM}'); A(f's_mov_b32 exec_hi, {sCM}')
lstore([f'global_store_dwordx4 {aCst}, {vD}, {pLB}'])
set_exec(-1)
stamp(13)
vG = vXx
A(f's_cmp_ge_u32 {sU}, 14'); A('s_cbranch_scc1 L_A_zero')
if CFG['LK'] > 1: A('s_waitcnt vmcnt(1)')
ppoll(18, CFG['LK'], CFG['lgap'], lambda r: [f'global_load_dwordx4 {r}, {aCld}, {pLB} sc1'], 1, [r[0:4] for r in vXs], [vG[i] for i in range(4)], sT6b, TM)
tred4(vG)
dpp('v_add_f32', vG[0], vG[0], vG[0], 'row_ror:8')
rnd(vG[0], vG[0])
A(f'v_mul_f32 {vT0}, {sL2E}, {vG[0]}'); A(f'v_exp_f32 {vT0}, -{vT0}'); A(f'v_add_f32 {vT0}, 1.0, {vT0}'); A(f'v_rcp_f32 {vT0}, {vT0}'); rnd(vT0, vT0)
dpp('v_mul_f32', vT0, vG[0], vT0, 'row_ror:12')
A(f'v_mov_b32 {vT1}, {vT0}'); A(f'v_permlane32_swap_b32 {vT0}, {vT1}'); A(f'v_cvt_pk_bf16_f32 {vT0}, {vT0}, {vT1}')
A(f'v_mov_b32 {vT1}, {vT0}'); A(f'v_permlane16_swap_b32 {vT0}, {vT1}')
vHh = vSB
for rowm, q0 in ((0x5, 0), (0xa, 2)):
    dpp('v_mov_b32', vHh[0], vT0, None, f'row_newbcast:{q0}', row=rowm); dpp('v_mov_b32', vHh[1], vT1, None, f'row_newbcast:{q0}', row=rowm)
    dpp('v_mov_b32', vHh[2], vT0, None, f'row_newbcast:{q0+1}', row=rowm); dpp('v_mov_b32', vHh[3], vT1, None, f'row_newbcast:{q0+1}', row=rowm)
for jj in range(4):
    b = vBm[4*(jj & 1):4*(jj & 1)+4]
    for p in range(4): A(f'v_and_b32 {b[p]}, {vMd[jj]}, {vHh[p]}')
    A(f'v_mfma_f32_16x16x32_bf16 {vD}, {vDn[4*jj:4*jj+4]}, {b}, {0 if jj == 0 else vD}')
for r in range(4): tagf(vD[r], vD[r], vTgb)
LAB('L_A_pub')
set_exec(M_N8)
lstore([f'global_store_dwordx4 {aDst}, {vD}, {pLB}'])
set_exec(-1)
stamp(14)
LAB('L_A_end')
end_wave()
LAB('L_A_zero')
for r in range(4): A(f'v_mov_b32 {vD[r]}, {vTgb}')
A('s_branch L_A_pub')
LAB('L_A_vlate')
sk = nl('S')
A(f's_cmp_eq_u32 {sNV}, 1'); A(f's_cbranch_scc1 {sk}')
lds_wait(9, F_LP, MKA['V0'] + NO - 1, vT0)
for x in xreads(range(NO)): A(x)
LAB(sk)
A('s_waitcnt lgkmcnt(0)')
A(f'ds_read_b32 {vT2}, {vZ}')
for x in xreads(range(NO, 7)): A(x)
pvx(range(NO), [None] * NO)
A(f's_waitcnt lgkmcnt({2*(7 - NO)})')
sk = nl('S')
A(f'v_readfirstlane_b32 {sTMP}, {vT2}'); A(f's_cmp_ge_u32 {sTMP}, {MKA["V0"] + 6}'); A(f's_cbranch_scc1 {sk}')
lds_wait(50, F_LP, MKA['V0'] + 6, vT0)
for x in xreads(range(NO, 7)): A(x)
LAB(sk)
A(f'ds_read_b32 {vT2}, {vZ}')
for x in xreads([7]): A(x)
pvx(range(NO, 7), [3 + 2*(6 - c) for c in range(NO, 7)])
lp, ok = nl('W'), nl('OK')
A(f's_mov_b32 {sCNT}, {CFG["limit"]}')
LAB(lp)
A('s_waitcnt lgkmcnt(2)')
A(f'v_readfirstlane_b32 {sTMP}, {vT2}'); A(f's_cmp_ge_u32 {sTMP}, {MKA["V0"] + 7}'); A(f's_cbranch_scc1 {ok}')
A(f'ds_read_b32 {vT2}, {vZ}')
for x in xreads([7]): A(x)
fail_branch(51, lp)
LAB(ok)
pvx([7], [0])
A('s_branch L_A_pvdone')
vg_A = V.hi
LAB('L_A9')
V.release(mP)
aQld, aQw = V(), V(); vQs = [V(16) for _ in range(CFG['QK'])]; vQx = V(16); vQp = V(4)
A(f'v_lshlrev_b32 {aQld}, 4, {vL}'); A(f'v_add_u32 {aQld}, {Q_}, {aQld}')
A(f'v_lshrrev_b32 {vT0}, 5, {vL}'); A(f'v_mul_u32_u24 {vT0}, {QS}, {vT0}'); A(f'v_and_b32 {vT1}, 31, {vL}'); A(f'v_lshl_add_u32 {aQw}, {vT1}, 3, {vT0}'); A(f'v_add_u32 {aQw}, {QL}, {aQw}')
A('s_barrier')
epoch_wait()
pure_phase()
lds_wait(37, F_LP, MKA['K0'] + CFG['qstart'], vT0, sleep=1)
stamp(7)
ppoll(6, CFG['QK'], CFG['qgap'], lambda r: [f'global_load_dwordx4 {r[4*k:4*k+4]}, {aQld}, {pLB} offset:{1024*k} sc1' for k in range(4)], 4, vQs, [vQx[i] for i in range(16)], sT6, TM)
for i in range(8): A(f'v_add_f32 {vQx[i]}, {vQx[i]}, {vQx[8+i]}')
for i in range(4): A(f'v_cvt_pk_bf16_f32 {vQp[i]}, {vQx[2*i]}, {vQx[2*i+1]}')
A(f'ds_write_b64 {aQw}, {vQp[0:2]}'); A(f'ds_write_b64 {aQw}, {vQp[2:4]} offset:{2*QS}'); flag(F_Q)
stamp(8)
vMc = vQx[0:8]; vLc = V(8); vML4 = vQx[12:16]
A(f'v_lshlrev_b32 {vT3}, 5, {vC}'); A(f'v_add_u32 {vT3}, {MX}, {vT3}')
A(f's_lshl_b32 s56, {sU}, 6'); A(f's_add_u32 s56, s56, {MLG}'); A(f'v_lshl_add_u32 {vT2}, {vL}, 4, s56')
A(f'v_mov_b32 {vML4[2]}, {sE}'); A(f'v_mov_b32 {vML4[3]}, {sE}')
lds_wait(39, F_SF, 8, vT0, sleep=CFG['s9'])
A(f'ds_read_b128 {vMc[0:4]}, {vT3}'); A(f'ds_read_b128 {vMc[4:8]}, {vT3} offset:16'); A(f'ds_read_b128 {vLc[0:4]}, {vT3} offset:{LX - MX}'); A(f'ds_read_b128 {vLc[4:8]}, {vT3} offset:{LX - MX + 16}'); A(pure_read())
A('s_waitcnt lgkmcnt(0)'); pure_update()
A(f'v_max3_f32 {vML4[0]}, {vMc[0]}, {vMc[1]}, {vMc[2]}'); A(f'v_max3_f32 {vT0}, {vMc[3]}, {vMc[4]}, {vMc[5]}'); A(f'v_max3_f32 {vML4[0]}, {vML4[0]}, {vMc[6]}, {vMc[7]}'); A(f'v_max_f32 {vML4[0]}, {vML4[0]}, {vT0}')
for a, b in ((0, 1), (2, 3), (4, 5), (6, 7), (0, 2), (4, 6)): A(f'v_add_f32 {vLc[a]}, {vLc[a]}, {vLc[b]}')
A(f'v_add_f32 {vML4[1]}, {vLc[0]}, {vLc[4]}')
tagf(vML4[0], vML4[0], vTg); tagf(vML4[1], vML4[1], vTg)
set_exec(0xf)
lstore([f'global_store_dwordx4 {vT2}, {vML4}, {pLB}'])
set_exec(-1)
stamp(9)
aGa = vQs[1][0]; vG8 = vQs[0][0:8]; vGx8 = vQs[0][8:16]; vMod = vQs[1][2:4]; aMs = vQs[1][1]
A('s_waitcnt vmcnt(0)')
A(f's_lshr_b32 s56, {sU}, 1'); A('s_lshl_b32 s56, s56, 8'); A(f's_and_b32 s57, {sU}, 1'); A('s_lshl_b32 s57, s57, 7'); A('s_add_u32 s56, s56, s57'); A(f's_add_u32 s56, s56, {S_MR}')
A(f'v_lshlrev_b32 {aGa}, 11, {vQ}'); A(f'v_lshl_add_u32 {aGa}, {vN}, 2, {aGa}'); A(f'v_add_u32 {aGa}, s56, {aGa}')
A(f's_lshl_b32 s56, {sU}, 7'); A(f'v_lshl_add_u32 {aMs}, {vN}, 2, s56'); A(f'v_lshrrev_b32 {vT0}, 1, {vQ}'); A(f'v_lshl_add_u32 {aMs}, {vT0}, 11, {aMs}')
A(f'v_xor_b32 {vT0}, {vT0}, {vQ}'); A(f'v_and_b32 {vT0}, 1, {vT0}'); A(f'v_mov_b32 {vT1}, {GAB}'); A(f'v_mov_b32 {vT2}, {MV}'); A(f'v_cmp_eq_u32 vcc, 1, {vT0}'); A(f'v_cndmask_b32 {vT1}, {vT1}, {vT2}, vcc'); A(f'v_add_u32 {aMs}, {aMs}, {vT1}')
lp, ok = nl('P'), nl('OK')
A(f's_mov_b32 {sCNT}, {CFG["limit"]}')
LAB(lp)
for i in range(4):
    if i: A(f'v_add_u32 {vT0}, {8192*i}, {aGa}')
    A(f'global_load_dword {vG8[i]}, {vT0 if i else aGa}, {pWS} sc1'); A(f'global_load_dword {vG8[4+i]}, {vT0 if i else aGa}, {pWS} offset:64 sc1')
A('s_waitcnt vmcnt(0)')
check([vG8[i] for i in range(8)], [vGx8[i] for i in range(8)], sT6, TM, vCH)
A(f's_cbranch_vccz {ok}'); fail_branch(22, lp); LAB(ok)
A(f'v_cmp_eq_u32 vcc, 2, {vQ}')
for h in range(2):
    for a, b in ((0, 1), (2, 3), (0, 2)): A(f'v_add_f32 {vGx8[4*h+a]}, {vGx8[4*h+a]}, {vGx8[4*h+b]}')
    rnd(vMod[h], vGx8[4*h])
    A(f'v_add_f32 {vT0}, 1.0, {vMod[h]}'); rnd(vT0, vT0)
    A(f'v_cndmask_b32 {vMod[h]}, {vMod[h]}, {vT0}, vcc'); A(f'v_or_b32 {vMod[h]}, {sT16}, {vMod[h]}')
lstore([f'global_store_dword {aMs}, {vMod[0]}, {pLB}', f'global_store_dword {aMs}, {vMod[1]}, {pLB} offset:64'])
stamp(11)
end_wave()
vg_A = max(vg_A, V.hi)

LAB('L_W')
V.release(mP)
sRED = 's13'
A(f's_mov_b32 {sRED}, 0')
A(f's_cmp_eq_u32 {sWAVE}, 9'); A('s_cbranch_scc1 L_W9')
aWq, aH, aHw, aHr, aQst, aWo, aBst, aOb, v8qr, vXc = [V() for _ in range(10)]
vMk = V(4, 1)
A(f'v_lshl_add_u32 {v8qr}, {vQ}, 3, {vR}')
A(f's_and_b32 s54, {sU}, 7'); A(f's_lshr_b32 s55, {sU}, 3')
A(f'v_lshl_add_u32 {aWq}, {v8qr}, 7, {vC8}'); A(f'v_add_u32 {aWq}, {w5}, {aWq}')
A('s_lshl_b32 s56, s55, 10'); A(f'v_lshl_add_u32 {aH}, {vL}, 4, s56')
A(f's_lshl_b32 s58, {sWAVE}, 9'); A(f's_add_u32 s56, s58, {HL}'); A(f'v_lshl_add_u32 {aHw}, {vL}, 3, s56'); A(f'v_add_u32 {aHr}, s56, {vQ16}')
A('s_lshl_b32 s56, s55, 11'); A('s_lshl_b32 s57, s54, 8'); A('s_add_u32 s56, s56, s57'); A(f's_add_u32 s56, s56, {w6}'); A(f's_add_u32 s56, s56, {Q_}'); A(f'v_add_u32 {aQst}, s56, {vQ16}')
A(f'v_and_b32 {vT0}, 1, {vQ}'); A(f'v_lshl_add_u32 {vT0}, {vT0}, 2, {vR}'); A(f'v_lshlrev_b32 {vT0}, 5, {vT0}')
A(f'v_add_u32 {vT1}, {w7}, {vC8}'); A(f'v_xor_b32 {vT1}, {vT1}, {vT0}'); A(f'v_lshl_add_u32 {aWo}, {v8qr}, 10, {vT1}'); A(f'v_add_u32 {aWo}, {WO}, {aWo}')
A(f'v_add_u32 {aOb}, {OB}, {vQ16}')
A(f'v_lshl_add_u32 {vT0}, {vN}, 6, {vQ16}')
A(f's_lshl_b32 s57, {sU}, 11'); A(f's_add_u32 s57, s57, {B1}'); A(f's_add_u32 s56, s57, {w8}'); A(f'v_add_u32 {aBst}, s56, {vT0}')
for j in range(4):
    A(f'v_cmp_eq_u32 vcc, {j}, {vN}'); A(f'v_cndmask_b32 {vMk[j]}, 0, -1, vcc')
A('s_barrier')
epoch_wait()
stamp(1)
def probe():
    if CFG['near']:
        sk = nl('S')
        A(f's_cmp_eq_u32 {sWAVE}, 7'); A(f's_cbranch_scc0 {sk}')
        A(f's_lshl_b32 s56, {sU}, 3'); A(f's_add_u32 s56, s56, {sG}'); A('s_lshl_b32 s56, s56, 7'); A('s_and_b32 s57, s56, 0x2000'); A('s_add_u32 s56, s56, s57'); A(f's_add_u32 s56, s56, {PROBE}')
        A(f's_add_u32 s56, {lo(pWS)}, s56'); A(f's_addc_u32 s57, {hi(pWS)}, 0')
        A('s_mov_b32 s52, -1'); A('s_mov_b32 s53, -1')
        for rep in range(CFG['near']):
            for c in range(2):
                A('s_memtime s[84:85]'); A('s_waitcnt lgkmcnt(0)')
                A(f's_load_dword s54, s[56:57], {8192*c} glc'); A('s_waitcnt lgkmcnt(0)')
                A('s_memtime s[86:87]'); A('s_waitcnt lgkmcnt(0)')
                A('s_sub_u32 s54, s86, s84'); A(f's_min_u32 s{52+c}, s{52+c}, s54')
            A('s_cmp_lt_u32 s52, s53'); A('s_cselect_b32 s54, 1, 2'); A(f'v_mov_b32 {vT0}, s54'); A(f'ds_write_b32 {vZ}, {vT0} offset:{F_CP - FLG}')
        if CFG['stamps']: A('s_mov_b32 s88, s52'); A('s_mov_b32 s90, s53')
        stamp(2)
        LAB(sk)
A(f's_cmp_ge_u32 {sWAVE}, 4'); A('s_cbranch_scc0 L_W_03')
m = V.mark()
vSt = V()
A(f's_lshl_b32 s56, {sU}, 3'); A(f's_add_u32 s56, s56, {sG}'); A('s_lshl_b32 s56, s56, 8'); A(f's_add_u32 s56, s56, {w6}'); A(f's_add_u32 s56, s56, {S_MR - 256}'); A(f'v_add_u32 {vSt}, s56, {vQ16}')
mod_tile(MR, 4, lambda: None, vSt, MKW['MR'], M_N0, 21, 2, before_wait=probe)
set_exec(-1)
stamp(4)
A('s_branch L_W_att')
V.release(m)
LAB('L_W_03')
A(f's_sub_u32 s57, {sWAVE}, 1'); A('s_cmp_lt_u32 s57, 2'); A('s_cbranch_scc0 L_W_main')
A(f's_mov_b32 {sRED}, 1')
m = V.mark()
vWq = V(32); mH = V.mark()
vMean, vVar, vAd, vAd2, vHs = V(), V(), V(), V(), V(); vU = V(8); vRs = [V(4) for _ in range(CFG['G1K'])]; vSa, vCa = vU[0], vU[1]
A(f's_lshl_b32 {sSL}, {sU}, 1'); A(f's_add_u32 {sSL}, {sSL}, s57')
A(f's_lshl_b32 s56, {sSL}, 6'); A(f'v_lshl_add_u32 {vHs}, {vN}, 2, s56')
A(f's_and_b32 s56, {sSL}, 3'); A('s_lshl_b32 s56, s56, 6'); A(f's_lshr_b32 s57, {sSL}, 2'); A('s_lshl_b32 s57, s57, 8'); A('s_add_u32 s56, s56, s57'); A(f's_add_u32 s56, s56, {S_M}')
A(f'v_lshlrev_b32 {vT0}, 12, {vQ}'); A(f'v_and_b32 {vT1}, 0x2000, {vT0}'); A(f'v_add_u32 {vT0}, {vT0}, {vT1}'); A(f'v_lshlrev_b32 {vT1}, 2, {vN}'); A(f'v_add3_u32 {vAd}, {vT0}, {vT1}, s56'); A(f'v_add_u32 {vAd2}, 32768, {vAd}')
A('s_waitcnt vmcnt(0)')
for j in range(4):
    A(f'v_lshlrev_b32 {vU[2*j]}, 16, {vX[j]}'); A(f'v_and_b32 {vU[2*j+1]}, {sHI}, {vX[j]}')
A(f'v_add_f32 {vMean}, {vU[0]}, {vU[1]}')
for j in range(2, 8): A(f'v_add_f32 {vMean}, {vMean}, {vU[j]}')
row_allred('v_add_f32', [vMean]); xrow_allred('v_add_f32', vMean, vT0)
A(f'v_mul_f32 {vMean}, 0x3b000000, {vMean}')
for j in range(8): A(f'v_sub_f32 {vU[j]}, {vU[j]}, {vMean}')
A(f'v_mul_f32 {vVar}, {vU[0]}, {vU[0]}')
for j in range(1, 8): A(f'v_fmac_f32 {vVar}, {vU[j]}, {vU[j]}')
row_allred('v_add_f32', [vVar]); xrow_allred('v_add_f32', vVar, vT0)
A(f'v_mul_f32 {vVar}, 0x3b000000, {vVar}')
rnd(vMean, vMean); rnd(vVar, vVar)
A(f'v_add_f32 {vVar}, 0x3727c5ac, {vVar}'); rnd(vVar, vVar)
A(f'v_sqrt_f32 {vVar}, {vVar}'); rnd(vVar, vVar)
A(f'v_lshlrev_b32 {vXc}, 16, {vXd}'); A(f'v_sub_f32 {vXd}, {vXc}, {vMean}'); rnd(vXd, vXd)
A(f'v_rcp_f32 {vT0}, {vVar}'); A(f'v_mul_f32 {vT1}, {vXd}, {vT0}'); A(f'v_fma_f32 {vT2}, -{vT1}, {vVar}, {vXd}'); A(f'v_fma_f32 {vXd}, {vT2}, {vT0}, {vT1}')
rnd(vXd, vXd)
stamp(2)
mQ = V.mark()
def wq_read(vWq):
    lds_wait(3, F_LP, MKW['WQ'], vT0)
    for ks in range(8):
        A(f'ds_read_b64_tr_b16 {vWq[4*ks:4*ks+2]}, {aWq} offset:{WQ + ks*4096}'); A(f'ds_read_b64_tr_b16 {vWq[4*ks+2:4*ks+4]}, {aWq} offset:{WQ + ks*4096 + 512}')
        if ks == 3: A('s_waitcnt lgkmcnt(4)')
wq_read(vWq)
near_update(); A(f'v_add_u32 {vAd}, {sCP}, {vAd}'); A(f'v_add_u32 {vAd2}, {sCP}, {vAd2}')
ppoll(1, CFG['G1K'], CFG['ggap'], lambda r: [gld(r[0], vAd, 0, 'gat1'), gld(r[1], vAd, 2048, 'gat1'), gld(r[2], vAd2, 0, 'gat1'), gld(r[3], vAd2, 2048, 'gat1')], 4, vRs, [vU[i] for i in range(4)], sT6, TM, extra=[pure_read()])
stamp(3)
A(f'v_add_f32 {vSa}, {vSa}, {vU[2]}'); A(f'v_add_f32 {vCa}, {vCa}, {vU[3]}')
A(f'v_permlane32_swap_b32 {vSa}, {vCa}'); A(f'v_add_f32 {vSa}, {vSa}, {vCa}')
A(f'v_mov_b32 {vCa}, {vSa}'); A(f'v_permlane16_swap_b32 {vSa}, {vCa}'); A(f'v_add_f32 {vSa}, {vSa}, {vCa}')
rnd(vSa, vSa)
A(f'v_mov_b32 {vCa}, {vSa}'); A(f'v_permlane32_swap_b32 {vSa}, {vCa}')
A(f'v_add_f32 {vCa}, 1.0, {vCa}'); rnd(vCa, vCa)
A(f'v_mul_f32 {vCa}, {vXd}, {vCa}'); rnd(vCa, vCa)
A(f'v_add_f32 {vCa}, {vCa}, {vSa}'); rnd(vCa, vCa)
A(f'v_or_b32 {vCa}, {sT16}, {vCa}')
A('s_waitcnt lgkmcnt(0)'); pure_update()
set_exec(0xffff)
lstore([f'global_store_dword {vHs}, {vCa}, {pLB} offset:{H_}'])
set_exec(-1)
flag(F_G1)
A('s_branch L_W_q')
LAB('L_W_main')
A(f'global_load_dword {vDUM}, {aH}, {pLB} sc1')
wq_read(vWq)
stamp(4)
lds_wait(30, F_G1, 1, vT0, sleep=1)
LAB('L_W_q')
V.release(mH)
vHB = V(32); vAq = V(4); vHs2 = [V(4) for _ in range(CFG['LK'])]; vHx = V(4); vHp = V(2)
ppoll(4, CFG['LK'], CFG['lgap'], lambda r: [f'global_load_dwordx4 {r}, {aH}, {pLB} offset:{H_} sc1'], 1, vHs2, [vHx[i] for i in range(4)], sT16, 0xffff, extra=[pure_read()])
stamp(5)
A(f'v_perm_b32 {vHp[0]}, {vHx[1]}, {vHx[0]}, {sSEL}'); A(f'v_perm_b32 {vHp[1]}, {vHx[3]}, {vHx[2]}, {sSEL}')
A(f'ds_write_b64 {aHw}, {vHp}')
for ks in range(8): A(f'ds_read_b128 {vHB[4*ks:4*ks+4]}, {aHr} offset:{64*ks}')
for ks in range(8):
    A(f's_waitcnt lgkmcnt({7-ks})')
    if ks == 0: pure_update()
    A(f'v_mfma_f32_16x16x32_bf16 {vAq}, {vWq[4*ks:4*ks+4]}, {vHB[4*ks:4*ks+4]}, {0 if ks == 0 else vAq}')
for r in range(4): tagf(vAq[r], vAq[r], vTg)
set_exec(M_N0)
lstore([f'global_store_dwordx4 {aQst}, {vAq}, {pLB}'])
set_exec(-1)
flag(F_QP)
stamp(6)
A('s_waitcnt vmcnt(0)')
V.release(m)
A(f's_cmp_eq_u32 {sRED}, 1'); A('s_cbranch_scc0 L_W_att')
vRs = [V(4) for _ in range(4)]; vRx = V(4); vG2s, vG2l, vX2s, vOut, aR1, aGa, vMod, vGb, vMVs = [V() for _ in range(9)]; vG4 = V(4)
A(f's_lshl_b32 s57, {sSL}, 5'); A(f'v_lshl_add_u32 {vOut}, {vN}, 1, s57')
A(f'v_lshrrev_b32 {vT2}, 5, {vL}'); A(f'v_lshl_add_u32 {vG2s}, {vC}, 2, {vT2}'); A(f'v_and_b32 {vT2}, 1, {vQ}'); A(f'v_lshl_add_u32 {vG2s}, {vT2}, 1, {vG2s}')
vG3s, vG3l = V(), V()
A(f's_lshl_b32 s56, {sSL}, 10'); A('s_and_b32 s57, s56, 0xffffe000'); A('s_add_u32 s56, s56, s57')
A(f's_lshl_b32 s57, {sG}, 7'); A('s_add_u32 s57, s57, s56'); A(f'v_lshl_add_u32 {vG2s}, {vG2s}, 2, s57')
A(f'v_lshlrev_b32 {vG2l}, 7, {vQ}'); A(f'v_lshl_add_u32 {vG2l}, {vN}, 2, {vG2l}'); A(f'v_add_u32 {vG2l}, s56, {vG2l}')
A(f'v_and_b32 {vT2}, 1, {vR}'); A(f'v_lshl_add_u32 {vG2s}, {vT2}, 13, {vG2s}'); A(f'v_add_u32 {vG2s}, {G2}, {vG2s}')
A(f'v_add_u32 {vG3s}, {G3 - G2}, {vG2s}')
A(f's_lshl_b32 s56, {sSL}, 6'); A(f's_add_u32 s57, s56, {X2}'); A(f'v_lshl_add_u32 {vX2s}, {vN}, 2, s57')
if CFG['gpt'] == 1:
    set_exec(M_N8); A(f'global_load_dword {vDUM}, {vG2s}, {pWS}'); A(f'global_load_dword {vDUM}, {vG3s}, {pWS}'); set_exec(-1)
if CFG['gpt'] == 2:
    A(f'v_not_b32 {vT0}, {vTg}'); set_exec(M_N8); A(f'global_store_dword {vG2s}, {vT0}, {pWS} sc1'); A(f'global_store_dword {vG3s}, {vT0}, {pWS} sc1'); set_exec(-1)
A(f'v_lshrrev_b32 {vT2}, 2, {vL}'); A(f'v_lshlrev_b32 {aR1}, 11, {vT2}'); A(f'v_lshl_add_u32 {aR1}, {vC}, 4, {aR1}')
A(f's_lshl_b32 s56, {sSL}, 6'); A(f's_add_u32 s57, s56, {B1}'); A(f'v_add_u32 {aR1}, s57, {aR1}')
A(f's_add_u32 s57, s56, {GAB}'); A(f'v_lshl_add_u32 {aGa}, {vN}, 2, s57')
A(f'global_load_dword {vDUM}, {aR1}, {pLB} sc1'); A(f'global_load_dword {vDUM}, {aGa}, {pLB} sc1'); A(f'global_load_dword {vDUM}, {aGa}, {pLB} offset:2048 sc1')
lds_wait(46, F_WI, 1, vT0, sleep=1)
near_update()
A(f's_add_u32 s57, {sCP}, {G2}'); A(f'v_add_u32 {vG2l}, s57, {vG2l}'); A(f'v_add_u32 {vG3l}, {G3 - G2}, {vG2l}')
stamp(11)
LAB('L_W_att')
vWo = V(16); vOb = V(4); vBm = V(8); vD = V(4)
lds_wait(11, F_LP, MKW['WO'], vT0, sleep=1)
for j in range(4):
    A(f'v_xor_b32 {vT0}, {32*j}, {aWo}'); A(f'ds_read_b64_tr_b16 {vWo[4*j:4*j+2]}, {vT0}'); A(f'ds_read_b64_tr_b16 {vWo[4*j+2:4*j+4]}, {vT0} offset:4096')
A(pure_read())
A('s_waitcnt lgkmcnt(0)'); pure_update()
stamp(7)
A('s_barrier')
A(f'ds_read_b128 {vOb}, {aOb}')
A('s_waitcnt lgkmcnt(0)')
for j in range(4):
    b = vBm[4*(j & 1):4*(j & 1)+4]
    for p in range(4): A(f'v_and_b32 {b[p]}, {vMk[j]}, {vOb[p]}')
    A(f'v_mfma_f32_16x16x32_bf16 {vD}, {vWo[4*j:4*j+4]}, {b}, {0 if j == 0 else vD}')
for r in range(4): tagf(vD[r], vD[r], vTg)
set_exec(M_N4)
lstore([f'global_store_dwordx4 {aBst}, {vD}, {pLB}'])
set_exec(-1)
stamp(10)
A(f's_cmp_eq_u32 {sRED}, 1'); A('s_cbranch_scc0 L_W_end')
gab_loads = [f'global_load_dword {vG4[0]}, {aGa}, {pLB} sc1', f'global_load_dword {vG4[1]}, {aGa}, {pLB} offset:2048 sc1']
def reduce16(code, tag, vS_, mask, extra=()):
    ppoll(code, CFG['LK'], CFG['lgap'], lambda r: [f'global_load_dwordx4 {r}, {aR1}, {pLB} sc1'], 1, vRs, [vRx[i] for i in range(4)], tag, TM)
    for x in extra: A(x)
    tred4(vRx)
    row_allred('v_add_f32', [vRx[0]], (4, 8))
    tagf(vRx[0], vRx[0], vTg)
    set_exec(mask)
    A(f'global_store_dword {vS_}, {vRx[0]}, {pWS} sc1'); set_exec(-1)
def gather8(code, vG2l, n):
    if CFG['gd' + n]: A(f's_sleep {CFG["gd" + n]}')
    ppoll(code, CFG['GK' + n], CFG['ggap'], lambda r: [gld(r[0], vG2l, 0, 'gat' + n), gld(r[1], vG2l, 512, 'gat' + n)], 2, [r[0:2] for r in vRs], [vRx[0], vRx[1]], sT6, TM)
    A(f'v_add_f32 {vRx[0]}, {vRx[0]}, {vRx[1]}'); xrow_allred('v_add_f32', vRx[0], vT0)
    rnd(vRx[0], vRx[0])
reduce16(23, sT6, vG2s, M_N8 if CFG['rep'] else M_N4, gab_loads)
stamp(12)
gather8(24, vG2l, '2')
lp, ok = nl('P'), nl('OK')
check([vG4[0], vG4[1]], [vMod, vGb], sT16, 0xffff, vCH); A(f's_cbranch_vccz {ok}')
poll(52, gab_loads, [vG4[0], vG4[1]], [vMod, vGb], sT16, 0xffff, vCH)
LAB(ok)
stamp(13)
A(f'v_mul_f32 {vRx[0]}, {vMod}, {vRx[0]}'); rnd(vRx[0], vRx[0])
A(f'v_add_f32 {vXc}, {vXc}, {vRx[0]}'); rnd(vXc, vXc)
A(f'v_or_b32 {vT0}, {sT16}, {vXc}')
set_exec(0xffff)
lstore([f'global_store_dword {vX2s}, {vT0}, {pLB}'])
set_exec(-1)
reduce16(25, sT6b, vG3s, M_N8 if CFG['rep'] else M_N4)
stamp(14)
A(f's_and_b32 s56, {sSL}, 7'); A(f's_cmp_eq_u32 s56, {sG}'); A('s_cbranch_scc0 L_W_end')
gather8(26, vG3l, '3')
A(f'v_mul_f32 {vRx[0]}, {vGb}, {vRx[0]}'); rnd(vRx[0], vRx[0])
A(f'v_add_f32 {vXc}, {vXc}, {vRx[0]}'); A(f'v_cvt_pk_bf16_f32 {vXc}, {vXc}, {vXc}')
set_exec(0xffff); A(f'global_store_short {vOut}, {vXc}, {pOUT}')
A(f's_cmp_eq_u32 {sSL}, 0'); A('s_cbranch_scc0 L_W_end2')
set_exec(1); A(f'v_mov_b32 {vT0}, {EP}'); A(f'v_mov_b32 {vT1}, {sE}'); A(f'global_store_dword {vT0}, {vT1}, {pWS} sc1')
if CFG['ampm']:
    set_exec(-1)
    A(f'v_lshlrev_b32 {vT0}, 4, {vL}'); A(f'v_add_u32 {vT0}, 0x180000, {vT0}'); A(f'global_load_dwordx4 {vRs[0]}, {vT0}, {pWS} sc1'); A('s_waitcnt vmcnt(0)')
    op = 'v_min_u32' if CFG['ampm'] == 1 else 'v_max_u32'
    for i in range(1, 4): A(f'{op} {vRs[0][0]}, {vRs[0][0]}, {vRs[0][i]}')
    row_allred(op, [vRs[0][0]]); xrow_allred(op, vRs[0][0], vT0)
    A(f'v_readfirstlane_b32 s92, {vRs[0][0]}')
if CFG['amp']:
    A('s_memrealtime s[94:95]'); A('s_waitcnt lgkmcnt(0)'); A('s_sub_u32 s56, s94, s92')
    if CFG['ampe']: A('s_sub_u32 s57, s90, s92'); A(f's_mul_i32 s57, s57, {CFG["amp"]}'); A('s_add_u32 s56, s56, s57')
    else: A(f's_mul_i32 s56, s56, {1 + CFG["amp"]}')
    A('s_min_u32 s56, s56, 100000')
    LAB('L_amp'); A('s_memrealtime s[94:95]'); A('s_waitcnt lgkmcnt(0)'); A('s_sub_u32 s57, s94, s92'); A('s_cmp_lt_u32 s57, s56'); A('s_cbranch_scc1 L_amp')
LAB('L_W_end2')
set_exec(-1)
stamp(15)
LAB('L_W_end')
end_wave()

vg_W = V.hi
LAB('L_W9')
V.release(mP)
aML, aA1, aA2, aOw = V(), V(), V(), V(); vMr = V(8); vMx = V(4); vAs = [V(8) for _ in range(CFG['LK'])]; vAx = V(8); vW1, vW2 = V(), V()
A(f'v_lshrrev_b32 {vT0}, 3, {vL}'); A(f'v_and_b32 {vT1}, 7, {vL}')
A(f's_lshr_b32 s57, {sU}, 2'); A('s_lshl_b32 s56, s57, 4'); A(f's_add_u32 s56, s56, {MLG}'); A(f'v_lshl_add_u32 {aML}, {vT0}, 6, s56')
A('s_lshl_b32 s56, s57, 9'); A(f's_and_b32 s57, {sU}, 3'); A('s_lshl_b32 s57, s57, 7'); A('s_add_u32 s56, s56, s57'); A(f's_add_u32 s56, s56, {A_}')
A(f'v_lshlrev_b32 {aA1}, 11, {vT0}'); A(f'v_lshl_add_u32 {aA1}, {vT1}, 4, {aA1}'); A(f'v_add_u32 {aA1}, s56, {aA1}'); A(f'v_add_u32 {aA2}, 16384, {aA1}')
A(f'v_lshrrev_b32 {vT0}, 5, {vL}'); A(f'v_lshl_add_u32 {aOw}, {vT1}, 2, {vT0}'); A(f'v_and_b32 {vT0}, 1, {vQ}'); A(f'v_lshl_add_u32 {aOw}, {vT0}, 1, {aOw}'); A(f'v_lshlrev_b32 {aOw}, 1, {aOw}'); A(f'v_add_u32 {aOw}, {OB}, {aOw}')
A('s_barrier')
epoch_wait()
pure_phase()
lds_wait(35, F_QP, 1, vT0, sleep=2)
if not CFG['nogo']:
    if CFG['hall']:
        A(f'v_lshlrev_b32 {vT3}, 3, {vN}'); A(f'v_add_u32 {vT3}, {HINT}, {vT3}')
    else:
        A(f's_lshl_b32 s56, {sU}, 3'); A(f's_add_u32 s56, s56, {HINT}'); A(f'v_mov_b32 {vT3}, s56')
    lp, ok = nl('P'), nl('OK')
    A(f's_mov_b32 {sCNT}, {CFG["limit"]}')
    LAB(lp)
    A(f'global_load_dword {vT0}, {vT3}, {pLB} sc1'); A('s_waitcnt vmcnt(0)')
    A(f'v_cmp_ne_u32 vcc, {sE}, {vT0}'); A(f's_cbranch_vccz {ok}')
    fail_branch(44, lp)
    LAB(ok)
    flag(F_GO)
stamp(6)
A(f'global_load_dword {vDUM}, {aA1}, {pLB} sc1'); A(f'global_load_dword {vDUM}, {aA2}, {pLB} sc1'); A(f'global_load_dword {vDUM}, {aML}, {pLB} sc1'); A(f'global_load_dword {vDUM}, {aML}, {pLB} offset:512 sc1')
lds_wait(36, F_WI, 1, vT0, sleep=1)
stamp(7)
a_loads = lambda r: [f'global_load_dwordx4 {r[0:4]}, {aA1}, {pLB} sc1', f'global_load_dwordx4 {r[4:8]}, {aA2}, {pLB} sc1']
ml_loads = [f'global_load_dwordx4 {vMr[0:4]}, {aML}, {pLB} sc1', f'global_load_dwordx4 {vMr[4:8]}, {aML}, {pLB} offset:512 sc1']
def weights():
    A(f'v_max_f32 {vT0}, {vMx[0]}, {vMx[2]}'); row_allred('v_max_f32', [vT0], (8,)); xrow_allred('v_max_f32', vT0, vT1)
    A(f'v_sub_f32 {vW1}, {vMx[0]}, {vT0}'); A(f'v_sub_f32 {vW2}, {vMx[2]}, {vT0}'); A(f'v_mul_f32 {vW1}, {sL2E}, {vW1}'); A(f'v_mul_f32 {vW2}, {sL2E}, {vW2}')
    A(f'v_exp_f32 {vW1}, {vW1}'); A(f'v_exp_f32 {vW2}, {vW2}')
    A(f'v_mul_f32 {vT0}, {vW1}, {vMx[1]}'); A(f'v_fmac_f32 {vT0}, {vW2}, {vMx[3]}'); row_allred('v_add_f32', [vT0], (8,)); xrow_allred('v_add_f32', vT0, vT1)
    A(f'v_rcp_f32 {vT0}, {vT0}'); A(f'v_mul_f32 {vW1}, {vW1}, {vT0}'); A(f'v_mul_f32 {vW2}, {vW2}, {vT0}')
    stamp(8)
if CFG['mlb']:
    poll(12, ml_loads + a_loads(vAs[0]), [vMr[i] for i in (0, 1, 4, 5)] + [vAs[0][i] for i in range(8)], [vMx[i] for i in range(4)] + [vAx[i] for i in range(8)], sT6, TM, vCH, full=[vMr[i] for i in (2, 3, 6, 7)])
    weights()
else:
    poll(10, ml_loads, [vMr[i] for i in (0, 1, 4, 5)], [vMx[i] for i in range(4)], sT6, TM, vCH, full=[vMr[i] for i in (2, 3, 6, 7)])
    poll(12, a_loads(vAs[0]), [vAs[0][i] for i in range(8)], [vAx[i] for i in range(8)], sT6, TM, vCH, shadow=weights)
stamp(9)
for i in range(4): A(f'v_mul_f32 {vAx[i]}, {vW1}, {vAx[i]}')
for i in range(4): A(f'v_fmac_f32 {vAx[i]}, {vW2}, {vAx[4+i]}')
tred4(vAx)
dpp('v_add_f32', vAx[0], vAx[0], vAx[0], 'row_ror:8')
A(f'v_cvt_pk_bf16_f32 {vT0}, {vAx[0]}, {vAx[0]}')
A(f'ds_write_b16 {aOw}, {vT0}'); A('s_waitcnt lgkmcnt(0)'); A('s_barrier')
end_wave()
vg_W = max(vg_W, V.hi)

LAB('L_loader')
V = Alloc('v', 1, 64)
vO1, vT0, vT1, vLin, vZ, vMark, vX, vOne = [V() for _ in range(8)]; vKo = V(4, 1); vVo = V(2, 1)
adv = lambda p: [f's_add_u32 s{p}, s{p}, 4096', f's_addc_u32 s{p+1}, s{p+1}, 0', 's_add_u32 m0, m0, 4096']
pend = []
def post(mark, st):
    A(f'v_mov_b32 {vMark}, {mark}')
    if CFG['vgate'] < 8: set_exec(1); A(f'ds_max_u32 {vZ}, {vMark}'); set_exec(-1)
    else: A(f'ds_write_b32 {vZ}, {vMark}')
    if st.get(mark): stamp(st[mark])
def retire_to(n, st):
    while len(pend) > n:
        mk = pend.pop(0)
        if mk is not None or len(pend) == n:
            A(f's_waitcnt vmcnt({len(pend)})')
            if mk is not None: post(mk, st)
def run(items, st, bar):
    for win, pre, ins, mk in items:
        if len(pend) >= win:
            if not bar: stamp(1); A('s_barrier'); bar = True
            retire_to(win - 1, st)
        for x in pre: A(x)
        if isinstance(ins, tuple):
            A(f's_mov_b64 exec, {ins[0]}'); A(ins[1]); A('s_mov_b64 exec, -1')
        else: A(ins)
        pend.append(mk)
    return bar
A(f'v_mov_b32 {vZ}, {FLG}'); A(f'v_mov_b32 {vOne}, 1'); A(f'v_lshlrev_b32 {vLin}, 4, {vL}')
A(f's_cmp_ge_u32 {sT}, 16'); A('s_cbranch_scc1 L_loaderW')
setup = [f'v_lshrrev_b32 {vT0}, 4, {vL}', f'v_and_b32 {vT1}, 15, {vL}']
for m in range(4):
    setup += [f'v_add_u32 {vX}, {4*m}, {vT0}', f'v_xor_b32 {vX}, {vX}, {vT1}' if CFG['ksw'] else f'v_mov_b32 {vX}, {vT1}', f'v_lshlrev_b32 {vX}, 4, {vX}', f'v_lshl_add_u32 {vKo[m]}, {vT0}, 8, {vX}']
for m in range(2):
    setup += [f'v_add_u32 {vX}, {4*m}, {vT0}', f'v_lshlrev_b32 {vX}, 1, {vX}', f'v_xor_b32 {vX}, {vX}, {vT1}', f'v_lshlrev_b32 {vX}, 4, {vX}', f'v_lshl_add_u32 {vVo[m]}, {vT0}, 8, {vX}']
setup += [f's_lshl_b32 s56, {sG}, 22', f's_lshl_b32 s57, {sU}, {12 if CFG["kvi"] else 16}', 's_add_u32 s56, s56, s57', 's_add_u32 s56, s56, 0x300000',
          f's_add_u32 s62, {lo(pK)}, s56', f's_addc_u32 s63, {hi(pK)}, 0', f's_add_u32 s60, {lo(pV)}, s56', f's_addc_u32 s61, {hi(pV)}, 0']
if CFG['kvi']:
    def advk(p, c):
        d = 17 if CFG['kvi'] == 1 else 16
        if CFG['kvi'] == 2: return [f's_add_u32 s{p}, s{p}, 65536', f's_addc_u32 s{p+1}, s{p+1}, 0', 's_add_u32 m0, m0, 4096']
        return [f's_cmp_eq_u32 {sU}, {16 - c}', f's_cselect_b32 s56, 4096, s55', f's_add_u32 s{p}, s{p}, s56', f's_addc_u32 s{p+1}, s{p+1}, 0', 's_add_u32 m0, m0, 4096']
    setup += [f's_mov_b32 s55, {17*4096}']
else:
    advk = lambda p, c: adv(p)
sec = {}
sec['K'] = [[0, [f's_mov_b32 m0, {KK}'] if i == 0 else advk(62, i // 4) if i % 4 == 0 else [], f'global_load_lds_dwordx4 {vKo[i % 4]}, s[62:63] offset:{1024*(i % 4)}{NT}', MKA['K0'] + i // 8 if i % 8 == 7 else None] for i in range(64)]
sec['V'] = [[0, [f's_mov_b32 m0, {VV}'] if i == 0 else advk(60, i // 4) if i % 4 == 0 else [], f'global_load_lds_dwordx4 {vVo[i & 1]}, s[60:61] offset:{1024*(i % 4)}{NT}', MKA['V0'] + i // 8 if i % 8 == 7 else None] for i in range(64)]
items = [None] * 8 + sec['K'] + sec['V']
items[8][1] = setup + items[8][1]
for i, it in list(enumerate(items))[8:]: it[0] = CFG['WA0'] if i < CFG['WA0'] + CFG['NA0'] else CFG['WA']
stA = {MKA['K0'] + 7: 3, MKA['V0'] + 7: 4, MKA['M']: 2}
if CFG['trace']:
    stA = {MKA['M']: 2, MKA['K0'] + 1: 3, MKA['K0'] + 3: 4, MKA['K0'] + 5: 5, MKA['K0'] + 7: 6}
    stA.update({MKA['V0'] + i: 7 + i for i in range(8)})
hint_at = len(items) - 64 + 8 * CFG['hint']
def hint():
    A('s_waitcnt lgkmcnt(0)'); A(f's_add_u32 {sE}, {sE}, 1'); A(f'v_mov_b32 {vMark}, {sE}')
    A(f's_mul_i32 s53, {sG}, {LBS}'); A(f's_lshl_b32 s56, {sU}, 3'); A('s_add_u32 s53, s53, s56'); A(f's_add_u32 s53, s53, {LB0 + HINT}'); A(f'v_mov_b32 {vX}, s53')
items[8][1] = [f's_load_dword {sE}, {pWS}, {EP}'] + items[8][1]
n0 = 8 + CFG['X0']
pend += [None] * 7 + [MKA['M']]
run([(63, *x[1:]) for x in items[8:n0]], stA, True)
stamp(1); A('s_barrier')
retire_to(CFG['X0'], stA)
n1 = n0 + (CFG['mpw'] - 1 if CFG['mpw'] else 0)
run(items[n0:n1], stA, True)
if not CFG['only'] and CFG['mpw']: lds_wait(45, F_MP, 4, vT0)
gate_at = len(items) - 64 + 8 * CFG['vgate']
def do_hint():
    retire_to(min(len(pend), CFG['hret']), stA)
    hint()
    A(f'ds_read_b32 {vT0}, {vZ} offset:{F_PURE - FLG}'); A('s_waitcnt lgkmcnt(0)'); A(f'v_readfirstlane_b32 {sPURE}, {vT0}')
    set_exec(1)
    lstore([f'global_store_dword {vX}, {vMark}, {pWS}'])
    set_exec(-1)
    pend.append(None)
def do_gate():
    if CFG['only'] or CFG['vgate'] >= 8: return
    dn = nl('GD')
    marks = [(len(pend) - 1 - i, mk) for i, mk in enumerate(pend) if mk is not None]
    for left, mk in marks:
        A(f'ds_read_b32 {vT0}, {vZ} offset:{F_Q - FLG}'); A('s_waitcnt lgkmcnt(0)'); A(f'v_readfirstlane_b32 {sTMP}, {vT0}'); A(f's_cmp_eq_u32 {sTMP}, 1'); A(f's_cbranch_scc1 {dn}')
        A(f's_waitcnt vmcnt({left})'); post(mk, {})
    lds_wait(47, F_Q, 1, vT0)
    LAB(dn)
pos = n1
for at, fn in sorted([(gate_at, do_gate)] + ([] if CFG['nogo'] else [(hint_at + 0.5, do_hint)]), key=lambda x: x[0]):
    run(items[pos:int(at)], stA, True); pos = max(pos, int(at)); fn()
run(items[pos:], stA, True)
retire_to(0, stA)
A(f's_and_b32 s54, {sU}, 7'); A(f's_lshr_b32 s55, {sU}, 3')
items = []
vGx = V(4, 1)
for i in range(32):
    if i == 0:
        pre = [f'v_lshrrev_b32 {vT0}, 5, {vL}', f'v_and_b32 {vT1}, 31, {vL}', f'v_mul_u32_u24 {vO1}, 3584, {vT0}',
               f's_mul_i32 s56, s54, {64*3584}', f's_mul_i32 s57, {sG}, 448', 's_add_u32 s56, s56, s57', f'v_add_u32 {vO1}, s56, {vO1}']
        for v in range(4):
            f0 = 2 * (v & 1) + 4 * (v >> 1)
            pre += [f'v_add_u32 {vX}, {f0}, {vT0}', f'v_lshlrev_b32 {vX}, 1, {vX}', f'v_xor_b32 {vX}, {vX}, {vT1}' if CFG['gsw'] else f'v_mov_b32 {vX}, {vT1}',
                    f'v_cmp_gt_u32 s[{84+2*v}:{85+2*v}], 28, {vX}', f'v_lshl_add_u32 {vGx[v]}, {vX}, 4, {vO1}']
        pre += ['s_cmp_ge_u32 s55, 1', f's_cselect_b32 s58, {lo(pWU)}, {lo(pWG)}', f's_cselect_b32 s59, {hi(pWU)}, {hi(pWG)}', f's_mov_b32 m0, {GU}']
    else: pre = [f's_add_u32 s58, s58, {2*3584}', 's_addc_u32 s59, s59, 0', 's_add_u32 m0, m0, 1024']
    v = (i & 1) | (((i >> 2) & 1) << 1)
    items.append((CFG['WG'], pre, (f's[{84+2*v}:{85+2*v}]', f'global_load_lds_dwordx4 {vGx[v]}, s[58:59]{NT}'), MKA['GU'] if i == 31 else None))
for i in range(16):
    pre = []
    if i == 0: pre = [f's_min_u32 s57, {sU}, 13', f's_mul_i32 s56, {sG}, {224*1024}', 's_lshl_b32 s57, s57, 14', 's_add_u32 s56, s56, s57', f's_add_u32 s58, {lo(pWD)}, s56', f's_addc_u32 s59, {hi(pWD)}, 0', f's_mov_b32 m0, {DN}']
    elif i % 4 == 0: pre = adv(58)
    fd = ((i & 3) << 1) | ((i >> 3) & 1)
    pre = pre + [f'v_xor_b32 {vX}, {32*fd if CFG["gsw"] else 0}, {vLin}']
    items.append((CFG['WG'], pre, f'global_load_lds_dwordx4 {vX}, s[58:59] offset:{1024*(i % 4)}{NT}', MKA['DN'] if i == 15 else None))
for x in items[0][1]: A(x)
items[0] = (items[0][0], [], *items[0][2:])
if not CFG['only']:
    lds_wait(42, F_AP, 8, vT0, sleep=1)
if not CFG['trace']: stA.update({MKA['GU']: 7, MKA['DN']: 8})
run(items, stA, True)
retire_to(0, stA)
A('s_waitcnt lgkmcnt(0)')
end_wave()
LAB('L_loaderW')
A(f's_and_b32 s54, {sU}, 7'); A(f's_lshr_b32 s55, {sU}, 3')
stW = {MKW['WQ']: 2, MKW['MR']: 6, MKW['WO']: 5}
pend += [None] * 31 + [MKW['WQ']]
if CFG['pv']:
    assert CFG['kvi'] == 2
    A(f's_lshl_b32 s56, {sG}, 22'); A(f's_lshl_b32 s57, {sU}, 12'); A('s_add_u32 s56, s56, s57'); A(f's_add_u32 s56, s56, {0x300000 + (16 - CFG["pv"]) * 65536}')
    A(f's_add_u32 s60, {lo(pV)}, s56'); A(f's_addc_u32 s61, {hi(pV)}, 0'); A(f's_mov_b32 m0, {WO}')
    fl = '' if CFG['pvf'] == '-' else ' ' + CFG['pvf']
    for b in range(CFG['pv']):
        if b: A('s_add_u32 s60, s60, 65536'); A('s_addc_u32 s61, s61, 0')
        for i in range(4): A(f'global_load_lds_dwordx4 {vLin}, s[60:61] offset:{1024*i}{fl}'); pend.append(None)
    assert len(pend) <= 63
for x in [f'v_lshrrev_b32 {vT0}, 3, {vL}', f'v_and_b32 {vT1}, 7, {vL}', f'v_mul_u32_u24 {vO1}, 6144, {vT0}', f'v_lshl_add_u32 {vO1}, {vT1}, 4, {vO1}',
          f's_lshr_b32 s56, {sU}, 2', f's_mul_i32 s56, s56, {128*6144}', f's_and_b32 s57, {sU}, 3', 's_lshl_b32 s57, s57, 10', 's_add_u32 s56, s56, s57',
          f's_lshl_b32 s57, {sG}, 7', 's_add_u32 s56, s56, s57', 's_add_u32 s56, s56, 2048', f'v_add_u32 {vO1}, s56, {vO1}']: A(x)
stamp(1); A('s_barrier')
retire_to(0, stW)
if CFG['only'] == 'loaderA': end_wave()
if not CFG['only']: lds_wait(48, F_QP, 1, vT0, sleep=1)
run([(63, [f's_mov_b32 m0, {MR}'] if i == 0 else [f'v_add_u32 {vO1}, {8*6144}, {vO1}', 's_add_u32 m0, m0, 1024'], f'global_load_lds_dwordx4 {vO1}, {pWM}{NT}', MKW['MR'] if i == 15 else None) for i in range(16)], stW, True)
if not CFG['nogo']: retire_to(0, stW)
if CFG['only'] != 'loader' and not CFG['nogo']: lds_wait(41, F_GO, 1, vT0, sleep=1)
items = []
for i in range(32):
    pre = []
    if i == 0: pre = [f's_lshl_b32 s56, {sG}, 19', f's_lshl_b32 s57, {sU}, 15', 's_add_u32 s56, s56, s57', f's_add_u32 s58, {lo(pWO)}, s56', f's_addc_u32 s59, {hi(pWO)}, 0', f's_mov_b32 m0, {WO}']
    elif i % 4 == 0: pre = adv(58)
    f = (i & 3) | ((i >> 1) & 4)
    pre = pre + [f'v_xor_b32 {vX}, {32*f}, {vLin}']
    items.append((CFG['WO0'] if i < CFG['WO0'] + CFG['NO0'] else CFG['WO1'], pre, f'global_load_lds_dwordx4 {vX}, s[58:59] offset:{1024*(i % 4)}{NT}', MKW['WO'] if i == 31 else None))
run(items, stW, True)
flag(F_WI)
retire_to(0, stW)
if not CFG['only']: A('s_waitcnt lgkmcnt(0)'); A('s_barrier')
A('s_waitcnt lgkmcnt(0)')
end_wave()

for sl, ins, bk in slow_paths:
    LAB(sl)
    for x in ins: A(x)
    A(f's_branch {bk}')
LAB('L_fail')
if CFG['dbgfail']:
    set_exec(1)
    A(f'v_mov_b32 v1, 0x1ffff0'); A(f's_lshl_b32 s56, s2, 16'); A(f's_lshl_b32 s57, {sWAVE}, 8'); A('s_or_b32 s56, s56, s57'); A(f's_or_b32 s56, s56, {sTMP}'); A('v_mov_b32 v2, s56')
    A(f'global_store_dword v1, v2, {pWS} sc1')
    set_exec(-1)
if CFG['stamps']:
    LAB('L_stamps')
    A('s_waitcnt lgkmcnt(0)')
    A('v_mov_b32 v2, 0')
    for i in range(16): A(f'v_writelane_b32 v2, s{64+2*i}, {i}')
    A(f's_lshl_b32 s56, {sT}, 3'); A(f's_add_u32 s56, s56, {sG}'); A(f's_mul_i32 s56, s56, {NW}'); A(f's_add_u32 s56, s56, {sWAVE}'); A('s_lshl_b32 s56, s56, 6'); A(f's_add_u32 s56, s56, {STAMPS}')
    A('v_lshl_add_u32 v1, v0, 2, s56')
    set_exec(0xffff); A(f'global_store_dword v1, v2, {pWS}')
LAB('L_exit')
A('s_endpgm')
LAB('L_codeend')

body = pad_hazards(L)
vg = (max(vg_A, vg_W) + 7) // 8 * 8
hdr = open('cdna_kernels/' + KN + '.s.ref').read().split('; Override launch')[0]
name = KN + '_kernel'
txt = hdr + f"""; @launch grid=(256,1,1) block=({64*NW},1,1) lds={LDS_BYTES}
.amdgcn_target "amdgcn-amd-amdhsa--gfx950"
.text
.globl {name}
.p2align 8
.type {name},@function
{name}:
""" + '\n'.join(body) + f"""
.section .rodata,"a"
.p2align 6
.amdhsa_kernel {name}
  .amdhsa_next_free_vgpr {vg}
  .amdhsa_next_free_sgpr 100
  .amdhsa_accum_offset {vg}
  .amdhsa_group_segment_fixed_size 0
  .amdhsa_kernarg_size 112
  .amdhsa_user_sgpr_count 2
  .amdhsa_user_sgpr_kernarg_segment_ptr 1
  .amdhsa_system_sgpr_workgroup_id_x 1
  .amdhsa_float_denorm_mode_32 3
.end_amdhsa_kernel
"""
open(OUT, 'w').write(txt)
print('vgprs', vg_A, vg_W, 'lines', len(body), file=sys.stderr)
```

```python
import sys
from kasm import pad_hazards, Alloc, Reg

KN = 'adaLN_cond__sliding_block_cached__glu_gated_glu__decode'
CFG = dict(stamps=0, limit=2000000, pf=1, dbgfail=1, amp=0, ptries=40,
           WA0=28, NA0=0, WA=28, WO0=24, NO0=0, WO1=24, WG=32, nt=1, only='', early=0, QK=3, qgap=4, GK=1, ggap=2, LK=1, lgap=1,
           qstart=4, prio=0, mrpos=0, rep=1, hint=4, qh=1, qsl=0, HK=3, hgap=3, ksw=1, nogo=0, s9=1, ampe=0, wqd=0, ampm=0, pv=0, pvf='nt', mlb=0, fpre=1, vgate=8, trace=0, near=4, gat2=1, GK2=3, gd2=0, gat3=1, GK3=3, gd3=0, mrg=0, tlb=0, gat=1, gat1=0, G1K=1, gpt=0, mpt=0, gdly=0, gsw=1, mpw=1, hall=0, hret=63, kvi=1, ilv=0, X0=8, lprio=3, cprio=3)
CFG.update(WA0=48, WA=48, QK=4, qgap=8, qh=0, qstart=2, qsl=0, X0=4, hint=1, GK2=1, gd2=6, hall=1, WO0=32, WO1=32, WG=32, kvi=2, GK=3, ggap=4, gpt=2)
for a in sys.argv[2:]:
    k, v = a.split('=')
    assert k in CFG, k
    CFG[k] = int(v) if v.lstrip('-').isdigit() else v
OUT = sys.argv[1]

EP = 0; S_MR = 0x8000; S_M = 0x10000; G2 = 0x20000; G3 = 0x30000
LB0 = 0x40000; LBS = 0x18000
H_ = 0; MV = 0x800; X2 = 0x1800; MLG = 0x2000; GAB = 0x2400 + 0x4000; HINT = 0x2800; Q_ = 0x3000; A_ = 0x8000; B1 = 0x10000
PROBE = 0x110000
STAMPS = 0x200000
KK = 0; VV = 0x10000; MM = 0x20000; OL = 0x22000
GU = 0; DN = 0x8000
WQ = 0; WO = 0x8000; MR = 0x10000
SC = 0x26800
QL = SC; QS = 320; MX = SC + 0x600; LX = SC + 0x680; HL = SC; OB = SC + 0x800; FLG = SC + 0x900; CL = SC + 0xA00
OS = 576
F_LP = FLG; F_PF = FLG + 4; F_PURE = FLG + 52; F_G1 = FLG + 8; F_QP = FLG + 12; F_Q = FLG + 56; F_AP = FLG + 16; F_WI = FLG + 20; F_B1 = FLG + 24; F_O = FLG + 28; F_GA = FLG + 32; F_GO = FLG + 40; F_MP = FLG + 44; F_CP = FLG + 36; F_SF = FLG + 48; F_MX = FLG + 60
PB = OL; PBS = 256
LDS_BYTES = SC + 0xE00
NO = 5
NW = 10
sWAVE, sG, sT, sE, sT6, sT16, sT6b = 's3', 's4', 's5', 's6', 's7', 's8', 's9'
sU, sSL, sCNT, sTMP = 's10', 's11', 's14', 's15'
pX, pK, pV, pWQ, pWO, pBX, pWG, pWU, pWD, pC, pWM, pOUT, pDBG, pWS = [f's[{16+2*i}:{17+2*i}]' for i in range(14)]
pLB = 's[44:45]'; sPURE = 's46'; sMASK = 's47'; sSEL = 's48'; sHI = 's49'; sL2E = 's50'; sCM = 's12'; sCP = 's51'
def lo(p): return 's' + p[2:-1].split(':')[0]
def hi(p): return 's' + p[2:-1].split(':')[1]
TM = 0x3f

L = []
def A(x): L.append('    ' + x)
def LAB(x): L.append(x + ':')
uid = [0]
def nl(p='L'):
    uid[0] += 1; return f'{p}_{uid[0]}'
slow_paths = []
def stamp(i):
    if CFG['ampe'] == i and i: A('s_memrealtime s[90:91]')
    if CFG['stamps'] and (CFG['stamps'] >> i) & 1: A(f's_memrealtime s[{64+2*i}:{65+2*i}]')
def set_exec(mask):
    if mask == -1: A('s_mov_b64 exec, -1'); return
    l, h = mask & 0xffffffff, mask >> 32
    if h == 0 and l <= 64: A(f's_mov_b64 exec, {l}'); return
    A(f's_mov_b32 exec_lo, {l:#x}'); A(f's_mov_b32 exec_hi, {h:#x}')
M_N0 = 0x0001000100010001; M_N4 = 0x000F000F000F000F; M_N8 = 0x00FF00FF00FF00FF; M_N2 = 0x0003000300030003; M_Q0 = 0x1111111111111111
def rnd(d, s):
    A(f'v_cvt_pk_bf16_f32 {d}, {s}, {s}'); A(f'v_and_b32 {d}, {sHI}, {d}')
def dpp(op, d, a, b, ctl, bank=0xf, row=0xf):
    if b is None: A(f'{op}_dpp {d}, {a} {ctl} row_mask:{row:#x} bank_mask:{bank:#x}')
    else: A(f'{op}_dpp {d}, {a}, {b} {ctl} row_mask:{row:#x} bank_mask:{bank:#x}')
def row_allred(op, regs, shifts=(8, 4, 2, 1)):
    for sh in shifts:
        for r in regs: dpp(op, r, r, r, f'row_ror:{sh}')
def xrow_allred(op, v, t):
    A(f'v_mov_b32 {t}, {v}'); A(f'v_permlane16_swap_b32 {v}, {t}'); A(f'{op} {v}, {v}, {t}')
    A(f'v_mov_b32 {t}, {v}'); A(f'v_permlane32_swap_b32 {v}, {t}'); A(f'{op} {v}, {v}, {t}')
def tred4(v):
    A(f'v_permlane32_swap_b32 {v[0]}, {v[1]}'); A(f'v_permlane32_swap_b32 {v[2]}, {v[3]}')
    A(f'v_add_f32 {v[0]}, {v[0]}, {v[1]}'); A(f'v_add_f32 {v[2]}, {v[2]}, {v[3]}')
    A(f'v_permlane16_swap_b32 {v[0]}, {v[2]}'); A(f'v_add_f32 {v[0]}, {v[0]}, {v[2]}')
def fail_branch(code, loop):
    A(f's_sub_u32 {sCNT}, {sCNT}, 1'); A(f's_cbranch_scc0 {loop}')
    if CFG['dbgfail']: A(f's_mov_b32 {sTMP}, {code}')
    A('s_branch L_fail')
def check(raw, out, tag, maskbits, chk, full=()):
    for r, o in zip(raw, out): A(f'v_xor_b32 {o}, {tag}, {r}')
    o = list(out)
    if len(o) == 1: A(f'v_and_b32 {chk}, {maskbits:#x}, {o[0]}'); o = None
    elif len(o) == 2: A(f'v_or_b32 {chk}, {o[0]}, {o[1]}'); o = []
    else: A(f'v_or3_b32 {chk}, {o[0]}, {o[1]}, {o[2]}'); o = o[3:]
    if o is not None:
        while len(o) >= 2: A(f'v_or3_b32 {chk}, {chk}, {o[0]}, {o[1]}'); o = o[2:]
        if o: A(f'v_or_b32 {chk}, {chk}, {o[0]}')
        A(f'v_and_b32 {chk}, {maskbits:#x}, {chk}')
    for r in full: A(f'v_xor_b32 {r}, {sE}, {r}'); A(f'v_or_b32 {chk}, {chk}, {r}')
    A(f'v_cmp_ne_u32 vcc, 0, {chk}')
def poll(code, loads, raw, out, tag, maskbits, chk, full=(), shadow=None, sleep=0, issued=False):
    lp, ok, lw = nl('P'), nl('OK'), nl('PW')
    A(f's_mov_b32 {sCNT}, {CFG["limit"]}')
    if shadow or issued:
        if not issued:
            for x in loads: A(x)
        if shadow: shadow()
        A(f's_branch {lw}')
    LAB(lp)
    if sleep: A(f's_sleep {sleep}')
    for x in loads: A(x)
    LAB(lw)
    A('s_waitcnt vmcnt(0)')
    check(raw, out, tag, maskbits, chk, full)
    A(f's_cbranch_vccz {ok}')
    fail_branch(code, lp)
    LAB(ok)
def ppoll(code, K, gap, mk, nld, sets, out, tag, maskbits, extra=()):
    if K == 1:
        poll(code, mk(sets[0]) + list(extra), [sets[0][i] for i in range(sets[0].n)], out, tag, maskbits, vCH); return
    lp, ok = nl('PP'), nl('OK')
    A(f's_mov_b32 {sCNT}, {CFG["limit"]}')
    for k in range(K - 1):
        for x in mk(sets[k]): A(x)
        if gap: A(f's_sleep {gap}')
    LAB(lp)
    for k in range(K):
        for x in mk(sets[(k + K - 1) % K]): A(x)
        for x in extra: A(x)
        A(f's_waitcnt vmcnt({(K-1)*nld})')
        check([sets[k][i] for i in range(sets[k].n)], out, tag, maskbits, vCH)
        A(f's_cbranch_vccz {ok}')
    fail_branch(code, lp)
    LAB(ok)
def lds_wait(code, off, val, tmp, sleep=0, vaddr=None, spec=()):
    lp, ok, ag = nl('W'), nl('OK'), nl('AG')
    va = vaddr or vZ
    if spec:
        A(f'ds_read_b32 {tmp}, {va} offset:{off - FLG}')
        for x in spec: A(x)
        A(f's_waitcnt lgkmcnt({min(15, len(spec))})')
        A(f'v_readfirstlane_b32 {sTMP}, {tmp}'); A(f's_cmp_ge_u32 {sTMP}, {val}'); A(f's_cbranch_scc1 {ok}')
    A(f's_mov_b32 {sCNT}, {CFG["limit"]}')
    LAB(lp)
    A(f'ds_read_b32 {tmp}, {va} offset:{off - FLG}')
    A('s_waitcnt lgkmcnt(0)')
    A(f'v_readfirstlane_b32 {sTMP}, {tmp}')
    A(f's_cmp_ge_u32 {sTMP}, {val}')
    A(f's_cbranch_scc1 {ag}')
    if sleep: A(f's_sleep {sleep}')
    fail_branch(code, lp)
    LAB(ag)
    for x in spec: A(x)
    LAB(ok)
def lds_wait8(code, off, fl, reads):
    lp, ok, again = nl('W'), nl('OK'), nl('AG')
    def flags():
        A(f'ds_read_b128 {fl[0:4]}, {vZ} offset:{off - FLG}'); A(f'ds_read_b128 {fl[4:8]}, {vZ} offset:{off - FLG + 16}')
    def test():
        A(f'v_and_b32 {fl[0]}, {fl[0]}, {fl[1]}')
        for i in (2, 4, 6): A(f'v_bitop3_b32 {fl[0]}, {fl[0]}, {fl[i]}, {fl[i+1]} bitop3:0x80')
        A(f'v_cmp_eq_u32 vcc, 0, {fl[0]}')
    A(f's_mov_b32 {sCNT}, {CFG["limit"]}')
    LAB(lp)
    flags()
    for x in reads: A(x)
    A(f's_waitcnt lgkmcnt({min(15, len(reads))})')
    test()
    A(f's_cbranch_vccz {ok}')
    fail_branch(code, lp)
    LAB(ok)
def gld(d, a, off=0, key='gat'):
    o = f' offset:{off}' if off else ''
    if CFG[key]: return f'global_atomic_add {d}, {a}, {vZero}, {pWS}{o} sc0 sc1'
    return f'global_load_dword {d}, {a}, {pWS}{o} sc1'
def near_update():
    if not CFG['near']: return
    A(f'ds_read_b32 {vT0}, {vZ} offset:{F_CP - FLG}'); A('s_waitcnt lgkmcnt(0)'); A(f'v_readfirstlane_b32 s56, {vT0}')
    A('s_cmp_eq_u32 s56, 1'); A(f's_cselect_b32 {sCP}, 0, {sCP}'); A('s_cmp_eq_u32 s56, 2'); A(f's_cselect_b32 {sCP}, 0x2000, {sCP}')
def pure_read(): return f'ds_read_b32 {vPU}, {vZ} offset:{F_PURE - FLG}'
def pure_update(): A(f'v_readfirstlane_b32 {sPURE}, {vPU}')
def lstore(instrs):
    sl, bk = nl('SL'), nl('BK')
    A(f's_cmp_eq_u32 {sPURE}, 1'); A(f's_cbranch_scc0 {sl}')
    for x in instrs: A(x)
    LAB(bk)
    slow_paths.append((sl, [x + ' sc1' for x in instrs], bk))
def tagf(d, s, vtag): A(f'v_and_or_b32 {d}, {s}, {sMASK}, {vtag}')
def epoch_wait():
    A('s_waitcnt lgkmcnt(0)')
    A(f's_add_u32 {sE}, {sE}, 1')
    A(f's_and_b32 {sT6}, {sE}, {TM:#x}'); A(f's_and_b32 {sT16}, {sE}, 0xffff'); A(f's_xor_b32 {sT6b}, {sT6}, 0x20')
    A(f'v_mov_b32 {vTg}, {sT6}'); A(f'v_mov_b32 {vTgb}, {sT6b}')
def silu_bf(d, c, t1):
    A(f'v_mul_f32 {t1}, {sL2E}, {c}'); A(f'v_exp_f32 {t1}, -{t1}'); A(f'v_add_f32 {t1}, 1.0, {t1}'); A(f'v_rcp_f32 {t1}, {t1}'); A(f'v_mul_f32 {d}, {c}, {t1}')
def end_wave():
    if CFG['stamps']: A('s_branch L_stamps')
    else: A('s_endpgm')
def flag(off): A(f'ds_write_b32 {vZ}, {vOne} offset:{off - FLG}')
NT = ' nt' if CFG['nt'] else ''
vL = 'v0'
MKA = dict(M=1, K0=2, V0=10, GU=18, DN=19)
MKW = dict(WQ=1, MR=2, WO=3)

LAB('L_start')
stamp(0)
if CFG['amp']: A('s_memrealtime s[92:93]')
A('s_cmp_ge_u32 s2, 256'); A('s_cbranch_scc1 L_exit')
A('s_load_dwordx16 s[16:31], s[0:1], 0'); A('s_load_dwordx8 s[32:39], s[0:1], 64'); A('s_load_dwordx4 s[40:43], s[0:1], 96')
A('v_lshrrev_b32 v1, 6, v0'); A('v_and_b32 v0, 63, v0'); A(f'v_readfirstlane_b32 {sWAVE}, v1')
A(f's_and_b32 {sG}, s2, 7'); A(f's_lshr_b32 {sT}, s2, 3'); A(f's_and_b32 {sU}, {sT}, 15')
V = Alloc('v', 1, 168)
vN, vQ, vR, vC, vT0, vT1, vT2, vT3, vCH, vZ, vTg, vTgb, vPU, vOne, vC8, vQ16, vDUM, vZero = [V() for _ in range(18)]
vX = V(4); vXd = V()
mP = V.mark()
A(f's_cmp_lt_u32 {sWAVE}, 8'); A('s_cbranch_scc1 L_i_c')
A(f's_cmp_eq_u32 {sWAVE}, 9'); A('s_cbranch_scc0 L_i_8')
if CFG['pf']:
    A('s_getpc_b64 s[56:57]')
    LAB('L_pc')
    A('s_sub_u32 s56, s56, L_pc - L_start'); A('s_subb_u32 s57, s57, 0')
    A(f's_and_b32 s58, {sT}, 3'); A('s_lshl_b32 s58, s58, 13'); A(f'v_lshl_add_u32 {vT0}, {vL}, 7, s58'); A(f'v_min_u32 {vT0}, L_codeend - L_start - 4, {vT0}')
    A(f'global_load_dword {vDUM}, {vT0}, s[56:57]')
A('s_branch L_i_9')
LAB('L_i_8')
if CFG['lprio']: A(f's_setprio {CFG["lprio"]}')
A(f'v_lshrrev_b32 v2, 3, {vL}'); A(f'v_and_b32 v3, 7, {vL}'); A(f's_lshl_b32 s58, {sG}, 7')
A(f's_cmp_ge_u32 {sT}, 16'); A('s_cbranch_scc1 L_i_8W')
A('v_mul_u32_u24 v1, 6144, v2'); A(f's_lshr_b32 s56, {sU}, 1'); A(f's_mul_i32 s56, s56, {64*6144}'); A(f's_and_b32 s57, {sU}, 1'); A('s_lshl_b32 s57, s57, 10')
A('s_add_u32 s56, s56, s57'); A('s_add_u32 s56, s56, s58'); A(f's_mov_b32 m0, {MM}'); A(f's_mov_b32 s59, {8*6144}'); A('s_mov_b32 s60, 1')
A('s_waitcnt lgkmcnt(0)'); A(f's_mov_b64 s[62:63], {pWM}')
A('s_branch L_i_8go')
LAB('L_i_8W')
A('v_lshlrev_b32 v1, 13, v2'); A(f's_lshr_b32 s56, {sU}, 3'); A('s_lshl_b32 s56, s56, 21'); A(f's_and_b32 s57, {sU}, 7'); A('s_lshl_b32 s57, s57, 7')
A('s_add_u32 s56, s56, s57'); A('s_lshl_b32 s58, s58, 3'); A('s_add_u32 s56, s56, s58'); A(f's_mov_b32 m0, {WQ}'); A('s_mov_b32 s59, 65536'); A('s_mov_b32 s60, 4')
A('s_waitcnt lgkmcnt(0)'); A(f's_mov_b64 s[62:63], {pWQ}')
for k in range(CFG['wqd']): A(f's_load_dword {sE}, {pWS}, {EP + 4096*k}'); A('s_waitcnt lgkmcnt(0)')
LAB('L_i_8go')
A('v_lshl_add_u32 v1, v3, 4, v1'); A('v_add_u32 v1, s56, v1')
LAB('L_i_8loop')
for _ in range(8): A(f'global_load_lds_dwordx4 v1, s[62:63]{NT}'); A('s_add_u32 m0, m0, 1024'); A('v_add_u32 v1, s59, v1')
A('s_sub_u32 s60, s60, 1'); A('s_cmp_lg_u32 s60, 0'); A('s_cbranch_scc1 L_i_8loop')
A('s_branch L_loader')
LAB('L_i_c')
if CFG['only'].startswith('loader'):
    A('s_waitcnt lgkmcnt(0)'); A('s_barrier'); A('s_branch L_stamps')
A(f's_cmp_ge_u32 {sWAVE}, 4'); A('s_cbranch_scc0 L_i_03')
A(f's_lshr_b32 s56, {sU}, 2'); A('s_lshl_b32 s56, s56, 8'); A(f'v_lshl_add_u32 {vT2}, {vL}, 2, s56')
A('s_waitcnt lgkmcnt(0)')
A(f'global_load_dword {vXd}, {vT2}, {pC}')
A('s_branch L_i_done')
LAB('L_i_03')
A(f'v_lshlrev_b32 {vT0}, 4, {vL}')
A(f's_add_u32 s57, {sWAVE}, 1'); A('s_and_b32 s57, s57, 1'); A(f's_lshl_b32 s56, {sU}, 1'); A('s_add_u32 s56, s56, s57'); A('s_lshl_b32 s56, s56, 5')
A(f'v_and_b32 {vT1}, 15, {vL}'); A(f'v_lshl_add_u32 {vT1}, {vT1}, 1, s56')
A(f's_sub_u32 s57, {sWAVE}, 1'); A(f's_lshr_b32 s56, {sT}, 4'); A('s_xor_b32 s56, s56, 1'); A('s_lshl_b32 s56, s56, 1'); A('s_or_b32 s57, s57, s56')
A('s_waitcnt lgkmcnt(0)')
A('s_cmp_lt_u32 s57, 2'); A('s_cbranch_scc0 L_i_done')
A(f'global_load_dwordx4 {vX}, {vT0}, {pX}'); A(f'global_load_ushort {vXd}, {vT1}, {pX}')
A('s_branch L_i_done')
LAB('L_i_9')
if CFG['only'].startswith('loader'):
    A('s_waitcnt lgkmcnt(0)'); A('s_barrier'); A('s_branch L_stamps')
if CFG['cprio']: A(f's_setprio {CFG["cprio"]}')
A(f'v_lshlrev_b32 {vT1}, 2, {vL}'); A(f'v_add_u32 {vT1}, {FLG}, {vT1}'); A(f'v_mov_b32 {vT2}, 0')
set_exec(0xffffffff); A(f'ds_write_b32 {vT1}, {vT2}'); set_exec(-1)
A('s_getreg_b32 s52, hwreg(HW_REG_XCC_ID)'); A('s_and_b32 s52, s52, 15'); A('s_or_b32 s52, s52, 0x80')
A(f's_lshl_b32 s56, {sG}, 5'); A(f's_add_u32 s57, s56, {sT}'); A(f'v_mov_b32 {vT0}, s57'); A(f'v_mov_b32 {vT1}, s52')
A('s_waitcnt lgkmcnt(0)')
set_exec(1); A(f'global_store_byte {vT0}, {vT1}, {pDBG}')
if CFG['ampm']:
    A(f's_lshl_b32 s57, s57, 2'); A('s_add_u32 s57, s57, 0x180000'); A(f'v_mov_b32 {vT0}, s57'); A(f'v_mov_b32 {vT1}, s92'); A(f'global_store_dword {vT0}, {vT1}, {pWS} sc1')
set_exec(-1)
LAB('L_i_done')
A(f's_load_dword {sE}, {pWS}, {EP}')
A(f's_getreg_b32 {sCP}, hwreg(HW_REG_XCC_ID)'); A(f's_and_b32 {sCP}, {sCP}, {4 if CFG["rep"] else 0}'); A(f's_lshl_b32 {sCP}, {sCP}, 11')
A(f's_mov_b32 {sMASK}, {0xffffffff ^ TM:#x}'); A(f's_mov_b32 {sSEL}, 0x07060302'); A(f's_mov_b32 {sHI}, 0xffff0000'); A(f's_mov_b32 {sL2E}, 0x3fb8aa3b'); A(f's_mov_b32 {sPURE}, 0')
A(f's_mul_i32 s53, {sG}, {LBS}'); A(f's_add_u32 s53, s53, {LB0}'); A(f's_add_u32 {lo(pLB)}, {lo(pWS)}, s53'); A(f's_addc_u32 {hi(pLB)}, {hi(pWS)}, 0')
A(f'v_mov_b32 {vZ}, {FLG}'); A(f'v_mov_b32 {vOne}, 1'); A(f'v_mov_b32 {vZero}, 0')
A(f'v_and_b32 {vN}, 15, {vL}'); A(f'v_lshrrev_b32 {vQ}, 4, {vL}'); A(f'v_bfe_u32 {vR}, {vL}, 2, 2'); A(f'v_and_b32 {vC}, 3, {vL}')
A(f'v_lshlrev_b32 {vC8}, 3, {vC}'); A(f'v_lshlrev_b32 {vQ16}, 4, {vQ}')
w2, w5, w6, w7, w8 = 's59', 's60', 's61', 's62', 's63'
A(f's_lshl_b32 {w2}, {sWAVE}, 2'); A(f's_lshl_b32 {w5}, {sWAVE}, 5'); A(f's_lshl_b32 {w6}, {sWAVE}, 6'); A(f's_lshl_b32 {w7}, {sWAVE}, 7'); A(f's_lshl_b32 {w8}, {sWAVE}, 8')

def pure_phase():
    lp, dn = nl('PP'), nl('PD')
    A('s_mul_i32 s52, s52, 0x01010101'); A(f'v_and_b32 {vT1}, 7, {vL}'); A(f's_lshl_b32 s56, {sG}, 5'); A(f'v_lshl_add_u32 {vT1}, {vT1}, 2, s56')
    A(f's_mov_b32 {sCNT}, {CFG["ptries"]}')
    LAB(lp)
    A(f'global_load_dword {vT0}, {vT1}, {pDBG} sc1'); A('s_waitcnt vmcnt(0)')
    A(f'v_cmp_ne_u32 vcc, s52, {vT0}'); A(f's_cbranch_vccz {lp}_ok')
    A(f's_sub_u32 {sCNT}, {sCNT}, 1'); A(f's_cbranch_scc0 {lp}'); A(f's_branch {dn}')
    LAB(lp + '_ok')
    flag(F_PURE)
    LAB(dn)
    stamp(2)

A(f's_cmp_ge_u32 {sT}, 16'); A('s_cbranch_scc1 L_W')
A(f's_cmp_eq_u32 {sWAVE}, 9'); A('s_cbranch_scc1 L_A9')
aK = V(4, 1); aQB, aMw, aMr, aVx, aPw, aPr, aAst = [V() for _ in range(7)]
A(f's_lshl_b32 s58, {sWAVE}, 13')
A(f'v_xor_b32 {vT0}, {vQ}, {vN}'); A(f'v_lshlrev_b32 {vT0}, 4, {vT0}'); A(f'v_lshl_add_u32 {vT0}, {vN}, 8, {vT0}'); A(f'v_add_u32 {aK[0]}, s58, {vT0}')
for ks in range(1, 4): A(f'v_xor_b32 {aK[ks]}, {64*ks}, {aK[0]}')
A(f'v_mul_u32_u24 {aQB}, {QS}, {vC}'); A(f'v_add3_u32 {aQB}, {aQB}, {vQ16}, {vZ}'); A(f'v_add_u32 {aQB}, {QL - FLG}, {aQB}')
A(f'v_lshlrev_b32 {aMr}, 5, {vC}'); A(f'v_add_u32 {aMr}, {MX}, {aMr}'); A(f'v_add_u32 {aMw}, {w2}, {aMr}')
A(f'v_lshl_add_u32 {vT0}, {vQ}, 2, {vR}'); A(f'v_and_b32 {vT1}, 7, {vT0}'); A(f'v_lshl_add_u32 {aVx}, {vT0}, 8, {vC8}'); A(f'v_lshl_add_u32 {aVx}, {vT1}, 5, {aVx}')
A(f'v_xor_b32 {aVx}, {w5}, {aVx}'); A(f'v_add_u32 {aVx}, {VV}, {aVx}')
A(f'v_lshl_add_u32 {vT2}, {vC}, 6, {vQ16}'); A(f's_add_u32 s56, {w8}, {PB}'); A(f'v_lshl_add_u32 {aPw}, {vR}, 2, {vT2}'); A(f'v_add_u32 {aPw}, s56, {aPw}')
A(f'v_add_u32 {aPr}, {PB}, {vT2}')
A(f's_lshl_b32 s57, {sU}, 11'); A(f's_add_u32 s56, s57, {w6}'); A(f's_add_u32 s56, s56, {A_}')
A(f'v_lshl_add_u32 {aAst}, {vC}, 9, {vQ16}'); A(f'v_add_u32 {aAst}, s56, {aAst}')
A('s_barrier')
epoch_wait()
stamp(1)
A(f's_cmp_ge_u32 {sWAVE}, 4'); A('s_cbranch_scc0 L_A_main')
def mod_tile(base, nks, koff_expr, vSt, mark, mask, code, sleep, before_wait=None):
    vCc = V(4 * nks); vMa = V(4 * nks); vD = V(4); aM, aC = V(), V()
    A(f's_sub_u32 s56, {w8}, {1024 - CL}'); A(f'v_lshl_add_u32 {vT2}, {vL}, 2, s56'); koff_expr(); A(f'v_add_u32 {aC}, s56, {vQ16}')
    A(f's_sub_u32 s56, {w5}, {128 - base}'); A(f'v_lshl_add_u32 {aM}, {vQ}, 3, {vR}'); A(f'v_lshl_add_u32 {aM}, {aM}, 7, {vC8}'); A(f'v_add_u32 {aM}, s56, {aM}')
    A('s_waitcnt vmcnt(0)')
    A(f'v_lshlrev_b32 {vX[0]}, 16, {vXd}'); A(f'v_and_b32 {vX[1]}, {sHI}, {vXd}')
    silu_bf(vX[0], vX[0], vT0); silu_bf(vX[1], vX[1], vT1)
    A(f'v_cvt_pk_bf16_f32 {vXd}, {vX[0]}, {vX[1]}')
    A(f'ds_write_b32 {vT2}, {vXd}')
    for ks in range(nks): A(f'ds_read_b128 {vCc[4*ks:4*ks+4]}, {aC} offset:{64*ks}')
    if before_wait: before_wait()
    reads = [x for ks in range(nks) for x in (f'ds_read_b64_tr_b16 {vMa[4*ks:4*ks+2]}, {aM} offset:{4096*ks}', f'ds_read_b64_tr_b16 {vMa[4*ks+2:4*ks+4]}, {aM} offset:{4096*ks + 512}')]
    lds_wait(code, F_LP, mark, vT0, spec=reads, sleep=sleep)
    for ks in range(nks):
        A(f's_waitcnt lgkmcnt({2*(nks-1-ks)})')
        A(f'v_mfma_f32_16x16x32_bf16 {vD}, {vMa[4*ks:4*ks+4]}, {vCc[4*ks:4*ks+4]}, {0 if ks == 0 else vD}')
    for r in range(4): tagf(vD[r], vD[r], vTg)
    set_exec(mask); A(f'global_store_dwordx4 {vSt}, {vD}, {pWS} sc1')
m = V.mark()
vSt = V()
A(f's_lshl_b32 s56, {sU}, 3'); A(f's_add_u32 s56, s56, {sG}'); A('s_lshl_b32 s56, s56, 8'); A(f's_add_u32 s56, s56, {w6}'); A(f's_sub_u32 s56, s56, 256')
A('s_and_b32 s57, s56, 0xffffe000'); A('s_add_u32 s56, s56, s57'); A(f's_add_u32 s56, s56, {S_M}'); A(f'v_lshl_add_u32 {vSt}, {vN}, 13, {vQ16}'); A(f'v_add_u32 {vSt}, s56, {vSt}')
mod_tile(MM, 2, lambda: (A(f's_and_b32 s57, {sU}, 2'), A('s_lshl_b32 s57, s57, 6'), A('s_add_u32 s56, s56, s57')), vSt, MKA['M'], M_N2, 20, 0)
set_exec(1); A(f'ds_add_u32 {vZ}, {vOne} offset:{F_MP - FLG}'); set_exec(-1)
stamp(3)
V.release(m)
LAB('L_A_main')
mA = V.mark()
vK = V(32); vV = V(32); vQB = V(16); vS = V(8); vP = V(); vM, vLs = V(), V()
A(f's_add_u32 s57, {sWAVE}, {MKA["K0"]}')
lds_wait(5, F_LP, 's57', vT0, sleep=1)
for T in range(2):
    for ks in range(4): A(f'ds_read_b128 {vK[16*T+4*ks:16*T+4*ks+4]}, {aK[ks]} offset:{4096*T}')
stamp(7)
xreads = lambda cs: [x for c in cs for x in (f'ds_read_b64_tr_b16 {vV[4*c:4*c+2]}, {aVx} offset:{8192*c}', f'ds_read_b64_tr_b16 {vV[4*c+2:4*c+4]}, {aVx} offset:{8192*c + 4096}')]
sNV = 's13'
A(f's_mov_b32 {sNV}, 0'); A(f's_mov_b32 s58, {MKA["V0"] + NO - 1}')
lp, ok, nv, n2 = nl('W'), nl('OK'), nl('NV'), nl('N2')
A(f's_mov_b32 {sCNT}, {CFG["limit"]}')
LAB(lp)
A(f'ds_read_b32 {vT1}, {vZ} offset:{F_Q - FLG}'); A(f'ds_read_b32 {vT2}, {vZ} offset:{F_LP - FLG}')
A('s_waitcnt lgkmcnt(0)')
A(f'v_readfirstlane_b32 {sTMP}, {vT1}'); A(f'v_readfirstlane_b32 s56, {vT2}')
A(f's_cmp_eq_u32 {sTMP}, 1'); A(f's_cbranch_scc1 {ok}')
A('s_cmp_ge_u32 s56, s58'); A(f's_cbranch_scc0 {nv}')
A(f's_cmp_eq_u32 {sNV}, 0'); A(f's_cbranch_scc0 {n2}')
for x in xreads(range(NO)): A(x)
A(f's_mov_b32 {sNV}, 1'); A(f's_mov_b32 s58, {MKA["V0"] + 7}'); A(f's_branch {nv}')
LAB(n2)
for x in xreads(range(NO, 8)): A(x)
A(f's_mov_b32 {sNV}, 2'); A('s_mov_b32 s58, 99')
LAB(nv)
fail_branch(7, lp)
LAB(ok)
for ks in range(4): A(f'ds_read_b128 {vQB[4*ks:4*ks+4]}, {aQB} offset:{64*ks}')
A(pure_read())
stamp(8)
for ks in range(4):
    A(f's_waitcnt lgkmcnt({4-ks})')
    for T in range(2): A(f'v_mfma_f32_16x16x32_bf16 {vS[4*T:4*T+4]}, {vK[16*T+4*ks:16*T+4*ks+4]}, {vQB[4*ks:4*ks+4]}, {0 if ks == 0 else vS[4*T:4*T+4]}')
A('s_waitcnt lgkmcnt(0)'); pure_update()
A('s_mov_b32 s56, 0x3db504f3')
for k in (1, 2, 3):
    dpp('v_mov_b32', vS[0], vS[2*k], None, 'quad_perm:[0,1,2,3]', 1 << k); dpp('v_mov_b32', vS[1], vS[2*k+1], None, 'quad_perm:[0,1,2,3]', 1 << k)
A(f'v_cvt_pk_bf16_f32 {vP}, {vS[0]}, {vS[1]}'); A(f'v_lshlrev_b32 {vS[0]}, 16, {vP}'); A(f'v_and_b32 {vS[1]}, {sHI}, {vP}')
A(f'v_mul_f32 {vS[0]}, s56, {vS[0]}'); A(f'v_mul_f32 {vS[1]}, s56, {vS[1]}')
A(f'v_cvt_pk_bf16_f32 {vP}, {vS[0]}, {vS[1]}'); A(f'v_lshlrev_b32 {vS[0]}, 16, {vP}'); A(f'v_and_b32 {vS[1]}, {sHI}, {vP}')
A(f'v_max_f32 {vM}, {vS[0]}, {vS[1]}'); row_allred('v_max_f32', [vM], (4, 8)); xrow_allred('v_max_f32', vM, vT0)
set_exec(0xf); A(f'ds_write_b32 {aMw}, {vM}'); set_exec(1); A(f'ds_add_u32 {vZ}, {vOne} offset:{F_MX - FLG}'); set_exec(-1)
vMc = vQB[0:8]; vFg = vQB[8:10]; vPp = vK; vO = vQB[12:16]
lp, ok = nl('W'), nl('OK')
A(f's_mov_b32 {sCNT}, {CFG["limit"]}')
LAB(lp)
A(f'ds_read_b32 {vT1}, {vZ} offset:{F_MX - FLG}'); A(f'ds_read_b128 {vMc[0:4]}, {aMr}'); A(f'ds_read_b128 {vMc[4:8]}, {aMr} offset:16')
A('s_waitcnt lgkmcnt(2)')
A(f'v_cmp_ne_u32 vcc, 8, {vT1}'); A(f's_cbranch_vccz {ok}')
fail_branch(58, lp)
LAB(ok)
A('s_waitcnt lgkmcnt(0)')
A(f'v_max3_f32 {vM}, {vMc[0]}, {vMc[1]}, {vMc[2]}'); A(f'v_max3_f32 {vT0}, {vMc[3]}, {vMc[4]}, {vMc[5]}'); A(f'v_max3_f32 {vM}, {vM}, {vMc[6]}, {vMc[7]}'); A(f'v_max_f32 {vM}, {vM}, {vT0}')
A(f'v_mul_f32 {vT1}, {sL2E}, {vM}')
for i in range(2): A(f'v_fma_f32 {vS[i]}, {vS[i]}, {sL2E}, -{vT1}')
for i in range(2): A(f'v_exp_f32 {vS[i]}, {vS[i]}')
A(f'v_cvt_pk_bf16_f32 {vP}, {vS[0]}, {vS[1]}')
A(f'ds_write_b32 {aPw}, {vP}')
set_exec(1); A(f'ds_add_u32 {vZ}, {vOne} offset:{F_PF - FLG}'); set_exec(-1)
stamp(9)
A(f'v_add_f32 {vLs}, {vS[0]}, {vS[1]}'); row_allred('v_add_f32', [vLs], (4, 8)); xrow_allred('v_add_f32', vLs, vT3)
set_exec(0xf); A(f'ds_write_b32 {aMw}, {vLs} offset:{LX - MX}'); set_exec(1); A(f'ds_add_u32 {vZ}, {vOne} offset:{F_SF - FLG}'); set_exec(-1)
lp, ok = nl('W'), nl('OK')
A(f's_mov_b32 {sCNT}, {CFG["limit"]}')
LAB(lp)
A(f'ds_read_b64 {vFg}, {vZ}')
A('s_waitcnt lgkmcnt(0)')
A(f'v_cmp_ne_u32 vcc, 8, {vFg[1]}'); A(f's_cbranch_vccz {ok}')
fail_branch(8, lp)
LAB(ok)
for c in range(8): A(f'ds_read_b128 {vPp[4*c:4*c+4]}, {aPr} offset:{256*c}')
stamp(10)
def pvx(cs, waits):
    for i, c in enumerate(cs):
        if waits[i] is not None: A(f's_waitcnt lgkmcnt({waits[i]})')
        A(f'v_mfma_f32_16x16x32_bf16 {vO}, {vV[4*c:4*c+4]}, {vPp[4*c:4*c+4]}, {0 if c == 0 else vO}')
A(f's_cmp_eq_u32 {sNV}, 2'); A('s_cbranch_scc0 L_A_vlate')
pvx(range(8), [7 - c for c in range(8)])
LAB('L_A_pvdone')
for r in range(4): tagf(vO[r], vO[r], vTg)
set_exec(M_N4)
lstore([f'global_store_dwordx4 {aAst}, {vO}, {pLB}'])
set_exec(1); A(f'ds_add_u32 {vZ}, {vOne} offset:{F_AP - FLG}'); set_exec(-1)
stamp(11)
A(f's_cmp_ge_u32 {sWAVE}, 4'); A('s_cbranch_scc1 L_A_end')
V.release(mP)
aDst, aMV, aX2, aX2b, aGu, aDn, aCst, aCld, v8qr = [V() for _ in range(9)]
vMk = V(4, 1); vMd = V(4, 1)
A(f'v_lshl_add_u32 {v8qr}, {vQ}, 3, {vR}')
A(f's_and_b32 s54, {sU}, 7'); A(f's_lshl_b32 s58, {sWAVE}, 9')
A(f'v_lshl_add_u32 {vT0}, {vN}, 6, {vQ16}')
A(f's_lshl_b32 s57, {sU}, 11'); A(f's_add_u32 s57, s57, {B1}'); A('s_add_u32 s56, s57, s58'); A(f'v_add_u32 {aDst}, s56, {vT0}')
A(f's_lshl_b32 s56, {sU}, 10'); A(f's_add_u32 s56, s56, {w8}'); A(f's_add_u32 s56, s56, {A_}'); A(f'v_add_u32 {aCst}, s56, {vT0}')
A(f'v_lshlrev_b32 {vT0}, 4, {vR}'); A(f'v_and_b32 {vT1}, 2, {vL}'); A(f'v_lshl_add_u32 {vT0}, {vT1}, 2, {vT0}'); A(f'v_lshl_add_u32 {vT0}, {vQ}, 1, {vT0}'); A(f'v_and_b32 {vT1}, 1, {vL}'); A(f'v_add_u32 {vT0}, {vT0}, {vT1}')
A('s_lshl_b32 s56, s54, 8'); A(f'v_lshl_add_u32 {vT0}, {vT0}, 4, s56'); A(f'v_and_b32 {vT0}, 2047, {vT0}')
A(f'v_add_u32 {aX2}, {X2}, {vT0}'); A(f'v_add_u32 {aMV}, {MV}, {vT0}'); A(f'v_xor_b32 {vT0}, 1024, {vT0}'); A(f'v_add_u32 {aX2b}, {X2}, {vT0}')
A(f'v_and_b32 {vT0}, 1, {vQ}'); A(f'v_lshl_add_u32 {vT0}, {vT0}, 2, {vR}'); A(f'v_lshlrev_b32 {vT0}, 5, {vT0}'); A(f'v_add_u32 {vT1}, {w7}, {vC8}')
if CFG['gsw']: A(f'v_xor_b32 {vT1}, {vT1}, {vT0}')
A(f'v_lshl_add_u32 {aGu}, {v8qr}, 9, {vT1}'); A(f'v_add_u32 {aGu}, {GU}, {aGu}')
A(f'v_and_b32 {vT0}, 1, {vQ}'); A(f'v_lshl_add_u32 {vT0}, {vT0}, 3, {vR}'); A(f'v_lshl_add_u32 {aDn}, {vT0}, 10, {vC8}'); A(f'v_lshrrev_b32 {vT1}, 1, {vQ}'); A(f'v_lshl_add_u32 {aDn}, {vT1}, 5, {aDn}')
A(f's_add_u32 s56, {w8}, {DN}'); A(f'v_add_u32 {aDn}, s56, {aDn}')
if CFG['gsw']:
    A(f'v_and_b32 {vT0}, 1, {vQ}'); A(f'v_lshl_add_u32 {vT0}, {vR}, 1, {vT0}'); A(f'v_lshlrev_b32 {vT0}, 5, {vT0}'); A(f'v_xor_b32 {aDn}, {aDn}, {vT0}')
A(f'v_bfe_u32 {vT0}, {vL}, 2, 1'); A(f'v_lshrrev_b32 {aCld}, 3, {vL}'); A(f'v_lshl_add_u32 {aCld}, {vT0}, 3, {aCld}'); A(f'v_lshlrev_b32 {aCld}, 10, {aCld}')
A(f'v_lshl_add_u32 {aCld}, {vC}, 4, {aCld}'); A(f's_lshl_b32 s56, {sU}, 6'); A(f's_add_u32 s56, s56, {A_}'); A(f'v_add_u32 {aCld}, s56, {aCld}')
for j in range(4):
    A(f'v_cmp_eq_u32 vcc, {j}, {vN}'); A(f'v_cndmask_b32 {vMk[j]}, 0, -1, vcc')
for jj in range(4):
    if jj: A(f'v_add_u32 {vT1}, 2, {vT1}')
    A(f'v_cmp_eq_u32 vcc, {vT1}, {vN}'); A(f'v_cndmask_b32 {vMd[jj]}, 0, -1, vcc')
A(f's_mov_b32 {sCM}, {M_N4 & 0xffffffff:#x}'); A(f's_cmp_eq_u32 {sWAVE}, 3'); A(f's_cselect_b32 {sCM}, {M_N2 & 0xffffffff:#x}, {sCM}')
vGu = V(32); vDn = V(16); vSB = V(4); vT1v = V(4); vXs = [V(8) for _ in range(CFG['LK'])]; vXr = vXs[0]; vXx = V(8); vHp = V(2); vBm = V(8); vD = V(4); vSum, vSq = V(), V()
A(f'global_load_dword {vDUM}, {aX2}, {pLB} sc1'); A(f'global_load_dword {vDUM}, {aX2b}, {pLB} sc1')
mv_loads = [f'global_load_dwordx4 {vXr[0:4]}, {aMV}, {pLB} sc1', f'global_load_dwordx4 {vXr[4:8]}, {aMV}, {pLB} offset:2048 sc1']
lds_wait(15, F_LP, MKA['GU'], vT0, sleep=1)
for x in mv_loads: A(x)
for j in range(4):
    A(f'v_xor_b32 {vT1}, {32*j}, {aGu}')
    for ks in range(2):
        r = vGu[8*j+4*ks:8*j+4*ks+4]
        A(f'ds_read_b64_tr_b16 {r[0:2]}, {vT1} offset:{16384*ks}'); A(f'ds_read_b64_tr_b16 {r[2:4]}, {vT1} offset:{16384*ks + 2048}')
    if j == 1: A('s_waitcnt lgkmcnt(4)')
lds_wait(16, F_LP, MKA['DN'], vT0)
for jj in range(4):
    A(f'v_xor_b32 {vT1}, {64*jj}, {aDn}'); A(f'ds_read_b64_tr_b16 {vDn[4*jj:4*jj+2]}, {vT1}'); A(f'ds_read_b64_tr_b16 {vDn[4*jj+2:4*jj+4]}, {vT1} offset:4096')
poll(13, mv_loads, [vXr[i] for i in range(8)], [vSB[i] for i in range(4)] + [vT1v[i] for i in range(4)], sT16, 0xffff, vCH, issued=True)
A('s_waitcnt lgkmcnt(0)')
stamp(6)
ppoll(17, CFG['LK'], CFG['lgap'], lambda r: [f'global_load_dwordx4 {r[0:4]}, {aX2}, {pLB} sc1', f'global_load_dwordx4 {r[4:8]}, {aX2b}, {pLB} sc1'], 2, vXs, [vXx[i] for i in range(8)], sT16, 0xffff)
stamp(12)
A(f'v_add_f32 {vSum}, {vXx[0]}, {vXx[1]}'); A(f'v_mul_f32 {vSq}, {vXx[0]}, {vXx[0]}')
A(f'v_add_f32 {vT0}, {vXx[2]}, {vXx[3]}'); A(f'v_mul_f32 {vT1}, {vXx[1]}, {vXx[1]}')
for i in range(2, 8): A(f'v_fmac_f32 {vSq if i % 2 == 0 else vT1}, {vXx[i]}, {vXx[i]}')
A(f'v_add_f32 {vT2}, {vXx[4]}, {vXx[5]}'); A(f'v_add_f32 {vT3}, {vXx[6]}, {vXx[7]}'); A(f'v_add_f32 {vSum}, {vSum}, {vT0}'); A(f'v_add_f32 {vT2}, {vT2}, {vT3}')
A(f'v_add_f32 {vSq}, {vSq}, {vT1}'); A(f'v_add_f32 {vSum}, {vSum}, {vT2}')
A(f'v_permlane32_swap_b32 {vSum}, {vSq}'); A(f'v_add_f32 {vSum}, {vSum}, {vSq}')
A(f'v_mov_b32 {vSq}, {vSum}'); A(f'v_permlane16_swap_b32 {vSum}, {vSq}'); A(f'v_add_f32 {vSum}, {vSum}, {vSq}')
row_allred('v_add_f32', [vSum])
A(f'v_mul_f32 {vSum}, 0x3b000000, {vSum}')
A(f'v_mov_b32 {vSq}, {vSum}'); A(f'v_permlane32_swap_b32 {vSum}, {vSq}')
A(f'v_fma_f32 {vSq}, -{vSum}, {vSum}, {vSq}'); A(f'v_max_f32 {vSq}, 0, {vSq}'); A(f'v_add_f32 {vSq}, 0x3727c5ac, {vSq}'); A(f'v_rsq_f32 {vSq}, {vSq}')
for i in range(4): A(f'v_sub_f32 {vXx[i]}, {vXx[i]}, {vSum}')
for i in range(4): A(f'v_mul_f32 {vT1v[i]}, {vSq}, {vT1v[i]}')
for i in range(4): A(f'v_fma_f32 {vXx[i]}, {vXx[i]}, {vT1v[i]}, {vSB[i]}')
for i in range(2): A(f'v_cvt_pk_bf16_f32 {vHp[i]}, {vXx[2*i]}, {vXx[2*i+1]}')
k = 0
sk = nl('S')
for j in range(4):
    if j == 2: A(f's_cmp_eq_u32 {sWAVE}, 3'); A(f's_cbranch_scc1 {sk}')
    for ks in range(2):
        b = vBm[4*(k & 1):4*(k & 1)+4]
        for p in range(4): dpp('v_and_b32', b[p], vHp[p & 1], vMk[j], f'row_newbcast:{2*ks + (p >> 1)}')
        A(f'v_mfma_f32_16x16x32_bf16 {vD}, {vGu[8*j+4*ks:8*j+4*ks+4]}, {b}, {0 if k == 0 else vD}'); k += 1
LAB(sk)
for r in range(4): tagf(vD[r], vD[r], vTgb)
A(f's_mov_b32 exec_lo, {sCM}'); A(f's_mov_b32 exec_hi, {sCM}')
lstore([f'global_store_dwordx4 {aCst}, {vD}, {pLB}'])
set_exec(-1)
stamp(13)
vG = vXx
A(f's_cmp_ge_u32 {sU}, 14'); A('s_cbranch_scc1 L_A_zero')
if CFG['LK'] > 1: A('s_waitcnt vmcnt(1)')
ppoll(18, CFG['LK'], CFG['lgap'], lambda r: [f'global_load_dwordx4 {r}, {aCld}, {pLB} sc1'], 1, [r[0:4] for r in vXs], [vG[i] for i in range(4)], sT6b, TM)
tred4(vG)
dpp('v_add_f32', vG[0], vG[0], vG[0], 'row_ror:8')
rnd(vG[0], vG[0])
A(f'v_mul_f32 {vT0}, {sL2E}, {vG[0]}'); A(f'v_exp_f32 {vT0}, -{vT0}'); A(f'v_add_f32 {vT0}, 1.0, {vT0}'); A(f'v_rcp_f32 {vT0}, {vT0}'); rnd(vT0, vT0)
dpp('v_mul_f32', vT0, vG[0], vT0, 'row_ror:12')
A(f'v_mov_b32 {vT1}, {vT0}'); A(f'v_permlane32_swap_b32 {vT0}, {vT1}'); A(f'v_cvt_pk_bf16_f32 {vT0}, {vT0}, {vT1}')
A(f'v_mov_b32 {vT1}, {vT0}'); A(f'v_permlane16_swap_b32 {vT0}, {vT1}')
vHh = vSB
for rowm, q0 in ((0x5, 0), (0xa, 2)):
    dpp('v_mov_b32', vHh[0], vT0, None, f'row_newbcast:{q0}', row=rowm); dpp('v_mov_b32', vHh[1], vT1, None, f'row_newbcast:{q0}', row=rowm)
    dpp('v_mov_b32', vHh[2], vT0, None, f'row_newbcast:{q0+1}', row=rowm); dpp('v_mov_b32', vHh[3], vT1, None, f'row_newbcast:{q0+1}', row=rowm)
for jj in range(4):
    b = vBm[4*(jj & 1):4*(jj & 1)+4]
    for p in range(4): A(f'v_and_b32 {b[p]}, {vMd[jj]}, {vHh[p]}')
    A(f'v_mfma_f32_16x16x32_bf16 {vD}, {vDn[4*jj:4*jj+4]}, {b}, {0 if jj == 0 else vD}')
for r in range(4): tagf(vD[r], vD[r], vTgb)
LAB('L_A_pub')
set_exec(M_N8)
lstore([f'global_store_dwordx4 {aDst}, {vD}, {pLB}'])
set_exec(-1)
stamp(14)
LAB('L_A_end')
end_wave()
LAB('L_A_zero')
for r in range(4): A(f'v_mov_b32 {vD[r]}, {vTgb}')
A('s_branch L_A_pub')
LAB('L_A_vlate')
sk = nl('S')
A(f's_cmp_eq_u32 {sNV}, 1'); A(f's_cbranch_scc1 {sk}')
lds_wait(9, F_LP, MKA['V0'] + NO - 1, vT0)
for x in xreads(range(NO)): A(x)
LAB(sk)
A('s_waitcnt lgkmcnt(0)')
A(f'ds_read_b32 {vT2}, {vZ}')
for x in xreads(range(NO, 7)): A(x)
pvx(range(NO), [None] * NO)
A(f's_waitcnt lgkmcnt({2*(7 - NO)})')
sk = nl('S')
A(f'v_readfirstlane_b32 {sTMP}, {vT2}'); A(f's_cmp_ge_u32 {sTMP}, {MKA["V0"] + 6}'); A(f's_cbranch_scc1 {sk}')
lds_wait(50, F_LP, MKA['V0'] + 6, vT0)
for x in xreads(range(NO, 7)): A(x)
LAB(sk)
A(f'ds_read_b32 {vT2}, {vZ}')
for x in xreads([7]): A(x)
pvx(range(NO, 7), [3 + 2*(6 - c) for c in range(NO, 7)])
lp, ok = nl('W'), nl('OK')
A(f's_mov_b32 {sCNT}, {CFG["limit"]}')
LAB(lp)
A('s_waitcnt lgkmcnt(2)')
A(f'v_readfirstlane_b32 {sTMP}, {vT2}'); A(f's_cmp_ge_u32 {sTMP}, {MKA["V0"] + 7}'); A(f's_cbranch_scc1 {ok}')
A(f'ds_read_b32 {vT2}, {vZ}')
for x in xreads([7]): A(x)
fail_branch(51, lp)
LAB(ok)
pvx([7], [0])
A('s_branch L_A_pvdone')
vg_A = V.hi
LAB('L_A9')
V.release(mP)
aQld, aQw = V(), V(); vQs = [V(16) for _ in range(CFG['QK'])]; vQx = V(16); vQp = V(4)
A(f'v_lshlrev_b32 {aQld}, 4, {vL}'); A(f'v_add_u32 {aQld}, {Q_}, {aQld}')
A(f'v_lshrrev_b32 {vT0}, 5, {vL}'); A(f'v_mul_u32_u24 {vT0}, {QS}, {vT0}'); A(f'v_and_b32 {vT1}, 31, {vL}'); A(f'v_lshl_add_u32 {aQw}, {vT1}, 3, {vT0}'); A(f'v_add_u32 {aQw}, {QL}, {aQw}')
A('s_barrier')
epoch_wait()
pure_phase()
lds_wait(37, F_LP, MKA['K0'] + CFG['qstart'], vT0, sleep=1)
stamp(7)
ppoll(6, CFG['QK'], CFG['qgap'], lambda r: [f'global_load_dwordx4 {r[4*k:4*k+4]}, {aQld}, {pLB} offset:{1024*k} sc1' for k in range(4)], 4, vQs, [vQx[i] for i in range(16)], sT6, TM)
for i in range(8): A(f'v_add_f32 {vQx[i]}, {vQx[i]}, {vQx[8+i]}')
for i in range(4): A(f'v_cvt_pk_bf16_f32 {vQp[i]}, {vQx[2*i]}, {vQx[2*i+1]}')
A(f'ds_write_b64 {aQw}, {vQp[0:2]}'); A(f'ds_write_b64 {aQw}, {vQp[2:4]} offset:{2*QS}'); flag(F_Q)
stamp(8)
vMc = vQx[0:8]; vLc = V(8); vML4 = vQx[12:16]
A(f'v_lshlrev_b32 {vT3}, 5, {vC}'); A(f'v_add_u32 {vT3}, {MX}, {vT3}')
A(f's_lshl_b32 s56, {sU}, 6'); A(f's_add_u32 s56, s56, {MLG}'); A(f'v_lshl_add_u32 {vT2}, {vL}, 4, s56')
A(f'v_mov_b32 {vML4[2]}, {sE}'); A(f'v_mov_b32 {vML4[3]}, {sE}')
lds_wait(39, F_SF, 8, vT0, sleep=CFG['s9'])
A(f'ds_read_b128 {vMc[0:4]}, {vT3}'); A(f'ds_read_b128 {vMc[4:8]}, {vT3} offset:16'); A(f'ds_read_b128 {vLc[0:4]}, {vT3} offset:{LX - MX}'); A(f'ds_read_b128 {vLc[4:8]}, {vT3} offset:{LX - MX + 16}'); A(pure_read())
A('s_waitcnt lgkmcnt(0)'); pure_update()
A(f'v_max3_f32 {vML4[0]}, {vMc[0]}, {vMc[1]}, {vMc[2]}'); A(f'v_max3_f32 {vT0}, {vMc[3]}, {vMc[4]}, {vMc[5]}'); A(f'v_max3_f32 {vML4[0]}, {vML4[0]}, {vMc[6]}, {vMc[7]}'); A(f'v_max_f32 {vML4[0]}, {vML4[0]}, {vT0}')
for a, b in ((0, 1), (2, 3), (4, 5), (6, 7), (0, 2), (4, 6)): A(f'v_add_f32 {vLc[a]}, {vLc[a]}, {vLc[b]}')
A(f'v_add_f32 {vML4[1]}, {vLc[0]}, {vLc[4]}')
tagf(vML4[0], vML4[0], vTg); tagf(vML4[1], vML4[1], vTg)
set_exec(0xf)
lstore([f'global_store_dwordx4 {vT2}, {vML4}, {pLB}'])
set_exec(-1)
stamp(9)
aGa = vQs[1][0]; vG8 = vQs[0][0:8]; vGx8 = vQs[0][8:16]; vMod = vQs[1][2:4]; aMs = vQs[1][1]
A('s_waitcnt vmcnt(0)')
A(f's_lshr_b32 s56, {sU}, 1'); A('s_lshl_b32 s56, s56, 8'); A(f's_and_b32 s57, {sU}, 1'); A('s_lshl_b32 s57, s57, 7'); A('s_add_u32 s56, s56, s57'); A(f's_add_u32 s56, s56, {S_MR}')
A(f'v_lshlrev_b32 {aGa}, 11, {vQ}'); A(f'v_lshl_add_u32 {aGa}, {vN}, 2, {aGa}'); A(f'v_add_u32 {aGa}, s56, {aGa}')
A(f's_lshl_b32 s56, {sU}, 7'); A(f'v_lshl_add_u32 {aMs}, {vN}, 2, s56'); A(f'v_lshrrev_b32 {vT0}, 1, {vQ}'); A(f'v_lshl_add_u32 {aMs}, {vT0}, 11, {aMs}')
A(f'v_xor_b32 {vT0}, {vT0}, {vQ}'); A(f'v_and_b32 {vT0}, 1, {vT0}'); A(f'v_mov_b32 {vT1}, {GAB}'); A(f'v_mov_b32 {vT2}, {MV}'); A(f'v_cmp_eq_u32 vcc, 1, {vT0}'); A(f'v_cndmask_b32 {vT1}, {vT1}, {vT2}, vcc'); A(f'v_add_u32 {aMs}, {aMs}, {vT1}')
lp, ok = nl('P'), nl('OK')
A(f's_mov_b32 {sCNT}, {CFG["limit"]}')
LAB(lp)
for i in range(4):
    if i: A(f'v_add_u32 {vT0}, {8192*i}, {aGa}')
    A(f'global_load_dword {vG8[i]}, {vT0 if i else aGa}, {pWS} sc1'); A(f'global_load_dword {vG8[4+i]}, {vT0 if i else aGa}, {pWS} offset:64 sc1')
A('s_waitcnt vmcnt(0)')
check([vG8[i] for i in range(8)], [vGx8[i] for i in range(8)], sT6, TM, vCH)
A(f's_cbranch_vccz {ok}'); fail_branch(22, lp); LAB(ok)
A(f'v_cmp_eq_u32 vcc, 2, {vQ}')
for h in range(2):
    for a, b in ((0, 1), (2, 3), (0, 2)): A(f'v_add_f32 {vGx8[4*h+a]}, {vGx8[4*h+a]}, {vGx8[4*h+b]}')
    rnd(vMod[h], vGx8[4*h])
    A(f'v_add_f32 {vT0}, 1.0, {vMod[h]}'); rnd(vT0, vT0)
    A(f'v_cndmask_b32 {vMod[h]}, {vMod[h]}, {vT0}, vcc'); A(f'v_or_b32 {vMod[h]}, {sT16}, {vMod[h]}')
lstore([f'global_store_dword {aMs}, {vMod[0]}, {pLB}', f'global_store_dword {aMs}, {vMod[1]}, {pLB} offset:64'])
stamp(11)
end_wave()
vg_A = max(vg_A, V.hi)

LAB('L_W')
V.release(mP)
sRED = 's13'
A(f's_mov_b32 {sRED}, 0')
A(f's_cmp_eq_u32 {sWAVE}, 9'); A('s_cbranch_scc1 L_W9')
aWq, aH, aHw, aHr, aQst, aWo, aBst, aOb, v8qr, vXc = [V() for _ in range(10)]
vMk = V(4, 1)
A(f'v_lshl_add_u32 {v8qr}, {vQ}, 3, {vR}')
A(f's_and_b32 s54, {sU}, 7'); A(f's_lshr_b32 s55, {sU}, 3')
A(f'v_lshl_add_u32 {aWq}, {v8qr}, 7, {vC8}'); A(f'v_add_u32 {aWq}, {w5}, {aWq}')
A('s_lshl_b32 s56, s55, 10'); A(f'v_lshl_add_u32 {aH}, {vL}, 4, s56')
A(f's_lshl_b32 s58, {sWAVE}, 9'); A(f's_add_u32 s56, s58, {HL}'); A(f'v_lshl_add_u32 {aHw}, {vL}, 3, s56'); A(f'v_add_u32 {aHr}, s56, {vQ16}')
A('s_lshl_b32 s56, s55, 11'); A('s_lshl_b32 s57, s54, 8'); A('s_add_u32 s56, s56, s57'); A(f's_add_u32 s56, s56, {w6}'); A(f's_add_u32 s56, s56, {Q_}'); A(f'v_add_u32 {aQst}, s56, {vQ16}')
A(f'v_and_b32 {vT0}, 1, {vQ}'); A(f'v_lshl_add_u32 {vT0}, {vT0}, 2, {vR}'); A(f'v_lshlrev_b32 {vT0}, 5, {vT0}')
A(f'v_add_u32 {vT1}, {w7}, {vC8}'); A(f'v_xor_b32 {vT1}, {vT1}, {vT0}'); A(f'v_lshl_add_u32 {aWo}, {v8qr}, 10, {vT1}'); A(f'v_add_u32 {aWo}, {WO}, {aWo}')
A(f'v_add_u32 {aOb}, {OB}, {vQ16}')
A(f'v_lshl_add_u32 {vT0}, {vN}, 6, {vQ16}')
A(f's_lshl_b32 s57, {sU}, 11'); A(f's_add_u32 s57, s57, {B1}'); A(f's_add_u32 s56, s57, {w8}'); A(f'v_add_u32 {aBst}, s56, {vT0}')
for j in range(4):
    A(f'v_cmp_eq_u32 vcc, {j}, {vN}'); A(f'v_cndmask_b32 {vMk[j]}, 0, -1, vcc')
A('s_barrier')
epoch_wait()
stamp(1)
def probe():
    if CFG['near']:
        sk = nl('S')
        A(f's_cmp_eq_u32 {sWAVE}, 7'); A(f's_cbranch_scc0 {sk}')
        A(f's_lshl_b32 s56, {sU}, 3'); A(f's_add_u32 s56, s56, {sG}'); A('s_lshl_b32 s56, s56, 7'); A('s_and_b32 s57, s56, 0x2000'); A('s_add_u32 s56, s56, s57'); A(f's_add_u32 s56, s56, {PROBE}')
        A(f's_add_u32 s56, {lo(pWS)}, s56'); A(f's_addc_u32 s57, {hi(pWS)}, 0')
        A('s_mov_b32 s52, -1'); A('s_mov_b32 s53, -1')
        for rep in range(CFG['near']):
            for c in range(2):
                A('s_memtime s[84:85]'); A('s_waitcnt lgkmcnt(0)')
                A(f's_load_dword s54, s[56:57], {8192*c} glc'); A('s_waitcnt lgkmcnt(0)')
                A('s_memtime s[86:87]'); A('s_waitcnt lgkmcnt(0)')
                A('s_sub_u32 s54, s86, s84'); A(f's_min_u32 s{52+c}, s{52+c}, s54')
            A('s_cmp_lt_u32 s52, s53'); A('s_cselect_b32 s54, 1, 2'); A(f'v_mov_b32 {vT0}, s54'); A(f'ds_write_b32 {vZ}, {vT0} offset:{F_CP - FLG}')
        if CFG['stamps']: A('s_mov_b32 s88, s52'); A('s_mov_b32 s90, s53')
        stamp(2)
        LAB(sk)
A(f's_cmp_ge_u32 {sWAVE}, 4'); A('s_cbranch_scc0 L_W_03')
m = V.mark()
vSt = V()
A(f's_lshl_b32 s56, {sU}, 3'); A(f's_add_u32 s56, s56, {sG}'); A('s_lshl_b32 s56, s56, 8'); A(f's_add_u32 s56, s56, {w6}'); A(f's_add_u32 s56, s56, {S_MR - 256}'); A(f'v_add_u32 {vSt}, s56, {vQ16}')
mod_tile(MR, 4, lambda: None, vSt, MKW['MR'], M_N0, 21, 2, before_wait=probe)
set_exec(-1)
stamp(4)
A('s_branch L_W_att')
V.release(m)
LAB('L_W_03')
A(f's_sub_u32 s57, {sWAVE}, 1'); A('s_cmp_lt_u32 s57, 2'); A('s_cbranch_scc0 L_W_main')
A(f's_mov_b32 {sRED}, 1')
m = V.mark()
vWq = V(32); mH = V.mark()
vMean, vVar, vAd, vAd2, vHs = V(), V(), V(), V(), V(); vU = V(8); vRs = [V(4) for _ in range(CFG['G1K'])]; vSa, vCa = vU[0], vU[1]
A(f's_lshl_b32 {sSL}, {sU}, 1'); A(f's_add_u32 {sSL}, {sSL}, s57')
A(f's_lshl_b32 s56, {sSL}, 6'); A(f'v_lshl_add_u32 {vHs}, {vN}, 2, s56')
A(f's_and_b32 s56, {sSL}, 3'); A('s_lshl_b32 s56, s56, 6'); A(f's_lshr_b32 s57, {sSL}, 2'); A('s_lshl_b32 s57, s57, 8'); A('s_add_u32 s56, s56, s57'); A(f's_add_u32 s56, s56, {S_M}')
A(f'v_lshlrev_b32 {vT0}, 12, {vQ}'); A(f'v_and_b32 {vT1}, 0x2000, {vT0}'); A(f'v_add_u32 {vT0}, {vT0}, {vT1}'); A(f'v_lshlrev_b32 {vT1}, 2, {vN}'); A(f'v_add3_u32 {vAd}, {vT0}, {vT1}, s56'); A(f'v_add_u32 {vAd2}, 32768, {vAd}')
A('s_waitcnt vmcnt(0)')
for j in range(4):
    A(f'v_lshlrev_b32 {vU[2*j]}, 16, {vX[j]}'); A(f'v_and_b32 {vU[2*j+1]}, {sHI}, {vX[j]}')
A(f'v_add_f32 {vMean}, {vU[0]}, {vU[1]}')
for j in range(2, 8): A(f'v_add_f32 {vMean}, {vMean}, {vU[j]}')
row_allred('v_add_f32', [vMean]); xrow_allred('v_add_f32', vMean, vT0)
A(f'v_mul_f32 {vMean}, 0x3b000000, {vMean}')
for j in range(8): A(f'v_sub_f32 {vU[j]}, {vU[j]}, {vMean}')
A(f'v_mul_f32 {vVar}, {vU[0]}, {vU[0]}')
for j in range(1, 8): A(f'v_fmac_f32 {vVar}, {vU[j]}, {vU[j]}')
row_allred('v_add_f32', [vVar]); xrow_allred('v_add_f32', vVar, vT0)
A(f'v_mul_f32 {vVar}, 0x3b000000, {vVar}')
rnd(vMean, vMean); rnd(vVar, vVar)
A(f'v_add_f32 {vVar}, 0x3727c5ac, {vVar}'); rnd(vVar, vVar)
A(f'v_sqrt_f32 {vVar}, {vVar}'); rnd(vVar, vVar)
A(f'v_lshlrev_b32 {vXc}, 16, {vXd}'); A(f'v_sub_f32 {vXd}, {vXc}, {vMean}'); rnd(vXd, vXd)
A(f'v_rcp_f32 {vT0}, {vVar}'); A(f'v_mul_f32 {vT1}, {vXd}, {vT0}'); A(f'v_fma_f32 {vT2}, -{vT1}, {vVar}, {vXd}'); A(f'v_fma_f32 {vXd}, {vT2}, {vT0}, {vT1}')
rnd(vXd, vXd)
stamp(2)
mQ = V.mark()
def wq_read(vWq):
    lds_wait(3, F_LP, MKW['WQ'], vT0)
    for ks in range(8):
        A(f'ds_read_b64_tr_b16 {vWq[4*ks:4*ks+2]}, {aWq} offset:{WQ + ks*4096}'); A(f'ds_read_b64_tr_b16 {vWq[4*ks+2:4*ks+4]}, {aWq} offset:{WQ + ks*4096 + 512}')
        if ks == 3: A('s_waitcnt lgkmcnt(4)')
wq_read(vWq)
near_update(); A(f'v_add_u32 {vAd}, {sCP}, {vAd}'); A(f'v_add_u32 {vAd2}, {sCP}, {vAd2}')
ppoll(1, CFG['G1K'], CFG['ggap'], lambda r: [gld(r[0], vAd, 0, 'gat1'), gld(r[1], vAd, 2048, 'gat1'), gld(r[2], vAd2, 0, 'gat1'), gld(r[3], vAd2, 2048, 'gat1')], 4, vRs, [vU[i] for i in range(4)], sT6, TM, extra=[pure_read()])
stamp(3)
A(f'v_add_f32 {vSa}, {vSa}, {vU[2]}'); A(f'v_add_f32 {vCa}, {vCa}, {vU[3]}')
A(f'v_permlane32_swap_b32 {vSa}, {vCa}'); A(f'v_add_f32 {vSa}, {vSa}, {vCa}')
A(f'v_mov_b32 {vCa}, {vSa}'); A(f'v_permlane16_swap_b32 {vSa}, {vCa}'); A(f'v_add_f32 {vSa}, {vSa}, {vCa}')
rnd(vSa, vSa)
A(f'v_mov_b32 {vCa}, {vSa}'); A(f'v_permlane32_swap_b32 {vSa}, {vCa}')
A(f'v_add_f32 {vCa}, 1.0, {vCa}'); rnd(vCa, vCa)
A(f'v_mul_f32 {vCa}, {vXd}, {vCa}'); rnd(vCa, vCa)
A(f'v_add_f32 {vCa}, {vCa}, {vSa}'); rnd(vCa, vCa)
A(f'v_or_b32 {vCa}, {sT16}, {vCa}')
A('s_waitcnt lgkmcnt(0)'); pure_update()
set_exec(0xffff)
lstore([f'global_store_dword {vHs}, {vCa}, {pLB} offset:{H_}'])
set_exec(-1)
flag(F_G1)
A('s_branch L_W_q')
LAB('L_W_main')
A(f'global_load_dword {vDUM}, {aH}, {pLB} sc1')
wq_read(vWq)
stamp(4)
lds_wait(30, F_G1, 1, vT0, sleep=1)
LAB('L_W_q')
V.release(mH)
vHB = V(32); vAq = V(4); vHs2 = [V(4) for _ in range(CFG['LK'])]; vHx = V(4); vHp = V(2)
ppoll(4, CFG['LK'], CFG['lgap'], lambda r: [f'global_load_dwordx4 {r}, {aH}, {pLB} offset:{H_} sc1'], 1, vHs2, [vHx[i] for i in range(4)], sT16, 0xffff, extra=[pure_read()])
stamp(5)
A(f'v_perm_b32 {vHp[0]}, {vHx[1]}, {vHx[0]}, {sSEL}'); A(f'v_perm_b32 {vHp[1]}, {vHx[3]}, {vHx[2]}, {sSEL}')
A(f'ds_write_b64 {aHw}, {vHp}')
for ks in range(8): A(f'ds_read_b128 {vHB[4*ks:4*ks+4]}, {aHr} offset:{64*ks}')
for ks in range(8):
    A(f's_waitcnt lgkmcnt({7-ks})')
    if ks == 0: pure_update()
    A(f'v_mfma_f32_16x16x32_bf16 {vAq}, {vWq[4*ks:4*ks+4]}, {vHB[4*ks:4*ks+4]}, {0 if ks == 0 else vAq}')
for r in range(4): tagf(vAq[r], vAq[r], vTg)
set_exec(M_N0)
lstore([f'global_store_dwordx4 {aQst}, {vAq}, {pLB}'])
set_exec(-1)
flag(F_QP)
stamp(6)
A('s_waitcnt vmcnt(0)')
V.release(m)
A(f's_cmp_eq_u32 {sRED}, 1'); A('s_cbranch_scc0 L_W_att')
vRs = [V(4) for _ in range(4)]; vRx = V(4); vG2s, vG2l, vX2s, vOut, aR1, aGa, vMod, vGb, vMVs = [V() for _ in range(9)]; vG4 = V(4)
A(f's_lshl_b32 s57, {sSL}, 5'); A(f'v_lshl_add_u32 {vOut}, {vN}, 1, s57')
A(f'v_lshrrev_b32 {vT2}, 5, {vL}'); A(f'v_lshl_add_u32 {vG2s}, {vC}, 2, {vT2}'); A(f'v_and_b32 {vT2}, 1, {vQ}'); A(f'v_lshl_add_u32 {vG2s}, {vT2}, 1, {vG2s}')
vG3s, vG3l = V(), V()
A(f's_lshl_b32 s56, {sSL}, 10'); A('s_and_b32 s57, s56, 0xffffe000'); A('s_add_u32 s56, s56, s57')
A(f's_lshl_b32 s57, {sG}, 7'); A('s_add_u32 s57, s57, s56'); A(f'v_lshl_add_u32 {vG2s}, {vG2s}, 2, s57')
A(f'v_lshlrev_b32 {vG2l}, 7, {vQ}'); A(f'v_lshl_add_u32 {vG2l}, {vN}, 2, {vG2l}'); A(f'v_add_u32 {vG2l}, s56, {vG2l}')
A(f'v_and_b32 {vT2}, 1, {vR}'); A(f'v_lshl_add_u32 {vG2s}, {vT2}, 13, {vG2s}'); A(f'v_add_u32 {vG2s}, {G2}, {vG2s}')
A(f'v_add_u32 {vG3s}, {G3 - G2}, {vG2s}')
A(f's_lshl_b32 s56, {sSL}, 6'); A(f's_add_u32 s57, s56, {X2}'); A(f'v_lshl_add_u32 {vX2s}, {vN}, 2, s57')
if CFG['gpt'] == 1:
    set_exec(M_N8); A(f'global_load_dword {vDUM}, {vG2s}, {pWS}'); A(f'global_load_dword {vDUM}, {vG3s}, {pWS}'); set_exec(-1)
if CFG['gpt'] == 2:
    A(f'v_not_b32 {vT0}, {vTg}'); set_exec(M_N8); A(f'global_store_dword {vG2s}, {vT0}, {pWS} sc1'); A(f'global_store_dword {vG3s}, {vT0}, {pWS} sc1'); set_exec(-1)
A(f'v_lshrrev_b32 {vT2}, 2, {vL}'); A(f'v_lshlrev_b32 {aR1}, 11, {vT2}'); A(f'v_lshl_add_u32 {aR1}, {vC}, 4, {aR1}')
A(f's_lshl_b32 s56, {sSL}, 6'); A(f's_add_u32 s57, s56, {B1}'); A(f'v_add_u32 {aR1}, s57, {aR1}')
A(f's_add_u32 s57, s56, {GAB}'); A(f'v_lshl_add_u32 {aGa}, {vN}, 2, s57')
A(f'global_load_dword {vDUM}, {aR1}, {pLB} sc1'); A(f'global_load_dword {vDUM}, {aGa}, {pLB} sc1'); A(f'global_load_dword {vDUM}, {aGa}, {pLB} offset:2048 sc1')
lds_wait(46, F_WI, 1, vT0, sleep=1)
near_update()
A(f's_add_u32 s57, {sCP}, {G2}'); A(f'v_add_u32 {vG2l}, s57, {vG2l}'); A(f'v_add_u32 {vG3l}, {G3 - G2}, {vG2l}')
stamp(11)
LAB('L_W_att')
vWo = V(16); vOb = V(4); vBm = V(8); vD = V(4)
lds_wait(11, F_LP, MKW['WO'], vT0, sleep=1)
for j in range(4):
    A(f'v_xor_b32 {vT0}, {32*j}, {aWo}'); A(f'ds_read_b64_tr_b16 {vWo[4*j:4*j+2]}, {vT0}'); A(f'ds_read_b64_tr_b16 {vWo[4*j+2:4*j+4]}, {vT0} offset:4096')
A(pure_read())
A('s_waitcnt lgkmcnt(0)'); pure_update()
stamp(7)
A('s_barrier')
A(f'ds_read_b128 {vOb}, {aOb}')
A('s_waitcnt lgkmcnt(0)')
for j in range(4):
    b = vBm[4*(j & 1):4*(j & 1)+4]
    for p in range(4): A(f'v_and_b32 {b[p]}, {vMk[j]}, {vOb[p]}')
    A(f'v_mfma_f32_16x16x32_bf16 {vD}, {vWo[4*j:4*j+4]}, {b}, {0 if j == 0 else vD}')
for r in range(4): tagf(vD[r], vD[r], vTg)
set_exec(M_N4)
lstore([f'global_store_dwordx4 {aBst}, {vD}, {pLB}'])
set_exec(-1)
stamp(10)
A(f's_cmp_eq_u32 {sRED}, 1'); A('s_cbranch_scc0 L_W_end')
gab_loads = [f'global_load_dword {vG4[0]}, {aGa}, {pLB} sc1', f'global_load_dword {vG4[1]}, {aGa}, {pLB} offset:2048 sc1']
def reduce16(code, tag, vS_, mask, extra=()):
    ppoll(code, CFG['LK'], CFG['lgap'], lambda r: [f'global_load_dwordx4 {r}, {aR1}, {pLB} sc1'], 1, vRs, [vRx[i] for i in range(4)], tag, TM)
    for x in extra: A(x)
    tred4(vRx)
    row_allred('v_add_f32', [vRx[0]], (4, 8))
    tagf(vRx[0], vRx[0], vTg)
    set_exec(mask)
    A(f'global_store_dword {vS_}, {vRx[0]}, {pWS} sc1'); set_exec(-1)
def gather8(code, vG2l, n):
    if CFG['gd' + n]: A(f's_sleep {CFG["gd" + n]}')
    ppoll(code, CFG['GK' + n], CFG['ggap'], lambda r: [gld(r[0], vG2l, 0, 'gat' + n), gld(r[1], vG2l, 512, 'gat' + n)], 2, [r[0:2] for r in vRs], [vRx[0], vRx[1]], sT6, TM)
    A(f'v_add_f32 {vRx[0]}, {vRx[0]}, {vRx[1]}'); xrow_allred('v_add_f32', vRx[0], vT0)
    rnd(vRx[0], vRx[0])
reduce16(23, sT6, vG2s, M_N8 if CFG['rep'] else M_N4, gab_loads)
stamp(12)
gather8(24, vG2l, '2')
lp, ok = nl('P'), nl('OK')
check([vG4[0], vG4[1]], [vMod, vGb], sT16, 0xffff, vCH); A(f's_cbranch_vccz {ok}')
poll(52, gab_loads, [vG4[0], vG4[1]], [vMod, vGb], sT16, 0xffff, vCH)
LAB(ok)
stamp(13)
A(f'v_mul_f32 {vRx[0]}, {vMod}, {vRx[0]}'); rnd(vRx[0], vRx[0])
A(f'v_add_f32 {vXc}, {vXc}, {vRx[0]}'); rnd(vXc, vXc)
A(f'v_or_b32 {vT0}, {sT16}, {vXc}')
set_exec(0xffff)
lstore([f'global_store_dword {vX2s}, {vT0}, {pLB}'])
sk = nl('S')
A(f's_or_b32 s56, {sSL}, {sG}'); A(f's_cbranch_scc1 {sk}')
set_exec(1); A(f'v_mov_b32 {vT2}, {EP}'); A(f'v_mov_b32 {vT1}, {sE}'); A(f'global_store_dword {vT2}, {vT1}, {pWS}')
LAB(sk)
set_exec(-1)
reduce16(25, sT6b, vG3s, M_N8 if CFG['rep'] else M_N4)
stamp(14)
A(f's_and_b32 s56, {sSL}, 7'); A(f's_cmp_eq_u32 s56, {sG}'); A('s_cbranch_scc0 L_W_end')
gather8(26, vG3l, '3')
A(f'v_mul_f32 {vRx[0]}, {vGb}, {vRx[0]}'); rnd(vRx[0], vRx[0])
A(f'v_add_f32 {vXc}, {vXc}, {vRx[0]}'); A(f'v_cvt_pk_bf16_f32 {vXc}, {vXc}, {vXc}')
set_exec(0xffff); A(f'global_store_short {vOut}, {vXc}, {pOUT}')
if CFG['amp']: A(f's_cmp_eq_u32 {sSL}, 0'); A('s_cbranch_scc0 L_W_end2')
if CFG['ampm']:
    set_exec(-1)
    A(f'v_lshlrev_b32 {vT0}, 4, {vL}'); A(f'v_add_u32 {vT0}, 0x180000, {vT0}'); A(f'global_load_dwordx4 {vRs[0]}, {vT0}, {pWS} sc1'); A('s_waitcnt vmcnt(0)')
    op = 'v_min_u32' if CFG['ampm'] == 1 else 'v_max_u32'
    for i in range(1, 4): A(f'{op} {vRs[0][0]}, {vRs[0][0]}, {vRs[0][i]}')
    row_allred(op, [vRs[0][0]]); xrow_allred(op, vRs[0][0], vT0)
    A(f'v_readfirstlane_b32 s92, {vRs[0][0]}')
if CFG['amp']:
    A('s_memrealtime s[94:95]'); A('s_waitcnt lgkmcnt(0)'); A('s_sub_u32 s56, s94, s92')
    if CFG['ampe']: A('s_sub_u32 s57, s90, s92'); A(f's_mul_i32 s57, s57, {CFG["amp"]}'); A('s_add_u32 s56, s56, s57')
    else: A(f's_mul_i32 s56, s56, {1 + CFG["amp"]}')
    A('s_min_u32 s56, s56, 100000')
    LAB('L_amp'); A('s_memrealtime s[94:95]'); A('s_waitcnt lgkmcnt(0)'); A('s_sub_u32 s57, s94, s92'); A('s_cmp_lt_u32 s57, s56'); A('s_cbranch_scc1 L_amp')
LAB('L_W_end2')
set_exec(-1)
stamp(15)
LAB('L_W_end')
end_wave()

vg_W = V.hi
LAB('L_W9')
V.release(mP)
aML, aA1, aA2, aOw = V(), V(), V(), V(); vMr = V(8); vMx = V(4); vAs = [V(8) for _ in range(CFG['LK'])]; vAx = V(8); vW1, vW2 = V(), V()
A(f'v_lshrrev_b32 {vT0}, 3, {vL}'); A(f'v_and_b32 {vT1}, 7, {vL}')
A(f's_lshr_b32 s57, {sU}, 2'); A('s_lshl_b32 s56, s57, 4'); A(f's_add_u32 s56, s56, {MLG}'); A(f'v_lshl_add_u32 {aML}, {vT0}, 6, s56')
A('s_lshl_b32 s56, s57, 9'); A(f's_and_b32 s57, {sU}, 3'); A('s_lshl_b32 s57, s57, 7'); A('s_add_u32 s56, s56, s57'); A(f's_add_u32 s56, s56, {A_}')
A(f'v_lshlrev_b32 {aA1}, 11, {vT0}'); A(f'v_lshl_add_u32 {aA1}, {vT1}, 4, {aA1}'); A(f'v_add_u32 {aA1}, s56, {aA1}'); A(f'v_add_u32 {aA2}, 16384, {aA1}')
A(f'v_lshrrev_b32 {vT0}, 5, {vL}'); A(f'v_lshl_add_u32 {aOw}, {vT1}, 2, {vT0}'); A(f'v_and_b32 {vT0}, 1, {vQ}'); A(f'v_lshl_add_u32 {aOw}, {vT0}, 1, {aOw}'); A(f'v_lshlrev_b32 {aOw}, 1, {aOw}'); A(f'v_add_u32 {aOw}, {OB}, {aOw}')
A('s_barrier')
epoch_wait()
pure_phase()
lds_wait(35, F_QP, 1, vT0, sleep=2)
if not CFG['nogo']:
    if CFG['hall']:
        A(f'v_lshlrev_b32 {vT3}, 3, {vN}'); A(f'v_add_u32 {vT3}, {HINT}, {vT3}')
    else:
        A(f's_lshl_b32 s56, {sU}, 3'); A(f's_add_u32 s56, s56, {HINT}'); A(f'v_mov_b32 {vT3}, s56')
    lp, ok = nl('P'), nl('OK')
    A(f's_mov_b32 {sCNT}, {CFG["limit"]}')
    LAB(lp)
    A(f'global_load_dword {vT0}, {vT3}, {pLB} sc1'); A('s_waitcnt vmcnt(0)')
    A(f'v_cmp_ne_u32 vcc, {sE}, {vT0}'); A(f's_cbranch_vccz {ok}')
    fail_branch(44, lp)
    LAB(ok)
    flag(F_GO)
stamp(6)
A(f'global_load_dword {vDUM}, {aA1}, {pLB} sc1'); A(f'global_load_dword {vDUM}, {aA2}, {pLB} sc1'); A(f'global_load_dword {vDUM}, {aML}, {pLB} sc1'); A(f'global_load_dword {vDUM}, {aML}, {pLB} offset:512 sc1')
lds_wait(36, F_WI, 1, vT0, sleep=1)
stamp(7)
a_loads = lambda r: [f'global_load_dwordx4 {r[0:4]}, {aA1}, {pLB} sc1', f'global_load_dwordx4 {r[4:8]}, {aA2}, {pLB} sc1']
ml_loads = [f'global_load_dwordx4 {vMr[0:4]}, {aML}, {pLB} sc1', f'global_load_dwordx4 {vMr[4:8]}, {aML}, {pLB} offset:512 sc1']
def weights():
    A(f'v_max_f32 {vT0}, {vMx[0]}, {vMx[2]}'); row_allred('v_max_f32', [vT0], (8,)); xrow_allred('v_max_f32', vT0, vT1)
    A(f'v_sub_f32 {vW1}, {vMx[0]}, {vT0}'); A(f'v_sub_f32 {vW2}, {vMx[2]}, {vT0}'); A(f'v_mul_f32 {vW1}, {sL2E}, {vW1}'); A(f'v_mul_f32 {vW2}, {sL2E}, {vW2}')
    A(f'v_exp_f32 {vW1}, {vW1}'); A(f'v_exp_f32 {vW2}, {vW2}')
    A(f'v_mul_f32 {vT0}, {vW1}, {vMx[1]}'); A(f'v_fmac_f32 {vT0}, {vW2}, {vMx[3]}'); row_allred('v_add_f32', [vT0], (8,)); xrow_allred('v_add_f32', vT0, vT1)
    A(f'v_rcp_f32 {vT0}, {vT0}'); A(f'v_mul_f32 {vW1}, {vW1}, {vT0}'); A(f'v_mul_f32 {vW2}, {vW2}, {vT0}')
    stamp(8)
if CFG['mlb']:
    poll(12, ml_loads + a_loads(vAs[0]), [vMr[i] for i in (0, 1, 4, 5)] + [vAs[0][i] for i in range(8)], [vMx[i] for i in range(4)] + [vAx[i] for i in range(8)], sT6, TM, vCH, full=[vMr[i] for i in (2, 3, 6, 7)])
    weights()
else:
    poll(10, ml_loads, [vMr[i] for i in (0, 1, 4, 5)], [vMx[i] for i in range(4)], sT6, TM, vCH, full=[vMr[i] for i in (2, 3, 6, 7)])
    poll(12, a_loads(vAs[0]), [vAs[0][i] for i in range(8)], [vAx[i] for i in range(8)], sT6, TM, vCH, shadow=weights)
stamp(9)
for i in range(4): A(f'v_mul_f32 {vAx[i]}, {vW1}, {vAx[i]}')
for i in range(4): A(f'v_fmac_f32 {vAx[i]}, {vW2}, {vAx[4+i]}')
tred4(vAx)
dpp('v_add_f32', vAx[0], vAx[0], vAx[0], 'row_ror:8')
A(f'v_cvt_pk_bf16_f32 {vT0}, {vAx[0]}, {vAx[0]}')
A(f'ds_write_b16 {aOw}, {vT0}'); A('s_waitcnt lgkmcnt(0)'); A('s_barrier')
end_wave()
vg_W = max(vg_W, V.hi)

LAB('L_loader')
V = Alloc('v', 1, 64)
vO1, vT0, vT1, vLin, vZ, vMark, vX, vOne = [V() for _ in range(8)]; vKo = V(4, 1); vVo = V(2, 1)
adv = lambda p: [f's_add_u32 s{p}, s{p}, 4096', f's_addc_u32 s{p+1}, s{p+1}, 0', 's_add_u32 m0, m0, 4096']
pend = []
def post(mark, st):
    A(f'v_mov_b32 {vMark}, {mark}')
    if CFG['vgate'] < 8: set_exec(1); A(f'ds_max_u32 {vZ}, {vMark}'); set_exec(-1)
    else: A(f'ds_write_b32 {vZ}, {vMark}')
    if st.get(mark): stamp(st[mark])
def retire_to(n, st):
    while len(pend) > n:
        mk = pend.pop(0)
        if mk is not None or len(pend) == n:
            A(f's_waitcnt vmcnt({len(pend)})')
            if mk is not None: post(mk, st)
def run(items, st, bar):
    for win, pre, ins, mk in items:
        if len(pend) >= win:
            if not bar: stamp(1); A('s_barrier'); bar = True
            retire_to(win - 1, st)
        for x in pre: A(x)
        if isinstance(ins, tuple):
            A(f's_mov_b64 exec, {ins[0]}'); A(ins[1]); A('s_mov_b64 exec, -1')
        else: A(ins)
        pend.append(mk)
    return bar
A(f'v_mov_b32 {vZ}, {FLG}'); A(f'v_mov_b32 {vOne}, 1'); A(f'v_lshlrev_b32 {vLin}, 4, {vL}')
A(f's_cmp_ge_u32 {sT}, 16'); A('s_cbranch_scc1 L_loaderW')
setup = [f'v_lshrrev_b32 {vT0}, 4, {vL}', f'v_and_b32 {vT1}, 15, {vL}']
for m in range(4):
    setup += [f'v_add_u32 {vX}, {4*m}, {vT0}', f'v_xor_b32 {vX}, {vX}, {vT1}' if CFG['ksw'] else f'v_mov_b32 {vX}, {vT1}', f'v_lshlrev_b32 {vX}, 4, {vX}', f'v_lshl_add_u32 {vKo[m]}, {vT0}, 8, {vX}']
for m in range(2):
    setup += [f'v_add_u32 {vX}, {4*m}, {vT0}', f'v_lshlrev_b32 {vX}, 1, {vX}', f'v_xor_b32 {vX}, {vX}, {vT1}', f'v_lshlrev_b32 {vX}, 4, {vX}', f'v_lshl_add_u32 {vVo[m]}, {vT0}, 8, {vX}']
setup += [f's_lshl_b32 s56, {sG}, 22', f's_lshl_b32 s57, {sU}, {12 if CFG["kvi"] else 16}', 's_add_u32 s56, s56, s57', 's_add_u32 s56, s56, 0x300000',
          f's_add_u32 s62, {lo(pK)}, s56', f's_addc_u32 s63, {hi(pK)}, 0', f's_add_u32 s60, {lo(pV)}, s56', f's_addc_u32 s61, {hi(pV)}, 0']
if CFG['kvi']:
    def advk(p, c):
        d = 17 if CFG['kvi'] == 1 else 16
        if CFG['kvi'] == 2: return [f's_add_u32 s{p}, s{p}, 65536', f's_addc_u32 s{p+1}, s{p+1}, 0', 's_add_u32 m0, m0, 4096']
        return [f's_cmp_eq_u32 {sU}, {16 - c}', f's_cselect_b32 s56, 4096, s55', f's_add_u32 s{p}, s{p}, s56', f's_addc_u32 s{p+1}, s{p+1}, 0', 's_add_u32 m0, m0, 4096']
    setup += [f's_mov_b32 s55, {17*4096}']
else:
    advk = lambda p, c: adv(p)
sec = {}
sec['K'] = [[0, [f's_mov_b32 m0, {KK}'] if i == 0 else advk(62, i // 4) if i % 4 == 0 else [], f'global_load_lds_dwordx4 {vKo[i % 4]}, s[62:63] offset:{1024*(i % 4)}{NT}', MKA['K0'] + i // 8 if i % 8 == 7 else None] for i in range(64)]
sec['V'] = [[0, [f's_mov_b32 m0, {VV}'] if i == 0 else advk(60, i // 4) if i % 4 == 0 else [], f'global_load_lds_dwordx4 {vVo[i & 1]}, s[60:61] offset:{1024*(i % 4)}{NT}', MKA['V0'] + i // 8 if i % 8 == 7 else None] for i in range(64)]
items = [None] * 8 + sec['K'] + sec['V']
items[8][1] = setup + items[8][1]
for i, it in list(enumerate(items))[8:]: it[0] = CFG['WA0'] if i < CFG['WA0'] + CFG['NA0'] else CFG['WA']
stA = {MKA['K0'] + 7: 3, MKA['V0'] + 7: 4, MKA['M']: 2}
if CFG['trace']:
    stA = {MKA['M']: 2, MKA['K0'] + 1: 3, MKA['K0'] + 3: 4, MKA['K0'] + 5: 5, MKA['K0'] + 7: 6}
    stA.update({MKA['V0'] + i: 7 + i for i in range(8)})
hint_at = len(items) - 64 + 8 * CFG['hint']
def hint():
    A('s_waitcnt lgkmcnt(0)'); A(f's_add_u32 {sE}, {sE}, 1'); A(f'v_mov_b32 {vMark}, {sE}')
    A(f's_mul_i32 s53, {sG}, {LBS}'); A(f's_lshl_b32 s56, {sU}, 3'); A('s_add_u32 s53, s53, s56'); A(f's_add_u32 s53, s53, {LB0 + HINT}'); A(f'v_mov_b32 {vX}, s53')
items[8][1] = [f's_load_dword {sE}, {pWS}, {EP}'] + items[8][1]
n0 = 8 + CFG['X0']
pend += [None] * 7 + [MKA['M']]
run([(63, *x[1:]) for x in items[8:n0]], stA, True)
stamp(1); A('s_barrier')
retire_to(CFG['X0'], stA)
n1 = n0 + (CFG['mpw'] - 1 if CFG['mpw'] else 0)
run(items[n0:n1], stA, True)
if not CFG['only'] and CFG['mpw']: lds_wait(45, F_MP, 4, vT0)
gate_at = len(items) - 64 + 8 * CFG['vgate']
def do_hint():
    retire_to(min(len(pend), CFG['hret']), stA)
    hint()
    A(f'ds_read_b32 {vT0}, {vZ} offset:{F_PURE - FLG}'); A('s_waitcnt lgkmcnt(0)'); A(f'v_readfirstlane_b32 {sPURE}, {vT0}')
    set_exec(1)
    lstore([f'global_store_dword {vX}, {vMark}, {pWS}'])
    set_exec(-1)
    pend.append(None)
def do_gate():
    if CFG['only'] or CFG['vgate'] >= 8: return
    dn = nl('GD')
    marks = [(len(pend) - 1 - i, mk) for i, mk in enumerate(pend) if mk is not None]
    for left, mk in marks:
        A(f'ds_read_b32 {vT0}, {vZ} offset:{F_Q - FLG}'); A('s_waitcnt lgkmcnt(0)'); A(f'v_readfirstlane_b32 {sTMP}, {vT0}'); A(f's_cmp_eq_u32 {sTMP}, 1'); A(f's_cbranch_scc1 {dn}')
        A(f's_waitcnt vmcnt({left})'); post(mk, {})
    lds_wait(47, F_Q, 1, vT0)
    LAB(dn)
pos = n1
for at, fn in sorted([(gate_at, do_gate)] + ([] if CFG['nogo'] else [(hint_at + 0.5, do_hint)]), key=lambda x: x[0]):
    run(items[pos:int(at)], stA, True); pos = max(pos, int(at)); fn()
run(items[pos:], stA, True)
retire_to(0, stA)
A(f's_and_b32 s54, {sU}, 7'); A(f's_lshr_b32 s55, {sU}, 3')
items = []
vGx = V(4, 1)
for i in range(32):
    if i == 0:
        pre = [f'v_lshrrev_b32 {vT0}, 5, {vL}', f'v_and_b32 {vT1}, 31, {vL}', f'v_mul_u32_u24 {vO1}, 3584, {vT0}',
               f's_mul_i32 s56, s54, {64*3584}', f's_mul_i32 s57, {sG}, 448', 's_add_u32 s56, s56, s57', f'v_add_u32 {vO1}, s56, {vO1}']
        for v in range(4):
            f0 = 2 * (v & 1) + 4 * (v >> 1)
            pre += [f'v_add_u32 {vX}, {f0}, {vT0}', f'v_lshlrev_b32 {vX}, 1, {vX}', f'v_xor_b32 {vX}, {vX}, {vT1}' if CFG['gsw'] else f'v_mov_b32 {vX}, {vT1}',
                    f'v_cmp_gt_u32 s[{84+2*v}:{85+2*v}], 28, {vX}', f'v_lshl_add_u32 {vGx[v]}, {vX}, 4, {vO1}']
        pre += ['s_cmp_ge_u32 s55, 1', f's_cselect_b32 s58, {lo(pWU)}, {lo(pWG)}', f's_cselect_b32 s59, {hi(pWU)}, {hi(pWG)}', f's_mov_b32 m0, {GU}']
    else: pre = [f's_add_u32 s58, s58, {2*3584}', 's_addc_u32 s59, s59, 0', 's_add_u32 m0, m0, 1024']
    v = (i & 1) | (((i >> 2) & 1) << 1)
    items.append((CFG['WG'], pre, (f's[{84+2*v}:{85+2*v}]', f'global_load_lds_dwordx4 {vGx[v]}, s[58:59]{NT}'), MKA['GU'] if i == 31 else None))
for i in range(16):
    pre = []
    if i == 0: pre = [f's_min_u32 s57, {sU}, 13', f's_mul_i32 s56, {sG}, {224*1024}', 's_lshl_b32 s57, s57, 14', 's_add_u32 s56, s56, s57', f's_add_u32 s58, {lo(pWD)}, s56', f's_addc_u32 s59, {hi(pWD)}, 0', f's_mov_b32 m0, {DN}']
    elif i % 4 == 0: pre = adv(58)
    fd = ((i & 3) << 1) | ((i >> 3) & 1)
    pre = pre + [f'v_xor_b32 {vX}, {32*fd if CFG["gsw"] else 0}, {vLin}']
    items.append((CFG['WG'], pre, f'global_load_lds_dwordx4 {vX}, s[58:59] offset:{1024*(i % 4)}{NT}', MKA['DN'] if i == 15 else None))
for x in items[0][1]: A(x)
items[0] = (items[0][0], [], *items[0][2:])
if not CFG['only']:
    lds_wait(42, F_AP, 8, vT0, sleep=1)
if not CFG['trace']: stA.update({MKA['GU']: 7, MKA['DN']: 8})
run(items, stA, True)
retire_to(0, stA)
A('s_waitcnt lgkmcnt(0)')
end_wave()
LAB('L_loaderW')
A(f's_and_b32 s54, {sU}, 7'); A(f's_lshr_b32 s55, {sU}, 3')
stW = {MKW['WQ']: 2, MKW['MR']: 6, MKW['WO']: 5}
pend += [None] * 31 + [MKW['WQ']]
if CFG['pv']:
    assert CFG['kvi'] == 2
    A(f's_lshl_b32 s56, {sG}, 22'); A(f's_lshl_b32 s57, {sU}, 12'); A('s_add_u32 s56, s56, s57'); A(f's_add_u32 s56, s56, {0x300000 + (16 - CFG["pv"]) * 65536}')
    A(f's_add_u32 s60, {lo(pV)}, s56'); A(f's_addc_u32 s61, {hi(pV)}, 0'); A(f's_mov_b32 m0, {WO}')
    fl = '' if CFG['pvf'] == '-' else ' ' + CFG['pvf']
    for b in range(CFG['pv']):
        if b: A('s_add_u32 s60, s60, 65536'); A('s_addc_u32 s61, s61, 0')
        for i in range(4): A(f'global_load_lds_dwordx4 {vLin}, s[60:61] offset:{1024*i}{fl}'); pend.append(None)
    assert len(pend) <= 63
for x in [f'v_lshrrev_b32 {vT0}, 3, {vL}', f'v_and_b32 {vT1}, 7, {vL}', f'v_mul_u32_u24 {vO1}, 6144, {vT0}', f'v_lshl_add_u32 {vO1}, {vT1}, 4, {vO1}',
          f's_lshr_b32 s56, {sU}, 2', f's_mul_i32 s56, s56, {128*6144}', f's_and_b32 s57, {sU}, 3', 's_lshl_b32 s57, s57, 10', 's_add_u32 s56, s56, s57',
          f's_lshl_b32 s57, {sG}, 7', 's_add_u32 s56, s56, s57', 's_add_u32 s56, s56, 2048', f'v_add_u32 {vO1}, s56, {vO1}']: A(x)
stamp(1); A('s_barrier')
retire_to(0, stW)
if CFG['only'] == 'loaderA': end_wave()
if not CFG['only']: lds_wait(48, F_QP, 1, vT0, sleep=1)
run([(63, [f's_mov_b32 m0, {MR}'] if i == 0 else [f'v_add_u32 {vO1}, {8*6144}, {vO1}', 's_add_u32 m0, m0, 1024'], f'global_load_lds_dwordx4 {vO1}, {pWM}{NT}', MKW['MR'] if i == 15 else None) for i in range(16)], stW, True)
if not CFG['nogo']: retire_to(0, stW)
if CFG['only'] != 'loader' and not CFG['nogo']: lds_wait(41, F_GO, 1, vT0, sleep=1)
items = []
for i in range(32):
    pre = []
    if i == 0: pre = [f's_lshl_b32 s56, {sG}, 19', f's_lshl_b32 s57, {sU}, 15', 's_add_u32 s56, s56, s57', f's_add_u32 s58, {lo(pWO)}, s56', f's_addc_u32 s59, {hi(pWO)}, 0', f's_mov_b32 m0, {WO}']
    elif i % 4 == 0: pre = adv(58)
    f = (i & 3) | ((i >> 1) & 4)
    pre = pre + [f'v_xor_b32 {vX}, {32*f}, {vLin}']
    items.append((CFG['WO0'] if i < CFG['WO0'] + CFG['NO0'] else CFG['WO1'], pre, f'global_load_lds_dwordx4 {vX}, s[58:59] offset:{1024*(i % 4)}{NT}', MKW['WO'] if i == 31 else None))
run(items, stW, True)
flag(F_WI)
retire_to(0, stW)
if not CFG['only']: A('s_waitcnt lgkmcnt(0)'); A('s_barrier')
A('s_waitcnt lgkmcnt(0)')
end_wave()

for sl, ins, bk in slow_paths:
    LAB(sl)
    for x in ins: A(x)
    A(f's_branch {bk}')
LAB('L_fail')
if CFG['dbgfail']:
    set_exec(1)
    A(f'v_mov_b32 v1, 0x1ffff0'); A(f's_lshl_b32 s56, s2, 16'); A(f's_lshl_b32 s57, {sWAVE}, 8'); A('s_or_b32 s56, s56, s57'); A(f's_or_b32 s56, s56, {sTMP}'); A('v_mov_b32 v2, s56')
    A(f'global_store_dword v1, v2, {pWS} sc1')
    set_exec(-1)
if CFG['stamps']:
    LAB('L_stamps')
    A('s_waitcnt lgkmcnt(0)')
    A('v_mov_b32 v2, 0')
    for i in range(16): A(f'v_writelane_b32 v2, s{64+2*i}, {i}')
    A(f's_lshl_b32 s56, {sT}, 3'); A(f's_add_u32 s56, s56, {sG}'); A(f's_mul_i32 s56, s56, {NW}'); A(f's_add_u32 s56, s56, {sWAVE}'); A('s_lshl_b32 s56, s56, 6'); A(f's_add_u32 s56, s56, {STAMPS}')
    A('v_lshl_add_u32 v1, v0, 2, s56')
    set_exec(0xffff); A(f'global_store_dword v1, v2, {pWS}')
LAB('L_exit')
A('s_endpgm')
LAB('L_codeend')

body = pad_hazards(L)
vg = (max(vg_A, vg_W) + 7) // 8 * 8
hdr = open('cdna_kernels/' + KN + '.s.ref').read().split('; Override launch')[0]
name = KN + '_kernel'
DOC = """;
"""
txt = hdr + DOC.lstrip(';\n').join(['; ', '']) if False else hdr + DOC + f"""; @launch grid=(256,1,1) block=({64*NW},1,1) lds={LDS_BYTES}
.amdgcn_target "amdgcn-amd-amdhsa--gfx950"
.text
.globl {name}
.p2align 8
.type {name},@function
{name}:
""" + '\n'.join(body) + f"""
.section .rodata,"a"
.p2align 6
.amdhsa_kernel {name}
  .amdhsa_next_free_vgpr {vg}
  .amdhsa_next_free_sgpr 100
  .amdhsa_accum_offset {vg}
  .amdhsa_group_segment_fixed_size 0
  .amdhsa_kernarg_size 112
  .amdhsa_user_sgpr_count 2
  .amdhsa_user_sgpr_kernarg_segment_ptr 1
  .amdhsa_system_sgpr_workgroup_id_x 1
  .amdhsa_float_denorm_mode_32 3
.end_amdhsa_kernel
"""
open(OUT, 'w').write(txt)
print('vgprs', vg_A, vg_W, 'lines', len(body), file=sys.stderr)
```

```python
import sys
from kasm import pad_hazards, Alloc, Reg

KN = 'adaLN_cond__sliding_block_cached__glu_gated_glu__decode'
CFG = dict(stamps=0, limit=2000000, pf=1, dbgfail=1, amp=0, ptries=40,
           WA0=28, NA0=0, WA=28, WO0=24, NO0=0, WO1=24, WG=32, nt=1, only='', early=0, QK=3, qgap=4, GK=1, ggap=2, LK=1, lgap=2,
           qstart=4, prio=0, mrpos=0, rep=1, hint=4, qh=1, qsl=0, HK=3, hgap=3, ksw=1, LKr=2, LKc=2, LKx=1, LKh=1, LKa=2, gpf=0, WG0=32, NG0=0, gg=0, nogo=0, s9=1, ampe=0, wqd=0, ampm=0, pv=0, pvf='nt', mlb=0, fpre=1, vgate=8, trace=0, near=4, gat2=1, GK2=3, gd2=0, gat3=1, GK3=3, gd3=0, mrg=0, tlb=0, gat=1, gat1=0, G1K=1, gpt=0, mpt=0, gdly=0, gsw=1, mpw=1, hall=0, hret=63, kvi=1, ilv=0, X0=8, lprio=3, cprio=3)
CFG.update(WA0=48, WA=48, QK=4, qgap=8, qh=0, qstart=2, qsl=0, X0=4, hint=1, GK2=1, gd2=6, hall=1, WO0=32, WO1=32, WG=32, kvi=2, GK=3, ggap=4, gpt=2)
for a in sys.argv[2:]:
    k, v = a.split('=')
    assert k in CFG, k
    CFG[k] = int(v) if v.lstrip('-').isdigit() else v
OUT = sys.argv[1]

EP = 0; S_MR = 0x8000; S_M = 0x10000; G2 = 0x20000; G3 = 0x30000
LB0 = 0x40000; LBS = 0x18000
H_ = 0; MV = 0x800; X2 = 0x1800; MLG = 0x2000; GAB = 0x2400 + 0x4000; HINT = 0x2800; Q_ = 0x3000; A_ = 0x8000; B1 = 0x10000
PROBE = 0x110000
STAMPS = 0x200000
KK = 0; VV = 0x10000; MM = 0x20000; OL = 0x22000
GU = 0; DN = 0x8000
WQ = 0; WO = 0x8000; MR = 0x10000
SC = 0x26800
QL = SC; QS = 320; MX = SC + 0x600; LX = SC + 0x680; HL = SC; OB = SC + 0x800; FLG = SC + 0x900; CL = SC + 0xA00
OS = 576
F_LP = FLG; F_PF = FLG + 4; F_PURE = FLG + 52; F_G1 = FLG + 8; F_QP = FLG + 12; F_Q = FLG + 56; F_AP = FLG + 16; F_WI = FLG + 20; F_B1 = FLG + 24; F_O = FLG + 28; F_GA = FLG + 32; F_GO = FLG + 40; F_MP = FLG + 44; F_CP = FLG + 36; F_SF = FLG + 48; F_MX = FLG + 60; F_GG = FLG + 28
PB = OL; PBS = 256
LDS_BYTES = SC + 0xE00
NO = 5
NW = 10
sWAVE, sG, sT, sE, sT6, sT16, sT6b = 's3', 's4', 's5', 's6', 's7', 's8', 's9'
sU, sSL, sCNT, sTMP = 's10', 's11', 's14', 's15'
pX, pK, pV, pWQ, pWO, pBX, pWG, pWU, pWD, pC, pWM, pOUT, pDBG, pWS = [f's[{16+2*i}:{17+2*i}]' for i in range(14)]
pLB = 's[44:45]'; sPURE = 's46'; sMASK = 's47'; sSEL = 's48'; sHI = 's49'; sL2E = 's50'; sCM = 's12'; sCP = 's51'
def lo(p): return 's' + p[2:-1].split(':')[0]
def hi(p): return 's' + p[2:-1].split(':')[1]
TM = 0x3f

L = []
def A(x): L.append('    ' + x)
def LAB(x): L.append(x + ':')
uid = [0]
def nl(p='L'):
    uid[0] += 1; return f'{p}_{uid[0]}'
slow_paths = []
def stamp(i):
    if CFG['ampe'] == i and i: A('s_memrealtime s[90:91]')
    if CFG['stamps'] and (CFG['stamps'] >> i) & 1: A(f's_memrealtime s[{64+2*i}:{65+2*i}]')
def set_exec(mask):
    if mask == -1: A('s_mov_b64 exec, -1'); return
    l, h = mask & 0xffffffff, mask >> 32
    if h == 0 and l <= 64: A(f's_mov_b64 exec, {l}'); return
    A(f's_mov_b32 exec_lo, {l:#x}'); A(f's_mov_b32 exec_hi, {h:#x}')
M_N0 = 0x0001000100010001; M_N4 = 0x000F000F000F000F; M_N8 = 0x00FF00FF00FF00FF; M_N2 = 0x0003000300030003; M_Q0 = 0x1111111111111111
def rnd(d, s):
    A(f'v_cvt_pk_bf16_f32 {d}, {s}, {s}'); A(f'v_and_b32 {d}, {sHI}, {d}')
def dpp(op, d, a, b, ctl, bank=0xf, row=0xf):
    if b is None: A(f'{op}_dpp {d}, {a} {ctl} row_mask:{row:#x} bank_mask:{bank:#x}')
    else: A(f'{op}_dpp {d}, {a}, {b} {ctl} row_mask:{row:#x} bank_mask:{bank:#x}')
def row_allred(op, regs, shifts=(8, 4, 2, 1)):
    for sh in shifts:
        for r in regs: dpp(op, r, r, r, f'row_ror:{sh}')
def xrow_allred(op, v, t):
    A(f'v_mov_b32 {t}, {v}'); A(f'v_permlane16_swap_b32 {v}, {t}'); A(f'{op} {v}, {v}, {t}')
    A(f'v_mov_b32 {t}, {v}'); A(f'v_permlane32_swap_b32 {v}, {t}'); A(f'{op} {v}, {v}, {t}')
def tred4(v):
    A(f'v_permlane32_swap_b32 {v[0]}, {v[1]}'); A(f'v_permlane32_swap_b32 {v[2]}, {v[3]}')
    A(f'v_add_f32 {v[0]}, {v[0]}, {v[1]}'); A(f'v_add_f32 {v[2]}, {v[2]}, {v[3]}')
    A(f'v_permlane16_swap_b32 {v[0]}, {v[2]}'); A(f'v_add_f32 {v[0]}, {v[0]}, {v[2]}')
def fail_branch(code, loop):
    A(f's_sub_u32 {sCNT}, {sCNT}, 1'); A(f's_cbranch_scc0 {loop}')
    if CFG['dbgfail']: A(f's_mov_b32 {sTMP}, {code}')
    A('s_branch L_fail')
def check(raw, out, tag, maskbits, chk, full=()):
    for r, o in zip(raw, out): A(f'v_xor_b32 {o}, {tag}, {r}')
    o = list(out)
    if len(o) == 1: A(f'v_and_b32 {chk}, {maskbits:#x}, {o[0]}'); o = None
    elif len(o) == 2: A(f'v_or_b32 {chk}, {o[0]}, {o[1]}'); o = []
    else: A(f'v_or3_b32 {chk}, {o[0]}, {o[1]}, {o[2]}'); o = o[3:]
    if o is not None:
        while len(o) >= 2: A(f'v_or3_b32 {chk}, {chk}, {o[0]}, {o[1]}'); o = o[2:]
        if o: A(f'v_or_b32 {chk}, {chk}, {o[0]}')
        A(f'v_and_b32 {chk}, {maskbits:#x}, {chk}')
    for r in full: A(f'v_xor_b32 {r}, {sE}, {r}'); A(f'v_or_b32 {chk}, {chk}, {r}')
    A(f'v_cmp_ne_u32 vcc, 0, {chk}')
def poll(code, loads, raw, out, tag, maskbits, chk, full=(), shadow=None, sleep=0, issued=False):
    lp, ok, lw = nl('P'), nl('OK'), nl('PW')
    A(f's_mov_b32 {sCNT}, {CFG["limit"]}')
    if shadow or issued:
        if not issued:
            for x in loads: A(x)
        if shadow: shadow()
        A(f's_branch {lw}')
    LAB(lp)
    if sleep: A(f's_sleep {sleep}')
    for x in loads: A(x)
    LAB(lw)
    A('s_waitcnt vmcnt(0)')
    check(raw, out, tag, maskbits, chk, full)
    A(f's_cbranch_vccz {ok}')
    fail_branch(code, lp)
    LAB(ok)
def ppoll(code, K, gap, mk, nld, sets, out, tag, maskbits, extra=()):
    if K == 1:
        poll(code, mk(sets[0]) + list(extra), [sets[0][i] for i in range(sets[0].n)], out, tag, maskbits, vCH); return
    lp, ok = nl('PP'), nl('OK')
    A(f's_mov_b32 {sCNT}, {CFG["limit"]}')
    for k in range(K - 1):
        for x in mk(sets[k]): A(x)
        if gap: A(f's_sleep {gap}')
    LAB(lp)
    for k in range(K):
        for x in mk(sets[(k + K - 1) % K]): A(x)
        for x in extra: A(x)
        A(f's_waitcnt vmcnt({(K-1)*nld})')
        check([sets[k][i] for i in range(sets[k].n)], out, tag, maskbits, vCH)
        A(f's_cbranch_vccz {ok}')
    fail_branch(code, lp)
    LAB(ok)
def lds_wait(code, off, val, tmp, sleep=0, vaddr=None, spec=()):
    lp, ok, ag = nl('W'), nl('OK'), nl('AG')
    va = vaddr or vZ
    if spec:
        A(f'ds_read_b32 {tmp}, {va} offset:{off - FLG}')
        for x in spec: A(x)
        A(f's_waitcnt lgkmcnt({min(15, len(spec))})')
        A(f'v_readfirstlane_b32 {sTMP}, {tmp}'); A(f's_cmp_ge_u32 {sTMP}, {val}'); A(f's_cbranch_scc1 {ok}')
    A(f's_mov_b32 {sCNT}, {CFG["limit"]}')
    LAB(lp)
    A(f'ds_read_b32 {tmp}, {va} offset:{off - FLG}')
    A('s_waitcnt lgkmcnt(0)')
    A(f'v_readfirstlane_b32 {sTMP}, {tmp}')
    A(f's_cmp_ge_u32 {sTMP}, {val}')
    A(f's_cbranch_scc1 {ag}')
    if sleep: A(f's_sleep {sleep}')
    fail_branch(code, lp)
    LAB(ag)
    for x in spec: A(x)
    LAB(ok)
def lds_wait8(code, off, fl, reads):
    lp, ok, again = nl('W'), nl('OK'), nl('AG')
    def flags():
        A(f'ds_read_b128 {fl[0:4]}, {vZ} offset:{off - FLG}'); A(f'ds_read_b128 {fl[4:8]}, {vZ} offset:{off - FLG + 16}')
    def test():
        A(f'v_and_b32 {fl[0]}, {fl[0]}, {fl[1]}')
        for i in (2, 4, 6): A(f'v_bitop3_b32 {fl[0]}, {fl[0]}, {fl[i]}, {fl[i+1]} bitop3:0x80')
        A(f'v_cmp_eq_u32 vcc, 0, {fl[0]}')
    A(f's_mov_b32 {sCNT}, {CFG["limit"]}')
    LAB(lp)
    flags()
    for x in reads: A(x)
    A(f's_waitcnt lgkmcnt({min(15, len(reads))})')
    test()
    A(f's_cbranch_vccz {ok}')
    fail_branch(code, lp)
    LAB(ok)
def gld(d, a, off=0, key='gat'):
    o = f' offset:{off}' if off else ''
    if CFG[key]: return f'global_atomic_add {d}, {a}, {vZero}, {pWS}{o} sc0 sc1'
    return f'global_load_dword {d}, {a}, {pWS}{o} sc1'
def near_update():
    if not CFG['near']: return
    A(f'ds_read_b32 {vT0}, {vZ} offset:{F_CP - FLG}'); A('s_waitcnt lgkmcnt(0)'); A(f'v_readfirstlane_b32 s56, {vT0}')
    A('s_cmp_eq_u32 s56, 1'); A(f's_cselect_b32 {sCP}, 0, {sCP}'); A('s_cmp_eq_u32 s56, 2'); A(f's_cselect_b32 {sCP}, 0x2000, {sCP}')
def pure_read(): return f'ds_read_b32 {vPU}, {vZ} offset:{F_PURE - FLG}'
def pure_update(): A(f'v_readfirstlane_b32 {sPURE}, {vPU}')
def lstore(instrs):
    sl, bk = nl('SL'), nl('BK')
    A(f's_cmp_eq_u32 {sPURE}, 1'); A(f's_cbranch_scc0 {sl}')
    for x in instrs: A(x)
    LAB(bk)
    slow_paths.append((sl, [x + ' sc1' for x in instrs], bk))
def tagf(d, s, vtag): A(f'v_and_or_b32 {d}, {s}, {sMASK}, {vtag}')
def epoch_wait():
    A('s_waitcnt lgkmcnt(0)')
    A(f's_add_u32 {sE}, {sE}, 1')
    A(f's_and_b32 {sT6}, {sE}, {TM:#x}'); A(f's_and_b32 {sT16}, {sE}, 0xffff'); A(f's_xor_b32 {sT6b}, {sT6}, 0x20')
    A(f'v_mov_b32 {vTg}, {sT6}'); A(f'v_mov_b32 {vTgb}, {sT6b}')
def silu_bf(d, c, t1, t2, t3):
    A(f'v_mul_f32 {t1}, {sL2E}, {c}'); A(f'v_exp_f32 {t1}, -{t1}'); A(f'v_add_f32 {t1}, 1.0, {t1}'); A(f'v_rcp_f32 {t2}, {t1}'); A(f'v_mul_f32 {t3}, {c}, {t2}')
    A(f'v_fma_f32 {t1}, -{t3}, {t1}, {c}'); A(f'v_fma_f32 {t1}, {t1}, {t2}, {t3}')
    A(f'v_cmp_o_f32 vcc, {t1}, {t1}'); A(f'v_cndmask_b32 {d}, {t3}, {t1}, vcc')
def end_wave():
    if CFG['stamps']: A('s_branch L_stamps')
    else: A('s_endpgm')
def flag(off): A(f'ds_write_b32 {vZ}, {vOne} offset:{off - FLG}')
NT = ' nt' if CFG['nt'] else ''
vL = 'v0'
MKA = dict(M=1, K0=2, V0=10, GU=18, DN=19)
MKW = dict(WQ=1, MR=2, WO=3)

LAB('L_start')
stamp(0)
if CFG['amp']: A('s_memrealtime s[92:93]')
A('s_cmp_ge_u32 s2, 256'); A('s_cbranch_scc1 L_exit')
A('s_load_dwordx16 s[16:31], s[0:1], 0'); A('s_load_dwordx8 s[32:39], s[0:1], 64'); A('s_load_dwordx4 s[40:43], s[0:1], 96')
A('v_lshrrev_b32 v1, 6, v0'); A('v_and_b32 v0, 63, v0'); A(f'v_readfirstlane_b32 {sWAVE}, v1')
A(f's_and_b32 {sG}, s2, 7'); A(f's_lshr_b32 {sT}, s2, 3'); A(f's_and_b32 {sU}, {sT}, 15')
V = Alloc('v', 1, 168)
vN, vQ, vR, vC, vT0, vT1, vT2, vT3, vCH, vZ, vTg, vTgb, vPU, vOne, vC8, vQ16, vDUM, vZero = [V() for _ in range(18)]
vX = V(4); vXd = V()
mP = V.mark()
A(f's_cmp_lt_u32 {sWAVE}, 8'); A('s_cbranch_scc1 L_i_c')
A(f's_cmp_eq_u32 {sWAVE}, 9'); A('s_cbranch_scc0 L_i_8')
if CFG['pf']:
    A('s_getpc_b64 s[56:57]')
    LAB('L_pc')
    A('s_sub_u32 s56, s56, L_pc - L_start'); A('s_subb_u32 s57, s57, 0')
    A(f's_and_b32 s58, {sT}, 3'); A('s_lshl_b32 s58, s58, 13'); A(f'v_lshl_add_u32 {vT0}, {vL}, 7, s58'); A(f'v_min_u32 {vT0}, L_codeend - L_start - 4, {vT0}')
    A(f'global_load_dword {vDUM}, {vT0}, s[56:57]')
A('s_branch L_i_9')
LAB('L_i_8')
if CFG['lprio']: A(f's_setprio {CFG["lprio"]}')
A(f'v_lshrrev_b32 v2, 3, {vL}'); A(f'v_and_b32 v3, 7, {vL}'); A(f's_lshl_b32 s58, {sG}, 7')
A(f's_cmp_ge_u32 {sT}, 16'); A('s_cbranch_scc1 L_i_8W')
A('v_mul_u32_u24 v1, 6144, v2'); A(f's_lshr_b32 s56, {sU}, 1'); A(f's_mul_i32 s56, s56, {64*6144}'); A(f's_and_b32 s57, {sU}, 1'); A('s_lshl_b32 s57, s57, 10')
A('s_add_u32 s56, s56, s57'); A('s_add_u32 s56, s56, s58'); A(f's_mov_b32 m0, {MM}'); A(f's_mov_b32 s59, {8*6144}'); A('s_mov_b32 s60, 1')
A('s_waitcnt lgkmcnt(0)'); A(f's_mov_b64 s[62:63], {pWM}')
A('s_branch L_i_8go')
LAB('L_i_8W')
A('v_lshlrev_b32 v1, 13, v2'); A(f's_lshr_b32 s56, {sU}, 3'); A('s_lshl_b32 s56, s56, 21'); A(f's_and_b32 s57, {sU}, 7'); A('s_lshl_b32 s57, s57, 7')
A('s_add_u32 s56, s56, s57'); A('s_lshl_b32 s58, s58, 3'); A('s_add_u32 s56, s56, s58'); A(f's_mov_b32 m0, {WQ}'); A('s_mov_b32 s59, 65536'); A('s_mov_b32 s60, 4')
A('s_waitcnt lgkmcnt(0)'); A(f's_mov_b64 s[62:63], {pWQ}')
for k in range(CFG['wqd']): A(f's_load_dword {sE}, {pWS}, {EP + 4096*k}'); A('s_waitcnt lgkmcnt(0)')
LAB('L_i_8go')
A('v_lshl_add_u32 v1, v3, 4, v1'); A('v_add_u32 v1, s56, v1')
LAB('L_i_8loop')
for _ in range(8): A(f'global_load_lds_dwordx4 v1, s[62:63]{NT}'); A('s_add_u32 m0, m0, 1024'); A('v_add_u32 v1, s59, v1')
A('s_sub_u32 s60, s60, 1'); A('s_cmp_lg_u32 s60, 0'); A('s_cbranch_scc1 L_i_8loop')
A('s_branch L_loader')
LAB('L_i_c')
if CFG['only'].startswith('loader'):
    A('s_waitcnt lgkmcnt(0)'); A('s_barrier'); A('s_branch L_stamps')
A(f's_cmp_ge_u32 {sWAVE}, 4'); A('s_cbranch_scc0 L_i_03')
A(f's_lshr_b32 s56, {sU}, 2'); A('s_lshl_b32 s56, s56, 8'); A(f'v_lshl_add_u32 {vT2}, {vL}, 2, s56')
A('s_waitcnt lgkmcnt(0)')
A(f'global_load_dword {vXd}, {vT2}, {pC}')
A('s_branch L_i_done')
LAB('L_i_03')
A(f'v_lshlrev_b32 {vT0}, 4, {vL}')
A(f's_add_u32 s57, {sWAVE}, 1'); A('s_and_b32 s57, s57, 1'); A(f's_lshl_b32 s56, {sU}, 1'); A('s_add_u32 s56, s56, s57'); A('s_lshl_b32 s56, s56, 5')
A(f'v_and_b32 {vT1}, 15, {vL}'); A(f'v_lshl_add_u32 {vT1}, {vT1}, 1, s56')
A(f's_sub_u32 s57, {sWAVE}, 1'); A(f's_lshr_b32 s56, {sT}, 4'); A('s_xor_b32 s56, s56, 1'); A('s_lshl_b32 s56, s56, 1'); A('s_or_b32 s57, s57, s56')
A('s_waitcnt lgkmcnt(0)')
A('s_cmp_lt_u32 s57, 2'); A('s_cbranch_scc0 L_i_done')
A(f'global_load_dwordx4 {vX}, {vT0}, {pX}'); A(f'global_load_ushort {vXd}, {vT1}, {pX}')
A('s_branch L_i_done')
LAB('L_i_9')
if CFG['only'].startswith('loader'):
    A('s_waitcnt lgkmcnt(0)'); A('s_barrier'); A('s_branch L_stamps')
if CFG['cprio']: A(f's_setprio {CFG["cprio"]}')
A(f'v_lshlrev_b32 {vT1}, 2, {vL}'); A(f'v_add_u32 {vT1}, {FLG}, {vT1}'); A(f'v_mov_b32 {vT2}, 0')
set_exec(0xffffffff); A(f'ds_write_b32 {vT1}, {vT2}'); set_exec(-1)
A('s_getreg_b32 s52, hwreg(HW_REG_XCC_ID)'); A('s_and_b32 s52, s52, 15'); A('s_or_b32 s52, s52, 0x80')
A(f's_lshl_b32 s56, {sG}, 5'); A(f's_add_u32 s57, s56, {sT}'); A(f'v_mov_b32 {vT0}, s57'); A(f'v_mov_b32 {vT1}, s52')
A('s_waitcnt lgkmcnt(0)')
set_exec(1); A(f'global_store_byte {vT0}, {vT1}, {pDBG}')
if CFG['ampm']:
    A(f's_lshl_b32 s57, s57, 2'); A('s_add_u32 s57, s57, 0x180000'); A(f'v_mov_b32 {vT0}, s57'); A(f'v_mov_b32 {vT1}, s92'); A(f'global_store_dword {vT0}, {vT1}, {pWS} sc1')
set_exec(-1)
LAB('L_i_done')
A(f's_load_dword {sE}, {pWS}, {EP}')
A(f's_getreg_b32 {sCP}, hwreg(HW_REG_XCC_ID)'); A(f's_and_b32 {sCP}, {sCP}, {4 if CFG["rep"] else 0}'); A(f's_lshl_b32 {sCP}, {sCP}, 11')
A(f's_mov_b32 {sMASK}, {0xffffffff ^ TM:#x}'); A(f's_mov_b32 {sSEL}, 0x07060302'); A(f's_mov_b32 {sHI}, 0xffff0000'); A(f's_mov_b32 {sL2E}, 0x3fb8aa3b'); A(f's_mov_b32 {sPURE}, 0')
A(f's_mul_i32 s53, {sG}, {LBS}'); A(f's_add_u32 s53, s53, {LB0}'); A(f's_add_u32 {lo(pLB)}, {lo(pWS)}, s53'); A(f's_addc_u32 {hi(pLB)}, {hi(pWS)}, 0')
A(f'v_mov_b32 {vZ}, {FLG}'); A(f'v_mov_b32 {vOne}, 1'); A(f'v_mov_b32 {vZero}, 0')
A(f'v_and_b32 {vN}, 15, {vL}'); A(f'v_lshrrev_b32 {vQ}, 4, {vL}'); A(f'v_bfe_u32 {vR}, {vL}, 2, 2'); A(f'v_and_b32 {vC}, 3, {vL}')
A(f'v_lshlrev_b32 {vC8}, 3, {vC}'); A(f'v_lshlrev_b32 {vQ16}, 4, {vQ}')
w2, w5, w6, w7, w8 = 's59', 's60', 's61', 's62', 's63'
A(f's_lshl_b32 {w2}, {sWAVE}, 2'); A(f's_lshl_b32 {w5}, {sWAVE}, 5'); A(f's_lshl_b32 {w6}, {sWAVE}, 6'); A(f's_lshl_b32 {w7}, {sWAVE}, 7'); A(f's_lshl_b32 {w8}, {sWAVE}, 8')

def pure_phase():
    lp, dn = nl('PP'), nl('PD')
    A('s_mul_i32 s52, s52, 0x01010101'); A(f'v_and_b32 {vT1}, 7, {vL}'); A(f's_lshl_b32 s56, {sG}, 5'); A(f'v_lshl_add_u32 {vT1}, {vT1}, 2, s56')
    A(f's_mov_b32 {sCNT}, {CFG["ptries"]}')
    LAB(lp)
    A(f'global_load_dword {vT0}, {vT1}, {pDBG} sc1'); A('s_waitcnt vmcnt(0)')
    A(f'v_cmp_ne_u32 vcc, s52, {vT0}'); A(f's_cbranch_vccz {lp}_ok')
    A(f's_sub_u32 {sCNT}, {sCNT}, 1'); A(f's_cbranch_scc0 {lp}'); A(f's_branch {dn}')
    LAB(lp + '_ok')
    flag(F_PURE)
    LAB(dn)
    stamp(2)

A(f's_cmp_ge_u32 {sT}, 16'); A('s_cbranch_scc1 L_W')
A(f's_cmp_eq_u32 {sWAVE}, 9'); A('s_cbranch_scc1 L_A9')
aK = V(4, 1); aQB, aMw, aMr, aVx, aPw, aPr, aAst = [V() for _ in range(7)]
A(f's_lshl_b32 s58, {sWAVE}, 13')
A(f'v_xor_b32 {vT0}, {vQ}, {vN}'); A(f'v_lshlrev_b32 {vT0}, 4, {vT0}'); A(f'v_lshl_add_u32 {vT0}, {vN}, 8, {vT0}'); A(f'v_add_u32 {aK[0]}, s58, {vT0}')
for ks in range(1, 4): A(f'v_xor_b32 {aK[ks]}, {64*ks}, {aK[0]}')
A(f'v_mul_u32_u24 {aQB}, {QS}, {vC}'); A(f'v_add3_u32 {aQB}, {aQB}, {vQ16}, {vZ}'); A(f'v_add_u32 {aQB}, {QL - FLG}, {aQB}')
A(f'v_lshlrev_b32 {aMr}, 5, {vC}'); A(f'v_add_u32 {aMr}, {MX}, {aMr}'); A(f'v_add_u32 {aMw}, {w2}, {aMr}')
A(f'v_lshl_add_u32 {vT0}, {vQ}, 2, {vR}'); A(f'v_and_b32 {vT1}, 7, {vT0}'); A(f'v_lshl_add_u32 {aVx}, {vT0}, 8, {vC8}'); A(f'v_lshl_add_u32 {aVx}, {vT1}, 5, {aVx}')
A(f'v_xor_b32 {aVx}, {w5}, {aVx}'); A(f'v_add_u32 {aVx}, {VV}, {aVx}')
A(f'v_lshl_add_u32 {vT2}, {vC}, 6, {vQ16}'); A(f's_add_u32 s56, {w8}, {PB}'); A(f'v_lshl_add_u32 {aPw}, {vR}, 2, {vT2}'); A(f'v_add_u32 {aPw}, s56, {aPw}')
A(f'v_add_u32 {aPr}, {PB}, {vT2}')
A(f's_lshl_b32 s57, {sU}, 11'); A(f's_add_u32 s56, s57, {w6}'); A(f's_add_u32 s56, s56, {A_}')
A(f'v_lshl_add_u32 {aAst}, {vC}, 9, {vQ16}'); A(f'v_add_u32 {aAst}, s56, {aAst}')
A('s_barrier')
epoch_wait()
stamp(1)
A(f's_cmp_ge_u32 {sWAVE}, 4'); A('s_cbranch_scc0 L_A_main')
def mod_tile(base, nks, koff_expr, vSt, mark, mask, code, sleep, before_wait=None):
    vCc = V(4 * nks); vMa = V(4 * nks); vD = V(4); aM, aC = V(), V()
    A(f's_sub_u32 s56, {w8}, {1024 - CL}'); A(f'v_lshl_add_u32 {vT2}, {vL}, 2, s56'); koff_expr(); A(f'v_add_u32 {aC}, s56, {vQ16}')
    A(f's_sub_u32 s56, {w5}, {128 - base}'); A(f'v_lshl_add_u32 {aM}, {vQ}, 3, {vR}'); A(f'v_lshl_add_u32 {aM}, {aM}, 7, {vC8}'); A(f'v_add_u32 {aM}, s56, {aM}')
    A('s_waitcnt vmcnt(0)')
    A(f'v_lshlrev_b32 {vX[0]}, 16, {vXd}'); A(f'v_and_b32 {vX[1]}, {sHI}, {vXd}')
    silu_bf(vX[0], vX[0], vT0, vX[2], vX[3]); silu_bf(vX[1], vX[1], vT1, vX[2], vX[3])
    A(f'v_cvt_pk_bf16_f32 {vXd}, {vX[0]}, {vX[1]}')
    A(f'ds_write_b32 {vT2}, {vXd}')
    for ks in range(nks): A(f'ds_read_b128 {vCc[4*ks:4*ks+4]}, {aC} offset:{64*ks}')
    if before_wait: before_wait()
    reads = [x for ks in range(nks) for x in (f'ds_read_b64_tr_b16 {vMa[4*ks:4*ks+2]}, {aM} offset:{4096*ks}', f'ds_read_b64_tr_b16 {vMa[4*ks+2:4*ks+4]}, {aM} offset:{4096*ks + 512}')]
    lds_wait(code, F_LP, mark, vT0, spec=reads, sleep=sleep)
    for ks in range(nks):
        A(f's_waitcnt lgkmcnt({2*(nks-1-ks)})')
        A(f'v_mfma_f32_16x16x32_bf16 {vD}, {vMa[4*ks:4*ks+4]}, {vCc[4*ks:4*ks+4]}, {0 if ks == 0 else vD}')
    for r in range(4): tagf(vD[r], vD[r], vTg)
    set_exec(mask); A(f'global_store_dwordx4 {vSt}, {vD}, {pWS} sc1')
m = V.mark()
vSt = V()
A(f's_lshl_b32 s56, {sU}, 3'); A(f's_add_u32 s56, s56, {sG}'); A('s_lshl_b32 s56, s56, 8'); A(f's_add_u32 s56, s56, {w6}'); A(f's_sub_u32 s56, s56, 256')
A('s_and_b32 s57, s56, 0xffffe000'); A('s_add_u32 s56, s56, s57'); A(f's_add_u32 s56, s56, {S_M}'); A(f'v_lshl_add_u32 {vSt}, {vN}, 13, {vQ16}'); A(f'v_add_u32 {vSt}, s56, {vSt}')
mod_tile(MM, 2, lambda: (A(f's_and_b32 s57, {sU}, 2'), A('s_lshl_b32 s57, s57, 6'), A('s_add_u32 s56, s56, s57')), vSt, MKA['M'], M_N2, 20, 0)
set_exec(1); A(f'ds_add_u32 {vZ}, {vOne} offset:{F_MP - FLG}'); set_exec(-1)
stamp(3)
V.release(m)
LAB('L_A_main')
mA = V.mark()
vK = V(32); vV = V(32); vQB = V(16); vS = V(8); vP = V(); vM, vLs = V(), V()
A(f's_add_u32 s57, {sWAVE}, {MKA["K0"]}')
lds_wait(5, F_LP, 's57', vT0, sleep=1)
for T in range(2):
    for ks in range(4): A(f'ds_read_b128 {vK[16*T+4*ks:16*T+4*ks+4]}, {aK[ks]} offset:{4096*T}')
stamp(7)
xreads = lambda cs: [x for c in cs for x in (f'ds_read_b64_tr_b16 {vV[4*c:4*c+2]}, {aVx} offset:{8192*c}', f'ds_read_b64_tr_b16 {vV[4*c+2:4*c+4]}, {aVx} offset:{8192*c + 4096}')]
sNV = 's13'
A(f's_mov_b32 {sNV}, 0'); A(f's_mov_b32 s58, {MKA["V0"] + NO - 1}')
lp, ok, nv, n2 = nl('W'), nl('OK'), nl('NV'), nl('N2')
A(f's_mov_b32 {sCNT}, {CFG["limit"]}')
LAB(lp)
A(f'ds_read_b32 {vT1}, {vZ} offset:{F_Q - FLG}'); A(f'ds_read_b32 {vT2}, {vZ} offset:{F_LP - FLG}')
A('s_waitcnt lgkmcnt(0)')
A(f'v_readfirstlane_b32 {sTMP}, {vT1}'); A(f'v_readfirstlane_b32 s56, {vT2}')
A(f's_cmp_eq_u32 {sTMP}, 1'); A(f's_cbranch_scc1 {ok}')
A('s_cmp_ge_u32 s56, s58'); A(f's_cbranch_scc0 {nv}')
A(f's_cmp_eq_u32 {sNV}, 0'); A(f's_cbranch_scc0 {n2}')
for x in xreads(range(NO)): A(x)
A(f's_mov_b32 {sNV}, 1'); A(f's_mov_b32 s58, {MKA["V0"] + 7}'); A(f's_branch {nv}')
LAB(n2)
for x in xreads(range(NO, 8)): A(x)
A(f's_mov_b32 {sNV}, 2'); A('s_mov_b32 s58, 99')
LAB(nv)
fail_branch(7, lp)
LAB(ok)
for ks in range(4): A(f'ds_read_b128 {vQB[4*ks:4*ks+4]}, {aQB} offset:{64*ks}')
A(pure_read())
stamp(8)
for ks in range(4):
    A(f's_waitcnt lgkmcnt({4-ks})')
    for T in range(2): A(f'v_mfma_f32_16x16x32_bf16 {vS[4*T:4*T+4]}, {vK[16*T+4*ks:16*T+4*ks+4]}, {vQB[4*ks:4*ks+4]}, {0 if ks == 0 else vS[4*T:4*T+4]}')
A('s_waitcnt lgkmcnt(0)'); pure_update()
A('s_mov_b32 s56, 0x3db504f3')
for k in (1, 2, 3):
    dpp('v_mov_b32', vS[0], vS[2*k], None, 'quad_perm:[0,1,2,3]', 1 << k); dpp('v_mov_b32', vS[1], vS[2*k+1], None, 'quad_perm:[0,1,2,3]', 1 << k)
A(f'v_cvt_pk_bf16_f32 {vP}, {vS[0]}, {vS[1]}'); A(f'v_lshlrev_b32 {vS[0]}, 16, {vP}'); A(f'v_and_b32 {vS[1]}, {sHI}, {vP}')
A(f'v_mul_f32 {vS[0]}, s56, {vS[0]}'); A(f'v_mul_f32 {vS[1]}, s56, {vS[1]}')
A(f'v_cvt_pk_bf16_f32 {vP}, {vS[0]}, {vS[1]}'); A(f'v_lshlrev_b32 {vS[0]}, 16, {vP}'); A(f'v_and_b32 {vS[1]}, {sHI}, {vP}')
A(f'v_max_f32 {vM}, {vS[0]}, {vS[1]}'); row_allred('v_max_f32', [vM], (4, 8)); xrow_allred('v_max_f32', vM, vT0)
set_exec(0xf); A(f'ds_write_b32 {aMw}, {vM}'); set_exec(1); A(f'ds_add_u32 {vZ}, {vOne} offset:{F_MX - FLG}'); set_exec(-1)
vMc = vQB[0:8]; vFg = vQB[8:10]; vPp = vK; vO = vQB[12:16]
lp, ok = nl('W'), nl('OK')
A(f's_mov_b32 {sCNT}, {CFG["limit"]}')
LAB(lp)
A(f'ds_read_b32 {vT1}, {vZ} offset:{F_MX - FLG}'); A(f'ds_read_b128 {vMc[0:4]}, {aMr}'); A(f'ds_read_b128 {vMc[4:8]}, {aMr} offset:16')
A('s_waitcnt lgkmcnt(2)')
A(f'v_cmp_ne_u32 vcc, 8, {vT1}'); A(f's_cbranch_vccz {ok}')
fail_branch(58, lp)
LAB(ok)
A('s_waitcnt lgkmcnt(0)')
A(f'v_max3_f32 {vM}, {vMc[0]}, {vMc[1]}, {vMc[2]}'); A(f'v_max3_f32 {vT0}, {vMc[3]}, {vMc[4]}, {vMc[5]}'); A(f'v_max3_f32 {vM}, {vM}, {vMc[6]}, {vMc[7]}'); A(f'v_max_f32 {vM}, {vM}, {vT0}')
A(f'v_mul_f32 {vT1}, {sL2E}, {vM}')
for i in range(2): A(f'v_fma_f32 {vS[i]}, {vS[i]}, {sL2E}, -{vT1}')
for i in range(2): A(f'v_exp_f32 {vS[i]}, {vS[i]}')
A(f'v_cvt_pk_bf16_f32 {vP}, {vS[0]}, {vS[1]}')
A(f'ds_write_b32 {aPw}, {vP}')
set_exec(1); A(f'ds_add_u32 {vZ}, {vOne} offset:{F_PF - FLG}'); set_exec(-1)
stamp(9)
A(f'v_add_f32 {vLs}, {vS[0]}, {vS[1]}'); row_allred('v_add_f32', [vLs], (4, 8)); xrow_allred('v_add_f32', vLs, vT3)
set_exec(0xf); A(f'ds_write_b32 {aMw}, {vLs} offset:{LX - MX}'); set_exec(1); A(f'ds_add_u32 {vZ}, {vOne} offset:{F_SF - FLG}'); set_exec(-1)
lp, ok = nl('W'), nl('OK')
A(f's_mov_b32 {sCNT}, {CFG["limit"]}')
LAB(lp)
A(f'ds_read_b64 {vFg}, {vZ}')
A('s_waitcnt lgkmcnt(0)')
A(f'v_cmp_ne_u32 vcc, 8, {vFg[1]}'); A(f's_cbranch_vccz {ok}')
fail_branch(8, lp)
LAB(ok)
for c in range(8): A(f'ds_read_b128 {vPp[4*c:4*c+4]}, {aPr} offset:{256*c}')
stamp(10)
def pvx(cs, waits):
    for i, c in enumerate(cs):
        if waits[i] is not None: A(f's_waitcnt lgkmcnt({waits[i]})')
        A(f'v_mfma_f32_16x16x32_bf16 {vO}, {vV[4*c:4*c+4]}, {vPp[4*c:4*c+4]}, {0 if c == 0 else vO}')
A(f's_cmp_eq_u32 {sNV}, 2'); A('s_cbranch_scc0 L_A_vlate')
pvx(range(8), [7 - c for c in range(8)])
LAB('L_A_pvdone')
for r in range(4): tagf(vO[r], vO[r], vTg)
set_exec(M_N4)
lstore([f'global_store_dwordx4 {aAst}, {vO}, {pLB}'])
set_exec(1); A(f'ds_add_u32 {vZ}, {vOne} offset:{F_AP - FLG}'); set_exec(-1)
stamp(11)
if CFG['gg']:
    sk = nl('S')
    A(f's_cmp_eq_u32 {sWAVE}, 4'); A(f's_cbranch_scc0 {sk}')
    if CFG['gg'] == 2: A(f'v_lshlrev_b32 {vT3}, 3, {vN}'); A(f'v_add_u32 {vT3}, {HINT + 128}, {vT3}')
    else: A(f's_lshl_b32 s56, {sU}, 3'); A(f's_add_u32 s56, s56, {HINT + 128}'); A(f'v_mov_b32 {vT3}, s56')
    lp, ok = nl('P'), nl('OK')
    A(f's_mov_b32 {sCNT}, {CFG["limit"]}')
    LAB(lp)
    A(f'global_load_dword {vT0}, {vT3}, {pLB} sc1'); A('s_waitcnt vmcnt(0)')
    A(f'v_cmp_ne_u32 vcc, {sE}, {vT0}'); A(f's_cbranch_vccz {ok}')
    fail_branch(60, lp)
    LAB(ok)
    flag(F_GG)
    LAB(sk)
A(f's_cmp_ge_u32 {sWAVE}, 4'); A('s_cbranch_scc1 L_A_end')
V.release(mP)
aDst, aMV, aX2, aX2b, aGu, aDn, aCst, aCld, v8qr = [V() for _ in range(9)]
vMk = V(4, 1); vMd = V(4, 1)
A(f'v_lshl_add_u32 {v8qr}, {vQ}, 3, {vR}')
A(f's_and_b32 s54, {sU}, 7'); A(f's_lshl_b32 s58, {sWAVE}, 9')
A(f'v_lshl_add_u32 {vT0}, {vN}, 6, {vQ16}')
A(f's_lshl_b32 s57, {sU}, 11'); A(f's_add_u32 s57, s57, {B1}'); A('s_add_u32 s56, s57, s58'); A(f'v_add_u32 {aDst}, s56, {vT0}')
A(f's_lshl_b32 s56, {sU}, 10'); A(f's_add_u32 s56, s56, {w8}'); A(f's_add_u32 s56, s56, {A_}'); A(f'v_add_u32 {aCst}, s56, {vT0}')
A(f'v_lshlrev_b32 {vT0}, 4, {vR}'); A(f'v_and_b32 {vT1}, 2, {vL}'); A(f'v_lshl_add_u32 {vT0}, {vT1}, 2, {vT0}'); A(f'v_lshl_add_u32 {vT0}, {vQ}, 1, {vT0}'); A(f'v_and_b32 {vT1}, 1, {vL}'); A(f'v_add_u32 {vT0}, {vT0}, {vT1}')
A('s_lshl_b32 s56, s54, 8'); A(f'v_lshl_add_u32 {vT0}, {vT0}, 4, s56'); A(f'v_and_b32 {vT0}, 2047, {vT0}')
A(f'v_add_u32 {aX2}, {X2}, {vT0}'); A(f'v_add_u32 {aMV}, {MV}, {vT0}'); A(f'v_xor_b32 {vT0}, 1024, {vT0}'); A(f'v_add_u32 {aX2b}, {X2}, {vT0}')
A(f'v_and_b32 {vT0}, 1, {vQ}'); A(f'v_lshl_add_u32 {vT0}, {vT0}, 2, {vR}'); A(f'v_lshlrev_b32 {vT0}, 5, {vT0}'); A(f'v_add_u32 {vT1}, {w7}, {vC8}')
if CFG['gsw']: A(f'v_xor_b32 {vT1}, {vT1}, {vT0}')
A(f'v_lshl_add_u32 {aGu}, {v8qr}, 9, {vT1}'); A(f'v_add_u32 {aGu}, {GU}, {aGu}')
A(f'v_and_b32 {vT0}, 1, {vQ}'); A(f'v_lshl_add_u32 {vT0}, {vT0}, 3, {vR}'); A(f'v_lshl_add_u32 {aDn}, {vT0}, 10, {vC8}'); A(f'v_lshrrev_b32 {vT1}, 1, {vQ}'); A(f'v_lshl_add_u32 {aDn}, {vT1}, 5, {aDn}')
A(f's_add_u32 s56, {w8}, {DN}'); A(f'v_add_u32 {aDn}, s56, {aDn}')
if CFG['gsw']:
    A(f'v_and_b32 {vT0}, 1, {vQ}'); A(f'v_lshl_add_u32 {vT0}, {vR}, 1, {vT0}'); A(f'v_lshlrev_b32 {vT0}, 5, {vT0}'); A(f'v_xor_b32 {aDn}, {aDn}, {vT0}')
A(f'v_bfe_u32 {vT0}, {vL}, 2, 1'); A(f'v_lshrrev_b32 {aCld}, 3, {vL}'); A(f'v_lshl_add_u32 {aCld}, {vT0}, 3, {aCld}'); A(f'v_lshlrev_b32 {aCld}, 10, {aCld}')
A(f'v_lshl_add_u32 {aCld}, {vC}, 4, {aCld}'); A(f's_lshl_b32 s56, {sU}, 6'); A(f's_add_u32 s56, s56, {A_}'); A(f'v_add_u32 {aCld}, s56, {aCld}')
for j in range(4):
    A(f'v_cmp_eq_u32 vcc, {j}, {vN}'); A(f'v_cndmask_b32 {vMk[j]}, 0, -1, vcc')
for jj in range(4):
    if jj: A(f'v_add_u32 {vT1}, 2, {vT1}')
    A(f'v_cmp_eq_u32 vcc, {vT1}, {vN}'); A(f'v_cndmask_b32 {vMd[jj]}, 0, -1, vcc')
A(f's_mov_b32 {sCM}, {M_N4 & 0xffffffff:#x}'); A(f's_cmp_eq_u32 {sWAVE}, 3'); A(f's_cselect_b32 {sCM}, {M_N2 & 0xffffffff:#x}, {sCM}')
vGu = V(32); vDn = V(16); vSB = V(4); vT1v = V(4); vXs = [V(8) for _ in range(max(CFG['LKx'], CFG['LKc']))]; vXr = vXs[0]; vXx = V(8); vHp = V(2); vBm = V(8); vD = V(4); vSum, vSq = V(), V()
A(f'global_load_dword {vDUM}, {aX2}, {pLB} sc1'); A(f'global_load_dword {vDUM}, {aX2b}, {pLB} sc1')
mv_loads = [f'global_load_dwordx4 {vXr[0:4]}, {aMV}, {pLB} sc1', f'global_load_dwordx4 {vXr[4:8]}, {aMV}, {pLB} offset:2048 sc1']
lds_wait(15, F_LP, MKA['GU'], vT0, sleep=1)
for x in mv_loads: A(x)
for j in range(4):
    A(f'v_xor_b32 {vT1}, {32*j}, {aGu}')
    for ks in range(2):
        r = vGu[8*j+4*ks:8*j+4*ks+4]
        A(f'ds_read_b64_tr_b16 {r[0:2]}, {vT1} offset:{16384*ks}'); A(f'ds_read_b64_tr_b16 {r[2:4]}, {vT1} offset:{16384*ks + 2048}')
    if j == 1: A('s_waitcnt lgkmcnt(4)')
lds_wait(16, F_LP, MKA['DN'], vT0)
for jj in range(4):
    A(f'v_xor_b32 {vT1}, {64*jj}, {aDn}'); A(f'ds_read_b64_tr_b16 {vDn[4*jj:4*jj+2]}, {vT1}'); A(f'ds_read_b64_tr_b16 {vDn[4*jj+2:4*jj+4]}, {vT1} offset:4096')
poll(13, mv_loads, [vXr[i] for i in range(8)], [vSB[i] for i in range(4)] + [vT1v[i] for i in range(4)], sT16, 0xffff, vCH, issued=True)
A('s_waitcnt lgkmcnt(0)')
stamp(6)
ppoll(17, CFG['LKx'], CFG['lgap'], lambda r: [f'global_load_dwordx4 {r[0:4]}, {aX2}, {pLB} sc1', f'global_load_dwordx4 {r[4:8]}, {aX2b}, {pLB} sc1'], 2, vXs, [vXx[i] for i in range(8)], sT16, 0xffff)
stamp(12)
A(f'v_add_f32 {vSum}, {vXx[0]}, {vXx[1]}'); A(f'v_mul_f32 {vSq}, {vXx[0]}, {vXx[0]}')
A(f'v_add_f32 {vT0}, {vXx[2]}, {vXx[3]}'); A(f'v_mul_f32 {vT1}, {vXx[1]}, {vXx[1]}')
for i in range(2, 8): A(f'v_fmac_f32 {vSq if i % 2 == 0 else vT1}, {vXx[i]}, {vXx[i]}')
A(f'v_add_f32 {vT2}, {vXx[4]}, {vXx[5]}'); A(f'v_add_f32 {vT3}, {vXx[6]}, {vXx[7]}'); A(f'v_add_f32 {vSum}, {vSum}, {vT0}'); A(f'v_add_f32 {vT2}, {vT2}, {vT3}')
A(f'v_add_f32 {vSq}, {vSq}, {vT1}'); A(f'v_add_f32 {vSum}, {vSum}, {vT2}')
A(f'v_permlane32_swap_b32 {vSum}, {vSq}'); A(f'v_add_f32 {vSum}, {vSum}, {vSq}')
A(f'v_mov_b32 {vSq}, {vSum}'); A(f'v_permlane16_swap_b32 {vSum}, {vSq}'); A(f'v_add_f32 {vSum}, {vSum}, {vSq}')
row_allred('v_add_f32', [vSum])
A(f'v_mul_f32 {vSum}, 0x3b000000, {vSum}')
A(f'v_mov_b32 {vSq}, {vSum}'); A(f'v_permlane32_swap_b32 {vSum}, {vSq}')
A(f'v_fma_f32 {vSq}, -{vSum}, {vSum}, {vSq}'); A(f'v_max_f32 {vSq}, 0, {vSq}'); A(f'v_add_f32 {vSq}, 0x3727c5ac, {vSq}'); A(f'v_rsq_f32 {vSq}, {vSq}')
for i in range(4): A(f'v_sub_f32 {vXx[i]}, {vXx[i]}, {vSum}')
for i in range(4): A(f'v_mul_f32 {vT1v[i]}, {vSq}, {vT1v[i]}')
for i in range(4): A(f'v_fma_f32 {vXx[i]}, {vXx[i]}, {vT1v[i]}, {vSB[i]}')
for i in range(2): A(f'v_cvt_pk_bf16_f32 {vHp[i]}, {vXx[2*i]}, {vXx[2*i+1]}')
k = 0
sk = nl('S')
for j in range(4):
    if j == 2: A(f's_cmp_eq_u32 {sWAVE}, 3'); A(f's_cbranch_scc1 {sk}')
    for ks in range(2):
        b = vBm[4*(k & 1):4*(k & 1)+4]
        for p in range(4): dpp('v_and_b32', b[p], vHp[p & 1], vMk[j], f'row_newbcast:{2*ks + (p >> 1)}')
        A(f'v_mfma_f32_16x16x32_bf16 {vD}, {vGu[8*j+4*ks:8*j+4*ks+4]}, {b}, {0 if k == 0 else vD}'); k += 1
LAB(sk)
for r in range(4): tagf(vD[r], vD[r], vTgb)
A(f's_mov_b32 exec_lo, {sCM}'); A(f's_mov_b32 exec_hi, {sCM}')
lstore([f'global_store_dwordx4 {aCst}, {vD}, {pLB}'])
set_exec(-1)
stamp(13)
vG = vXx
A(f's_cmp_ge_u32 {sU}, 14'); A('s_cbranch_scc1 L_A_zero')
ppoll(18, CFG['LKc'], CFG['lgap'], lambda r: [f'global_load_dwordx4 {r}, {aCld}, {pLB} sc1'], 1, [r[0:4] for r in vXs], [vG[i] for i in range(4)], sT6b, TM)
tred4(vG)
dpp('v_add_f32', vG[0], vG[0], vG[0], 'row_ror:8')
rnd(vG[0], vG[0])
A(f'v_mul_f32 {vT0}, {sL2E}, {vG[0]}'); A(f'v_exp_f32 {vT0}, -{vT0}'); A(f'v_add_f32 {vT0}, 1.0, {vT0}'); A(f'v_rcp_f32 {vT0}, {vT0}'); rnd(vT0, vT0)
dpp('v_mul_f32', vT0, vG[0], vT0, 'row_ror:12')
A(f'v_mov_b32 {vT1}, {vT0}'); A(f'v_permlane32_swap_b32 {vT0}, {vT1}'); A(f'v_cvt_pk_bf16_f32 {vT0}, {vT0}, {vT1}')
A(f'v_mov_b32 {vT1}, {vT0}'); A(f'v_permlane16_swap_b32 {vT0}, {vT1}')
vHh = vSB
for rowm, q0 in ((0x5, 0), (0xa, 2)):
    dpp('v_mov_b32', vHh[0], vT0, None, f'row_newbcast:{q0}', row=rowm); dpp('v_mov_b32', vHh[1], vT1, None, f'row_newbcast:{q0}', row=rowm)
    dpp('v_mov_b32', vHh[2], vT0, None, f'row_newbcast:{q0+1}', row=rowm); dpp('v_mov_b32', vHh[3], vT1, None, f'row_newbcast:{q0+1}', row=rowm)
for jj in range(4):
    b = vBm[4*(jj & 1):4*(jj & 1)+4]
    for p in range(4): A(f'v_and_b32 {b[p]}, {vMd[jj]}, {vHh[p]}')
    A(f'v_mfma_f32_16x16x32_bf16 {vD}, {vDn[4*jj:4*jj+4]}, {b}, {0 if jj == 0 else vD}')
for r in range(4): tagf(vD[r], vD[r], vTgb)
LAB('L_A_pub')
set_exec(M_N8)
lstore([f'global_store_dwordx4 {aDst}, {vD}, {pLB}'])
set_exec(-1)
stamp(14)
LAB('L_A_end')
end_wave()
LAB('L_A_zero')
for r in range(4): A(f'v_mov_b32 {vD[r]}, {vTgb}')
A('s_branch L_A_pub')
LAB('L_A_vlate')
sk = nl('S')
A(f's_cmp_eq_u32 {sNV}, 1'); A(f's_cbranch_scc1 {sk}')
lds_wait(9, F_LP, MKA['V0'] + NO - 1, vT0)
for x in xreads(range(NO)): A(x)
LAB(sk)
A('s_waitcnt lgkmcnt(0)')
A(f'ds_read_b32 {vT2}, {vZ}')
for x in xreads(range(NO, 7)): A(x)
pvx(range(NO), [None] * NO)
A(f's_waitcnt lgkmcnt({2*(7 - NO)})')
sk = nl('S')
A(f'v_readfirstlane_b32 {sTMP}, {vT2}'); A(f's_cmp_ge_u32 {sTMP}, {MKA["V0"] + 6}'); A(f's_cbranch_scc1 {sk}')
lds_wait(50, F_LP, MKA['V0'] + 6, vT0)
for x in xreads(range(NO, 7)): A(x)
LAB(sk)
A(f'ds_read_b32 {vT2}, {vZ}')
for x in xreads([7]): A(x)
pvx(range(NO, 7), [3 + 2*(6 - c) for c in range(NO, 7)])
lp, ok = nl('W'), nl('OK')
A(f's_mov_b32 {sCNT}, {CFG["limit"]}')
LAB(lp)
A('s_waitcnt lgkmcnt(2)')
A(f'v_readfirstlane_b32 {sTMP}, {vT2}'); A(f's_cmp_ge_u32 {sTMP}, {MKA["V0"] + 7}'); A(f's_cbranch_scc1 {ok}')
A(f'ds_read_b32 {vT2}, {vZ}')
for x in xreads([7]): A(x)
fail_branch(51, lp)
LAB(ok)
pvx([7], [0])
A('s_branch L_A_pvdone')
vg_A = V.hi
LAB('L_A9')
V.release(mP)
aQld, aQw = V(), V(); vQs = [V(16) for _ in range(CFG['QK'])]; vQx = V(16); vQp = V(4)
A(f'v_lshlrev_b32 {aQld}, 4, {vL}'); A(f'v_add_u32 {aQld}, {Q_}, {aQld}')
A(f'v_lshrrev_b32 {vT0}, 5, {vL}'); A(f'v_mul_u32_u24 {vT0}, {QS}, {vT0}'); A(f'v_and_b32 {vT1}, 31, {vL}'); A(f'v_lshl_add_u32 {aQw}, {vT1}, 3, {vT0}'); A(f'v_add_u32 {aQw}, {QL}, {aQw}')
A('s_barrier')
epoch_wait()
pure_phase()
lds_wait(37, F_LP, MKA['K0'] + CFG['qstart'], vT0, sleep=1)
stamp(7)
ppoll(6, CFG['QK'], CFG['qgap'], lambda r: [f'global_load_dwordx4 {r[4*k:4*k+4]}, {aQld}, {pLB} offset:{1024*k} sc1' for k in range(4)], 4, vQs, [vQx[i] for i in range(16)], sT6, TM)
for i in range(8): A(f'v_add_f32 {vQx[i]}, {vQx[i]}, {vQx[8+i]}')
for i in range(4): A(f'v_cvt_pk_bf16_f32 {vQp[i]}, {vQx[2*i]}, {vQx[2*i+1]}')
A(f'ds_write_b64 {aQw}, {vQp[0:2]}'); A(f'ds_write_b64 {aQw}, {vQp[2:4]} offset:{2*QS}'); flag(F_Q)
stamp(8)
vMc = vQx[0:8]; vLc = V(8); vML4 = vQx[12:16]
A(f'v_lshlrev_b32 {vT3}, 5, {vC}'); A(f'v_add_u32 {vT3}, {MX}, {vT3}')
A(f's_lshl_b32 s56, {sU}, 6'); A(f's_add_u32 s56, s56, {MLG}'); A(f'v_lshl_add_u32 {vT2}, {vL}, 4, s56')
A(f'v_mov_b32 {vML4[2]}, {sE}'); A(f'v_mov_b32 {vML4[3]}, {sE}')
lds_wait(39, F_SF, 8, vT0, sleep=CFG['s9'])
A(f'ds_read_b128 {vMc[0:4]}, {vT3}'); A(f'ds_read_b128 {vMc[4:8]}, {vT3} offset:16'); A(f'ds_read_b128 {vLc[0:4]}, {vT3} offset:{LX - MX}'); A(f'ds_read_b128 {vLc[4:8]}, {vT3} offset:{LX - MX + 16}'); A(pure_read())
A('s_waitcnt lgkmcnt(0)'); pure_update()
A(f'v_max3_f32 {vML4[0]}, {vMc[0]}, {vMc[1]}, {vMc[2]}'); A(f'v_max3_f32 {vT0}, {vMc[3]}, {vMc[4]}, {vMc[5]}'); A(f'v_max3_f32 {vML4[0]}, {vML4[0]}, {vMc[6]}, {vMc[7]}'); A(f'v_max_f32 {vML4[0]}, {vML4[0]}, {vT0}')
for a, b in ((0, 1), (2, 3), (4, 5), (6, 7), (0, 2), (4, 6)): A(f'v_add_f32 {vLc[a]}, {vLc[a]}, {vLc[b]}')
A(f'v_add_f32 {vML4[1]}, {vLc[0]}, {vLc[4]}')
tagf(vML4[0], vML4[0], vTg); tagf(vML4[1], vML4[1], vTg)
set_exec(0xf)
lstore([f'global_store_dwordx4 {vT2}, {vML4}, {pLB}'])
set_exec(-1)
stamp(9)
aGa = vQs[1][0]; vG8 = vQs[0][0:8]; vGx8 = vQs[0][8:16]; vMod = vQs[1][2:4]; aMs = vQs[1][1]
A('s_waitcnt vmcnt(0)')
A(f's_lshr_b32 s56, {sU}, 1'); A('s_lshl_b32 s56, s56, 8'); A(f's_and_b32 s57, {sU}, 1'); A('s_lshl_b32 s57, s57, 7'); A('s_add_u32 s56, s56, s57'); A(f's_add_u32 s56, s56, {S_MR}')
A(f'v_lshlrev_b32 {aGa}, 11, {vQ}'); A(f'v_lshl_add_u32 {aGa}, {vN}, 2, {aGa}'); A(f'v_add_u32 {aGa}, s56, {aGa}')
A(f's_lshl_b32 s56, {sU}, 7'); A(f'v_lshl_add_u32 {aMs}, {vN}, 2, s56'); A(f'v_lshrrev_b32 {vT0}, 1, {vQ}'); A(f'v_lshl_add_u32 {aMs}, {vT0}, 11, {aMs}')
A(f'v_xor_b32 {vT0}, {vT0}, {vQ}'); A(f'v_and_b32 {vT0}, 1, {vT0}'); A(f'v_mov_b32 {vT1}, {GAB}'); A(f'v_mov_b32 {vT2}, {MV}'); A(f'v_cmp_eq_u32 vcc, 1, {vT0}'); A(f'v_cndmask_b32 {vT1}, {vT1}, {vT2}, vcc'); A(f'v_add_u32 {aMs}, {aMs}, {vT1}')
lp, ok = nl('P'), nl('OK')
A(f's_mov_b32 {sCNT}, {CFG["limit"]}')
LAB(lp)
for i in range(4):
    if i: A(f'v_add_u32 {vT0}, {8192*i}, {aGa}')
    A(f'global_load_dword {vG8[i]}, {vT0 if i else aGa}, {pWS} sc1'); A(f'global_load_dword {vG8[4+i]}, {vT0 if i else aGa}, {pWS} offset:64 sc1')
A('s_waitcnt vmcnt(0)')
check([vG8[i] for i in range(8)], [vGx8[i] for i in range(8)], sT6, TM, vCH)
A(f's_cbranch_vccz {ok}'); fail_branch(22, lp); LAB(ok)
A(f'v_cmp_eq_u32 vcc, 2, {vQ}')
for h in range(2):
    for a, b in ((0, 1), (2, 3), (0, 2)): A(f'v_add_f32 {vGx8[4*h+a]}, {vGx8[4*h+a]}, {vGx8[4*h+b]}')
    rnd(vMod[h], vGx8[4*h])
    A(f'v_add_f32 {vT0}, 1.0, {vMod[h]}'); rnd(vT0, vT0)
    A(f'v_cndmask_b32 {vMod[h]}, {vMod[h]}, {vT0}, vcc'); A(f'v_or_b32 {vMod[h]}, {sT16}, {vMod[h]}')
lstore([f'global_store_dword {aMs}, {vMod[0]}, {pLB}', f'global_store_dword {aMs}, {vMod[1]}, {pLB} offset:64'])
stamp(11)
end_wave()
vg_A = max(vg_A, V.hi)

LAB('L_W')
V.release(mP)
sRED = 's13'
A(f's_mov_b32 {sRED}, 0')
A(f's_cmp_eq_u32 {sWAVE}, 9'); A('s_cbranch_scc1 L_W9')
aWq, aH, aHw, aHr, aQst, aWo, aBst, aOb, v8qr, vXc = [V() for _ in range(10)]
vMk = V(4, 1)
A(f'v_lshl_add_u32 {v8qr}, {vQ}, 3, {vR}')
A(f's_and_b32 s54, {sU}, 7'); A(f's_lshr_b32 s55, {sU}, 3')
A(f'v_lshl_add_u32 {aWq}, {v8qr}, 7, {vC8}'); A(f'v_add_u32 {aWq}, {w5}, {aWq}')
A('s_lshl_b32 s56, s55, 10'); A(f'v_lshl_add_u32 {aH}, {vL}, 4, s56')
A(f's_lshl_b32 s58, {sWAVE}, 9'); A(f's_add_u32 s56, s58, {HL}'); A(f'v_lshl_add_u32 {aHw}, {vL}, 3, s56'); A(f'v_add_u32 {aHr}, s56, {vQ16}')
A('s_lshl_b32 s56, s55, 11'); A('s_lshl_b32 s57, s54, 8'); A('s_add_u32 s56, s56, s57'); A(f's_add_u32 s56, s56, {w6}'); A(f's_add_u32 s56, s56, {Q_}'); A(f'v_add_u32 {aQst}, s56, {vQ16}')
A(f'v_and_b32 {vT0}, 1, {vQ}'); A(f'v_lshl_add_u32 {vT0}, {vT0}, 2, {vR}'); A(f'v_lshlrev_b32 {vT0}, 5, {vT0}')
A(f'v_add_u32 {vT1}, {w7}, {vC8}'); A(f'v_xor_b32 {vT1}, {vT1}, {vT0}'); A(f'v_lshl_add_u32 {aWo}, {v8qr}, 10, {vT1}'); A(f'v_add_u32 {aWo}, {WO}, {aWo}')
A(f'v_add_u32 {aOb}, {OB}, {vQ16}')
A(f'v_lshl_add_u32 {vT0}, {vN}, 6, {vQ16}')
A(f's_lshl_b32 s57, {sU}, 11'); A(f's_add_u32 s57, s57, {B1}'); A(f's_add_u32 s56, s57, {w8}'); A(f'v_add_u32 {aBst}, s56, {vT0}')
for j in range(4):
    A(f'v_cmp_eq_u32 vcc, {j}, {vN}'); A(f'v_cndmask_b32 {vMk[j]}, 0, -1, vcc')
A('s_barrier')
epoch_wait()
stamp(1)
def probe():
    if CFG['near']:
        sk = nl('S')
        A(f's_cmp_eq_u32 {sWAVE}, 7'); A(f's_cbranch_scc0 {sk}')
        A(f's_lshl_b32 s56, {sU}, 3'); A(f's_add_u32 s56, s56, {sG}'); A('s_lshl_b32 s56, s56, 7'); A('s_and_b32 s57, s56, 0x2000'); A('s_add_u32 s56, s56, s57'); A(f's_add_u32 s56, s56, {PROBE}')
        A(f's_add_u32 s56, {lo(pWS)}, s56'); A(f's_addc_u32 s57, {hi(pWS)}, 0')
        A('s_mov_b32 s52, -1'); A('s_mov_b32 s53, -1')
        for rep in range(CFG['near']):
            for c in range(2):
                A('s_memtime s[84:85]'); A('s_waitcnt lgkmcnt(0)')
                A(f's_load_dword s54, s[56:57], {8192*c} glc'); A('s_waitcnt lgkmcnt(0)')
                A('s_memtime s[86:87]'); A('s_waitcnt lgkmcnt(0)')
                A('s_sub_u32 s54, s86, s84'); A(f's_min_u32 s{52+c}, s{52+c}, s54')
            A('s_cmp_lt_u32 s52, s53'); A('s_cselect_b32 s54, 1, 2'); A(f'v_mov_b32 {vT0}, s54'); A(f'ds_write_b32 {vZ}, {vT0} offset:{F_CP - FLG}')
        if CFG['stamps']: A('s_mov_b32 s88, s52'); A('s_mov_b32 s90, s53')
        stamp(2)
        LAB(sk)
A(f's_cmp_ge_u32 {sWAVE}, 4'); A('s_cbranch_scc0 L_W_03')
m = V.mark()
vSt = V()
A(f's_lshl_b32 s56, {sU}, 3'); A(f's_add_u32 s56, s56, {sG}'); A('s_lshl_b32 s56, s56, 8'); A(f's_add_u32 s56, s56, {w6}'); A(f's_add_u32 s56, s56, {S_MR - 256}'); A(f'v_add_u32 {vSt}, s56, {vQ16}')
mod_tile(MR, 4, lambda: None, vSt, MKW['MR'], M_N0, 21, 2, before_wait=probe)
set_exec(-1)
stamp(4)
A('s_branch L_W_att')
V.release(m)
LAB('L_W_03')
A(f's_sub_u32 s57, {sWAVE}, 1'); A('s_cmp_lt_u32 s57, 2'); A('s_cbranch_scc0 L_W_main')
A(f's_mov_b32 {sRED}, 1')
m = V.mark()
vWq = V(32); mH = V.mark()
vMean, vVar, vAd, vAd2, vHs = V(), V(), V(), V(), V(); vU = V(8); vRs = [V(4) for _ in range(CFG['G1K'])]; vSa, vCa = vU[0], vU[1]
A(f's_lshl_b32 {sSL}, {sU}, 1'); A(f's_add_u32 {sSL}, {sSL}, s57')
A(f's_lshl_b32 s56, {sSL}, 6'); A(f'v_lshl_add_u32 {vHs}, {vN}, 2, s56')
A(f's_and_b32 s56, {sSL}, 3'); A('s_lshl_b32 s56, s56, 6'); A(f's_lshr_b32 s57, {sSL}, 2'); A('s_lshl_b32 s57, s57, 8'); A('s_add_u32 s56, s56, s57'); A(f's_add_u32 s56, s56, {S_M}')
A(f'v_lshlrev_b32 {vT0}, 12, {vQ}'); A(f'v_and_b32 {vT1}, 0x2000, {vT0}'); A(f'v_add_u32 {vT0}, {vT0}, {vT1}'); A(f'v_lshlrev_b32 {vT1}, 2, {vN}'); A(f'v_add3_u32 {vAd}, {vT0}, {vT1}, s56'); A(f'v_add_u32 {vAd2}, 32768, {vAd}')
A('s_waitcnt vmcnt(0)')
for j in range(4):
    A(f'v_lshlrev_b32 {vU[2*j]}, 16, {vX[j]}'); A(f'v_and_b32 {vU[2*j+1]}, {sHI}, {vX[j]}')
A(f'v_add_f32 {vMean}, {vU[0]}, {vU[1]}')
for j in range(2, 8): A(f'v_add_f32 {vMean}, {vMean}, {vU[j]}')
row_allred('v_add_f32', [vMean]); xrow_allred('v_add_f32', vMean, vT0)
A(f'v_mul_f32 {vMean}, 0x3b000000, {vMean}')
for j in range(8): A(f'v_sub_f32 {vU[j]}, {vU[j]}, {vMean}')
A(f'v_mul_f32 {vVar}, {vU[0]}, {vU[0]}')
for j in range(1, 8): A(f'v_fmac_f32 {vVar}, {vU[j]}, {vU[j]}')
row_allred('v_add_f32', [vVar]); xrow_allred('v_add_f32', vVar, vT0)
A(f'v_mul_f32 {vVar}, 0x3b000000, {vVar}')
rnd(vMean, vMean); rnd(vVar, vVar)
A(f'v_add_f32 {vVar}, 0x3727c5ac, {vVar}'); rnd(vVar, vVar)
A(f'v_sqrt_f32 {vVar}, {vVar}'); rnd(vVar, vVar)
A(f'v_lshlrev_b32 {vXc}, 16, {vXd}'); A(f'v_sub_f32 {vXd}, {vXc}, {vMean}'); rnd(vXd, vXd)
A(f'v_rcp_f32 {vT0}, {vVar}'); A(f'v_mul_f32 {vT1}, {vXd}, {vT0}'); A(f'v_fma_f32 {vT2}, -{vT1}, {vVar}, {vXd}'); A(f'v_fma_f32 {vXd}, {vT2}, {vT0}, {vT1}')
rnd(vXd, vXd)
stamp(2)
mQ = V.mark()
def wq_read(vWq):
    lds_wait(3, F_LP, MKW['WQ'], vT0)
    for ks in range(8):
        A(f'ds_read_b64_tr_b16 {vWq[4*ks:4*ks+2]}, {aWq} offset:{WQ + ks*4096}'); A(f'ds_read_b64_tr_b16 {vWq[4*ks+2:4*ks+4]}, {aWq} offset:{WQ + ks*4096 + 512}')
        if ks == 3: A('s_waitcnt lgkmcnt(4)')
wq_read(vWq)
near_update(); A(f'v_add_u32 {vAd}, {sCP}, {vAd}'); A(f'v_add_u32 {vAd2}, {sCP}, {vAd2}')
ppoll(1, CFG['G1K'], CFG['ggap'], lambda r: [gld(r[0], vAd, 0, 'gat1'), gld(r[1], vAd, 2048, 'gat1'), gld(r[2], vAd2, 0, 'gat1'), gld(r[3], vAd2, 2048, 'gat1')], 4, vRs, [vU[i] for i in range(4)], sT6, TM, extra=[pure_read()])
stamp(3)
A(f'v_add_f32 {vSa}, {vSa}, {vU[2]}'); A(f'v_add_f32 {vCa}, {vCa}, {vU[3]}')
A(f'v_permlane32_swap_b32 {vSa}, {vCa}'); A(f'v_add_f32 {vSa}, {vSa}, {vCa}')
A(f'v_mov_b32 {vCa}, {vSa}'); A(f'v_permlane16_swap_b32 {vSa}, {vCa}'); A(f'v_add_f32 {vSa}, {vSa}, {vCa}')
rnd(vSa, vSa)
A(f'v_mov_b32 {vCa}, {vSa}'); A(f'v_permlane32_swap_b32 {vSa}, {vCa}')
A(f'v_add_f32 {vCa}, 1.0, {vCa}'); rnd(vCa, vCa)
A(f'v_mul_f32 {vCa}, {vXd}, {vCa}'); rnd(vCa, vCa)
A(f'v_add_f32 {vCa}, {vCa}, {vSa}'); rnd(vCa, vCa)
A(f'v_or_b32 {vCa}, {sT16}, {vCa}')
A('s_waitcnt lgkmcnt(0)'); pure_update()
set_exec(0xffff)
lstore([f'global_store_dword {vHs}, {vCa}, {pLB} offset:{H_}'])
set_exec(-1)
flag(F_G1)
A('s_branch L_W_q')
LAB('L_W_main')
A(f'global_load_dword {vDUM}, {aH}, {pLB} sc1')
wq_read(vWq)
stamp(4)
lds_wait(30, F_G1, 1, vT0, sleep=1)
LAB('L_W_q')
V.release(mH)
vHB = V(32); vAq = V(4); vHs2 = [V(4) for _ in range(CFG['LKh'])]; vHx = V(4); vHp = V(2)
ppoll(4, CFG['LKh'], CFG['lgap'], lambda r: [f'global_load_dwordx4 {r}, {aH}, {pLB} offset:{H_} sc1'], 1, vHs2, [vHx[i] for i in range(4)], sT16, 0xffff, extra=[pure_read()])
stamp(5)
A(f'v_perm_b32 {vHp[0]}, {vHx[1]}, {vHx[0]}, {sSEL}'); A(f'v_perm_b32 {vHp[1]}, {vHx[3]}, {vHx[2]}, {sSEL}')
A(f'ds_write_b64 {aHw}, {vHp}')
for ks in range(8): A(f'ds_read_b128 {vHB[4*ks:4*ks+4]}, {aHr} offset:{64*ks}')
for ks in range(8):
    A(f's_waitcnt lgkmcnt({7-ks})')
    if ks == 0: pure_update()
    A(f'v_mfma_f32_16x16x32_bf16 {vAq}, {vWq[4*ks:4*ks+4]}, {vHB[4*ks:4*ks+4]}, {0 if ks == 0 else vAq}')
for r in range(4): tagf(vAq[r], vAq[r], vTg)
set_exec(M_N0)
lstore([f'global_store_dwordx4 {aQst}, {vAq}, {pLB}'])
set_exec(-1)
flag(F_QP)
stamp(6)
A('s_waitcnt vmcnt(0)')
V.release(m)
A(f's_cmp_eq_u32 {sRED}, 1'); A('s_cbranch_scc0 L_W_att')
vRs = [V(4) for _ in range(4)]; vRx = V(4); vG2s, vG2l, vX2s, vOut, aR1, aGa, vMod, vGb, vMVs = [V() for _ in range(9)]; vG4 = V(4)
A(f's_lshl_b32 s57, {sSL}, 5'); A(f'v_lshl_add_u32 {vOut}, {vN}, 1, s57')
A(f'v_lshrrev_b32 {vT2}, 5, {vL}'); A(f'v_lshl_add_u32 {vG2s}, {vC}, 2, {vT2}'); A(f'v_and_b32 {vT2}, 1, {vQ}'); A(f'v_lshl_add_u32 {vG2s}, {vT2}, 1, {vG2s}')
vG3s, vG3l = V(), V()
A(f's_lshl_b32 s56, {sSL}, 10'); A('s_and_b32 s57, s56, 0xffffe000'); A('s_add_u32 s56, s56, s57')
A(f's_lshl_b32 s57, {sG}, 7'); A('s_add_u32 s57, s57, s56'); A(f'v_lshl_add_u32 {vG2s}, {vG2s}, 2, s57')
A(f'v_lshlrev_b32 {vG2l}, 7, {vQ}'); A(f'v_lshl_add_u32 {vG2l}, {vN}, 2, {vG2l}'); A(f'v_add_u32 {vG2l}, s56, {vG2l}')
A(f'v_and_b32 {vT2}, 1, {vR}'); A(f'v_lshl_add_u32 {vG2s}, {vT2}, 13, {vG2s}'); A(f'v_add_u32 {vG2s}, {G2}, {vG2s}')
A(f'v_add_u32 {vG3s}, {G3 - G2}, {vG2s}')
A(f's_lshl_b32 s56, {sSL}, 6'); A(f's_add_u32 s57, s56, {X2}'); A(f'v_lshl_add_u32 {vX2s}, {vN}, 2, s57')
if CFG['gpt'] == 1:
    set_exec(M_N8); A(f'global_load_dword {vDUM}, {vG2s}, {pWS}'); A(f'global_load_dword {vDUM}, {vG3s}, {pWS}'); set_exec(-1)
if CFG['gpt'] == 2:
    A(f'v_not_b32 {vT0}, {vTg}'); set_exec(M_N8); A(f'global_store_dword {vG2s}, {vT0}, {pWS} sc1'); A(f'global_store_dword {vG3s}, {vT0}, {pWS} sc1'); set_exec(-1)
A(f'v_lshrrev_b32 {vT2}, 2, {vL}'); A(f'v_lshlrev_b32 {aR1}, 11, {vT2}'); A(f'v_lshl_add_u32 {aR1}, {vC}, 4, {aR1}')
A(f's_lshl_b32 s56, {sSL}, 6'); A(f's_add_u32 s57, s56, {B1}'); A(f'v_add_u32 {aR1}, s57, {aR1}')
A(f's_add_u32 s57, s56, {GAB}'); A(f'v_lshl_add_u32 {aGa}, {vN}, 2, s57')
A(f'global_load_dword {vDUM}, {aR1}, {pLB} sc1'); A(f'global_load_dword {vDUM}, {aGa}, {pLB} sc1'); A(f'global_load_dword {vDUM}, {aGa}, {pLB} offset:2048 sc1')
lds_wait(46, F_WI, 1, vT0, sleep=1)
near_update()
A(f's_add_u32 s57, {sCP}, {G2}'); A(f'v_add_u32 {vG2l}, s57, {vG2l}'); A(f'v_add_u32 {vG3l}, {G3 - G2}, {vG2l}')
stamp(11)
LAB('L_W_att')
vWo = V(16); vOb = V(4); vBm = V(8); vD = V(4)
lds_wait(11, F_LP, MKW['WO'], vT0, sleep=1)
for j in range(4):
    A(f'v_xor_b32 {vT0}, {32*j}, {aWo}'); A(f'ds_read_b64_tr_b16 {vWo[4*j:4*j+2]}, {vT0}'); A(f'ds_read_b64_tr_b16 {vWo[4*j+2:4*j+4]}, {vT0} offset:4096')
A(pure_read())
A('s_waitcnt lgkmcnt(0)'); pure_update()
if CFG['gg']:
    sk = nl('S')
    A(f's_cmp_eq_u32 {sWAVE}, 4'); A(f's_cbranch_scc0 {sk}')
    A(f's_lshl_b32 s56, {sU}, 3'); A(f's_add_u32 s56, s56, {HINT + 128}'); A(f'v_mov_b32 {vT0}, s56'); A(f'v_mov_b32 {vT1}, {sE}')
    set_exec(1); lstore([f'global_store_dword {vT0}, {vT1}, {pLB}']); set_exec(-1)
    LAB(sk)
stamp(7)
A('s_barrier')
A(f'ds_read_b128 {vOb}, {aOb}')
A('s_waitcnt lgkmcnt(0)')
for j in range(4):
    b = vBm[4*(j & 1):4*(j & 1)+4]
    for p in range(4): A(f'v_and_b32 {b[p]}, {vMk[j]}, {vOb[p]}')
    A(f'v_mfma_f32_16x16x32_bf16 {vD}, {vWo[4*j:4*j+4]}, {b}, {0 if j == 0 else vD}')
for r in range(4): tagf(vD[r], vD[r], vTg)
set_exec(M_N4)
lstore([f'global_store_dwordx4 {aBst}, {vD}, {pLB}'])
set_exec(-1)
stamp(10)
A(f's_cmp_eq_u32 {sRED}, 1'); A('s_cbranch_scc0 L_W_end')
gab_loads = [f'global_load_dword {vG4[0]}, {aGa}, {pLB} sc1', f'global_load_dword {vG4[1]}, {aGa}, {pLB} offset:2048 sc1']
def reduce16(code, tag, vS_, mask, extra=()):
    ppoll(code, CFG['LKr'], CFG['lgap'], lambda r: [f'global_load_dwordx4 {r}, {aR1}, {pLB} sc1'], 1, vRs, [vRx[i] for i in range(4)], tag, TM)
    for x in extra: A(x)
    tred4(vRx)
    row_allred('v_add_f32', [vRx[0]], (4, 8))
    tagf(vRx[0], vRx[0], vTg)
    set_exec(mask)
    A(f'global_store_dword {vS_}, {vRx[0]}, {pWS} sc1'); set_exec(-1)
def gather8(code, vG2l, n):
    if CFG['gd' + n]: A(f's_sleep {CFG["gd" + n]}')
    ppoll(code, CFG['GK' + n], CFG['ggap'], lambda r: [gld(r[0], vG2l, 0, 'gat' + n), gld(r[1], vG2l, 512, 'gat' + n)], 2, [r[0:2] for r in vRs], [vRx[0], vRx[1]], sT6, TM)
    A(f'v_add_f32 {vRx[0]}, {vRx[0]}, {vRx[1]}'); xrow_allred('v_add_f32', vRx[0], vT0)
    rnd(vRx[0], vRx[0])
reduce16(23, sT6, vG2s, M_N8 if CFG['rep'] else M_N4, gab_loads)
stamp(12)
gather8(24, vG2l, '2')
lp, ok = nl('P'), nl('OK')
check([vG4[0], vG4[1]], [vMod, vGb], sT16, 0xffff, vCH); A(f's_cbranch_vccz {ok}')
poll(52, gab_loads, [vG4[0], vG4[1]], [vMod, vGb], sT16, 0xffff, vCH)
LAB(ok)
stamp(13)
A(f'v_mul_f32 {vRx[0]}, {vMod}, {vRx[0]}'); rnd(vRx[0], vRx[0])
A(f'v_add_f32 {vXc}, {vXc}, {vRx[0]}'); rnd(vXc, vXc)
A(f'v_or_b32 {vT0}, {sT16}, {vXc}')
set_exec(0xffff)
lstore([f'global_store_dword {vX2s}, {vT0}, {pLB}'])
sk = nl('S')
A(f's_or_b32 s56, {sSL}, {sG}'); A(f's_cbranch_scc1 {sk}')
set_exec(1); A(f'v_mov_b32 {vT2}, {EP}'); A(f'v_mov_b32 {vT1}, {sE}'); A(f'global_store_dword {vT2}, {vT1}, {pWS}')
LAB(sk)
set_exec(-1)
reduce16(25, sT6b, vG3s, M_N8 if CFG['rep'] else M_N4)
stamp(14)
A(f's_and_b32 s56, {sSL}, 7'); A(f's_cmp_eq_u32 s56, {sG}'); A('s_cbranch_scc0 L_W_end')
gather8(26, vG3l, '3')
A(f'v_mul_f32 {vRx[0]}, {vGb}, {vRx[0]}'); rnd(vRx[0], vRx[0])
A(f'v_add_f32 {vXc}, {vXc}, {vRx[0]}'); A(f'v_cvt_pk_bf16_f32 {vXc}, {vXc}, {vXc}')
set_exec(0xffff); A(f'global_store_short {vOut}, {vXc}, {pOUT}')
if CFG['amp']: A(f's_cmp_eq_u32 {sSL}, 0'); A('s_cbranch_scc0 L_W_end2')
if CFG['ampm']:
    set_exec(-1)
    A(f'v_lshlrev_b32 {vT0}, 4, {vL}'); A(f'v_add_u32 {vT0}, 0x180000, {vT0}'); A(f'global_load_dwordx4 {vRs[0]}, {vT0}, {pWS} sc1'); A('s_waitcnt vmcnt(0)')
    op = 'v_min_u32' if CFG['ampm'] == 1 else 'v_max_u32'
    for i in range(1, 4): A(f'{op} {vRs[0][0]}, {vRs[0][0]}, {vRs[0][i]}')
    row_allred(op, [vRs[0][0]]); xrow_allred(op, vRs[0][0], vT0)
    A(f'v_readfirstlane_b32 s92, {vRs[0][0]}')
if CFG['amp']:
    A('s_memrealtime s[94:95]'); A('s_waitcnt lgkmcnt(0)'); A('s_sub_u32 s56, s94, s92')
    if CFG['ampe']: A('s_sub_u32 s57, s90, s92'); A(f's_mul_i32 s57, s57, {CFG["amp"]}'); A('s_add_u32 s56, s56, s57')
    else: A(f's_mul_i32 s56, s56, {1 + CFG["amp"]}')
    A('s_min_u32 s56, s56, 100000')
    LAB('L_amp'); A('s_memrealtime s[94:95]'); A('s_waitcnt lgkmcnt(0)'); A('s_sub_u32 s57, s94, s92'); A('s_cmp_lt_u32 s57, s56'); A('s_cbranch_scc1 L_amp')
LAB('L_W_end2')
set_exec(-1)
stamp(15)
LAB('L_W_end')
end_wave()

vg_W = V.hi
LAB('L_W9')
V.release(mP)
aML, aA1, aA2, aOw = V(), V(), V(), V(); vMr = V(8); vMx = V(4); vAs = [V(8) for _ in range(CFG['LKa'])]; vAx = V(8); vW1, vW2 = V(), V()
A(f'v_lshrrev_b32 {vT0}, 3, {vL}'); A(f'v_and_b32 {vT1}, 7, {vL}')
A(f's_lshr_b32 s57, {sU}, 2'); A('s_lshl_b32 s56, s57, 4'); A(f's_add_u32 s56, s56, {MLG}'); A(f'v_lshl_add_u32 {aML}, {vT0}, 6, s56')
A('s_lshl_b32 s56, s57, 9'); A(f's_and_b32 s57, {sU}, 3'); A('s_lshl_b32 s57, s57, 7'); A('s_add_u32 s56, s56, s57'); A(f's_add_u32 s56, s56, {A_}')
A(f'v_lshlrev_b32 {aA1}, 11, {vT0}'); A(f'v_lshl_add_u32 {aA1}, {vT1}, 4, {aA1}'); A(f'v_add_u32 {aA1}, s56, {aA1}'); A(f'v_add_u32 {aA2}, 16384, {aA1}')
A(f'v_lshrrev_b32 {vT0}, 5, {vL}'); A(f'v_lshl_add_u32 {aOw}, {vT1}, 2, {vT0}'); A(f'v_and_b32 {vT0}, 1, {vQ}'); A(f'v_lshl_add_u32 {aOw}, {vT0}, 1, {aOw}'); A(f'v_lshlrev_b32 {aOw}, 1, {aOw}'); A(f'v_add_u32 {aOw}, {OB}, {aOw}')
A('s_barrier')
epoch_wait()
pure_phase()
lds_wait(35, F_QP, 1, vT0, sleep=2)
if not CFG['nogo']:
    if CFG['hall']:
        A(f'v_lshlrev_b32 {vT3}, 3, {vN}'); A(f'v_add_u32 {vT3}, {HINT}, {vT3}')
    else:
        A(f's_lshl_b32 s56, {sU}, 3'); A(f's_add_u32 s56, s56, {HINT}'); A(f'v_mov_b32 {vT3}, s56')
    lp, ok = nl('P'), nl('OK')
    A(f's_mov_b32 {sCNT}, {CFG["limit"]}')
    LAB(lp)
    A(f'global_load_dword {vT0}, {vT3}, {pLB} sc1'); A('s_waitcnt vmcnt(0)')
    A(f'v_cmp_ne_u32 vcc, {sE}, {vT0}'); A(f's_cbranch_vccz {ok}')
    fail_branch(44, lp)
    LAB(ok)
    flag(F_GO)
stamp(6)
A(f'global_load_dword {vDUM}, {aA1}, {pLB} sc1'); A(f'global_load_dword {vDUM}, {aA2}, {pLB} sc1'); A(f'global_load_dword {vDUM}, {aML}, {pLB} sc1'); A(f'global_load_dword {vDUM}, {aML}, {pLB} offset:512 sc1')
lds_wait(36, F_WI, 1, vT0, sleep=1)
stamp(7)
a_loads = lambda r: [f'global_load_dwordx4 {r[0:4]}, {aA1}, {pLB} sc1', f'global_load_dwordx4 {r[4:8]}, {aA2}, {pLB} sc1']
ml_loads = [f'global_load_dwordx4 {vMr[0:4]}, {aML}, {pLB} sc1', f'global_load_dwordx4 {vMr[4:8]}, {aML}, {pLB} offset:512 sc1']
def weights():
    A(f'v_max_f32 {vT0}, {vMx[0]}, {vMx[2]}'); row_allred('v_max_f32', [vT0], (8,)); xrow_allred('v_max_f32', vT0, vT1)
    A(f'v_sub_f32 {vW1}, {vMx[0]}, {vT0}'); A(f'v_sub_f32 {vW2}, {vMx[2]}, {vT0}'); A(f'v_mul_f32 {vW1}, {sL2E}, {vW1}'); A(f'v_mul_f32 {vW2}, {sL2E}, {vW2}')
    A(f'v_exp_f32 {vW1}, {vW1}'); A(f'v_exp_f32 {vW2}, {vW2}')
    A(f'v_mul_f32 {vT0}, {vW1}, {vMx[1]}'); A(f'v_fmac_f32 {vT0}, {vW2}, {vMx[3]}'); row_allred('v_add_f32', [vT0], (8,)); xrow_allred('v_add_f32', vT0, vT1)
    A(f'v_rcp_f32 {vT0}, {vT0}'); A(f'v_mul_f32 {vW1}, {vW1}, {vT0}'); A(f'v_mul_f32 {vW2}, {vW2}, {vT0}')
    stamp(8)
if CFG['mlb']:
    poll(12, ml_loads + a_loads(vAs[0]), [vMr[i] for i in (0, 1, 4, 5)] + [vAs[0][i] for i in range(8)], [vMx[i] for i in range(4)] + [vAx[i] for i in range(8)], sT6, TM, vCH, full=[vMr[i] for i in (2, 3, 6, 7)])
    weights()
else:
    poll(10, ml_loads, [vMr[i] for i in (0, 1, 4, 5)], [vMx[i] for i in range(4)], sT6, TM, vCH, full=[vMr[i] for i in (2, 3, 6, 7)])
    if CFG['LKa'] == 1: poll(12, a_loads(vAs[0]), [vAs[0][i] for i in range(8)], [vAx[i] for i in range(8)], sT6, TM, vCH, shadow=weights)
    else:
        weights(); ppoll(12, CFG['LKa'], CFG['lgap'], a_loads, 2, vAs, [vAx[i] for i in range(8)], sT6, TM)
stamp(9)
for i in range(4): A(f'v_mul_f32 {vAx[i]}, {vW1}, {vAx[i]}')
for i in range(4): A(f'v_fmac_f32 {vAx[i]}, {vW2}, {vAx[4+i]}')
tred4(vAx)
dpp('v_add_f32', vAx[0], vAx[0], vAx[0], 'row_ror:8')
A(f'v_cvt_pk_bf16_f32 {vT0}, {vAx[0]}, {vAx[0]}')
A(f'ds_write_b16 {aOw}, {vT0}'); A('s_waitcnt lgkmcnt(0)'); A('s_barrier')
end_wave()
vg_W = max(vg_W, V.hi)

LAB('L_loader')
V = Alloc('v', 1, 64)
vO1, vT0, vT1, vLin, vZ, vMark, vX, vOne = [V() for _ in range(8)]; vKo = V(4, 1); vVo = V(2, 1)
adv = lambda p: [f's_add_u32 s{p}, s{p}, 4096', f's_addc_u32 s{p+1}, s{p+1}, 0', 's_add_u32 m0, m0, 4096']
pend = []
def post(mark, st):
    A(f'v_mov_b32 {vMark}, {mark}')
    if CFG['vgate'] < 8: set_exec(1); A(f'ds_max_u32 {vZ}, {vMark}'); set_exec(-1)
    else: A(f'ds_write_b32 {vZ}, {vMark}')
    if st.get(mark): stamp(st[mark])
def retire_to(n, st):
    while len(pend) > n:
        mk = pend.pop(0)
        if mk is not None or len(pend) == n:
            A(f's_waitcnt vmcnt({len(pend)})')
            if mk is not None: post(mk, st)
def run(items, st, bar):
    for win, pre, ins, mk in items:
        if len(pend) >= win:
            if not bar: stamp(1); A('s_barrier'); bar = True
            retire_to(win - 1, st)
        for x in pre: A(x)
        if isinstance(ins, tuple):
            A(f's_mov_b64 exec, {ins[0]}'); A(ins[1]); A('s_mov_b64 exec, -1')
        else: A(ins)
        pend.append(mk)
    return bar
A(f'v_mov_b32 {vZ}, {FLG}'); A(f'v_mov_b32 {vOne}, 1'); A(f'v_lshlrev_b32 {vLin}, 4, {vL}')
A(f's_cmp_ge_u32 {sT}, 16'); A('s_cbranch_scc1 L_loaderW')
setup = [f'v_lshrrev_b32 {vT0}, 4, {vL}', f'v_and_b32 {vT1}, 15, {vL}']
for m in range(4):
    setup += [f'v_add_u32 {vX}, {4*m}, {vT0}', f'v_xor_b32 {vX}, {vX}, {vT1}' if CFG['ksw'] else f'v_mov_b32 {vX}, {vT1}', f'v_lshlrev_b32 {vX}, 4, {vX}', f'v_lshl_add_u32 {vKo[m]}, {vT0}, 8, {vX}']
for m in range(2):
    setup += [f'v_add_u32 {vX}, {4*m}, {vT0}', f'v_lshlrev_b32 {vX}, 1, {vX}', f'v_xor_b32 {vX}, {vX}, {vT1}', f'v_lshlrev_b32 {vX}, 4, {vX}', f'v_lshl_add_u32 {vVo[m]}, {vT0}, 8, {vX}']
setup += [f's_lshl_b32 s56, {sG}, 22', f's_lshl_b32 s57, {sU}, {12 if CFG["kvi"] else 16}', 's_add_u32 s56, s56, s57', 's_add_u32 s56, s56, 0x300000',
          f's_add_u32 s62, {lo(pK)}, s56', f's_addc_u32 s63, {hi(pK)}, 0', f's_add_u32 s60, {lo(pV)}, s56', f's_addc_u32 s61, {hi(pV)}, 0']
if CFG['kvi']:
    def advk(p, c):
        d = 17 if CFG['kvi'] == 1 else 16
        if CFG['kvi'] == 2: return [f's_add_u32 s{p}, s{p}, 65536', f's_addc_u32 s{p+1}, s{p+1}, 0', 's_add_u32 m0, m0, 4096']
        return [f's_cmp_eq_u32 {sU}, {16 - c}', f's_cselect_b32 s56, 4096, s55', f's_add_u32 s{p}, s{p}, s56', f's_addc_u32 s{p+1}, s{p+1}, 0', 's_add_u32 m0, m0, 4096']
    setup += [f's_mov_b32 s55, {17*4096}']
else:
    advk = lambda p, c: adv(p)
sec = {}
sec['K'] = [[0, [f's_mov_b32 m0, {KK}'] if i == 0 else advk(62, i // 4) if i % 4 == 0 else [], f'global_load_lds_dwordx4 {vKo[i % 4]}, s[62:63] offset:{1024*(i % 4)}{NT}', MKA['K0'] + i // 8 if i % 8 == 7 else None] for i in range(64)]
sec['V'] = [[0, [f's_mov_b32 m0, {VV}'] if i == 0 else advk(60, i // 4) if i % 4 == 0 else [], f'global_load_lds_dwordx4 {vVo[i & 1]}, s[60:61] offset:{1024*(i % 4)}{NT}', MKA['V0'] + i // 8 if i % 8 == 7 else None] for i in range(64)]
items = [None] * 8 + sec['K'] + sec['V']
items[8][1] = setup + items[8][1]
for i, it in list(enumerate(items))[8:]: it[0] = CFG['WA0'] if i < CFG['WA0'] + CFG['NA0'] else CFG['WA']
stA = {MKA['K0'] + 7: 3, MKA['V0'] + 7: 4, MKA['M']: 2}
if CFG['trace']:
    stA = {MKA['M']: 2, MKA['K0'] + 1: 3, MKA['K0'] + 3: 4, MKA['K0'] + 5: 5, MKA['K0'] + 7: 6}
    stA.update({MKA['V0'] + i: 7 + i for i in range(8)})
hint_at = len(items) - 64 + 8 * CFG['hint']
def hint():
    A('s_waitcnt lgkmcnt(0)'); A(f's_add_u32 {sE}, {sE}, 1'); A(f'v_mov_b32 {vMark}, {sE}')
    A(f's_mul_i32 s53, {sG}, {LBS}'); A(f's_lshl_b32 s56, {sU}, 3'); A('s_add_u32 s53, s53, s56'); A(f's_add_u32 s53, s53, {LB0 + HINT}'); A(f'v_mov_b32 {vX}, s53')
items[8][1] = [f's_load_dword {sE}, {pWS}, {EP}'] + items[8][1]
n0 = 8 + CFG['X0']
pend += [None] * 7 + [MKA['M']]
run([(63, *x[1:]) for x in items[8:n0]], stA, True)
stamp(1); A('s_barrier')
retire_to(CFG['X0'], stA)
n1 = n0 + (CFG['mpw'] - 1 if CFG['mpw'] else 0)
run(items[n0:n1], stA, True)
if not CFG['only'] and CFG['mpw']: lds_wait(45, F_MP, 4, vT0)
gate_at = len(items) - 64 + 8 * CFG['vgate']
def do_hint():
    retire_to(min(len(pend), CFG['hret']), stA)
    hint()
    A(f'ds_read_b32 {vT0}, {vZ} offset:{F_PURE - FLG}'); A('s_waitcnt lgkmcnt(0)'); A(f'v_readfirstlane_b32 {sPURE}, {vT0}')
    set_exec(1)
    lstore([f'global_store_dword {vX}, {vMark}, {pWS}'])
    set_exec(-1)
    pend.append(None)
def do_gate():
    if CFG['only'] or CFG['vgate'] >= 8: return
    dn = nl('GD')
    marks = [(len(pend) - 1 - i, mk) for i, mk in enumerate(pend) if mk is not None]
    for left, mk in marks:
        A(f'ds_read_b32 {vT0}, {vZ} offset:{F_Q - FLG}'); A('s_waitcnt lgkmcnt(0)'); A(f'v_readfirstlane_b32 {sTMP}, {vT0}'); A(f's_cmp_eq_u32 {sTMP}, 1'); A(f's_cbranch_scc1 {dn}')
        A(f's_waitcnt vmcnt({left})'); post(mk, {})
    lds_wait(47, F_Q, 1, vT0)
    LAB(dn)
pos = n1
for at, fn in sorted([(gate_at, do_gate)] + ([] if CFG['nogo'] else [(hint_at + 0.5, do_hint)]), key=lambda x: x[0]):
    run(items[pos:int(at)], stA, True); pos = max(pos, int(at)); fn()
run(items[pos:], stA, True)
retire_to(0, stA)
A(f's_and_b32 s54, {sU}, 7'); A(f's_lshr_b32 s55, {sU}, 3')
items = []
vGx = V(4, 1)
for i in range(32):
    if i == 0:
        pre = [f'v_lshrrev_b32 {vT0}, 5, {vL}', f'v_and_b32 {vT1}, 31, {vL}', f'v_mul_u32_u24 {vO1}, 3584, {vT0}',
               f's_mul_i32 s56, s54, {64*3584}', f's_mul_i32 s57, {sG}, 448', 's_add_u32 s56, s56, s57', f'v_add_u32 {vO1}, s56, {vO1}']
        for v in range(4):
            f0 = 2 * (v & 1) + 4 * (v >> 1)
            pre += [f'v_add_u32 {vX}, {f0}, {vT0}', f'v_lshlrev_b32 {vX}, 1, {vX}', f'v_xor_b32 {vX}, {vX}, {vT1}' if CFG['gsw'] else f'v_mov_b32 {vX}, {vT1}',
                    f'v_cmp_gt_u32 s[{84+2*v}:{85+2*v}], 28, {vX}', f'v_lshl_add_u32 {vGx[v]}, {vX}, 4, {vO1}']
        pre += ['s_cmp_ge_u32 s55, 1', f's_cselect_b32 s58, {lo(pWU)}, {lo(pWG)}', f's_cselect_b32 s59, {hi(pWU)}, {hi(pWG)}', f's_mov_b32 m0, {GU}']
    else: pre = [f's_add_u32 s58, s58, {2*3584}', 's_addc_u32 s59, s59, 0', 's_add_u32 m0, m0, 1024']
    v = (i & 1) | (((i >> 2) & 1) << 1)
    items.append((CFG['WG'], pre, (f's[{84+2*v}:{85+2*v}]', f'global_load_lds_dwordx4 {vGx[v]}, s[58:59]{NT}'), MKA['GU'] if i == 31 else None))
for i in range(16):
    pre = []
    if i == 0: pre = [f's_min_u32 s57, {sU}, 13', f's_mul_i32 s56, {sG}, {224*1024}', 's_lshl_b32 s57, s57, 14', 's_add_u32 s56, s56, s57', f's_add_u32 s58, {lo(pWD)}, s56', f's_addc_u32 s59, {hi(pWD)}, 0', f's_mov_b32 m0, {DN}']
    elif i % 4 == 0: pre = adv(58)
    fd = ((i & 3) << 1) | ((i >> 3) & 1)
    pre = pre + [f'v_xor_b32 {vX}, {32*fd if CFG["gsw"] else 0}, {vLin}']
    items.append((CFG['WG'], pre, f'global_load_lds_dwordx4 {vX}, s[58:59] offset:{1024*(i % 4)}{NT}', MKA['DN'] if i == 15 else None))
for x in items[0][1]: A(x)
items[0] = (items[0][0], [], *items[0][2:])
if not CFG['only']:
    lds_wait(42, (F_AP, F_PF, F_MX)[CFG['gpf']], 8, vT0, sleep=1)
    if CFG['gg']: lds_wait(59, F_GG, 1, vT0, sleep=1)
if not CFG['trace']: stA.update({MKA['GU']: 7, MKA['DN']: 8})
items = [((CFG['WG0'] if i < CFG['WG0'] + CFG['NG0'] else it[0]), *it[1:]) for i, it in enumerate(items)]
run(items, stA, True)
retire_to(0, stA)
A('s_waitcnt lgkmcnt(0)')
end_wave()
LAB('L_loaderW')
A(f's_and_b32 s54, {sU}, 7'); A(f's_lshr_b32 s55, {sU}, 3')
stW = {MKW['WQ']: 2, MKW['MR']: 6, MKW['WO']: 5}
pend += [None] * 31 + [MKW['WQ']]
if CFG['pv']:
    assert CFG['kvi'] == 2
    A(f's_lshl_b32 s56, {sG}, 22'); A(f's_lshl_b32 s57, {sU}, 12'); A('s_add_u32 s56, s56, s57'); A(f's_add_u32 s56, s56, {0x300000 + (16 - CFG["pv"]) * 65536}')
    A(f's_add_u32 s60, {lo(pV)}, s56'); A(f's_addc_u32 s61, {hi(pV)}, 0'); A(f's_mov_b32 m0, {WO}')
    fl = '' if CFG['pvf'] == '-' else ' ' + CFG['pvf']
    for b in range(CFG['pv']):
        if b: A('s_add_u32 s60, s60, 65536'); A('s_addc_u32 s61, s61, 0')
        for i in range(4): A(f'global_load_lds_dwordx4 {vLin}, s[60:61] offset:{1024*i}{fl}'); pend.append(None)
    assert len(pend) <= 63
for x in [f'v_lshrrev_b32 {vT0}, 3, {vL}', f'v_and_b32 {vT1}, 7, {vL}', f'v_mul_u32_u24 {vO1}, 6144, {vT0}', f'v_lshl_add_u32 {vO1}, {vT1}, 4, {vO1}',
          f's_lshr_b32 s56, {sU}, 2', f's_mul_i32 s56, s56, {128*6144}', f's_and_b32 s57, {sU}, 3', 's_lshl_b32 s57, s57, 10', 's_add_u32 s56, s56, s57',
          f's_lshl_b32 s57, {sG}, 7', 's_add_u32 s56, s56, s57', 's_add_u32 s56, s56, 2048', f'v_add_u32 {vO1}, s56, {vO1}']: A(x)
stamp(1); A('s_barrier')
retire_to(0, stW)
if CFG['only'] == 'loaderA': end_wave()
if not CFG['only']: lds_wait(48, F_QP, 1, vT0, sleep=1)
run([(63, [f's_mov_b32 m0, {MR}'] if i == 0 else [f'v_add_u32 {vO1}, {8*6144}, {vO1}', 's_add_u32 m0, m0, 1024'], f'global_load_lds_dwordx4 {vO1}, {pWM}{NT}', MKW['MR'] if i == 15 else None) for i in range(16)], stW, True)
if not CFG['nogo']: retire_to(0, stW)
if CFG['only'] != 'loader' and not CFG['nogo']: lds_wait(41, F_GO, 1, vT0, sleep=1)
items = []
for i in range(32):
    pre = []
    if i == 0: pre = [f's_lshl_b32 s56, {sG}, 19', f's_lshl_b32 s57, {sU}, 15', 's_add_u32 s56, s56, s57', f's_add_u32 s58, {lo(pWO)}, s56', f's_addc_u32 s59, {hi(pWO)}, 0', f's_mov_b32 m0, {WO}']
    elif i % 4 == 0: pre = adv(58)
    f = (i & 3) | ((i >> 1) & 4)
    pre = pre + [f'v_xor_b32 {vX}, {32*f}, {vLin}']
    items.append((CFG['WO0'] if i < CFG['WO0'] + CFG['NO0'] else CFG['WO1'], pre, f'global_load_lds_dwordx4 {vX}, s[58:59] offset:{1024*(i % 4)}{NT}', MKW['WO'] if i == 31 else None))
run(items, stW, True)
flag(F_WI)
retire_to(0, stW)
if not CFG['only']: A('s_waitcnt lgkmcnt(0)'); A('s_barrier')
A('s_waitcnt lgkmcnt(0)')
end_wave()

for sl, ins, bk in slow_paths:
    LAB(sl)
    for x in ins: A(x)
    A(f's_branch {bk}')
LAB('L_fail')
if CFG['dbgfail']:
    set_exec(1)
    A(f'v_mov_b32 v1, 0x1ffff0'); A(f's_lshl_b32 s56, s2, 16'); A(f's_lshl_b32 s57, {sWAVE}, 8'); A('s_or_b32 s56, s56, s57'); A(f's_or_b32 s56, s56, {sTMP}'); A('v_mov_b32 v2, s56')
    A(f'global_store_dword v1, v2, {pWS} sc1')
    set_exec(-1)
if CFG['stamps']:
    LAB('L_stamps')
    A('s_waitcnt lgkmcnt(0)')
    A('v_mov_b32 v2, 0')
    for i in range(16): A(f'v_writelane_b32 v2, s{64+2*i}, {i}')
    A(f's_lshl_b32 s56, {sT}, 3'); A(f's_add_u32 s56, s56, {sG}'); A(f's_mul_i32 s56, s56, {NW}'); A(f's_add_u32 s56, s56, {sWAVE}'); A('s_lshl_b32 s56, s56, 6'); A(f's_add_u32 s56, s56, {STAMPS}')
    A('v_lshl_add_u32 v1, v0, 2, s56')
    set_exec(0xffff); A(f'global_store_dword v1, v2, {pWS}')
LAB('L_exit')
A('s_endpgm')
LAB('L_codeend')

body = pad_hazards(L)
vg = (max(vg_A, vg_W) + 7) // 8 * 8
hdr = open('cdna_kernels/' + KN + '.s.ref').read().split('; Override launch')[0]
name = KN + '_kernel'
DOC = """;
; Hand-offs go through d_ws as self-tagged words (low bits = launch epoch read from d_ws[0], bumped once per launch).
"""
txt = hdr + DOC.lstrip(';\n').join(['; ', '']) if False else hdr + DOC + f"""; @launch grid=(256,1,1) block=({64*NW},1,1) lds={LDS_BYTES}
.amdgcn_target "amdgcn-amd-amdhsa--gfx950"
.text
.globl {name}
.p2align 8
.type {name},@function
{name}:
""" + '\n'.join(body) + f"""
.section .rodata,"a"
.p2align 6
.amdhsa_kernel {name}
  .amdhsa_next_free_vgpr {vg}
  .amdhsa_next_free_sgpr 100
  .amdhsa_accum_offset {vg}
  .amdhsa_group_segment_fixed_size 0
  .amdhsa_kernarg_size 112
  .amdhsa_user_sgpr_count 2
  .amdhsa_user_sgpr_kernarg_segment_ptr 1
  .amdhsa_system_sgpr_workgroup_id_x 1
  .amdhsa_float_denorm_mode_32 3
.end_amdhsa_kernel
"""
open(OUT, 'w').write(txt)
print('vgprs', vg_A, vg_W, 'lines', len(body), file=sys.stderr)
```
